```python
import torch

def _softmax(x, axis=-1):
    return torch.softmax(x, dim=axis)
def _gelu(x):
    return torch.nn.functional.gelu(x, approximate="tanh")
def _silu(x):
    return torch.nn.functional.silu(x)
def _sigmoid(x):
    return torch.sigmoid(x)
def _layernorm(x, axis=-1, eps=1e-5):
    m = x.mean(dim=axis, keepdim=True)
    v = x.var(dim=axis, keepdim=True, unbiased=False)
    return (x - m) / torch.sqrt(v + eps)
def _scatter_add(tgt, idx, src, axis=0):
    return tgt.clone().index_add_(axis, idx, src)
def _segment_sum(src, seg, n):
    out = torch.zeros((n,) + src.shape[1:], dtype=src.dtype)
    return out.index_add_(0, seg, src)
def _pad(x, pw):
    flat = tuple(v for pair in reversed(pw) for v in pair)
    return torch.nn.functional.pad(x, flat)

kernel_name = 'standalone__molecular_angular_gemnet__graph'

def setup_inputs():

    _w = (lambda a: (lambda t: t.to(torch.bfloat16) if t.is_floating_point() else t)(torch.as_tensor(a)))
    N, deg, De, L = 10000, 16, 16, 1
    E = N * deg
    T = E * deg
    NR = 8
    dist = torch.rand(E).to(float)
    angle = (torch.rand(T) * torch.pi).to(float)
    centers = torch.linspace(0.0, 1.0, NR).to(float)
    ang_freq = torch.arange(1, L + 1).to(float)
    return {
        "m": _w((lambda *s: torch.randn(*s, dtype=torch.bfloat16) * 0.05)(E, De)),
        "idx_in": _w((lambda lo, hi, *s: torch.randint(lo, hi, s))(0, E, T).to(torch.int64)),
        "idx_out": _w((lambda lo, hi, *s: torch.randint(lo, hi, s))(0, E, T).to(torch.int64)),
        "dist": _w(dist),
        "angle": _w(angle),
        "centers": _w(centers),
        "ang_freq": _w(ang_freq),
        "w_rbf": _w((lambda *s: torch.randn(*s, dtype=torch.bfloat16) * 0.2)(NR, De)),
        "w_sbf": _w((lambda *s: torch.randn(*s, dtype=torch.bfloat16) * 0.2)(NR * L, De)),
        "w_down": _w((lambda *s: torch.randn(*s, dtype=torch.bfloat16) * 0.2)(De, De)),
        "w_up": _w((lambda *s: torch.randn(*s, dtype=torch.bfloat16) * 0.2)(De, De)),
    }

def reference(m, idx_in, idx_out, dist, angle, centers, ang_freq, w_rbf, w_sbf, w_down, w_up):
    E, De = m.shape[0], m.shape[1]
    NR = centers.shape[0]
    L = ang_freq.shape[0]
    rbf = torch.exp(-10.0 * (dist[:, None] - centers[None, :]) ** 2)
    cbf = torch.cos(ang_freq[None, :] * angle[:, None])
    rbf_t = rbf[idx_out]
    sbf = torch.reshape(rbf_t[:, :, None] * cbf[:, None, :], (-1, NR * L))
    x = (m[idx_in] @ w_down) * (sbf @ w_sbf)
    agg = _segment_sum(x, idx_out, E)
    return m + (agg @ w_up) * (rbf @ w_rbf)
```

```python
import sys

NAME = "standalone__molecular_angular_gemnet__graph"

E = 160000
T = 2560000
NCH = 256
CH = 10000
BK = 625
CHB = CH * 6
WS_SEG = 0x1000000
CAP = 192

DEFAULTS = dict(
    HS=80000,
    D=3,
    k1_ld="nt",
    k1_st="sc1",
    k1_seg_st="sc1",
    k2_rec_ld="nt",
    k2_seg_ld="",
    k2_out_st="",
    k2_gather="",
    xl=1,
    stamps=0,
    force_slow=0,
)

HEADER = """; Kernarg layout for this problem (112 bytes, ptrs only, base s[0:1]):
;
"""


class Asm:
    def __init__(self):
        self.lines = []

    def __call__(self, s):
        for ln in s.strip("\n").split("\n"):
            ln = ln.strip()
            if not ln:
                continue
            if ln.endswith(":"):
                self.lines.append(ln)
            else:
                self.lines.append("    " + ln)

    def text(self):
        return "\n".join(self.lines) + "\n"


def vr(a, n=1):
    return f"v{a}" if n == 1 else f"v[{a}:{a + n - 1}]"


def sr(a, n=1):
    return f"s{a}" if n == 1 else f"s[{a}:{a + n - 1}]"


def srd(a, dst, lo, hi, size):
    a(f"""
    s_mov_b32 s{dst}, {lo}
    s_and_b32 s{dst + 1}, {hi}, 0xffff
    s_mov_b32 s{dst + 2}, {size}
    s_mov_b32 s{dst + 3}, 0x20000
    """)


def stamp(a, P, kern, idx, stmp, vtmp, srd_base, wg):
    if not P["stamps"]:
        return
    off = 0x2000000 - WS_SEG + kern * 0x10000 + idx * 8
    a(f"""
    s_memrealtime s[{stmp}:{stmp + 1}]
    s_mov_b64 s[{stmp + 2}:{stmp + 3}], exec
    s_mov_b64 exec, -1
    s_waitcnt lgkmcnt(0)
    v_mov_b32 v{vtmp}, s{stmp}
    v_mov_b32 v{vtmp + 1}, s{stmp + 1}
    s_lshl_b32 s{stmp}, {wg}, 7
    s_add_u32 s{stmp}, s{stmp}, {off}
    v_mov_b32 v{vtmp + 2}, s{stmp}
    v_cmp_eq_u32 vcc, 0, v0
    s_and_b64 exec, exec, vcc
    global_store_dwordx2 v{vtmp + 2}, v[{vtmp}:{vtmp + 1}], s[{srd_base}:{srd_base + 1}]
    s_mov_b64 exec, s[{stmp + 2}:{stmp + 3}]
    """)


def gen_k1(P):
    a = Asm()
    HIST, BASE = 61440, 62464
    SO, SI, SA, SR, SG = 4, 8, 12, 16, 20
    sOff, sOffA = 36, 41
    sC625, sM625, sK, sMask, sFreq, sAct = 46, 47, 48, 49, 50, 52
    vO, vI, vA, vJ, vR = 8, 28, 48, 58, 78
    vT = 98
    vOff16, vOff8, vSix, vF = 1, 2, 3, 4
    ld = P["k1_ld"]
    a(f"""
    s_cmp_ge_u32 s2, {NCH}
    s_cbranch_scc1 L1_end
    s_load_dwordx4 s[24:27], s[0:1], 8
    s_load_dwordx2 s[28:29], s[0:1], 32
    s_load_dwordx2 s[30:31], s[0:1], 48
    s_load_dwordx2 s[32:33], s[0:1], 104
    v_lshlrev_b32 v{vOff16}, 4, v0
    v_lshlrev_b32 v{vOff8}, 3, v0
    v_lshlrev_b32 v5, 2, v0
    v_mov_b32 v6, 0
    v_mov_b32 v{vSix}, 6
    s_mul_i32 s{sOff}, s2, {CH * 4}
    s_mul_i32 s{sOffA}, s2, {CH * 2}
    """)
    for q in range(1, 5):
        a(f"s_add_u32 s{sOff + q}, s{sOff}, {q * 8000}")
        a(f"s_add_u32 s{sOffA + q}, s{sOffA}, {q * 4000}")
    a(f"""
    s_mov_b32 s{sC625}, 6871948
    s_mov_b32 s{sM625}, -{BK}
    s_mov_b32 s{sK}, {131072 - P["HS"]}
    s_mov_b32 s{sMask}, 0x1ff8
    s_mul_i32 s34, s2, {CHB}
    ds_write_b32 v5, v6 offset:{HIST}
    v_cmp_gt_u32 vcc, 500, v0
    s_waitcnt lgkmcnt(0)
    """)
    srd(a, SO, "s26", "s27", T * 4)
    srd(a, SI, "s24", "s25", T * 4)
    srd(a, SA, "s28", "s29", T * 2)
    a(f"""
    s_and_saveexec_b64 s[54:55], vcc
    s_mov_b64 s[{sAct}:{sAct + 1}], exec
    global_load_ushort v{vF}, v6, s[30:31]
    """)
    for q in range(5):
        a(f"buffer_load_dwordx4 {vr(vO + 4 * q, 4)}, v{vOff16}, s[{SO}:{SO + 3}], s{sOff + q} offen {ld}")
    for q in range(5):
        a(f"buffer_load_dwordx2 {vr(vA + 2 * q, 2)}, v{vOff8}, s[{SA}:{SA + 3}], s{sOffA + q} offen {ld}")
    for q in range(5):
        a(f"buffer_load_dwordx4 {vr(vI + 4 * q, 4)}, v{vOff16}, s[{SI}:{SI + 3}], s{sOff + q} offen {ld}")
    a(f"""
    s_add_u32 s34, s32, s34
    s_addc_u32 s35, s33, 0
    """)
    srd(a, SR, "s34", "s35", CHB)
    a(f"""
    s_add_u32 s34, s32, {WS_SEG}
    s_addc_u32 s35, s33, 0
    """)
    srd(a, SG, "s34", "s35", NCH * 1024)
    stamp(a, P, 0, 0, 56, vT, 34, "s2")
    a("s_barrier")
    extra = 1 if P["stamps"] else 0
    for q in range(5):
        a(f"s_waitcnt vmcnt({14 - q + extra})")
        for r in range(4):
            i = 4 * q + r
            a(f"v_mul_hi_u32_u24 v{vT + r}, s{sC625}, v{vO + i}")
        for r in range(4):
            i = 4 * q + r
            a(f"v_lshlrev_b32 v{vJ + i}, 2, v{vT + r}")
            a(f"v_mad_i32_i24 v{vO + i}, v{vT + r}, s{sM625}, v{vO + i}")
            a(f"ds_add_rtn_u32 v{vR + i}, v{vJ + i}, v{vSix} offset:{HIST}")
        for r in range(4):
            i = 4 * q + r
            a(f"v_lshrrev_b32 v{vT + r}, 1, v{vO + i}")
            a(f"v_lshl_or_b32 v{vO + i}, v{vO + i}, 9, v{vT + r}")
    a(f"v_lshlrev_b32 v{vF}, 16, v{vF}")
    for q in range(5):
        a(f"s_waitcnt vmcnt({9 - q + extra})")
        t = vT
        for p in range(2):
            d = vA + 2 * q + p
            a(f"v_lshlrev_b32 v{t + 2 * p}, 16, v{d}")
            a(f"v_and_b32 v{t + 2 * p + 1}, 0xffff0000, v{d}")
        for k in range(4):
            a(f"v_mul_f32 v{t + k}, v{vF}, v{t + k}")
        for p in range(2):
            a(f"v_cvt_pk_bf16_f32 v{vA + 2 * q + p}, v{t + 2 * p}, v{t + 2 * p + 1}")
        for p in range(2):
            d = vA + 2 * q + p
            a(f"v_lshlrev_b32 v{t + 2 * p}, 16, v{d}")
            a(f"v_and_b32 v{t + 2 * p + 1}, 0xffff0000, v{d}")
        for k in range(4):
            a(f"v_mul_f32 v{t + k}, 0.15915494, v{t + k}")
        for k in range(4):
            a(f"v_fract_f32 v{t + k}, v{t + k}")
        for k in range(4):
            a(f"v_cos_f32 v{t + k}, v{t + k}")
        a("s_nop 0")
        for p in range(2):
            a(f"v_cvt_pk_bf16_f32 v{vA + 2 * q + p}, v{t + 2 * p}, v{t + 2 * p + 1}")
    a(f"""
    s_waitcnt lgkmcnt(0)
    s_mov_b64 exec, -1
    s_barrier
    """)
    c, b, x, ln = vT, vT + 4, vT + 8, vT + 9
    a(f"""
    v_and_b32 v{ln}, 63, v0
    v_lshlrev_b32 v{ln}, 4, v{ln}
    ds_read_b128 {vr(c, 4)}, v{ln} offset:{HIST}
    s_waitcnt lgkmcnt(0)
    v_add_u32 v{b + 2}, v{c}, v{c + 1}
    v_add_u32 v{b + 3}, v{b + 2}, v{c + 2}
    v_add_u32 v{b}, v{b + 3}, v{c + 3}
    v_mov_b32 v{x}, v{b}
    s_nop 1
    v_add_u32_dpp v{x}, v{x}, v{x} row_shr:1 row_mask:0xf bank_mask:0xf
    s_nop 1
    v_add_u32_dpp v{x}, v{x}, v{x} row_shr:2 row_mask:0xf bank_mask:0xf
    s_nop 1
    v_add_u32_dpp v{x}, v{x}, v{x} row_shr:4 row_mask:0xf bank_mask:0xf
    s_nop 1
    v_add_u32_dpp v{x}, v{x}, v{x} row_shr:8 row_mask:0xf bank_mask:0xf
    s_nop 1
    v_add_u32_dpp v{x}, v{x}, v{x} row_bcast:15 row_mask:0xa bank_mask:0xf
    s_nop 1
    v_add_u32_dpp v{x}, v{x}, v{x} row_bcast:31 row_mask:0xc bank_mask:0xf
    v_sub_u32 v{b}, v{x}, v{b}
    v_add_u32 v{b + 1}, v{b}, v{c}
    v_add_u32 v{b + 2}, v{b}, v{b + 2}
    v_add_u32 v{b + 3}, v{b}, v{b + 3}
    ds_write_b128 v{ln}, {vr(b, 4)} offset:{BASE}
    v_cmp_gt_u32 vcc, 64, v0
    s_and_b64 exec, exec, vcc
    s_cbranch_execz L1_noseg
    v_lshl_or_b32 v{c}, v{c}, 16, v{b}
    v_lshl_or_b32 v{c + 1}, v{c + 1}, 16, v{b + 1}
    v_lshl_or_b32 v{c + 2}, v{c + 2}, 16, v{b + 2}
    v_lshl_or_b32 v{c + 3}, v{c + 3}, 16, v{b + 3}
    s_lshl_b32 s54, s2, 10
    buffer_store_dwordx4 {vr(c, 4)}, v{ln}, s[{SG}:{SG + 3}], s54 offen {P["k1_seg_st"]}
    L1_noseg:
    s_mov_b64 exec, s[{sAct}:{sAct + 1}]
    """)
    for i in range(20):
        a(f"ds_read_b32 v{vJ + i}, v{vJ + i} offset:{BASE}")
    for q in range(5):
        if q == 0:
            a("s_waitcnt lgkmcnt(0)")
        for r in range(4):
            i = 4 * q + r
            a(f"v_add_u32 v{vR + i}, v{vJ + i}, v{vR + i}")
            a(f"v_and_b32 v{vJ + i}, -4, v{vR + i}")
            a(f"v_and_b32 v{vR + i}, 2, v{vR + i}")
            a(f"v_sub_u32 v{vR + i}, v{vJ + i}, v{vR + i}")
            op = "ds_write_b16_d16_hi" if r & 1 else "ds_write_b16"
            a(f"{op} v{vR + i}, v{vA + 2 * q + (r >> 1)} offset:8")
    for q in range(5):
        a(f"s_waitcnt vmcnt({4 - q})")
        for r in range(4):
            i = 4 * q + r
            a(f"v_add_u32 v{vT + r}, s{sK}, v{vI + i}")
            a(f"v_lshlrev_b32 v{vI + i}, 14, v{vI + i}")
            a(f"v_lshrrev_b32 v{vT + r}, 15, v{vT + r}")
            a(f"v_and_or_b32 v{vI + i}, v{vO + i}, s{sMask}, v{vI + i}")
            a(f"v_and_or_b32 v{vI + i}, v{vT + r}, 4, v{vI + i}")
            a(f"ds_write_b32 v{vJ + i}, v{vI + i}")
    a(f"""
    s_mov_b64 exec, -1
    s_waitcnt lgkmcnt(0)
    s_barrier
    """)
    stamp(a, P, 0, 1, 56, vT, 34, "s2")
    for i in range(8):
        a(f"ds_read_b128 {vr(vO + 4 * i, 4)}, v{vOff16} offset:{i * 8192}")
    for i in range(8):
        a(f"s_movk_i32 s54, {i * 8192}" if i * 8192 < 32768 else f"s_mov_b32 s54, {i * 8192}")
        a(f"s_waitcnt lgkmcnt({7 - i})")
        a(f"buffer_store_dwordx4 {vr(vO + 4 * i, 4)}, v{vOff16}, s[{SR}:{SR + 3}], s54 offen {P['k1_st']}")
    if P["stamps"]:
        a("s_waitcnt vmcnt(0)")
        a("s_barrier")
        stamp(a, P, 0, 2, 56, vT, 34, "s2")
    a("""
    L1_end:
    s_endpgm
    """)
    return a.text(), 112, 64, 65536


def gen_k2(P):
    a = Asm()
    D = P["D"]
    R = D + 1
    assert R == 4
    CNT, BB, SB, AB, DESC, RING = 0, 1024, 32768, 40960, 106496, 108544
    LDS = RING + 8 * R * 1024
    SENT_REL = 80 * CAP * 4
    SENT = 0x7FFFFFE0
    SREC, SM, SOUT, SSEG, SDIST = 4, 8, 12, 16, 20
    sJ, sW = 3, 2
    sPtr = 24
    sMk = 34
    sC192, sLast, sFirst, sSC, sSU = 24, 25, 26, 27, 28
    sM31, sF0, sRingB, sPrev, sCur, sWA, sRowOff = 29, 30, 31, 32, 33, 34, 35
    sM, sL, sA, sC, sN = 36, 38, 39, 40, 41
    sT = 42
    vLane, vLL12, vFour, vZero = 1, 2, 3, 4
    vLH4, vHalf16, vSc, vSrd, vTr, vTab, vCntA, vS128, vSteps = 5, 6, 7, 8, 9, 10, 11, 12, 13
    vMoff, vOut4, vPf, vPf2 = 14, 15, 16, 17
    vT = 18
    vSlot = 32
    vD0, vD1 = 100, 116
    vAcc = 132
    vG, vH = 152, 172
    vMr = 192
    vDist = 202
    vWraw = 208
    vCen = 220
    vWd, vWu = 224, 228
    vWs, vWr, vRb = 232, 234, 236
    vMt, vSt = 240, 244
    vQ = 248

    def fill():
        a(f"""
        v_mov_b32 v{vQ}, 0
        v_mov_b32 v{vQ + 1}, 0
        v_mov_b32 v{vQ + 2}, 0
        v_mov_b32 v{vQ + 3}, 0
        v_mov_b32 v{vQ + 4}, {SENT}
        v_mov_b32 v{vQ + 5}, v{vQ + 4}
        v_mov_b32 v{vQ + 6}, v{vQ + 4}
        v_mov_b32 v{vQ + 7}, v{vQ + 4}
        """)
        for i in range(5):
            a(f"ds_write_b128 v{vPf}, {vr(vQ, 4)} offset:{i * 8192}")
        for i in range(8):
            a(f"ds_write_b128 v{vPf2}, {vr(vQ + 4, 4)} offset:{i * 8192}")

    def place_atomics(w, mA, mB, t):
        a(f"""
        s_mov_b64 exec, s[{mA}:{mA + 1}]
        v_and_b32 v{t}, 0x1fc, v{w}
        ds_add_rtn_u32 v{t + 2}, v{t}, v{vFour} offset:{CNT}
        s_mov_b64 exec, s[{mB}:{mB + 1}]
        v_and_b32 v{t + 1}, 0x1fc, v{w + 1}
        ds_add_rtn_u32 v{t + 3}, v{t + 1}, v{vFour} offset:{CNT}
        """)

    def place_writes(w, mA, mB, t):
        a(f"""
        s_mov_b64 exec, s[{mA}:{mA + 1}]
        v_mad_u32_u24 v{t}, v{t}, s{sC192}, v{t + 2}
        v_lshrrev_b32 v{w}, 9, v{w}
        v_lshrrev_b32 v{t + 2}, 1, v{t}
        ds_write_b32 v{t}, v{w} offset:{AB}
        ds_write_b16 v{t + 2}, v{w + 2} offset:{BB}
        s_mov_b64 exec, s[{mB}:{mB + 1}]
        v_mad_u32_u24 v{t + 1}, v{t + 1}, s{sC192}, v{t + 3}
        v_lshrrev_b32 v{w + 1}, 9, v{w + 1}
        v_lshrrev_b32 v{t + 3}, 1, v{t + 1}
        ds_write_b32 v{t + 1}, v{w + 1} offset:{AB}
        ds_write_b16_d16_hi v{t + 3}, v{w + 2} offset:{BB}
        """)

    a(f"""
    s_cmp_ge_u32 s2, {NCH}
    s_cbranch_scc1 L2_end
    s_load_dwordx2 s[4:5], s[0:1], 104
    s_load_dwordx2 s[8:9], s[0:1], 0
    s_load_dwordx2 s[12:13], s[0:1], 88
    s_load_dwordx2 s[20:21], s[0:1], 24
    s_load_dwordx2 s[24:25], s[0:1], 40
    s_load_dwordx4 s[28:31], s[0:1], 56
    s_load_dwordx2 s[26:27], s[0:1], 72
    s_load_dwordx2 s[32:33], s[0:1], 80
    """)
    if P["xl"]:
        a(f"""
        s_and_b32 s{sJ}, s2, 7
        s_lshl_b32 s{sJ}, s{sJ}, 5
        s_lshr_b32 s{sT}, s2, 3
        s_add_u32 s{sJ}, s{sJ}, s{sT}
        """)
    else:
        a(f"s_mov_b32 s{sJ}, s2")
    a(f"""
    v_lshrrev_b32 v{vT}, 6, v0
    v_and_b32 v{vLane}, 63, v0
    v_readfirstlane_b32 s{sW}, v{vT}
    v_and_b32 v{vT + 1}, 31, v0
    v_lshl_add_u32 v{vT + 2}, v{vT}, 5, v{vT + 1}
    v_lshlrev_b32 v{vT + 3}, 10, v{vT + 2}
    v_mul_u32_u24 v{vLL12}, 12, v{vT + 1}
    v_lshlrev_b32 v{vPf}, 4, v0
    v_add_u32 v{vPf2}, {AB}, v{vPf}
    s_lshl_b32 s{sT}, s{sJ}, 2
    s_waitcnt lgkmcnt(0)
    s_add_u32 s16, s4, {WS_SEG}
    s_addc_u32 s17, s5, 0
    s_and_b32 s17, s17, 0xffff
    s_mov_b32 s18, {NCH * 1024}
    s_mov_b32 s19, 0x20000
    buffer_load_dword v{vT + 4}, v{vT + 3}, s[{SSEG}:{SSEG + 3}], s{sT} offen {P["k2_seg_ld"]}
    s_and_b32 s5, s5, 0xffff
    s_mov_b32 s6, {NCH * CHB}
    s_mov_b32 s7, 0x20000
    s_and_b32 s9, s9, 0xffff
    s_mov_b32 s10, {E * 32}
    s_mov_b32 s11, 0x20000
    s_and_b32 s13, s13, 0xffff
    s_mov_b32 s14, {E * 32}
    s_mov_b32 s15, 0x20000
    s_and_b32 s21, s21, 0xffff
    s_mov_b32 s22, {E * 2}
    s_mov_b32 s23, 0x20000
    """)
    stamp(a, P, 1, 0, 94, vSlot, 16, "s3")
    fill()
    a(f"""
    v_mov_b32 v{vFour}, 4
    v_mov_b32 v{vZero}, 0
    v_lshrrev_b32 v{vT + 5}, 1, v{vLane}
    v_lshlrev_b32 v{vLH4}, 2, v{vT + 5}
    v_and_b32 v{vHalf16}, 1, v{vLane}
    v_lshlrev_b32 v{vHalf16}, 4, v{vHalf16}
    v_bfe_u32 v{vT + 6}, v{vT + 5}, 2, 1
    v_bfe_u32 v{vT + 7}, v{vT + 5}, 4, 1
    v_lshl_add_u32 v{vT + 6}, v{vT + 7}, 1, v{vT + 6}
    v_and_b32 v{vT + 7}, 3, v{vT + 5}
    v_bfe_u32 v{vT + 8}, v{vT + 5}, 3, 1
    v_lshl_add_u32 v{vT + 7}, v{vT + 8}, 2, v{vT + 7}
    v_lshlrev_b32 v{vT + 7}, 1, v{vT + 7}
    v_lshl_add_u32 v{vSc}, v{vT + 6}, 8, v{vT + 7}
    v_lshlrev_b32 v{vT + 8}, 10, v{vT}
    v_add_u32 v{vT + 8}, {SB}, v{vT + 8}
    v_add_u32 v{vSc}, v{vSc}, v{vT + 8}
    v_lshl_add_u32 v{vSrd}, v{vLane}, 4, v{vT + 8}
    v_bfe_u32 v{vT + 6}, v{vLane}, 4, 1
    v_bfe_u32 v{vT + 7}, v{vLane}, 5, 1
    v_lshlrev_b32 v{vT + 7}, 4, v{vT + 7}
    v_lshl_add_u32 v{vT + 6}, v{vT + 6}, 2, v{vT + 7}
    v_bfe_u32 v{vT + 7}, v{vLane}, 2, 2
    v_add_u32 v{vT + 6}, v{vT + 6}, v{vT + 7}
    v_and_b32 v{vT + 7}, 3, v{vLane}
    v_lshlrev_b32 v{vT + 7}, 3, v{vT + 7}
    v_lshl_add_u32 v{vTr}, v{vT + 6}, 5, v{vT + 7}
    v_lshlrev_b32 v{vT + 8}, 12, v{vT}
    v_add_u32 v{vT + 8}, {RING}, v{vT + 8}
    v_add_u32 v{vTr}, v{vTr}, v{vT + 8}
    v_mul_u32_u24 v{vT + 6}, 43, v{vLane}
    v_lshrrev_b32 v{vT + 6}, 8, v{vT + 6}
    v_mul_u32_u24 v{vT + 7}, 6, v{vT + 6}
    v_sub_u32 v{vT + 7}, v{vLane}, v{vT + 7}
    v_lshlrev_b32 v{vS128}, 7, v{vT + 7}
    v_lshlrev_b32 v{vT + 8}, 1, v{vT + 6}
    v_subrev_u32 v{vT + 9}, 9, v{vT + 8}
    v_cmp_lt_u32 vcc, 4, v{vT + 6}
    v_mul_u32_u24 v{vT + 10}, 10, v{vT}
    s_nop 0
    v_cndmask_b32 v{vT + 8}, v{vT + 8}, v{vT + 9}, vcc
    v_add_u32 v{vT + 8}, v{vT + 8}, v{vT + 10}
    v_lshlrev_b32 v{vCntA}, 2, v{vT + 8}
    v_mul_u32_u24 v{vT + 8}, {CAP * 4}, v{vT + 8}
    v_add_u32 v{vTab}, v{vT + 8}, v{vS128}
    v_cmp_lt_u32 vcc, 59, v{vLane}
    v_mov_b32 v{vT + 8}, {SENT_REL}
    v_mov_b32 v{vT + 9}, 0x7fffffff
    v_cndmask_b32 v{vTab}, v{vTab}, v{vT + 8}, vcc
    v_cndmask_b32 v{vS128}, v{vS128}, v{vT + 9}, vcc
    v_cndmask_b32 v{vCntA}, v{vCntA}, v{vZero}, vcc
    v_and_b32 v{vT + 6}, 15, v{vLane}
    v_lshrrev_b32 v{vT + 7}, 4, v{vLane}
    v_mul_u32_u24 v{vT + 8}, 80, v{vT}
    v_add_u32 v{vT + 8}, v{vT + 8}, v{vT + 6}
    v_lshlrev_b32 v{vMoff}, 5, v{vT + 8}
    v_lshl_add_u32 v{vMoff}, v{vT + 7}, 3, v{vMoff}
    v_cmp_gt_u32 vcc, {BK - 64}, v{vT + 8}
    v_mov_b32 v{vT + 9}, 0x7fffff00
    v_lshlrev_b32 v{vT + 11}, 1, v{vT + 8}
    v_cndmask_b32 v{vOut4}, v{vT + 9}, v{vMoff}, vcc
    v_lshlrev_b32 v{vT + 12}, 1, v{vT + 6}
    v_lshl_add_u32 v{vT + 13}, v{vT + 7}, 6, v{vT + 12}
    v_lshl_add_u32 v{vT + 12}, v{vT + 7}, 7, v{vT + 12}
    v_lshlrev_b32 v{vT + 10}, 2, v{vT + 7}
    """)
    for k in range(20):
        a(f"v_mov_b32 v{vAcc + k}, 0")
    w = vT + 4
    a(f"""
    v_mul_u32_u24 v{vT + 2}, {CHB}, v{vT + 2}
    v_lshlrev_b32 v{vT + 5}, 8, v{vT}
    v_lshl_add_u32 v{vT + 3}, v{vT + 1}, 2, v{vT + 5}
    v_add_u32 v{vT + 3}, {DESC}, v{vT + 3}
    v_lshrrev_b32 v{vT + 6}, 5, v{vLane}
    v_lshl_add_u32 v{vT + 5}, v{vT + 6}, 6, v{vT + 5}
    v_add_u32 v{vT + 5}, {DESC}, v{vT + 5}
    s_waitcnt vmcnt(0)
    v_bfe_u32 v{vT + 6}, v{w}, 1, 1
    v_mul_u32_u24 v{vT + 6}, 6, v{vT + 6}
    v_and_b32 v{vT + 7}, 0xffff, v{w}
    v_lshrrev_b32 v{w}, 16, v{w}
    v_add_u32 v{vT + 2}, v{vT + 2}, v{vT + 7}
    v_sub_u32 v{vT + 2}, v{vT + 2}, v{vT + 6}
    v_add_u32 v{w}, v{w}, v{vT + 6}
    v_min_u32 v{vT + 7}, 384, v{w}
    v_sub_u32 v{vT + 7}, v{vT + 7}, v{vT + 6}
    v_lshl_or_b32 v{vT + 7}, v{vT + 7}, 16, v{vT + 6}
    ds_write_b32 v{vT + 3}, v{vT + 2}
    ds_write_b32 v{vT + 3}, v{vT + 7} offset:128
    """)
    for k in range(4):
        a(f"ds_read_b128 {vr(vD0 + 4 * k, 4)}, v{vT + 5} offset:{16 * k}")
    for k in range(4):
        a(f"ds_read_b128 {vr(vD1 + 4 * k, 4)}, v{vT + 5} offset:{128 + 16 * k}")
    xD0, xD1 = vSlot + 4 * 16, vSlot + 4 * 16 + 1
    a(f"""
    v_max_u32 v{w}, 384, v{w}
    v_subrev_u32 v{w}, 384, v{w}
    v_cmp_gt_u32 vcc, 32, v{vLane}
    v_add_u32 v{vT + 2}, 384, v{vT + 2}
    s_nop 0
    v_cndmask_b32 v{w}, v{vZero}, v{w}, vcc
    v_min_u32 v{vT + 7}, 384, v{w}
    v_lshlrev_b32 v{vT + 7}, 16, v{vT + 7}
    v_cmp_lt_u32 vcc, 384, v{w}
    v_cmp_lt_u32 s[42:43], 0, v{w}
    s_nop 1
    s_bcnt1_i32_b64 s44, s[42:43]
    s_cmp_gt_u32 s44, 2
    s_cselect_b32 s0, -1, vcc_lo
    """)
    if P["force_slow"]:
        a("s_mov_b32 s0, -1")
    a(f"""
    s_ff1_i32_b64 s44, s[42:43]
    s_bitset0_b64 s[42:43], s44
    s_ff1_i32_b64 s45, s[42:43]
    v_readlane_b32 s46, v{vT + 2}, s44
    v_readlane_b32 s47, v{vT + 7}, s44
    v_readlane_b32 s48, v{vT + 2}, s45
    v_readlane_b32 s49, v{vT + 7}, s45
    s_nop 1
    v_mov_b32 v{xD0}, s48
    v_mov_b32 v{xD1}, s49
    s_mov_b32 exec_hi, 0
    v_mov_b32 v{xD0}, s46
    v_mov_b32 v{xD1}, s47
    s_mov_b64 exec, -1
    s_waitcnt lgkmcnt(0)
    """)
    for i in range(17):
        d0 = vD0 + i if i < 16 else xD0
        d1 = vD1 + i if i < 16 else xD1
        mA, mB = sMk + 4 * i, sMk + 4 * i + 2
        t = vT + 6 + (i & 1) * 2
        a(f"""
        v_sub_u32_sdwa v{t}, v{vLL12}, v{d1} dst_sel:DWORD dst_unused:UNUSED_PAD src0_sel:DWORD src1_sel:WORD_0
        v_add_u32 v{vSlot + 4 * i + 3}, v{d0}, v{vLL12}
        v_add_u32 v{t + 1}, 6, v{t}
        v_cmp_lt_u32_sdwa s[{mA}:{mA + 1}], v{t}, v{d1} src0_sel:DWORD src1_sel:WORD_1
        v_cmp_lt_u32_sdwa s[{mB}:{mB + 1}], v{t + 1}, v{d1} src0_sel:DWORD src1_sel:WORD_1
        s_or_b64 exec, s[{mA}:{mA + 1}], s[{mB}:{mB + 1}]
        buffer_load_dwordx3 {vr(vSlot + 4 * i, 3)}, v{vSlot + 4 * i + 3}, s[{SREC}:{SREC + 3}], 0 offen {P["k2_rec_ld"]}
        s_mov_b64 exec, -1
        """)
    nmisc = 0
    a(f"s_mul_i32 vcc_lo, s{sJ}, {BK * 2}")
    a(f"s_mul_i32 vcc_hi, s{sJ}, {BK * 32}")
    for g in range(5):
        a(f"buffer_load_ushort v{vDist + g}, v{vT + 11}, s[{SDIST}:{SDIST + 3}], vcc_lo offen offset:{32 * g}")
        nmisc += 1
    for g in range(5):
        a(f"buffer_load_dwordx2 {vr(vMr + 2 * g, 2)}, v{vMoff}, s[{SM}:{SM + 3}], vcc_hi offen offset:{512 * g}")
        nmisc += 1
    for k in range(4):
        a(f"global_load_ushort v{vWraw + k}, v{vT + 12}, s[26:27] offset:{32 * k}")
        a(f"global_load_ushort v{vWraw + 4 + k}, v{vT + 12}, s[32:33] offset:{32 * k}")
        nmisc += 2
    for k in range(2):
        a(f"global_load_ushort v{vWraw + 8 + k}, v{vT + 13}, s[30:31] offset:{32 * k}")
        a(f"global_load_ushort v{vWraw + 10 + k}, v{vT + 13}, s[28:29] offset:{32 * k}")
        nmisc += 2
    a(f"global_load_dword v{vCen}, v{vT + 10}, s[24:25]")
    nmisc += 1
    a(f"""
    s_movk_i32 s{sC192}, {CAP}
    s_barrier
    s_cmp_eq_u32 s0, 0
    s_cbranch_scc1 L2_noflag
    v_mov_b32 v{vT + 8}, {80 * 4}
    v_mov_b32 v{vT + 9}, 0x10000
    ds_write_b32 v{vT + 8}, v{vT + 9} offset:{CNT}
    L2_noflag:
    """)
    tt = [vT, vT + 4]
    a(f"s_waitcnt vmcnt({16 + nmisc})")
    place_atomics(vSlot, sMk, sMk + 2, tt[0])
    for i in range(17):
        if i + 1 < 17:
            a(f"s_waitcnt vmcnt({16 - (i + 1) + nmisc})")
            place_atomics(vSlot + 4 * (i + 1), sMk + 4 * (i + 1), sMk + 4 * (i + 1) + 2, tt[(i + 1) & 1])
            a(f"s_waitcnt lgkmcnt({2 if i == 0 else 6})")
        else:
            a("s_waitcnt lgkmcnt(4)")
        place_writes(vSlot + 4 * i, sMk + 4 * i, sMk + 4 * i + 2, tt[i & 1])
    a(f"""
    s_mov_b64 exec, -1
    s_mov_b32 s{sLast}, 1
    s_mov_b32 s{sFirst}, 1
    s_mov_b32 s{sM31}, 0xffffffe0
    s_movk_i32 s{sF0}, 0xf0
    s_lshl_b32 s{sRingB}, s{sW}, 12
    s_add_u32 s{sRingB}, s{sRingB}, {RING}
    s_mul_i32 s{sWA}, s{sW}, {10 * CAP * 4}
    s_mul_i32 s{sRowOff}, s{sJ}, {BK * 32}
    v_lshlrev_b32 v{vT}, 2, v{vLane}
    s_waitcnt lgkmcnt(0)
    s_barrier
    ds_read_b32 v{vT + 1}, v{vT} offset:{CNT}
    ds_read_b32 v{vT + 2}, v{vT} offset:{CNT + 256}
    s_waitcnt lgkmcnt(0)
    v_max_u32 v{vT + 1}, v{vT + 1}, v{vT + 2}
    v_cmp_lt_u32 vcc, {CAP * 4}, v{vT + 1}
    s_cbranch_vccz L2_G
    """)
    a(f"""
    s_mov_b32 s{sSC}, 0
    s_mov_b32 s{sSU}, 0
    s_mov_b32 s{sLast}, 0
    L2_slow:
    s_waitcnt vmcnt(0) lgkmcnt(0)
    s_barrier
    """)
    fill()
    a(f"""
    s_waitcnt lgkmcnt(0)
    s_barrier
    s_cmp_lt_u32 s{sSC}, {NCH}
    s_cbranch_scc1 L2_slow_unit
    s_mov_b32 s{sLast}, 1
    s_branch L2_G
    L2_slow_unit:
    s_lshl_b32 s{sT}, s{sSC}, 10
    s_lshl_b32 s{sT + 1}, s{sJ}, 2
    s_add_u32 s{sT}, s{sT}, s{sT + 1}
    s_buffer_load_dword s{sT + 2}, s[{SSEG}:{SSEG + 3}], s{sT}
    s_waitcnt lgkmcnt(0)
    s_bfe_u32 s{sT}, s{sT + 2}, 0x10001
    s_mul_i32 s{sT}, s{sT}, 6
    s_and_b32 s{sT + 1}, s{sT + 2}, 0xffff
    s_lshr_b32 s{sT + 2}, s{sT + 2}, 16
    s_mul_i32 s{sT + 3}, s{sSC}, {CHB}
    s_add_u32 s{sT + 3}, s{sT + 3}, s{sT + 1}
    s_sub_u32 s{sT + 3}, s{sT + 3}, s{sT}
    s_add_u32 s{sT + 3}, s{sT + 3}, s{sSU}
    s_sub_u32 s{sT + 4}, s{sSU}, s{sT}
    s_cmp_lg_u32 s{sW}, 0
    s_cbranch_scc1 L2_slow_adv
    v_mul_u32_u24 v{vT}, 12, v{vLane}
    v_add_u32 v{vT + 1}, s{sT + 4}, v{vT}
    v_add_u32 v{vT + 2}, 6, v{vT + 1}
    v_cmp_gt_u32 s[{sT + 6}:{sT + 7}], s{sT + 2}, v{vT + 1}
    v_cmp_gt_u32 s[{sT + 8}:{sT + 9}], s{sT + 2}, v{vT + 2}
    s_or_b64 exec, s[{sT + 6}:{sT + 7}], s[{sT + 8}:{sT + 9}]
    buffer_load_dwordx3 {vr(vSlot, 3)}, v{vT}, s[{SREC}:{SREC + 3}], s{sT + 3} offen
    s_waitcnt vmcnt(0)
    """)
    place_atomics(vSlot, sT + 6, sT + 8, vT + 4)
    a("s_waitcnt lgkmcnt(0)")
    place_writes(vSlot, sT + 6, sT + 8, vT + 4)
    a(f"""
    s_mov_b64 exec, -1
    L2_slow_adv:
    s_add_u32 s{sSU}, s{sSU}, 768
    s_add_u32 s{sT}, s{sT}, s{sT + 2}
    s_cmp_lt_u32 s{sSU}, s{sT}
    s_cbranch_scc1 L2_slow_go
    s_add_u32 s{sSC}, s{sSC}, 1
    s_mov_b32 s{sSU}, 0
    L2_slow_go:
    s_waitcnt lgkmcnt(0)
    s_barrier
    """)

    def issue(wait_after_read):
        a(f"""
        s_ff1_i32_b64 s{sL}, s[{sM}:{sM + 1}]
        s_bitset0_b64 s[{sM}:{sM + 1}], s{sL}
        v_readlane_b32 s{sA}, v{vTab}, s{sL}
        """)

    a("L2_G:")
    stamp(a, P, 1, 1, 94, vSlot, 16, "s3")
    a(f"""
    ds_read_b32 v{vT}, v{vCntA} offset:{CNT}
    s_mov_b32 s{sCur}, 0
    s_waitcnt lgkmcnt(0)
    v_cmp_gt_u32 s[{sM}:{sM + 1}], v{vT}, v{vS128}
    v_add_u32 v{vSteps}, 127, v{vT}
    v_lshrrev_b32 v{vSteps}, 7, v{vSteps}
    s_nop 1
    """)
    for k in range(D):
        issue(True)
        a(f"""
        s_add_u32 m0, s{sRingB}, {k * 1024}
        s_nop 0
        v_add_u32 v{vT + k}, s{sA}, v{vLH4}
        ds_read_b32 v{vT + k}, v{vT + k} offset:{AB}
        s_waitcnt lgkmcnt(0)
        v_and_or_b32 v{vT + k}, v{vT + k}, s{sM31}, v{vHalf16}
        buffer_load_dwordx4 v{vT + k}, s[{SM}:{SM + 3}], 0 offen {P["k2_gather"]} lds
        """)
    a(f"""
    s_movk_i32 s{sPrev}, {D * 1024}
    s_cmp_eq_u32 s{sFirst}, 0
    s_cbranch_scc1 L2_main
    s_mov_b32 s{sFirst}, 0
    s_waitcnt vmcnt({D})
    """)
    a(f"""
    v_lshl_or_b32 v{vWd}, v{vWraw + 1}, 16, v{vWraw}
    v_lshl_or_b32 v{vWd + 1}, v{vWraw + 3}, 16, v{vWraw + 2}
    v_lshl_or_b32 v{vWu}, v{vWraw + 5}, 16, v{vWraw + 4}
    v_lshl_or_b32 v{vWu + 1}, v{vWraw + 7}, 16, v{vWraw + 6}
    v_lshl_or_b32 v{vWs}, v{vWraw + 9}, 16, v{vWraw + 8}
    v_lshl_or_b32 v{vWr}, v{vWraw + 11}, 16, v{vWraw + 10}
    v_mov_b32 v{vWd + 2}, v{vWd}
    v_mov_b32 v{vWd + 3}, v{vWd + 1}
    v_mov_b32 v{vWu + 2}, v{vWu}
    v_mov_b32 v{vWu + 3}, v{vWu + 1}
    v_mov_b32 v{vWs + 1}, 0
    v_mov_b32 v{vWr + 1}, 0
    v_mov_b32 v{vRb + 1}, 0
    v_mov_b32 v{vRb + 3}, 0
    v_and_b32 v{vCen + 1}, 0xffff0000, v{vCen}
    v_lshlrev_b32 v{vCen}, 16, v{vCen}
    """)
    for g in range(5):
        t = vT + 4
        rb = vRb + 2 * (g & 1)
        a(f"""
        v_lshlrev_b32 v{t + 2}, 16, v{vDist + g}
        v_sub_f32 v{t}, v{t + 2}, v{vCen}
        v_sub_f32 v{t + 1}, v{t + 2}, v{vCen + 1}
        v_cvt_pk_bf16_f32 v{t + 2}, v{t}, v{t + 1}
        v_lshlrev_b32 v{t}, 16, v{t + 2}
        v_and_b32 v{t + 1}, 0xffff0000, v{t + 2}
        v_mul_f32 v{t}, v{t}, v{t}
        v_mul_f32 v{t + 1}, v{t + 1}, v{t + 1}
        v_cvt_pk_bf16_f32 v{t + 2}, v{t}, v{t + 1}
        v_lshlrev_b32 v{t}, 16, v{t + 2}
        v_and_b32 v{t + 1}, 0xffff0000, v{t + 2}
        v_mul_f32 v{t}, 0xc1200000, v{t}
        v_mul_f32 v{t + 1}, 0xc1200000, v{t + 1}
        v_cvt_pk_bf16_f32 v{t + 2}, v{t}, v{t + 1}
        v_lshlrev_b32 v{t}, 16, v{t + 2}
        v_and_b32 v{t + 1}, 0xffff0000, v{t + 2}
        v_mul_f32 v{t}, 0x3fb8aa3b, v{t}
        v_mul_f32 v{t + 1}, 0x3fb8aa3b, v{t + 1}
        v_exp_f32 v{t}, v{t}
        v_exp_f32 v{t + 1}, v{t + 1}
        s_nop 0
        v_cvt_pk_bf16_f32 v{rb}, v{t}, v{t + 1}
        s_nop 1
        v_mfma_f32_16x16x16_bf16 {vr(vG + 4 * g, 4)}, {vr(vWs, 2)}, {vr(rb, 2)}, 0
        v_mfma_f32_16x16x16_bf16 {vr(vH + 4 * g, 4)}, {vr(vWr, 2)}, {vr(rb, 2)}, 0
        """)
    a("L2_main:")

    def split(src, dst, t):
        a(f"""
        v_cvt_pk_bf16_f32 v{dst}, v{src}, v{src + 1}
        v_cvt_pk_bf16_f32 v{dst + 1}, v{src + 2}, v{src + 3}
        v_lshlrev_b32 v{t}, 16, v{dst}
        v_and_b32 v{t + 1}, 0xffff0000, v{dst}
        v_lshlrev_b32 v{t + 2}, 16, v{dst + 1}
        v_and_b32 v{t + 3}, 0xffff0000, v{dst + 1}
        v_sub_f32 v{t}, v{src}, v{t}
        v_sub_f32 v{t + 1}, v{src + 1}, v{t + 1}
        v_sub_f32 v{t + 2}, v{src + 2}, v{t + 2}
        v_sub_f32 v{t + 3}, v{src + 3}, v{t + 3}
        v_cvt_pk_bf16_f32 v{dst + 2}, v{t}, v{t + 1}
        v_cvt_pk_bf16_f32 v{dst + 3}, v{t + 2}, v{t + 3}
        s_nop 1
        """)

    for h in range(2):
        for g in range(5):
            b = h * 5 + g
            acc = vAcc + 4 * g
            a(f"""
            v_readlane_b32 s{sN}, v{vSteps}, {6 * b}
            s_add_u32 s{sC}, s{sWA}, {(2 * g + h) * CAP * 4}
            s_cmp_eq_u32 s{sN}, 0
            s_cbranch_scc1 L2_bin{b}_done
            L2_bin{b}:
            s_ff1_i32_b64 s{sL}, s[{sM}:{sM + 1}]
            s_bitset0_b64 s[{sM}:{sM + 1}], s{sL}
            v_readlane_b32 s{sA}, v{vTab}, s{sL}
            v_add_u32 v{vT + 1}, s{sC}, v{vLH4}
            s_add_u32 m0, s{sRingB}, s{sPrev}
            v_add_u32 v{vT}, s{sA}, v{vLH4}
            v_lshrrev_b32 v{vT + 2}, 1, v{vT + 1}
            ds_read_b32 v{vT}, v{vT} offset:{AB}
            ds_read_b32 v{vT + 1}, v{vT + 1} offset:{AB}
            ds_read_u16 v{vT + 2}, v{vT + 2} offset:{BB}
            v_add_u32 v{vT + 3}, s{sCur}, v{vTr}
            s_mov_b32 s{sPrev}, s{sCur}
            s_add_u32 s{sCur}, s{sCur}, 1024
            s_and_b32 s{sCur}, s{sCur}, {R * 1024 - 1}
            s_add_u32 s{sC}, s{sC}, 128
            s_waitcnt lgkmcnt(2)
            v_and_or_b32 v{vT}, v{vT}, s{sM31}, v{vHalf16}
            buffer_load_dwordx4 v{vT}, s[{SM}:{SM + 3}], 0 offen {P["k2_gather"]} lds
            s_waitcnt lgkmcnt(0)
            v_lshlrev_b32 v{vT + 1}, 4, v{vT + 1}
            v_and_or_b32 v{vT + 1}, v{vT + 1}, s{sF0}, v{vSc}
            ds_write_b16 v{vT + 1}, v{vT + 2}
            ds_read_b128 {vr(vSt, 4)}, v{vSrd}
            ds_write_b16 v{vT + 1}, v{vZero}
            s_sub_u32 s{sN}, s{sN}, 1
            s_waitcnt vmcnt({D})
            ds_read_b64_tr_b16 {vr(vMt, 2)}, v{vT + 3}
            ds_read_b64_tr_b16 {vr(vMt + 2, 2)}, v{vT + 3} offset:256
            s_cmp_lg_u32 s{sN}, 0
            s_waitcnt lgkmcnt(0)
            v_mfma_f32_16x16x32_bf16 {vr(acc, 4)}, {vr(vMt, 4)}, {vr(vSt, 4)}, {vr(acc, 4)}
            s_cbranch_scc1 L2_bin{b}
            L2_bin{b}_done:
            """)
            if h == 1:
                x, y, t = vT + 2, vT + 6, vT + 10
                a(f"""
                s_cmp_eq_u32 s{sLast}, 0
                s_cbranch_scc1 L2_epi{g}_done
                s_nop 5
                """)
                split(acc, x, t)
                a(f"""
                v_mfma_f32_16x16x32_bf16 {vr(y, 4)}, {vr(vWd, 4)}, {vr(x, 4)}, 0
                s_nop 7
                v_mul_f32 v{y}, v{y}, v{vG + 4 * g}
                v_mul_f32 v{y + 1}, v{y + 1}, v{vG + 4 * g + 1}
                v_mul_f32 v{y + 2}, v{y + 2}, v{vG + 4 * g + 2}
                v_mul_f32 v{y + 3}, v{y + 3}, v{vG + 4 * g + 3}
                """)
                split(y, x, t)
                mr = vMr + 2 * g
                a(f"""
                v_mfma_f32_16x16x32_bf16 {vr(y, 4)}, {vr(vWu, 4)}, {vr(x, 4)}, 0
                v_lshlrev_b32 v{t}, 16, v{mr}
                v_and_b32 v{t + 1}, 0xffff0000, v{mr}
                v_lshlrev_b32 v{t + 2}, 16, v{mr + 1}
                v_and_b32 v{t + 3}, 0xffff0000, v{mr + 1}
                s_nop 3
                v_fmac_f32 v{t}, v{y}, v{vH + 4 * g}
                v_fmac_f32 v{t + 1}, v{y + 1}, v{vH + 4 * g + 1}
                v_fmac_f32 v{t + 2}, v{y + 2}, v{vH + 4 * g + 2}
                v_fmac_f32 v{t + 3}, v{y + 3}, v{vH + 4 * g + 3}
                v_cvt_pk_bf16_f32 v{mr}, v{t}, v{t + 1}
                v_cvt_pk_bf16_f32 v{mr + 1}, v{t + 2}, v{t + 3}
                buffer_store_dwordx2 {vr(mr, 2)}, v{vOut4 if g == 4 else vMoff}, s[{SOUT}:{SOUT + 3}], s{sRowOff} offen offset:{512 * g} {P["k2_out_st"]}
                L2_epi{g}_done:
                """)
    a(f"""
    s_cmp_eq_u32 s{sLast}, 0
    s_cbranch_scc1 L2_slow
    """)
    if P["stamps"]:
        a("s_waitcnt vmcnt(0)")
        a("s_barrier")
        stamp(a, P, 1, 2, 94, vSlot, 16, "s3")
    a("""
    L2_end:
    s_endpgm
    """)
    return a.text(), 256, 102, LDS


def descriptor(name, nv, ns):
    return f""".amdhsa_kernel {name}
  .amdhsa_next_free_vgpr {nv}
  .amdhsa_next_free_sgpr {ns}
  .amdhsa_accum_offset {(nv + 3) // 4 * 4}
  .amdhsa_group_segment_fixed_size 0
  .amdhsa_kernarg_size 112
  .amdhsa_user_sgpr_count 2
  .amdhsa_user_sgpr_kernarg_segment_ptr 1
  .amdhsa_system_sgpr_workgroup_id_x 1
  .amdhsa_float_denorm_mode_32 3
.end_amdhsa_kernel
"""


def generate(**kw):
    P = dict(DEFAULTS)
    P.update(kw)
    k1, k1v, k1s, k1l = gen_k1(P)
    k2, k2v, k2s, k2l = gen_k2(P)
    n1, n2 = "gemnet_bin_kernel", NAME + "_kernel"
    out = HEADER
    out += f"; @launch kernel={n1} grid=({NCH},1,1) block=(512,1,1) lds={k1l}\n"
    out += f"; @launch kernel={n2} grid=({NCH},1,1) block=(512,1,1) lds={k2l}\n"
    out += '.amdgcn_target "amdgcn-amd-amdhsa--gfx950"\n.text\n'
    for n, body in ((n1, k1), (n2, k2)):
        out += f".globl {n}\n.p2align 8\n.type {n},@function\n{n}:\n{body}"
    out += '.section .rodata,"a"\n.p2align 6\n' + descriptor(n1, k1v, k1s)
    out += ".p2align 6\n" + descriptor(n2, k2v, k2s)
    return out


if __name__ == "__main__":
    path = sys.argv[1]
    kw = {}
    for arg in sys.argv[2:]:
        k, v = arg.split("=", 1)
        kw[k] = int(v) if v.lstrip("-").isdigit() else v
    open(path, "w").write(generate(**kw))
```

```python
import sys

NAME = "standalone__molecular_angular_gemnet__graph"

E = 160000
T = 2560000
NCH = 256
CH = 10000
BK = 625
CHB = CH * 6
WS_SEG = 0x1000000
WS_PAR = WS_SEG + NCH * 1024
CAP = 192

DEFAULTS = dict(
    HS=80000,
    D=3,
    k1_ld="nt",
    k1_st="sc1",
    k1_seg_st="sc1",
    k2_rec_ld="nt",
    k2_seg_ld="",
    k2_out_st="",
    k2_gather="",
    NPRE=7,
    xl=1,
    stamps=0,
    force_slow=0,
)

HEADER = """; Kernarg layout for this problem (112 bytes, ptrs only, base s[0:1]):
;
"""


class Asm:
    def __init__(self):
        self.lines = []

    def __call__(self, s):
        for ln in s.strip("\n").split("\n"):
            ln = ln.strip()
            if not ln:
                continue
            if ln.endswith(":"):
                self.lines.append(ln)
            else:
                self.lines.append("    " + ln)

    def text(self):
        return "\n".join(self.lines) + "\n"


def vr(a, n=1):
    return f"v{a}" if n == 1 else f"v[{a}:{a + n - 1}]"


def sr(a, n=1):
    return f"s{a}" if n == 1 else f"s[{a}:{a + n - 1}]"


def srd(a, dst, lo, hi, size):
    a(f"""
    s_mov_b32 s{dst}, {lo}
    s_and_b32 s{dst + 1}, {hi}, 0xffff
    s_mov_b32 s{dst + 2}, {size}
    s_mov_b32 s{dst + 3}, 0x20000
    """)


class Stamps:
    def __init__(self, a, P, kern, vreg, stmp):
        self.a, self.on, self.kern, self.v, self.s = a, P["stamps"], kern, vreg, stmp
        self.names = []

    def __call__(self, name):
        if not self.on or (self.on == 2 and name not in ("start", "Gissued", "end")):
            return
        if self.on == 3 and name in ("O0", "A4", "I0", "GH", "bin0"):
            return
        self.a(f"""
        s_memrealtime s[{self.s}:{self.s + 1}]
        s_waitcnt lgkmcnt(0)
        v_writelane_b32 v{self.v}, s{self.s}, {len(self.names)}
        """)
        self.names.append(name)

    def flush(self, base, wg, vt):
        if not self.on:
            return
        off = 0x2000000 - WS_SEG + self.kern * 0x100000
        self.a(f"""
        s_mov_b64 exec, -1
        s_lshl_b32 s{self.s}, {wg}, 11
        s_add_u32 s{self.s}, s{self.s}, {off}
        v_lshlrev_b32 v{vt}, 2, v0
        v_add_u32 v{vt}, s{self.s}, v{vt}
        global_store_dword v{vt}, v{self.v}, s[{base}:{base + 1}]
        """)
        print(f"kernel {self.kern} stamps:", ",".join(self.names), file=sys.stderr)


def gen_k1(P):
    a = Asm()
    HIST, BASE = 61440, 62464
    SO, SI, SA, SR, SG = 4, 8, 12, 16, 20
    sOff, sOffA = 36, 41
    sC625, sM625, sK, sMask, sFreq, sAct = 46, 47, 48, 49, 50, 52
    vO, vI, vA, vJ, vR = 8, 28, 48, 58, 78
    vT = 98
    vOff16, vOff8, vSix, vF = 1, 2, 3, 4
    vSeg = 112
    ld = P["k1_ld"]
    st = Stamps(a, P, 0, 110, 56)
    a(f"""
    s_cmp_ge_u32 s2, {NCH}
    s_cbranch_scc1 L1_par
    """)
    st("start")
    a(f"""
    s_load_dwordx4 s[24:27], s[0:1], 8
    s_load_dwordx2 s[28:29], s[0:1], 32
    s_load_dwordx2 s[30:31], s[0:1], 48
    s_load_dwordx2 s[32:33], s[0:1], 104
    v_lshlrev_b32 v{vOff16}, 4, v0
    v_lshlrev_b32 v{vOff8}, 3, v0
    v_lshlrev_b32 v5, 2, v0
    v_mov_b32 v6, 0
    v_mov_b32 v{vSix}, 6
    s_mul_i32 s{sOff}, s2, {CH * 4}
    s_mul_i32 s{sOffA}, s2, {CH * 2}
    """)
    for q in range(1, 5):
        a(f"s_add_u32 s{sOff + q}, s{sOff}, {q * 8000}")
        a(f"s_add_u32 s{sOffA + q}, s{sOffA}, {q * 4000}")
    a(f"""
    s_mov_b32 s{sC625}, 6871948
    s_mov_b32 s{sM625}, -{BK}
    s_mov_b32 s{sK}, {131072 - P["HS"]}
    s_mov_b32 s{sMask}, 0x1ff8
    s_mul_i32 s34, s2, {CHB}
    ds_write_b32 v5, v6 offset:{HIST}
    v_cmp_gt_u32 vcc, 500, v0
    s_waitcnt lgkmcnt(0)
    """)
    srd(a, SO, "s26", "s27", T * 4)
    srd(a, SI, "s24", "s25", T * 4)
    srd(a, SA, "s28", "s29", T * 2)
    a(f"""
    s_barrier
    s_and_saveexec_b64 s[54:55], vcc
    s_mov_b64 s[{sAct}:{sAct + 1}], exec
    """)
    issued = []

    def ld_issue(name):
        k, q = name[0], int(name[1:] or 0)
        if k == "F":
            a(f"global_load_ushort v{vF}, v6, s[30:31]")
        elif k == "O":
            a(f"buffer_load_dwordx4 {vr(vO + 4 * q, 4)}, v{vOff16}, s[{SO}:{SO + 3}], s{sOff + q} offen {ld}")
        elif k == "A":
            a(f"buffer_load_dwordx2 {vr(vA + 2 * q, 2)}, v{vOff8}, s[{SA}:{SA + 3}], s{sOffA + q} offen {ld}")
        else:
            a(f"buffer_load_dwordx4 {vr(vI + 4 * q, 4)}, v{vOff16}, s[{SI}:{SI + 3}], s{sOff + q} offen {ld}")
        issued.append(name)

    def ld_wait(name):
        a(f"s_waitcnt vmcnt({len(issued) - 1 - issued.index(name)})")

    for n in ("O0", "O1", "O2", "O3", "O4", "F"):
        ld_issue(n)
    a(f"""
    s_add_u32 s34, s32, s34
    s_addc_u32 s35, s33, 0
    """)
    srd(a, SR, "s34", "s35", CHB)
    a(f"""
    s_add_u32 s34, s32, {WS_SEG}
    s_addc_u32 s35, s33, 0
    """)
    srd(a, SG, "s34", "s35", NCH * 1024)
    st("issued")
    after_o = [("A0", "A1"), ("A2", "A3"), ("A4", "I0"), ("I1",), ("I2",)]
    for q in range(5):
        ld_wait(f"O{q}")
        for n in after_o[q]:
            ld_issue(n)
        if q in (0, 4):
            st(f"O{q}")
        for r in range(4):
            i = 4 * q + r
            a(f"v_mul_hi_u32_u24 v{vT + r}, s{sC625}, v{vO + i}")
        for r in range(4):
            i = 4 * q + r
            a(f"v_lshlrev_b32 v{vJ + i}, 2, v{vT + r}")
            a(f"v_mad_i32_i24 v{vO + i}, v{vT + r}, s{sM625}, v{vO + i}")
            a(f"ds_add_rtn_u32 v{vR + i}, v{vJ + i}, v{vSix} offset:{HIST}")
        for r in range(4):
            i = 4 * q + r
            a(f"v_lshrrev_b32 v{vT + r}, 1, v{vO + i}")
            a(f"v_lshl_or_b32 v{vO + i}, v{vO + i}, 9, v{vT + r}")
    a(f"""
    s_waitcnt lgkmcnt(0)
    s_mov_b64 exec, -1
    s_barrier
    """)
    st("bar2")
    c, b, x, ln = vT, vT + 4, vT + 8, vT + 9
    a(f"""
    v_and_b32 v{ln}, 63, v0
    v_lshlrev_b32 v{ln}, 4, v{ln}
    ds_read_b128 {vr(c, 4)}, v{ln} offset:{HIST}
    s_waitcnt lgkmcnt(0)
    v_add_u32 v{b + 2}, v{c}, v{c + 1}
    v_add_u32 v{b + 3}, v{b + 2}, v{c + 2}
    v_add_u32 v{b}, v{b + 3}, v{c + 3}
    v_mov_b32 v{x}, v{b}
    s_nop 1
    v_add_u32_dpp v{x}, v{x}, v{x} row_shr:1 row_mask:0xf bank_mask:0xf
    s_nop 1
    v_add_u32_dpp v{x}, v{x}, v{x} row_shr:2 row_mask:0xf bank_mask:0xf
    s_nop 1
    v_add_u32_dpp v{x}, v{x}, v{x} row_shr:4 row_mask:0xf bank_mask:0xf
    s_nop 1
    v_add_u32_dpp v{x}, v{x}, v{x} row_shr:8 row_mask:0xf bank_mask:0xf
    s_nop 1
    v_add_u32_dpp v{x}, v{x}, v{x} row_bcast:15 row_mask:0xa bank_mask:0xf
    s_nop 1
    v_add_u32_dpp v{x}, v{x}, v{x} row_bcast:31 row_mask:0xc bank_mask:0xf
    v_sub_u32 v{b}, v{x}, v{b}
    v_add_u32 v{b + 1}, v{b}, v{c}
    v_add_u32 v{b + 2}, v{b}, v{b + 2}
    v_add_u32 v{b + 3}, v{b}, v{b + 3}
    ds_write_b128 v{ln}, {vr(b, 4)} offset:{BASE}
    v_lshl_or_b32 v{vSeg}, v{c}, 16, v{b}
    v_lshl_or_b32 v{vSeg + 1}, v{c + 1}, 16, v{b + 1}
    v_lshl_or_b32 v{vSeg + 2}, v{c + 2}, 16, v{b + 2}
    v_lshl_or_b32 v{vSeg + 3}, v{c + 3}, 16, v{b + 3}
    s_mov_b64 exec, s[{sAct}:{sAct + 1}]
    """)
    ld_issue("I3")
    for i in range(20):
        a(f"ds_read_b32 v{vJ + i}, v{vJ + i} offset:{BASE}")
    for q in range(5):
        ld_wait(f"A{q}")
        if q == 0:
            a(f"v_lshlrev_b32 v{vF}, 16, v{vF}")
        if q == 2:
            ld_issue("I4")
        if q in (0, 4):
            st(f"A{q}")
        t = vT
        for p in range(2):
            d = vA + 2 * q + p
            a(f"v_lshlrev_b32 v{t + 2 * p}, 16, v{d}")
            a(f"v_and_b32 v{t + 2 * p + 1}, 0xffff0000, v{d}")
        for k in range(4):
            a(f"v_mul_f32 v{t + k}, v{vF}, v{t + k}")
        for p in range(2):
            a(f"v_cvt_pk_bf16_f32 v{vA + 2 * q + p}, v{t + 2 * p}, v{t + 2 * p + 1}")
        for p in range(2):
            d = vA + 2 * q + p
            a(f"v_lshlrev_b32 v{t + 2 * p}, 16, v{d}")
            a(f"v_and_b32 v{t + 2 * p + 1}, 0xffff0000, v{d}")
        for k in range(4):
            a(f"v_mul_f32 v{t + k}, 0.15915494, v{t + k}")
        for k in range(4):
            a(f"v_fract_f32 v{t + k}, v{t + k}")
        for k in range(4):
            a(f"v_cos_f32 v{t + k}, v{t + k}")
        a("s_waitcnt lgkmcnt(15)")
        for p in range(2):
            a(f"v_cvt_pk_bf16_f32 v{vA + 2 * q + p}, v{t + 2 * p}, v{t + 2 * p + 1}")
        for r in range(4):
            i = 4 * q + r
            a(f"v_add_u32 v{vR + i}, v{vJ + i}, v{vR + i}")
            a(f"v_and_b32 v{vJ + i}, -4, v{vR + i}")
            a(f"v_and_b32 v{vR + i}, 2, v{vR + i}")
            a(f"v_sub_u32 v{vR + i}, v{vJ + i}, v{vR + i}")
            op = "ds_write_b16_d16_hi" if r & 1 else "ds_write_b16"
            a(f"{op} v{vR + i}, v{vA + 2 * q + (r >> 1)} offset:8")
    for q in range(5):
        if q == 0:
            st("Bwr")
        ld_wait(f"I{q}")
        if q in (0, 4):
            st(f"I{q}")
        for r in range(4):
            i = 4 * q + r
            a(f"v_add_u32 v{vT + r}, s{sK}, v{vI + i}")
            a(f"v_lshlrev_b32 v{vI + i}, 14, v{vI + i}")
            a(f"v_lshrrev_b32 v{vT + r}, 15, v{vT + r}")
            a(f"v_and_or_b32 v{vI + i}, v{vO + i}, s{sMask}, v{vI + i}")
            a(f"v_and_or_b32 v{vI + i}, v{vT + r}, 4, v{vI + i}")
            a(f"ds_write_b32 v{vJ + i}, v{vI + i}")
    st("Awr")
    a(f"""
    s_mov_b64 exec, -1
    s_waitcnt lgkmcnt(0)
    s_barrier
    """)
    st("bar3")
    for i in range(8):
        a(f"ds_read_b128 {vr(vO + 4 * i, 4)}, v{vOff16} offset:{i * 8192}")
    for i in range(8):
        a(f"s_movk_i32 s54, {i * 8192}" if i * 8192 < 32768 else f"s_mov_b32 s54, {i * 8192}")
        a(f"s_waitcnt lgkmcnt({7 - i})")
        a(f"buffer_store_dwordx4 {vr(vO + 4 * i, 4)}, v{vOff16}, s[{SR}:{SR + 3}], s54 offen {P['k1_st']}")
    a(f"""
    v_cmp_gt_u32 vcc, 64, v0
    s_and_b64 exec, exec, vcc
    s_cbranch_execz L1_noseg
    s_lshl_b32 s54, s2, 10
    buffer_store_dwordx4 {vr(vSeg, 4)}, v{vOff16}, s[{SG}:{SG + 3}], s54 offen {P["k1_seg_st"]}
    L1_noseg:
    """)
    st("stissued")
    if P["stamps"]:
        a("s_waitcnt vmcnt(0)")
    st("end")
    st.flush(34, "s2", vT)
    a(f"""
    s_endpgm
    L1_par:
    s_cmp_gt_u32 s2, {NCH}
    s_cbranch_scc1 L1_end
    v_cmp_gt_u32 vcc, 64, v0
    s_and_b64 exec, exec, vcc
    s_cbranch_execz L1_end
    s_load_dwordx2 s[4:5], s[0:1], 40
    s_load_dwordx4 s[8:11], s[0:1], 56
    s_load_dwordx4 s[12:15], s[0:1], 72
    s_load_dwordx2 s[16:17], s[0:1], 104
    v_and_b32 v1, 15, v0
    v_lshrrev_b32 v2, 4, v0
    v_lshlrev_b32 v1, 1, v1
    v_lshl_add_u32 v3, v2, 7, v1
    v_lshl_add_u32 v4, v2, 6, v1
    v_lshlrev_b32 v5, 2, v2
    v_lshlrev_b32 v6, 5, v0
    v_add_u32 v6, {WS_PAR}, v6
    s_waitcnt lgkmcnt(0)
    """)
    for k in range(4):
        a(f"global_load_ushort v{8 + k}, v3, s[12:13] offset:{32 * k}")
        a(f"global_load_ushort v{12 + k}, v3, s[14:15] offset:{32 * k}")
    for k in range(2):
        a(f"global_load_ushort v{16 + k}, v4, s[10:11] offset:{32 * k}")
        a(f"global_load_ushort v{18 + k}, v4, s[8:9] offset:{32 * k}")
    a(f"""
    global_load_dword v20, v5, s[4:5]
    s_waitcnt vmcnt(0)
    v_lshl_or_b32 v24, v9, 16, v8
    v_lshl_or_b32 v25, v11, 16, v10
    v_lshl_or_b32 v26, v13, 16, v12
    v_lshl_or_b32 v27, v15, 16, v14
    v_lshl_or_b32 v28, v17, 16, v16
    v_lshl_or_b32 v29, v19, 16, v18
    v_lshlrev_b32 v30, 16, v20
    v_and_b32 v31, 0xffff0000, v20
    global_store_dwordx4 v6, v[24:27], s[16:17]
    global_store_dwordx4 v6, v[28:31], s[16:17] offset:16
    L1_end:
    s_endpgm
    """)
    return a.text(), 116, 64, 65536


def gen_k2(P):
    a = Asm()
    D = P["D"]
    R = D + 1
    assert R == 4
    CNT, BB, SB, AB, DESC, RING = 0, 1024, 32768, 40960, 106496, 108544
    LDS = RING + 8 * R * 1024
    SENT_REL = 80 * CAP * 4
    SENT = 0x7FFFFFE0
    SREC, SM, SOUT, SSEG, SDIST = 4, 8, 12, 16, 20
    sJ, sW = 3, 2
    sFlag = 50
    sPtr = 24
    sMk = 34
    sC192, sLast, sFirst, sSC, sSU = 24, 25, 26, 27, 28
    sM31, sF0, sRingB, sPrev, sCur, sWA, sRowOff = 29, 30, 31, 32, 33, 34, 35
    sM, sL, sA, sC, sN = 36, 38, 39, 40, 41
    sT = 42
    vLane, vLL12, vFour, vZero = 1, 2, 3, 4
    vLH4, vHalf16, vSc, vSrd, vTr, vTab, vCntA, vS128, vSteps = 5, 6, 7, 8, 9, 10, 11, 12, 13
    vMoff, vOut4, vPf, vPf2 = 14, 15, 16, 17
    vT = 18
    vSlot = 32
    vD0, vD1 = 100, 116
    vAcc = 132
    vG, vH = 152, 172
    vMr = 192
    vDist = 202
    vWraw = 208
    vCen = vWraw + 6
    vFlag = 222
    vDoff = 223
    vWd, vWu = 224, 228
    vWs, vWr, vRb = 232, 234, 236
    vMt, vSt = 240, 244
    vQ = 248

    def fill():
        a(f"""
        v_mov_b32 v{vQ}, 0
        v_mov_b32 v{vQ + 1}, 0
        v_mov_b32 v{vQ + 2}, 0
        v_mov_b32 v{vQ + 3}, 0
        v_mov_b32 v{vQ + 4}, {SENT}
        v_mov_b32 v{vQ + 5}, v{vQ + 4}
        v_mov_b32 v{vQ + 6}, v{vQ + 4}
        v_mov_b32 v{vQ + 7}, v{vQ + 4}
        """)
        for i in range(5):
            a(f"ds_write_b128 v{vPf}, {vr(vQ, 4)} offset:{i * 8192}")
        for i in range(8):
            a(f"ds_write_b128 v{vPf2}, {vr(vQ + 4, 4)} offset:{i * 8192}")

    def place_atomics(w, mA, mB, t):
        a(f"""
        s_mov_b64 exec, s[{mA}:{mA + 1}]
        v_and_b32 v{t}, 0x1fc, v{w}
        ds_add_rtn_u32 v{t + 2}, v{t}, v{vFour} offset:{CNT}
        s_mov_b64 exec, s[{mB}:{mB + 1}]
        v_and_b32 v{t + 1}, 0x1fc, v{w + 1}
        ds_add_rtn_u32 v{t + 3}, v{t + 1}, v{vFour} offset:{CNT}
        """)

    def place_writes(w, mA, mB, t):
        a(f"""
        s_mov_b64 exec, s[{mA}:{mA + 1}]
        v_mad_u32_u24 v{t}, v{t}, s{sC192}, v{t + 2}
        v_lshrrev_b32 v{w}, 9, v{w}
        v_lshrrev_b32 v{t + 2}, 1, v{t}
        ds_write_b32 v{t}, v{w} offset:{AB}
        ds_write_b16 v{t + 2}, v{w + 2} offset:{BB}
        s_mov_b64 exec, s[{mB}:{mB + 1}]
        v_mad_u32_u24 v{t + 1}, v{t + 1}, s{sC192}, v{t + 3}
        v_lshrrev_b32 v{w + 1}, 9, v{w + 1}
        v_lshrrev_b32 v{t + 3}, 1, v{t + 1}
        ds_write_b32 v{t + 1}, v{w + 1} offset:{AB}
        ds_write_b16_d16_hi v{t + 3}, v{w + 2} offset:{BB}
        """)

    st = Stamps(a, P, 1, 207, 0)
    a(f"""
    s_cmp_ge_u32 s2, {NCH}
    s_cbranch_scc1 L2_end
    s_load_dwordx2 s[4:5], s[0:1], 104
    s_load_dwordx2 s[8:9], s[0:1], 0
    s_load_dwordx2 s[12:13], s[0:1], 88
    s_load_dwordx2 s[20:21], s[0:1], 24
    """)
    if P["xl"]:
        a(f"""
        s_and_b32 s{sJ}, s2, 7
        s_lshl_b32 s{sJ}, s{sJ}, 5
        s_lshr_b32 s{sT}, s2, 3
        s_add_u32 s{sJ}, s{sJ}, s{sT}
        """)
    else:
        a(f"s_mov_b32 s{sJ}, s2")
    a(f"""
    v_lshrrev_b32 v{vT}, 6, v0
    v_and_b32 v{vLane}, 63, v0
    v_readfirstlane_b32 s{sW}, v{vT}
    v_and_b32 v{vT + 1}, 31, v0
    v_lshl_add_u32 v{vT + 2}, v{vT}, 5, v{vT + 1}
    v_lshlrev_b32 v{vT + 3}, 10, v{vT + 2}
    v_mul_u32_u24 v{vLL12}, 12, v{vT + 1}
    v_lshlrev_b32 v{vPf}, 4, v0
    v_add_u32 v{vPf2}, {AB}, v{vPf}
    v_lshlrev_b32 v{vT + 5}, 5, v{vLane}
    s_lshl_b32 s{sT}, s{sJ}, 2
    s_waitcnt lgkmcnt(0)
    s_add_u32 s16, s4, {WS_SEG}
    s_addc_u32 s17, s5, 0
    s_and_b32 s17, s17, 0xffff
    s_mov_b32 s18, {NCH * 1024 + 2048}
    s_mov_b32 s19, 0x20000
    s_mov_b32 s24, {NCH * 1024}
    buffer_load_dword v{vT + 4}, v{vT + 3}, s[{SSEG}:{SSEG + 3}], s{sT} offen {P["k2_seg_ld"]}
    buffer_load_dwordx4 {vr(vWraw, 4)}, v{vT + 5}, s[{SSEG}:{SSEG + 3}], s24 offen
    buffer_load_dwordx4 {vr(vWraw + 4, 4)}, v{vT + 5}, s[{SSEG}:{SSEG + 3}], s24 offen offset:16
    s_and_b32 s5, s5, 0xffff
    s_mov_b32 s6, {NCH * CHB}
    s_mov_b32 s7, 0x20000
    s_and_b32 s9, s9, 0xffff
    s_mov_b32 s10, {E * 32}
    s_mov_b32 s11, 0x20000
    s_and_b32 s13, s13, 0xffff
    s_mov_b32 s14, {E * 32}
    s_mov_b32 s15, 0x20000
    s_and_b32 s21, s21, 0xffff
    s_mov_b32 s22, {E * 2}
    s_mov_b32 s23, 0x20000
    """)
    st("segissued")
    a(f"""
    v_and_b32 v{vT + 6}, 15, v{vLane}
    v_lshrrev_b32 v{vT + 7}, 4, v{vLane}
    v_mul_u32_u24 v{vT + 8}, 80, v{vT}
    v_add_u32 v{vT + 8}, v{vT + 8}, v{vT + 6}
    v_lshlrev_b32 v{vMoff}, 5, v{vT + 8}
    v_lshl_add_u32 v{vMoff}, v{vT + 7}, 3, v{vMoff}
    v_cmp_gt_u32 vcc, {BK - 64}, v{vT + 8}
    v_mov_b32 v{vT + 9}, 0x7fffff00
    v_lshlrev_b32 v{vDoff}, 1, v{vT + 8}
    v_cndmask_b32 v{vOut4}, v{vT + 9}, v{vMoff}, vcc
    """)
    nmisc = 2

    def late_loads():
        a(f"""
        s_mov_b64 exec, -1
        s_mul_i32 s26, s{sJ}, {BK * 2}
        s_mul_i32 s27, s{sJ}, {BK * 32}
        """)
        for g in range(5):
            a(f"buffer_load_ushort v{vDist + g}, v{vDoff}, s[{SDIST}:{SDIST + 3}], s26 offen offset:{32 * g}")
        for g in range(5):
            a(f"buffer_load_dwordx2 {vr(vMr + 2 * g, 2)}, v{vMoff}, s[{SM}:{SM + 3}], s27 offen offset:{512 * g}")
        return 10

    a(f"""
    v_mov_b32 v{vFour}, 4
    v_mov_b32 v{vZero}, 0
    v_lshrrev_b32 v{vT + 5}, 1, v{vLane}
    v_lshlrev_b32 v{vLH4}, 2, v{vT + 5}
    v_and_b32 v{vHalf16}, 1, v{vLane}
    v_lshlrev_b32 v{vHalf16}, 4, v{vHalf16}
    v_bfe_u32 v{vT + 6}, v{vT + 5}, 2, 1
    v_bfe_u32 v{vT + 7}, v{vT + 5}, 4, 1
    v_lshl_add_u32 v{vT + 6}, v{vT + 7}, 1, v{vT + 6}
    v_and_b32 v{vT + 7}, 3, v{vT + 5}
    v_bfe_u32 v{vT + 8}, v{vT + 5}, 3, 1
    v_lshl_add_u32 v{vT + 7}, v{vT + 8}, 2, v{vT + 7}
    v_lshlrev_b32 v{vT + 7}, 1, v{vT + 7}
    v_lshl_add_u32 v{vSc}, v{vT + 6}, 8, v{vT + 7}
    v_lshlrev_b32 v{vT + 8}, 10, v{vT}
    v_add_u32 v{vT + 8}, {SB}, v{vT + 8}
    v_add_u32 v{vSc}, v{vSc}, v{vT + 8}
    v_lshl_add_u32 v{vSrd}, v{vLane}, 4, v{vT + 8}
    v_bfe_u32 v{vT + 6}, v{vLane}, 4, 1
    v_bfe_u32 v{vT + 7}, v{vLane}, 5, 1
    v_lshlrev_b32 v{vT + 7}, 4, v{vT + 7}
    v_lshl_add_u32 v{vT + 6}, v{vT + 6}, 2, v{vT + 7}
    v_bfe_u32 v{vT + 7}, v{vLane}, 2, 2
    v_add_u32 v{vT + 6}, v{vT + 6}, v{vT + 7}
    v_and_b32 v{vT + 7}, 3, v{vLane}
    v_lshlrev_b32 v{vT + 7}, 3, v{vT + 7}
    v_lshl_add_u32 v{vTr}, v{vT + 6}, 5, v{vT + 7}
    v_lshlrev_b32 v{vT + 8}, 12, v{vT}
    v_add_u32 v{vT + 8}, {RING}, v{vT + 8}
    v_add_u32 v{vTr}, v{vTr}, v{vT + 8}
    v_mul_u32_u24 v{vT + 6}, 43, v{vLane}
    v_lshrrev_b32 v{vT + 6}, 8, v{vT + 6}
    v_mul_u32_u24 v{vT + 7}, 6, v{vT + 6}
    v_sub_u32 v{vT + 7}, v{vLane}, v{vT + 7}
    v_lshlrev_b32 v{vS128}, 7, v{vT + 7}
    v_lshlrev_b32 v{vT + 8}, 1, v{vT + 6}
    v_subrev_u32 v{vT + 9}, 9, v{vT + 8}
    v_cmp_lt_u32 vcc, 4, v{vT + 6}
    v_mul_u32_u24 v{vT + 10}, 10, v{vT}
    s_nop 0
    v_cndmask_b32 v{vT + 8}, v{vT + 8}, v{vT + 9}, vcc
    v_add_u32 v{vT + 8}, v{vT + 8}, v{vT + 10}
    v_lshlrev_b32 v{vCntA}, 2, v{vT + 8}
    v_mul_u32_u24 v{vT + 8}, {CAP * 4}, v{vT + 8}
    v_add_u32 v{vTab}, v{vT + 8}, v{vS128}
    v_cmp_lt_u32 vcc, 59, v{vLane}
    v_mov_b32 v{vT + 8}, {SENT_REL}
    v_mov_b32 v{vT + 9}, 0x7fffffff
    v_cndmask_b32 v{vTab}, v{vTab}, v{vT + 8}, vcc
    v_cndmask_b32 v{vS128}, v{vS128}, v{vT + 9}, vcc
    v_cndmask_b32 v{vCntA}, v{vCntA}, v{vZero}, vcc
    """)
    for k in range(20):
        a(f"v_mov_b32 v{vAcc + k}, 0")
    w = vT + 4
    a(f"""
    v_mul_u32_u24 v{vT + 2}, {CHB}, v{vT + 2}
    v_lshlrev_b32 v{vT + 5}, 8, v{vT}
    v_lshl_add_u32 v{vT + 3}, v{vT + 1}, 2, v{vT + 5}
    v_add_u32 v{vT + 3}, {DESC}, v{vT + 3}
    v_lshrrev_b32 v{vT + 6}, 5, v{vLane}
    v_lshl_add_u32 v{vT + 5}, v{vT + 6}, 6, v{vT + 5}
    v_add_u32 v{vT + 5}, {DESC}, v{vT + 5}
    """)
    st("consts")
    a(f"s_waitcnt vmcnt({nmisc})")
    st("seg")
    a(f"""
    v_bfe_u32 v{vT + 6}, v{w}, 1, 1
    v_mul_u32_u24 v{vT + 6}, 6, v{vT + 6}
    v_and_b32 v{vT + 7}, 0xffff, v{w}
    v_lshrrev_b32 v{w}, 16, v{w}
    v_add_u32 v{vT + 2}, v{vT + 2}, v{vT + 7}
    v_sub_u32 v{vT + 2}, v{vT + 2}, v{vT + 6}
    v_add_u32 v{w}, v{w}, v{vT + 6}
    v_min_u32 v{vT + 7}, 384, v{w}
    v_sub_u32 v{vT + 7}, v{vT + 7}, v{vT + 6}
    v_lshl_or_b32 v{vT + 7}, v{vT + 7}, 16, v{vT + 6}
    ds_write_b32 v{vT + 3}, v{vT + 2}
    ds_write_b32 v{vT + 3}, v{vT + 7} offset:128
    """)
    for k in range(4):
        a(f"ds_read_b128 {vr(vD0 + 4 * k, 4)}, v{vT + 5} offset:{16 * k}")
    for k in range(4):
        a(f"ds_read_b128 {vr(vD1 + 4 * k, 4)}, v{vT + 5} offset:{128 + 16 * k}")
    xD0, xD1 = vSlot + 4 * 16, vSlot + 4 * 16 + 1
    a(f"""
    v_max_u32 v{w}, 384, v{w}
    v_subrev_u32 v{w}, 384, v{w}
    v_cmp_gt_u32 vcc, 32, v{vLane}
    v_add_u32 v{vT + 2}, 384, v{vT + 2}
    s_nop 0
    v_cndmask_b32 v{w}, v{vZero}, v{w}, vcc
    v_min_u32 v{vT + 7}, 384, v{w}
    v_lshlrev_b32 v{vT + 7}, 16, v{vT + 7}
    v_cmp_lt_u32 vcc, 384, v{w}
    v_cmp_lt_u32 s[42:43], 0, v{w}
    s_nop 1
    s_bcnt1_i32_b64 s44, s[42:43]
    s_cmp_gt_u32 s44, 2
    s_cselect_b32 s{sFlag}, -1, vcc_lo
    s_cmp_lg_u32 s{sFlag}, 0
    s_cselect_b32 s{sFlag}, -1, 0
    """)
    if P["force_slow"]:
        a(f"s_mov_b32 s{sFlag}, -1")
    a(f"""
    v_mov_b32 v{vFlag}, s{sFlag}
    s_ff1_i32_b64 s44, s[42:43]
    s_bitset0_b64 s[42:43], s44
    s_ff1_i32_b64 s45, s[42:43]
    v_readlane_b32 s46, v{vT + 2}, s44
    v_readlane_b32 s47, v{vT + 7}, s44
    v_readlane_b32 s48, v{vT + 2}, s45
    v_readlane_b32 s49, v{vT + 7}, s45
    s_nop 1
    v_mov_b32 v{xD0}, s48
    v_mov_b32 v{xD1}, s49
    s_mov_b32 exec_hi, 0
    v_mov_b32 v{xD0}, s46
    v_mov_b32 v{xD1}, s47
    s_mov_b64 exec, -1
    s_waitcnt lgkmcnt(0)
    """)
    st("desc")
    NPRE = P["NPRE"]

    def rec_issue(i):
        d0 = vD0 + i if i < 16 else xD0
        d1 = vD1 + i if i < 16 else xD1
        mA, mB = sMk + 4 * i, sMk + 4 * i + 2
        t = vT + 8 + (i & 1) * 2
        a(f"""
        s_mov_b64 exec, -1
        v_sub_u32_sdwa v{t}, v{vLL12}, v{d1} dst_sel:DWORD dst_unused:UNUSED_PAD src0_sel:DWORD src1_sel:WORD_0
        v_add_u32 v{vSlot + 4 * i + 3}, v{d0}, v{vLL12}
        v_add_u32 v{t + 1}, 6, v{t}
        v_cmp_lt_u32_sdwa s[{mA}:{mA + 1}], v{t}, v{d1} src0_sel:DWORD src1_sel:WORD_1
        v_cmp_lt_u32_sdwa s[{mB}:{mB + 1}], v{t + 1}, v{d1} src0_sel:DWORD src1_sel:WORD_1
        s_or_b64 exec, s[{mA}:{mA + 1}], s[{mB}:{mB + 1}]
        buffer_load_dwordx3 {vr(vSlot + 4 * i, 3)}, v{vSlot + 4 * i + 3}, s[{SREC}:{SREC + 3}], 0 offen {P["k2_rec_ld"]}
        """)

    for i in range(NPRE):
        rec_issue(i)
    a("s_mov_b64 exec, -1")
    st("ldissued")
    fill()
    a(f"""
    s_movk_i32 s{sC192}, {CAP}
    s_waitcnt lgkmcnt(0)
    s_barrier
    s_mov_b64 exec, 1
    ds_or_b32 v{vZero}, v{vFlag} offset:{CNT + 80 * 4}
    """)
    st("bar1")
    tt = [vT, vT + 4]
    nis = NPRE
    nlate = 0
    a(f"s_waitcnt vmcnt({nis - 1})")
    st("slot0")
    place_atomics(vSlot, sMk, sMk + 2, tt[0])
    for i in range(17):
        if nis < 17:
            rec_issue(nis)
            nis += 1
        elif nlate == 0:
            nlate = late_loads()
        if i + 1 < 17:
            a(f"s_waitcnt vmcnt({nis - 1 - (i + 1) + nlate})")
            if i + 1 in (8, 16):
                st(f"slot{i + 1}")
            place_atomics(vSlot + 4 * (i + 1), sMk + 4 * (i + 1), sMk + 4 * (i + 1) + 2, tt[(i + 1) & 1])
            a(f"s_waitcnt lgkmcnt({2 if i == 0 else 6})")
        else:
            a("s_waitcnt lgkmcnt(4)")
        place_writes(vSlot + 4 * i, sMk + 4 * i, sMk + 4 * i + 2, tt[i & 1])
    a(f"""
    s_mov_b64 exec, -1
    s_mov_b32 s{sLast}, 1
    s_mov_b32 s{sFirst}, 1
    s_mov_b32 s{sM31}, 0xffffffe0
    s_movk_i32 s{sF0}, 0xf0
    s_lshl_b32 s{sRingB}, s{sW}, 12
    s_add_u32 s{sRingB}, s{sRingB}, {RING}
    s_mul_i32 s{sWA}, s{sW}, {10 * CAP * 4}
    s_mul_i32 s{sRowOff}, s{sJ}, {BK * 32}
    v_lshlrev_b32 v{vT}, 2, v{vLane}
    s_waitcnt lgkmcnt(0)
    """)
    st("intake")
    a("s_barrier")
    st("bar2")
    a(f"""
    ds_read_b32 v{vT + 1}, v{vT} offset:{CNT}
    ds_read_b32 v{vT + 2}, v{vT} offset:{CNT + 256}
    s_waitcnt lgkmcnt(0)
    v_max_u32 v{vT + 1}, v{vT + 1}, v{vT + 2}
    v_cmp_lt_u32 vcc, {CAP * 4}, v{vT + 1}
    s_cbranch_vccz L2_G
    """)
    a(f"""
    s_mov_b32 s{sSC}, 0
    s_mov_b32 s{sSU}, 0
    s_mov_b32 s{sLast}, 0
    L2_slow:
    s_waitcnt vmcnt(0) lgkmcnt(0)
    s_barrier
    """)
    fill()
    a(f"""
    s_waitcnt lgkmcnt(0)
    s_barrier
    s_cmp_lt_u32 s{sSC}, {NCH}
    s_cbranch_scc1 L2_slow_unit
    s_mov_b32 s{sLast}, 1
    s_branch L2_G
    L2_slow_unit:
    s_lshl_b32 s{sT}, s{sSC}, 10
    s_lshl_b32 s{sT + 1}, s{sJ}, 2
    s_add_u32 s{sT}, s{sT}, s{sT + 1}
    s_buffer_load_dword s{sT + 2}, s[{SSEG}:{SSEG + 3}], s{sT}
    s_waitcnt lgkmcnt(0)
    s_bfe_u32 s{sT}, s{sT + 2}, 0x10001
    s_mul_i32 s{sT}, s{sT}, 6
    s_and_b32 s{sT + 1}, s{sT + 2}, 0xffff
    s_lshr_b32 s{sT + 2}, s{sT + 2}, 16
    s_mul_i32 s{sT + 3}, s{sSC}, {CHB}
    s_add_u32 s{sT + 3}, s{sT + 3}, s{sT + 1}
    s_sub_u32 s{sT + 3}, s{sT + 3}, s{sT}
    s_add_u32 s{sT + 3}, s{sT + 3}, s{sSU}
    s_sub_u32 s{sT + 4}, s{sSU}, s{sT}
    s_cmp_lg_u32 s{sW}, 0
    s_cbranch_scc1 L2_slow_adv
    v_mul_u32_u24 v{vT}, 12, v{vLane}
    v_add_u32 v{vT + 1}, s{sT + 4}, v{vT}
    v_add_u32 v{vT + 2}, 6, v{vT + 1}
    v_cmp_gt_u32 s[{sT + 6}:{sT + 7}], s{sT + 2}, v{vT + 1}
    v_cmp_gt_u32 s[{sT + 8}:{sT + 9}], s{sT + 2}, v{vT + 2}
    s_or_b64 exec, s[{sT + 6}:{sT + 7}], s[{sT + 8}:{sT + 9}]
    buffer_load_dwordx3 {vr(vSlot, 3)}, v{vT}, s[{SREC}:{SREC + 3}], s{sT + 3} offen
    s_waitcnt vmcnt(0)
    """)
    place_atomics(vSlot, sT + 6, sT + 8, vT + 4)
    a("s_waitcnt lgkmcnt(0)")
    place_writes(vSlot, sT + 6, sT + 8, vT + 4)
    a(f"""
    s_mov_b64 exec, -1
    L2_slow_adv:
    s_add_u32 s{sSU}, s{sSU}, 768
    s_add_u32 s{sT}, s{sT}, s{sT + 2}
    s_cmp_lt_u32 s{sSU}, s{sT}
    s_cbranch_scc1 L2_slow_go
    s_add_u32 s{sSC}, s{sSC}, 1
    s_mov_b32 s{sSU}, 0
    L2_slow_go:
    s_waitcnt lgkmcnt(0)
    s_barrier
    """)

    def issue(wait_after_read):
        a(f"""
        s_ff1_i32_b64 s{sL}, s[{sM}:{sM + 1}]
        s_bitset0_b64 s[{sM}:{sM + 1}], s{sL}
        v_readlane_b32 s{sA}, v{vTab}, s{sL}
        """)

    a("L2_G:")
    a(f"""
    ds_read_b32 v{vT}, v{vCntA} offset:{CNT}
    s_mov_b32 s{sCur}, 0
    s_waitcnt lgkmcnt(0)
    v_cmp_gt_u32 s[{sM}:{sM + 1}], v{vT}, v{vS128}
    v_add_u32 v{vSteps}, 127, v{vT}
    v_lshrrev_b32 v{vSteps}, 7, v{vSteps}
    s_nop 1
    """)
    for k in range(D):
        issue(True)
        a(f"""
        s_add_u32 m0, s{sRingB}, {k * 1024}
        s_nop 0
        v_add_u32 v{vT + k}, s{sA}, v{vLH4}
        ds_read_b32 v{vT + k}, v{vT + k} offset:{AB}
        s_waitcnt lgkmcnt(0)
        v_and_or_b32 v{vT + k}, v{vT + k}, s{sM31}, v{vHalf16}
        buffer_load_dwordx4 v{vT + k}, s[{SM}:{SM + 3}], 0 offen {P["k2_gather"]} lds
        """)
    a(f"""
    s_movk_i32 s{sPrev}, {D * 1024}
    s_cmp_eq_u32 s{sFirst}, 0
    s_cbranch_scc1 L2_main
    s_mov_b32 s{sFirst}, 0
    """)
    st("Gissued")
    a(f"s_waitcnt vmcnt({D})")
    st("misc")
    a(f"""
    v_mov_b32 v{vWd}, v{vWraw}
    v_mov_b32 v{vWd + 1}, v{vWraw + 1}
    v_mov_b32 v{vWd + 2}, v{vWraw}
    v_mov_b32 v{vWd + 3}, v{vWraw + 1}
    v_mov_b32 v{vWu}, v{vWraw + 2}
    v_mov_b32 v{vWu + 1}, v{vWraw + 3}
    v_mov_b32 v{vWu + 2}, v{vWraw + 2}
    v_mov_b32 v{vWu + 3}, v{vWraw + 3}
    v_mov_b32 v{vWs}, v{vWraw + 4}
    v_mov_b32 v{vWr}, v{vWraw + 5}
    v_mov_b32 v{vWs + 1}, 0
    v_mov_b32 v{vWr + 1}, 0
    v_mov_b32 v{vRb + 1}, 0
    v_mov_b32 v{vRb + 3}, 0
    """)
    for g in range(5):
        t = vT + 4
        rb = vRb + 2 * (g & 1)
        a(f"""
        v_lshlrev_b32 v{t + 2}, 16, v{vDist + g}
        v_sub_f32 v{t}, v{t + 2}, v{vCen}
        v_sub_f32 v{t + 1}, v{t + 2}, v{vCen + 1}
        v_cvt_pk_bf16_f32 v{t + 2}, v{t}, v{t + 1}
        v_lshlrev_b32 v{t}, 16, v{t + 2}
        v_and_b32 v{t + 1}, 0xffff0000, v{t + 2}
        v_mul_f32 v{t}, v{t}, v{t}
        v_mul_f32 v{t + 1}, v{t + 1}, v{t + 1}
        v_cvt_pk_bf16_f32 v{t + 2}, v{t}, v{t + 1}
        v_lshlrev_b32 v{t}, 16, v{t + 2}
        v_and_b32 v{t + 1}, 0xffff0000, v{t + 2}
        v_mul_f32 v{t}, 0xc1200000, v{t}
        v_mul_f32 v{t + 1}, 0xc1200000, v{t + 1}
        v_cvt_pk_bf16_f32 v{t + 2}, v{t}, v{t + 1}
        v_lshlrev_b32 v{t}, 16, v{t + 2}
        v_and_b32 v{t + 1}, 0xffff0000, v{t + 2}
        v_mul_f32 v{t}, 0x3fb8aa3b, v{t}
        v_mul_f32 v{t + 1}, 0x3fb8aa3b, v{t + 1}
        v_exp_f32 v{t}, v{t}
        v_exp_f32 v{t + 1}, v{t + 1}
        s_nop 0
        v_cvt_pk_bf16_f32 v{rb}, v{t}, v{t + 1}
        s_nop 1
        v_mfma_f32_16x16x16_bf16 {vr(vG + 4 * g, 4)}, {vr(vWs, 2)}, {vr(rb, 2)}, 0
        v_mfma_f32_16x16x16_bf16 {vr(vH + 4 * g, 4)}, {vr(vWr, 2)}, {vr(rb, 2)}, 0
        """)
    st("GH")
    a("L2_main:")

    def split(src, dst, t):
        a(f"""
        v_cvt_pk_bf16_f32 v{dst}, v{src}, v{src + 1}
        v_cvt_pk_bf16_f32 v{dst + 1}, v{src + 2}, v{src + 3}
        v_lshlrev_b32 v{t}, 16, v{dst}
        v_and_b32 v{t + 1}, 0xffff0000, v{dst}
        v_lshlrev_b32 v{t + 2}, 16, v{dst + 1}
        v_and_b32 v{t + 3}, 0xffff0000, v{dst + 1}
        v_sub_f32 v{t}, v{src}, v{t}
        v_sub_f32 v{t + 1}, v{src + 1}, v{t + 1}
        v_sub_f32 v{t + 2}, v{src + 2}, v{t + 2}
        v_sub_f32 v{t + 3}, v{src + 3}, v{t + 3}
        v_cvt_pk_bf16_f32 v{dst + 2}, v{t}, v{t + 1}
        v_cvt_pk_bf16_f32 v{dst + 3}, v{t + 2}, v{t + 3}
        s_nop 1
        """)

    for h in range(2):
        for g in range(5):
            b = h * 5 + g
            acc = vAcc + 4 * g
            a(f"""
            v_readlane_b32 s{sN}, v{vSteps}, {6 * b}
            s_add_u32 s{sC}, s{sWA}, {(2 * g + h) * CAP * 4}
            s_cmp_eq_u32 s{sN}, 0
            s_cbranch_scc1 L2_bin{b}_done
            L2_bin{b}:
            s_ff1_i32_b64 s{sL}, s[{sM}:{sM + 1}]
            s_bitset0_b64 s[{sM}:{sM + 1}], s{sL}
            v_readlane_b32 s{sA}, v{vTab}, s{sL}
            v_add_u32 v{vT + 1}, s{sC}, v{vLH4}
            s_add_u32 m0, s{sRingB}, s{sPrev}
            v_add_u32 v{vT}, s{sA}, v{vLH4}
            v_lshrrev_b32 v{vT + 2}, 1, v{vT + 1}
            ds_read_b32 v{vT}, v{vT} offset:{AB}
            ds_read_b32 v{vT + 1}, v{vT + 1} offset:{AB}
            ds_read_u16 v{vT + 2}, v{vT + 2} offset:{BB}
            v_add_u32 v{vT + 3}, s{sCur}, v{vTr}
            s_mov_b32 s{sPrev}, s{sCur}
            s_add_u32 s{sCur}, s{sCur}, 1024
            s_and_b32 s{sCur}, s{sCur}, {R * 1024 - 1}
            s_add_u32 s{sC}, s{sC}, 128
            s_waitcnt lgkmcnt(2)
            v_and_or_b32 v{vT}, v{vT}, s{sM31}, v{vHalf16}
            buffer_load_dwordx4 v{vT}, s[{SM}:{SM + 3}], 0 offen {P["k2_gather"]} lds
            s_waitcnt lgkmcnt(0)
            v_lshlrev_b32 v{vT + 1}, 4, v{vT + 1}
            v_and_or_b32 v{vT + 1}, v{vT + 1}, s{sF0}, v{vSc}
            ds_write_b16 v{vT + 1}, v{vT + 2}
            ds_read_b128 {vr(vSt, 4)}, v{vSrd}
            ds_write_b16 v{vT + 1}, v{vZero}
            s_sub_u32 s{sN}, s{sN}, 1
            s_waitcnt vmcnt({D})
            ds_read_b64_tr_b16 {vr(vMt, 2)}, v{vT + 3}
            ds_read_b64_tr_b16 {vr(vMt + 2, 2)}, v{vT + 3} offset:256
            s_cmp_lg_u32 s{sN}, 0
            s_waitcnt lgkmcnt(0)
            v_mfma_f32_16x16x32_bf16 {vr(acc, 4)}, {vr(vMt, 4)}, {vr(vSt, 4)}, {vr(acc, 4)}
            s_cbranch_scc1 L2_bin{b}
            L2_bin{b}_done:
            """)
            if g == 4 or (h == 0 and g == 0):
                st(f"bin{b}")
            if h == 1:
                x, y, t = vT + 2, vT + 6, vT + 10
                a(f"""
                s_cmp_eq_u32 s{sLast}, 0
                s_cbranch_scc1 L2_epi{g}_done
                s_nop 5
                """)
                split(acc, x, t)
                a(f"""
                v_mfma_f32_16x16x32_bf16 {vr(y, 4)}, {vr(vWd, 4)}, {vr(x, 4)}, 0
                s_nop 7
                v_mul_f32 v{y}, v{y}, v{vG + 4 * g}
                v_mul_f32 v{y + 1}, v{y + 1}, v{vG + 4 * g + 1}
                v_mul_f32 v{y + 2}, v{y + 2}, v{vG + 4 * g + 2}
                v_mul_f32 v{y + 3}, v{y + 3}, v{vG + 4 * g + 3}
                """)
                split(y, x, t)
                mr = vMr + 2 * g
                a(f"""
                v_mfma_f32_16x16x32_bf16 {vr(y, 4)}, {vr(vWu, 4)}, {vr(x, 4)}, 0
                v_lshlrev_b32 v{t}, 16, v{mr}
                v_and_b32 v{t + 1}, 0xffff0000, v{mr}
                v_lshlrev_b32 v{t + 2}, 16, v{mr + 1}
                v_and_b32 v{t + 3}, 0xffff0000, v{mr + 1}
                s_nop 3
                v_fmac_f32 v{t}, v{y}, v{vH + 4 * g}
                v_fmac_f32 v{t + 1}, v{y + 1}, v{vH + 4 * g + 1}
                v_fmac_f32 v{t + 2}, v{y + 2}, v{vH + 4 * g + 2}
                v_fmac_f32 v{t + 3}, v{y + 3}, v{vH + 4 * g + 3}
                v_cvt_pk_bf16_f32 v{mr}, v{t}, v{t + 1}
                v_cvt_pk_bf16_f32 v{mr + 1}, v{t + 2}, v{t + 3}
                buffer_store_dwordx2 {vr(mr, 2)}, v{vOut4 if g == 4 else vMoff}, s[{SOUT}:{SOUT + 3}], s{sRowOff} offen offset:{512 * g} {P["k2_out_st"]}
                L2_epi{g}_done:
                """)
    a(f"""
    s_cmp_eq_u32 s{sLast}, 0
    s_cbranch_scc1 L2_slow
    """)
    if P["stamps"]:
        a("s_waitcnt vmcnt(0)")
    st("end")
    st.flush(16, "s3", vT)
    a("""
    L2_end:
    s_endpgm
    """)
    return a.text(), 256, 102, LDS


def descriptor(name, nv, ns):
    return f""".amdhsa_kernel {name}
  .amdhsa_next_free_vgpr {nv}
  .amdhsa_next_free_sgpr {ns}
  .amdhsa_accum_offset {(nv + 3) // 4 * 4}
  .amdhsa_group_segment_fixed_size 0
  .amdhsa_kernarg_size 112
  .amdhsa_user_sgpr_count 2
  .amdhsa_user_sgpr_kernarg_segment_ptr 1
  .amdhsa_system_sgpr_workgroup_id_x 1
  .amdhsa_float_denorm_mode_32 3
.end_amdhsa_kernel
"""


def generate(**kw):
    P = dict(DEFAULTS)
    P.update(kw)
    k1, k1v, k1s, k1l = gen_k1(P)
    k2, k2v, k2s, k2l = gen_k2(P)
    n1, n2 = "gemnet_bin_kernel", NAME + "_kernel"
    out = HEADER
    out += f"; @launch kernel={n1} grid=({NCH + 1},1,1) block=(512,1,1) lds={k1l}\n"
    out += f"; @launch kernel={n2} grid=({NCH},1,1) block=(512,1,1) lds={k2l}\n"
    out += '.amdgcn_target "amdgcn-amd-amdhsa--gfx950"\n.text\n'
    for n, body in ((n1, k1), (n2, k2)):
        out += f".globl {n}\n.p2align 8\n.type {n},@function\n{n}:\n{body}"
    out += '.section .rodata,"a"\n.p2align 6\n' + descriptor(n1, k1v, k1s)
    out += ".p2align 6\n" + descriptor(n2, k2v, k2s)
    return out


if __name__ == "__main__":
    path = sys.argv[1]
    kw = {}
    for arg in sys.argv[2:]:
        k, v = arg.split("=", 1)
        kw[k] = int(v) if v.lstrip("-").isdigit() else v
    open(path, "w").write(generate(**kw))
```

```python
import sys
from gen import Asm, vr, srd, Stamps, descriptor, NAME, E, T, NCH, CH, BK, CHB, WS_SEG, CAP

SPIN_MAX = 1 << 18
CS = 60160

DEFAULTS = dict(
    HS=80000,
    D=3,
    in_ld="nt",
    rec_st="sc1",
    rec_ld="sc1",
    out_st="",
    gather="",
    sleep=4,
    NPRE=7,
    xl=1,
    stamps=0,
    force_slow=0,
)

HEADER = """; Kernarg layout for this problem (112 bytes, ptrs only, base s[0:1]):
;
"""


def gen(P):
    a = Asm()
    D = P["D"]
    R = D + 1
    assert R == 4
    CNT, BB, SB, HIST, BASE, AB, RING = 0, 512, 31232, 39424, 40448, 41472, 103040
    STG = RING
    DESC = RING + 8 * R * 1024
    LDS = 163840
    SENT_REL = 80 * CAP * 4
    SENT = 0x7FFFFFE0
    sCh, sJ = 2, 3
    SO, SI, SA, SRW, SSEG, SREC, SM, SOUT, SDIST, SDBG = 4, 8, 12, 16, 20, 24, 28, 32, 36, 40
    pM, pI, pO, pDist, pAng, pCen, pFreq, pWr, pWs, pWd, pWu, pOut, pDbg, pWsp = range(44, 72, 2)
    sOff, sOffA = 72, 77
    sC625, sM625, sK, sMask, sAct, sW, sSpin, sX = 82, 83, 84, 85, 86, 88, 89, 90
    sMk = 44
    sPend, sReady, sNs, sJ4, sTk = 76, 77, 78, 79, 80
    sLate = 4
    sDo, sMo = 6, 7
    sC192, sLast, sFirst, sSC, sSU = 82, 83, 84, 85, 86
    sM31, sF0, sRingB, sPrev, sCur, sWA, sRowOff = 44, 45, 46, 47, 48, 49, 50
    sM, sL, sA, sC, sN = 52, 54, 55, 56, 57
    sT = 58
    st = Stamps(a, P, 0, 207, 98)
    vOff16, vOff8, vSix, vF = 1, 2, 3, 4
    vO, vI, vA, vJ, vR = 8, 28, 48, 58, 78
    vP = 98
    vSeg = 112
    vLane, vLL12, vFour, vZero = 1, 2, 3, 4
    vLH4, vHalf16, vSc, vSrd, vTr, vTab, vCntA, vS128, vSteps = 5, 6, 7, 8, 9, 10, 11, 12, 13
    vMoff, vOut4, vPf, vPf2 = 14, 15, 16, 17
    vT = 18
    vSlot = 32
    vD0, vLo, vHi, vSegA, vCb, vSegW, vDw, vDr, vDoff = range(100, 109)
    vL0, vL1 = 64, 80
    vPar = 116
    vAcc = 132
    vG, vH = 152, 172
    vMr = 192
    vDist = 202
    vWraw = 208
    vCen = 220
    vCtr = 222
    vWd, vWu = 224, 228
    vWs, vWr, vRb = 232, 234, 236
    vMt, vSt = 240, 244
    vQ = 248

    def fill(pf, pf2, tmp):
        a(f"""
        v_mov_b32 v{vQ}, 0
        v_mov_b32 v{vQ + 1}, 0
        v_mov_b32 v{vQ + 2}, 0
        v_mov_b32 v{vQ + 3}, 0
        v_mov_b32 v{vQ + 4}, {SENT}
        v_mov_b32 v{vQ + 5}, v{vQ + 4}
        v_mov_b32 v{vQ + 6}, v{vQ + 4}
        v_mov_b32 v{vQ + 7}, v{vQ + 4}
        v_cmp_gt_u32 vcc, {(HIST - 32768) // 16}, v0
        """)
        for i in range(4):
            a(f"ds_write_b128 v{pf}, {vr(vQ, 4)} offset:{i * 8192}")
        for i in range(8):
            a(f"ds_write_b128 v{pf2}, {vr(vQ + 4, 4)} offset:{i * 8192}")
        a(f"""
        s_and_saveexec_b64 s[{tmp}:{tmp + 1}], vcc
        ds_write_b128 v{pf}, {vr(vQ, 4)} offset:32768
        s_mov_b64 exec, s[{tmp}:{tmp + 1}]
        """)

    def place_atomics(w, mA, mB, t):
        a(f"""
        s_mov_b64 exec, s[{mA}:{mA + 1}]
        v_and_b32 v{t}, 0x1fc, v{w}
        ds_add_rtn_u32 v{t + 2}, v{t}, v{vFour} offset:{CNT}
        s_mov_b64 exec, s[{mB}:{mB + 1}]
        v_and_b32 v{t + 1}, 0x1fc, v{w + 1}
        ds_add_rtn_u32 v{t + 3}, v{t + 1}, v{vFour} offset:{CNT}
        """)

    def place_writes(w, mA, mB, t):
        a(f"""
        s_mov_b64 exec, s[{mA}:{mA + 1}]
        v_mad_u32_u24 v{t}, v{t}, s{sC192}, v{t + 2}
        v_lshrrev_b32 v{w}, 9, v{w}
        v_lshrrev_b32 v{t + 2}, 1, v{t}
        ds_write_b32 v{t}, v{w} offset:{AB}
        ds_write_b16 v{t + 2}, v{w + 2} offset:{BB}
        s_mov_b64 exec, s[{mB}:{mB + 1}]
        v_mad_u32_u24 v{t + 1}, v{t + 1}, s{sC192}, v{t + 3}
        v_lshrrev_b32 v{w + 1}, 9, v{w + 1}
        v_lshrrev_b32 v{t + 3}, 1, v{t + 1}
        ds_write_b32 v{t + 1}, v{w + 1} offset:{AB}
        ds_write_b16_d16_hi v{t + 3}, v{w + 2} offset:{BB}
        """)

    ld = P["in_ld"]
    a(f"""
    s_cmp_ge_u32 s2, {NCH}
    s_cbranch_scc1 L_end
    """)
    st("start")
    a(f"""
    s_load_dwordx16 s[44:59], s[0:1], 0
    s_load_dwordx8 s[60:67], s[0:1], 64
    s_load_dwordx4 s[68:71], s[0:1], 96
    v_lshlrev_b32 v{vOff16}, 4, v0
    v_lshlrev_b32 v{vOff8}, 3, v0
    v_lshlrev_b32 v5, 2, v0
    v_mov_b32 v6, 0
    v_mov_b32 v{vSix}, 6
    v_lshrrev_b32 v7, 6, v0
    s_mul_i32 s{sOff}, s2, {CH * 4}
    s_mul_i32 s{sOffA}, s2, {CH * 2}
    v_readfirstlane_b32 s{sW}, v7
    """)
    for q in range(1, 5):
        a(f"s_add_u32 s{sOff + q}, s{sOff}, {q * 8000}")
        a(f"s_add_u32 s{sOffA + q}, s{sOffA}, {q * 4000}")
    if P["xl"]:
        a(f"""
        s_and_b32 s{sJ}, s2, 7
        s_lshl_b32 s{sJ}, s{sJ}, 5
        s_lshr_b32 s{sX}, s2, 3
        s_add_u32 s{sJ}, s{sJ}, s{sX}
        """)
    else:
        a(f"s_mov_b32 s{sJ}, s2")
    a(f"""
    s_mov_b32 s{sC625}, 6871948
    s_mov_b32 s{sM625}, -{BK}
    s_mov_b32 s{sK}, {131072 - P["HS"]}
    s_mov_b32 s{sMask}, 0x1ff8
    ds_write_b32 v5, v6 offset:{HIST}
    v_cmp_gt_u32 vcc, 500, v0
    s_lshl_b32 s{sX + 2}, s2, 10
    s_cmp_eq_u32 s{sW}, 0
    s_cselect_b64 s[{sX}:{sX + 1}], -1, 0
    s_waitcnt lgkmcnt(0)
    """)
    srd(a, SO, f"s{pO}", f"s{pO + 1}", T * 4)
    a(f"""
    s_add_u32 s{SSEG}, s{pWsp}, {WS_SEG}
    s_addc_u32 s{SSEG + 1}, s{pWsp + 1}, 0
    s_and_b32 s{SSEG + 1}, s{SSEG + 1}, 0xffff
    s_mov_b32 s{SSEG + 2}, {NCH * 1024}
    s_mov_b32 s{SSEG + 3}, 0x20000
    s_barrier
    s_mov_b64 s[{sAct}:{sAct + 1}], vcc
    s_mov_b64 exec, vcc
    """)
    issued = []

    def ld_issue(name):
        k, q = name[0], int(name[1:] or 0)
        if k == "F":
            a(f"global_load_ushort v{vF}, v6, s[{pFreq}:{pFreq + 1}]")
        elif k == "C":
            a(f"""
            s_and_b64 exec, s[{sX}:{sX + 1}], 1
            s_and_b32 s{sX + 3}, s2, 3
            s_lshl_b32 s{sX + 3}, s{sX + 3}, 6
            buffer_atomic_add v7, v6, s[{SDBG}:{SDBG + 3}], s{sX + 3} offen
            s_mov_b64 exec, s[{sAct}:{sAct + 1}]
            """)
        elif k == "W":
            lo, hi, dst, ptr, off = ((-1, 0, 0, pWd, 0), (0, -1, 0, pWu, -512), (0xffff, 0, 4, pWs, 0),
                                     (0xffff0000, 0, 4, pWr, -256), (0, 1, 4, pCen, -512))[q]
            a(f"""
            s_and_b32 exec_lo, s{sX}, {lo}
            s_and_b32 exec_hi, s{sX}, {hi}
            global_load_dwordx4 {vr(vPar + dst, 4)}, v{vOff16}, s[{ptr}:{ptr + 1}] offset:{off}
            """)
            if q == 4:
                a(f"s_mov_b64 exec, s[{sAct}:{sAct + 1}]")
        elif k == "Z":
            a(f"""
            s_mov_b64 exec, s[{sX}:{sX + 1}]
            buffer_store_dwordx4 {vr(vQ, 4)}, v{vOff16}, s[{SSEG}:{SSEG + 3}], s{sX + 2} offen sc1
            s_mov_b64 exec, s[{sAct}:{sAct + 1}]
            """)
        elif k == "O":
            a(f"buffer_load_dwordx4 {vr(vO + 4 * q, 4)}, v{vOff16}, s[{SO}:{SO + 3}], s{sOff + q} offen {ld}")
        elif k == "A":
            a(f"buffer_load_dwordx2 {vr(vA + 2 * q, 2)}, v{vOff8}, s[{SA}:{SA + 3}], s{sOffA + q} offen {ld}")
        else:
            a(f"buffer_load_dwordx4 {vr(vI + 4 * q, 4)}, v{vOff16}, s[{SI}:{SI + 3}], s{sOff + q} offen {ld}")
        issued.append(name)

    def ld_wait(name):
        a(f"s_waitcnt vmcnt({len(issued) - 1 - issued.index(name)})")

    for n in ("O0", "O1", "O2", "O3", "O4", "F"):
        ld_issue(n)
    srd(a, SI, f"s{pI}", f"s{pI + 1}", T * 4)
    srd(a, SA, f"s{pAng}", f"s{pAng + 1}", T * 2)
    srd(a, SDBG, f"s{pDbg}", f"s{pDbg + 1}", 256)
    srd(a, SREC, f"s{pWsp}", f"s{pWsp + 1}", NCH * CS)
    srd(a, SM, f"s{pM}", f"s{pM + 1}", E * 32)
    srd(a, SOUT, f"s{pOut}", f"s{pOut + 1}", E * 32)
    srd(a, SDIST, f"s{pDist}", f"s{pDist + 1}", E * 2)
    a(f"""
    s_mul_i32 s{sX + 3}, s2, {CS}
    s_add_u32 s{SRW}, s{pWsp}, s{sX + 3}
    s_addc_u32 s{SRW + 1}, s{pWsp + 1}, 0
    s_and_b32 s{SRW + 1}, s{SRW + 1}, 0xffff
    s_mov_b32 s{SRW + 2}, {CHB}
    s_mov_b32 s{SRW + 3}, 0x20000
    s_mov_b64 exec, -1
    v_add_u32 v{vP + 4}, {AB}, v{vOff16}
    v_mov_b32 v7, 1
    """)
    fill(vOff16, vP + 4, sX + 4)
    a(f"s_mov_b64 exec, s[{sAct}:{sAct + 1}]")
    st("issued")
    after_o = [("Z", "A0", "A1"), ("A2", "A3"), ("A4", "I0"), ("I1",), ("I2",)]
    for q in range(5):
        ld_wait(f"O{q}")
        for n in after_o[q]:
            ld_issue(n)
        if q in (0, 4):
            st(f"O{q}")
        for r in range(4):
            i = 4 * q + r
            a(f"v_mul_hi_u32_u24 v{vP + r}, s{sC625}, v{vO + i}")
        for r in range(4):
            i = 4 * q + r
            a(f"v_lshlrev_b32 v{vJ + i}, 2, v{vP + r}")
            a(f"v_mad_i32_i24 v{vO + i}, v{vP + r}, s{sM625}, v{vO + i}")
            a(f"ds_add_rtn_u32 v{vR + i}, v{vJ + i}, v{vSix} offset:{HIST}")
        for r in range(4):
            i = 4 * q + r
            a(f"v_lshrrev_b32 v{vP + r}, 1, v{vO + i}")
            a(f"v_lshl_or_b32 v{vO + i}, v{vO + i}, 9, v{vP + r}")
    for q in range(5):
        ld_issue(f"W{q}")
    a(f"""
    s_waitcnt lgkmcnt(0)
    s_mov_b64 exec, -1
    s_barrier
    """)
    st("bar2")
    c, b, x, ln = vP, vP + 4, vP + 8, vP + 9
    a(f"""
    v_and_b32 v{ln}, 63, v0
    v_lshlrev_b32 v{ln}, 4, v{ln}
    ds_read_b128 {vr(c, 4)}, v{ln} offset:{HIST}
    s_waitcnt lgkmcnt(0)
    v_add_u32 v{b + 2}, v{c}, v{c + 1}
    v_add_u32 v{b + 3}, v{b + 2}, v{c + 2}
    v_add_u32 v{b}, v{b + 3}, v{c + 3}
    v_mov_b32 v{x}, v{b}
    s_nop 1
    v_add_u32_dpp v{x}, v{x}, v{x} row_shr:1 row_mask:0xf bank_mask:0xf
    s_nop 1
    v_add_u32_dpp v{x}, v{x}, v{x} row_shr:2 row_mask:0xf bank_mask:0xf
    s_nop 1
    v_add_u32_dpp v{x}, v{x}, v{x} row_shr:4 row_mask:0xf bank_mask:0xf
    s_nop 1
    v_add_u32_dpp v{x}, v{x}, v{x} row_shr:8 row_mask:0xf bank_mask:0xf
    s_nop 1
    v_add_u32_dpp v{x}, v{x}, v{x} row_bcast:15 row_mask:0xa bank_mask:0xf
    s_nop 1
    v_add_u32_dpp v{x}, v{x}, v{x} row_bcast:31 row_mask:0xc bank_mask:0xf
    v_sub_u32 v{b}, v{x}, v{b}
    v_add_u32 v{b}, {STG}, v{b}
    v_add_u32 v{b + 1}, v{b}, v{c}
    v_add_u32 v{b + 2}, v{b}, v{b + 2}
    v_add_u32 v{b + 3}, v{b}, v{b + 3}
    ds_write_b128 v{ln}, {vr(b, 4)} offset:{BASE}
    s_mov_b32 s{sX + 4}, {(0x80000000 - STG // 2) & 0xffffffff}
    """)
    for k in range(4):
        a(f"v_lshrrev_b32 v{x}, 1, v{b + k}")
        a(f"v_lshl_add_u32 v{vSeg + k}, v{c + k}, 14, v{x}")
        a(f"v_add_u32 v{vSeg + k}, s{sX + 4}, v{vSeg + k}")
    a(f"s_mov_b64 exec, s[{sAct}:{sAct + 1}]")
    ld_issue("I3")
    ld_issue("I4")
    for i in range(20):
        a(f"ds_read_b32 v{vJ + i}, v{vJ + i} offset:{BASE}")
    for q in range(5):
        ld_wait(f"A{q}")
        if q == 0:
            a(f"v_lshlrev_b32 v{vF}, 16, v{vF}")
            ld_issue("C")
        if q in (0, 4):
            st(f"A{q}")
        t = vP
        for p in range(2):
            d = vA + 2 * q + p
            a(f"v_lshlrev_b32 v{t + 2 * p}, 16, v{d}")
            a(f"v_and_b32 v{t + 2 * p + 1}, 0xffff0000, v{d}")
        for k in range(4):
            a(f"v_mul_f32 v{t + k}, v{vF}, v{t + k}")
        for p in range(2):
            a(f"v_cvt_pk_bf16_f32 v{vA + 2 * q + p}, v{t + 2 * p}, v{t + 2 * p + 1}")
        for p in range(2):
            d = vA + 2 * q + p
            a(f"v_lshlrev_b32 v{t + 2 * p}, 16, v{d}")
            a(f"v_and_b32 v{t + 2 * p + 1}, 0xffff0000, v{d}")
        for k in range(4):
            a(f"v_mul_f32 v{t + k}, 0.15915494, v{t + k}")
        for k in range(4):
            a(f"v_fract_f32 v{t + k}, v{t + k}")
        for k in range(4):
            a(f"v_cos_f32 v{t + k}, v{t + k}")
        a("s_waitcnt lgkmcnt(15)")
        for p in range(2):
            a(f"v_cvt_pk_bf16_f32 v{vA + 2 * q + p}, v{t + 2 * p}, v{t + 2 * p + 1}")
        for r in range(4):
            i = 4 * q + r
            a(f"v_add_u32 v{vR + i}, v{vJ + i}, v{vR + i}")
            a(f"v_and_b32 v{vJ + i}, -4, v{vR + i}")
            a(f"v_and_b32 v{vR + i}, 2, v{vR + i}")
            a(f"v_sub_u32 v{vR + i}, v{vJ + i}, v{vR + i}")
            op = "ds_write_b16_d16_hi" if r & 1 else "ds_write_b16"
            a(f"{op} v{vR + i}, v{vA + 2 * q + (r >> 1)} offset:8")
    for q in range(5):
        ld_wait(f"I{q}")
        if q in (0, 4):
            st(f"I{q}")
        for r in range(4):
            i = 4 * q + r
            a(f"v_add_u32 v{vP + r}, s{sK}, v{vI + i}")
            a(f"v_lshlrev_b32 v{vI + i}, 14, v{vI + i}")
            a(f"v_lshrrev_b32 v{vP + r}, 15, v{vP + r}")
            a(f"v_and_or_b32 v{vI + i}, v{vO + i}, s{sMask}, v{vI + i}")
            a(f"v_and_or_b32 v{vI + i}, v{vP + r}, 4, v{vI + i}")
            a(f"ds_write_b32 v{vJ + i}, v{vI + i}")
    vS = 64
    a(f"""
    s_mov_b64 exec, -1
    v_add_u32 v5, {STG}, v{vOff16}
    v_mov_b32 v{vP}, v{vOff16}
    s_waitcnt lgkmcnt(0)
    s_barrier
    """)
    st("bar3")
    for i in range(8):
        a(f"ds_read_b128 {vr(vS + 4 * i, 4)}, v5 offset:{i * 8192}")
    a(f"""
    s_mov_b64 exec, s[{sX}:{sX + 1}]
    ds_write_b128 v{vP}, {vr(vPar, 4)} offset:{HIST}
    ds_write_b128 v{vP}, {vr(vPar + 4, 4)} offset:{HIST + 1024}
    s_mov_b64 exec, -1
    """)
    for i in range(8):
        a(f"s_mov_b32 s{sX + 4}, {i * 8192}")
        a(f"s_waitcnt lgkmcnt({9 - i})")
        a(f"buffer_store_dwordx4 {vr(vS + 4 * i, 4)}, v{vP}, s[{SRW}:{SRW + 3}], s{sX + 4} offen {P['rec_st']}")
    st("stissued")
    a(f"""
    v_lshrrev_b32 v{vT}, 6, v0
    v_and_b32 v{vLane}, 63, v0
    v_lshlrev_b32 v{vCtr + 1}, 6, v{vLane}
    s_cmp_eq_u32 s{sW}, 7
    s_cselect_b32 exec_lo, 15, 0
    s_mov_b32 exec_hi, 0
    buffer_load_dword v{vCtr}, v{vCtr + 1}, s[{SDBG}:{SDBG + 3}], 0 offen sc1
    s_mov_b64 exec, -1
    v_and_b32 v{vT + 6}, 15, v{vLane}
    v_lshrrev_b32 v{vT + 7}, 4, v{vLane}
    v_mul_u32_u24 v{vT + 8}, 80, v{vT}
    v_add_u32 v{vT + 8}, v{vT + 8}, v{vT + 6}
    v_lshlrev_b32 v{vMoff}, 5, v{vT + 8}
    v_lshl_add_u32 v{vMoff}, v{vT + 7}, 3, v{vMoff}
    v_cmp_gt_u32 vcc, {BK - 64}, v{vT + 8}
    v_mov_b32 v{vT + 9}, 0x7fffff00
    v_lshlrev_b32 v{vDoff}, 1, v{vT + 8}
    v_cndmask_b32 v{vOut4}, v{vT + 9}, v{vMoff}, vcc
    v_lshlrev_b32 v{vT + 12}, 1, v{vT + 6}
    v_lshl_add_u32 v{vT + 13}, v{vT + 7}, 6, v{vT + 12}
    v_lshl_add_u32 v{vT + 12}, v{vT + 7}, 7, v{vT + 12}
    v_lshlrev_b32 v{vT + 11}, 2, v{vT + 7}
    v_mov_b32 v{vZero}, 0
    v_mov_b32 v{vFour}, 4
    v_and_b32 v{vT + 1}, 31, v0
    v_mul_u32_u24 v{vLL12}, 12, v{vT + 1}
    v_lshl_add_u32 v{vT + 2}, v{vT + 1}, 3, v{vT}
    v_lshlrev_b32 v{vSegA}, 10, v{vT + 2}
    v_mul_u32_u24 v{vCb}, {CS}, v{vT + 2}
    v_lshlrev_b32 v{vDw}, 8, v{vT}
    v_add_u32 v{vDw}, {DESC}, v{vDw}
    v_lshrrev_b32 v{vT + 2}, 5, v{vLane}
    v_lshl_add_u32 v{vDr}, v{vT + 2}, 6, v{vDw}
    v_lshlrev_b32 v{vPf}, 4, v0
    v_add_u32 v{vPf2}, {AB}, v{vPf}
    v_lshrrev_b32 v{vT + 5}, 1, v{vLane}
    v_lshlrev_b32 v{vLH4}, 2, v{vT + 5}
    v_and_b32 v{vHalf16}, 1, v{vLane}
    v_lshlrev_b32 v{vHalf16}, 4, v{vHalf16}
    v_bfe_u32 v{vT + 6}, v{vT + 5}, 2, 1
    v_bfe_u32 v{vT + 7}, v{vT + 5}, 4, 1
    v_lshl_add_u32 v{vT + 6}, v{vT + 7}, 1, v{vT + 6}
    v_and_b32 v{vT + 7}, 3, v{vT + 5}
    v_bfe_u32 v{vT + 8}, v{vT + 5}, 3, 1
    v_lshl_add_u32 v{vT + 7}, v{vT + 8}, 2, v{vT + 7}
    v_lshlrev_b32 v{vT + 7}, 1, v{vT + 7}
    v_lshl_add_u32 v{vSc}, v{vT + 6}, 8, v{vT + 7}
    v_lshlrev_b32 v{vT + 8}, 10, v{vT}
    v_add_u32 v{vT + 8}, {SB}, v{vT + 8}
    v_add_u32 v{vSc}, v{vSc}, v{vT + 8}
    v_lshl_add_u32 v{vSrd}, v{vLane}, 4, v{vT + 8}
    v_bfe_u32 v{vT + 6}, v{vLane}, 4, 1
    v_bfe_u32 v{vT + 7}, v{vLane}, 5, 1
    v_lshlrev_b32 v{vT + 7}, 4, v{vT + 7}
    v_lshl_add_u32 v{vT + 6}, v{vT + 6}, 2, v{vT + 7}
    v_bfe_u32 v{vT + 7}, v{vLane}, 2, 2
    v_add_u32 v{vT + 6}, v{vT + 6}, v{vT + 7}
    v_and_b32 v{vT + 7}, 3, v{vLane}
    v_lshlrev_b32 v{vT + 7}, 3, v{vT + 7}
    v_lshl_add_u32 v{vTr}, v{vT + 6}, 5, v{vT + 7}
    v_lshlrev_b32 v{vT + 8}, 12, v{vT}
    v_add_u32 v{vT + 8}, {RING}, v{vT + 8}
    v_add_u32 v{vTr}, v{vTr}, v{vT + 8}
    v_mul_u32_u24 v{vT + 6}, 43, v{vLane}
    v_lshrrev_b32 v{vT + 6}, 8, v{vT + 6}
    v_mul_u32_u24 v{vT + 7}, 6, v{vT + 6}
    v_sub_u32 v{vT + 7}, v{vLane}, v{vT + 7}
    v_lshlrev_b32 v{vS128}, 7, v{vT + 7}
    v_lshlrev_b32 v{vT + 8}, 1, v{vT + 6}
    v_subrev_u32 v{vT + 9}, 9, v{vT + 8}
    v_cmp_lt_u32 vcc, 4, v{vT + 6}
    v_mul_u32_u24 v{vT + 10}, 10, v{vT}
    s_nop 0
    v_cndmask_b32 v{vT + 8}, v{vT + 8}, v{vT + 9}, vcc
    v_add_u32 v{vT + 8}, v{vT + 8}, v{vT + 10}
    v_lshlrev_b32 v{vCntA}, 2, v{vT + 8}
    v_mul_u32_u24 v{vT + 8}, {CAP * 4}, v{vT + 8}
    v_add_u32 v{vTab}, v{vT + 8}, v{vS128}
    v_cmp_lt_u32 vcc, 59, v{vLane}
    v_mov_b32 v{vT + 8}, {SENT_REL}
    v_mov_b32 v{vT + 9}, 0x7fffffff
    v_cndmask_b32 v{vTab}, v{vTab}, v{vT + 8}, vcc
    v_cndmask_b32 v{vS128}, v{vS128}, v{vT + 9}, vcc
    v_cndmask_b32 v{vCntA}, v{vCntA}, v{vZero}, vcc
    """)
    for k in range(20):
        a(f"v_mov_b32 v{vAcc + k}, 0")
    a(f"""
    s_mov_b32 s{sSpin}, 0
    s_mov_b32 s97, 0
    s_movk_i32 s{sC192}, {CAP}
    s_mov_b32 s{sPend}, -1
    s_mov_b32 s{sReady}, 0
    s_lshl_b32 s{sJ4}, s{sJ}, 2
    s_mov_b64 s[{sLate}:{sLate + 1}], -1
    s_mul_i32 s{sDo}, s{sJ}, {BK * 2}
    s_mul_i32 s{sMo}, s{sJ}, {BK * 32}
    s_waitcnt vmcnt(0) lgkmcnt(0)
    s_cmp_lg_u32 s{sW}, 7
    s_cbranch_scc1 L_ctr_ok
    L_ctr:
    v_readlane_b32 s{sTk}, v{vCtr}, 0
    v_readlane_b32 s{sTk + 1}, v{vCtr}, 1
    s_add_u32 s{sTk}, s{sTk}, s{sTk + 1}
    v_readlane_b32 s{sTk + 1}, v{vCtr}, 2
    s_add_u32 s{sTk}, s{sTk}, s{sTk + 1}
    v_readlane_b32 s{sTk + 1}, v{vCtr}, 3
    s_add_u32 s{sTk}, s{sTk}, s{sTk + 1}
    s_cmp_ge_u32 s{sTk}, {NCH}
    s_cbranch_scc1 L_ctr_ok
    s_add_u32 s{sSpin}, s{sSpin}, 1
    s_cmp_gt_u32 s{sSpin}, {SPIN_MAX}
    s_cbranch_scc1 L_end
    s_sleep 2
    s_mov_b64 exec, 15
    buffer_load_dword v{vCtr}, v{vCtr + 1}, s[{SDBG}:{SDBG + 3}], 0 offen sc1
    s_mov_b64 exec, -1
    s_waitcnt vmcnt(0)
    s_branch L_ctr
    L_ctr_ok:
    """)
    st("drained")

    def late_loads():
        a(f"s_mov_b64 exec, s[{sLate}:{sLate + 1}]")
        for g in range(5):
            a(f"buffer_load_ushort v{vDist + g}, v{vDoff}, s[{SDIST}:{SDIST + 3}], s{sDo} offen offset:{32 * g}")
        for g in range(5):
            a(f"buffer_load_dwordx2 {vr(vMr + 2 * g, 2)}, v{vMoff}, s[{SM}:{SM + 3}], s{sMo} offen offset:{512 * g}")
        a(f"s_mov_b64 s[{sLate}:{sLate + 1}], 0")
        return 10

    def poll():
        a(f"""
        s_mov_b32 exec_lo, s{sPend}
        s_mov_b32 exec_hi, 0
        buffer_load_dword v{vSegW}, v{vSegA}, s[{SSEG}:{SSEG + 3}], s{sJ4} offen sc1
        """)

    a(f"""
    s_barrier
    s_mov_b64 exec, s[{sX}:{sX + 1}]
    buffer_store_dwordx4 {vr(vSeg, 4)}, v{vP}, s[{SSEG}:{SSEG + 3}], s{sX + 2} offen sc1
    """)
    st("pub")
    poll()
    a("s_mov_b64 exec, -1")
    for k in range(4):
        a(f"ds_read_u16 v{vWraw + k}, v{vT + 12} offset:{HIST + 32 * k}")
        a(f"ds_read_u16 v{vWraw + 4 + k}, v{vT + 12} offset:{HIST + 512 + 32 * k}")
    for k in range(2):
        a(f"ds_read_u16 v{vWraw + 8 + k}, v{vT + 13} offset:{HIST + 1024 + 32 * k}")
        a(f"ds_read_u16 v{vWraw + 10 + k}, v{vT + 13} offset:{HIST + 1280 + 32 * k}")
    a(f"""
    ds_read_b32 v{vCen}, v{vT + 11} offset:{HIST + 1536}
    s_waitcnt lgkmcnt(0)
    s_barrier
    s_branch L_polled
    L_nap:
    s_add_u32 s{sSpin}, s{sSpin}, 1
    s_cmp_gt_u32 s{sSpin}, {SPIN_MAX}
    s_cbranch_scc1 L_end
    s_cmp_eq_u32 s{sLate}, 0
    s_cbranch_scc1 L_nap2
    """)
    late_loads()
    a(f"""
    L_nap2:
    s_sleep {P["sleep"]}
    """)
    poll()
    a(f"""
    L_polled:
    s_mov_b32 exec_lo, s{sPend}
    s_mov_b32 exec_hi, 0
    s_waitcnt vmcnt(0)
    v_cmp_gt_i32 vcc, 0, v{vSegW}
    s_and_b32 s{sTk}, s{sPend}, vcc_lo
    s_andn2_b32 s{sPend}, s{sPend}, s{sTk}
    s_or_b32 s{sReady}, s{sReady}, s{sTk}
    s_cbranch_scc0 L_nap
    s_mov_b32 exec_lo, s{sTk}
    v_and_b32 v{vLo}, 1, v{vSegW}
    v_mul_u32_u24 v{vLo}, 6, v{vLo}
    v_and_b32 v{vT + 1}, 0x7fff, v{vSegW}
    v_bfe_u32 v{vT + 2}, v{vSegW}, 15, 15
    v_lshl_add_u32 v{vD0}, v{vT + 1}, 1, v{vCb}
    v_sub_u32 v{vD0}, v{vD0}, v{vLo}
    v_lshl_add_u32 v{vHi}, v{vT + 2}, 1, v{vLo}
    """)
    if P["stamps"]:
        a(f"""
        s_add_u32 s97, s97, 1
        s_memrealtime s[98:99]
        s_waitcnt lgkmcnt(0)
        s_mov_b32 s96, s98
        """)
    a(f"""
    s_mov_b32 exec_lo, -1
    v_lshl_add_u32 v{vT + 3}, v{vLane}, 2, v{vDw}
    ds_write_b32 v{vT + 3}, v{vZero} offset:128
    s_mov_b32 exec_lo, s{sReady}
    v_mbcnt_lo_u32_b32 v{vT}, s{sReady}, 0
    v_min_u32 v{vT + 1}, 384, v{vHi}
    v_and_b32 v{vT + 2}, 1, v{vT}
    v_lshrrev_b32 v{vT}, 1, v{vT}
    v_sub_u32 v{vHi}, v{vHi}, v{vT + 1}
    v_lshl_add_u32 v{vT}, v{vT + 2}, 4, v{vT}
    v_sub_u32 v{vT + 1}, v{vT + 1}, v{vLo}
    v_lshl_add_u32 v{vT}, v{vT}, 2, v{vDw}
    v_lshl_or_b32 v{vT + 1}, v{vT + 1}, 16, v{vLo}
    ds_write_b32 v{vT}, v{vD0}
    ds_write_b32 v{vT}, v{vT + 1} offset:128
    v_cmp_lt_u32 vcc, 0, v{vHi}
    v_add_u32 v{vD0}, 384, v{vD0}
    v_mov_b32 v{vLo}, 0
    s_bcnt1_i32_b32 s{sNs}, s{sReady}
    s_add_u32 s{sNs}, s{sNs}, 1
    s_lshr_b32 s{sNs}, s{sNs}, 1
    s_mov_b32 s{sReady}, vcc_lo
    s_mov_b64 exec, -1
    """)
    for k in range(4):
        a(f"ds_read_b128 {vr(vL0 + 4 * k, 4)}, v{vDr} offset:{16 * k}")
    for k in range(4):
        a(f"ds_read_b128 {vr(vL1 + 4 * k, 4)}, v{vDr} offset:{128 + 16 * k}")
    a("s_waitcnt lgkmcnt(0)")
    NPRE = P["NPRE"]
    assert NPRE <= 7
    ops = []
    stubs = []

    def rec_issue(i):
        if i == 16:
            a(f"s_cmp_eq_u32 s{sNs}, 16")
            a(f"s_cselect_b32 exec_lo, s{sPend}, 0")
            a(f"s_mov_b32 exec_hi, 0")
            a(f"buffer_load_dword v{vSegW}, v{vSegA}, s[{SSEG}:{SSEG + 3}], s{sJ4} offen sc1")
            ops.append("P")
            ops.extend(["L"] * late_loads())
            return
        w = vSlot + 4 * (i & 7)
        mA, mB = sMk + 4 * (i & 7), sMk + 4 * (i & 7) + 2
        t = vT + 8 + (i & 1) * 2
        a(f"""
        s_mov_b64 exec, -1
        v_sub_u32_sdwa v{t}, v{vLL12}, v{vL1 + i} dst_sel:DWORD dst_unused:UNUSED_PAD src0_sel:DWORD src1_sel:WORD_0
        v_add_u32 v{w + 3}, v{vL0 + i}, v{vLL12}
        v_add_u32 v{t + 1}, 6, v{t}
        v_cmp_lt_u32_sdwa s[{mA}:{mA + 1}], v{t}, v{vL1 + i} src0_sel:DWORD src1_sel:WORD_1
        v_cmp_lt_u32_sdwa s[{mB}:{mB + 1}], v{t + 1}, v{vL1 + i} src0_sel:DWORD src1_sel:WORD_1
        """)
        if i > 0:
            a(f"""
            s_cmp_eq_u32 s{sNs}, {i}
            s_cbranch_scc1 L_p{i}
            """)
            stubs.append(i)
        a(f"""
        s_or_b64 exec, s[{mA}:{mA + 1}], s[{mB}:{mB + 1}]
        buffer_load_dwordx3 {vr(w, 3)}, v{w + 3}, s[{SREC}:{SREC + 3}], 0 offen {P["rec_ld"]}
        L_q{i}:
        """)
        ops.append(i)

    def rec_wait(i):
        a(f"s_waitcnt vmcnt({len(ops) - 1 - ops.index(i)})")

    def mk(i):
        return vSlot + 4 * (i & 7), sMk + 4 * (i & 7), sMk + 4 * (i & 7) + 2

    for i in range(NPRE):
        rec_issue(i)
    tt = [vT, vT + 4]
    nis = NPRE
    rec_wait(0)
    place_atomics(*mk(0), tt[0])
    for i in range(16):
        if nis <= 16:
            rec_issue(nis)
            nis += 1
        if i + 1 < 16:
            rec_wait(i + 1)
            place_atomics(*mk(i + 1), tt[(i + 1) & 1])
            a(f"s_waitcnt lgkmcnt({2 if i == 0 else 6})")
        else:
            a("s_waitcnt lgkmcnt(4)")
        place_writes(*mk(i), tt[i & 1])
        if i + 1 < 16:
            a(f"""
            s_cmp_le_u32 s{sNs}, {i + 1}
            s_cbranch_scc1 L_bdone
            """)
    a(f"""
    L_bdone:
    s_or_b32 s{sTk}, s{sPend}, s{sReady}
    s_cbranch_scc1 L_polled
    s_cmp_eq_u32 s{sLate}, 0
    s_cbranch_scc1 L_taken
    """)
    late_loads()
    a("s_branch L_taken")
    for i in stubs:
        a(f"L_p{i}:")
        poll()
        a(f"s_branch L_q{i}")
    a(f"""
    L_taken:
    s_mov_b64 exec, -1
    s_mov_b32 s{sLast}, 1
    s_mov_b32 s{sFirst}, 1
    s_mov_b32 s{sM31}, 0xffffffe0
    s_movk_i32 s{sF0}, 0xf0
    s_lshl_b32 s{sRingB}, s{sW}, 12
    s_add_u32 s{sRingB}, s{sRingB}, {RING}
    s_mul_i32 s{sWA}, s{sW}, {10 * CAP * 4}
    s_mul_i32 s{sRowOff}, s{sJ}, {BK * 32}
    v_lshlrev_b32 v{vT}, 2, v{vLane}
    s_waitcnt lgkmcnt(0)
    """)
    st("intake")
    if P["stamps"]:
        a(f"v_writelane_b32 v207, s{sSpin}, 40")
        a(f"v_writelane_b32 v207, s97, 41")
        a(f"v_writelane_b32 v207, s96, 42")
    a("s_barrier")
    st("bar5")
    a(f"""
    ds_read_b32 v{vT + 1}, v{vT} offset:{CNT}
    ds_read_b32 v{vT + 2}, v{vT} offset:{CNT + 256}
    s_waitcnt lgkmcnt(0)
    v_max_u32 v{vT + 1}, v{vT + 1}, v{vT + 2}
    v_cmp_lt_u32 vcc, {-1 if P["force_slow"] else CAP * 4}, v{vT + 1}
    """.replace("v_cmp_lt_u32 vcc, -1,", "v_cmp_lt_i32 vcc, -1,"))
    a(f"""
    s_cbranch_vccz L_G
    s_mov_b32 s{sSC}, 0
    s_mov_b32 s{sSU}, 0
    s_mov_b32 s{sLast}, 0
    L_slow:
    s_waitcnt vmcnt(0) lgkmcnt(0)
    s_barrier
    """)
    fill(vPf, vPf2, sT)
    a(f"""
    s_waitcnt lgkmcnt(0)
    s_barrier
    s_cmp_lt_u32 s{sSC}, {NCH}
    s_cbranch_scc1 L_slow_unit
    s_mov_b32 s{sLast}, 1
    s_branch L_G
    L_slow_unit:
    s_lshl_b32 s{sT}, s{sSC}, 10
    s_lshl_b32 s{sT + 1}, s{sJ}, 2
    s_add_u32 s{sT}, s{sT}, s{sT + 1}
    buffer_load_dword v{vT}, v{vZero}, s[{SSEG}:{SSEG + 3}], s{sT} offen sc1
    s_waitcnt vmcnt(0)
    v_readfirstlane_b32 s{sT + 2}, v{vT}
    s_and_b32 s{sT}, s{sT + 2}, 1
    s_mul_i32 s{sT}, s{sT}, 6
    s_and_b32 s{sT + 1}, s{sT + 2}, 0x7fff
    s_lshl_b32 s{sT + 1}, s{sT + 1}, 1
    s_bfe_u32 s{sT + 2}, s{sT + 2}, 0xf000f
    s_lshl_b32 s{sT + 2}, s{sT + 2}, 1
    s_mul_i32 s{sT + 3}, s{sSC}, {CS}
    s_add_u32 s{sT + 3}, s{sT + 3}, s{sT + 1}
    s_sub_u32 s{sT + 3}, s{sT + 3}, s{sT}
    s_add_u32 s{sT + 3}, s{sT + 3}, s{sSU}
    s_sub_u32 s{sT + 4}, s{sSU}, s{sT}
    s_cmp_lg_u32 s{sW}, 0
    s_cbranch_scc1 L_slow_adv
    v_mul_u32_u24 v{vT}, 12, v{vLane}
    v_add_u32 v{vT + 1}, s{sT + 4}, v{vT}
    v_add_u32 v{vT + 2}, 6, v{vT + 1}
    v_cmp_gt_u32 s[{sT + 6}:{sT + 7}], s{sT + 2}, v{vT + 1}
    v_cmp_gt_u32 s[{sT + 8}:{sT + 9}], s{sT + 2}, v{vT + 2}
    s_or_b64 exec, s[{sT + 6}:{sT + 7}], s[{sT + 8}:{sT + 9}]
    buffer_load_dwordx3 {vr(vSlot, 3)}, v{vT}, s[{SREC}:{SREC + 3}], s{sT + 3} offen sc1
    s_waitcnt vmcnt(0)
    """)
    place_atomics(vSlot, sT + 6, sT + 8, vT + 4)
    a("s_waitcnt lgkmcnt(0)")
    place_writes(vSlot, sT + 6, sT + 8, vT + 4)
    a(f"""
    s_mov_b64 exec, -1
    L_slow_adv:
    s_add_u32 s{sSU}, s{sSU}, 768
    s_add_u32 s{sT}, s{sT}, s{sT + 2}
    s_cmp_lt_u32 s{sSU}, s{sT}
    s_cbranch_scc1 L_slow_go
    s_add_u32 s{sSC}, s{sSC}, 1
    s_mov_b32 s{sSU}, 0
    L_slow_go:
    s_waitcnt lgkmcnt(0)
    s_barrier
    L_G:
    ds_read_b32 v{vT}, v{vCntA} offset:{CNT}
    s_mov_b32 s{sCur}, 0
    s_waitcnt lgkmcnt(0)
    v_cmp_gt_u32 s[{sM}:{sM + 1}], v{vT}, v{vS128}
    v_add_u32 v{vSteps}, 127, v{vT}
    v_lshrrev_b32 v{vSteps}, 7, v{vSteps}
    s_nop 1
    """)
    for k in range(D):
        a(f"""
        s_ff1_i32_b64 s{sL}, s[{sM}:{sM + 1}]
        s_bitset0_b64 s[{sM}:{sM + 1}], s{sL}
        v_readlane_b32 s{sA}, v{vTab}, s{sL}
        s_add_u32 m0, s{sRingB}, {k * 1024}
        s_nop 0
        v_add_u32 v{vT + k}, s{sA}, v{vLH4}
        ds_read_b32 v{vT + k}, v{vT + k} offset:{AB}
        s_waitcnt lgkmcnt(0)
        v_and_or_b32 v{vT + k}, v{vT + k}, s{sM31}, v{vHalf16}
        buffer_load_dwordx4 v{vT + k}, s[{SM}:{SM + 3}], 0 offen {P["gather"]} lds
        """)
    a(f"""
    s_movk_i32 s{sPrev}, {D * 1024}
    s_cmp_eq_u32 s{sFirst}, 0
    s_cbranch_scc1 L_main
    s_mov_b32 s{sFirst}, 0
    """)
    st("Gissued")
    a(f"s_waitcnt vmcnt({D})")
    a(f"""
    v_lshl_or_b32 v{vWd}, v{vWraw + 1}, 16, v{vWraw}
    v_lshl_or_b32 v{vWd + 1}, v{vWraw + 3}, 16, v{vWraw + 2}
    v_lshl_or_b32 v{vWu}, v{vWraw + 5}, 16, v{vWraw + 4}
    v_lshl_or_b32 v{vWu + 1}, v{vWraw + 7}, 16, v{vWraw + 6}
    v_lshl_or_b32 v{vWs}, v{vWraw + 9}, 16, v{vWraw + 8}
    v_lshl_or_b32 v{vWr}, v{vWraw + 11}, 16, v{vWraw + 10}
    v_mov_b32 v{vWd + 2}, v{vWd}
    v_mov_b32 v{vWd + 3}, v{vWd + 1}
    v_mov_b32 v{vWu + 2}, v{vWu}
    v_mov_b32 v{vWu + 3}, v{vWu + 1}
    v_mov_b32 v{vWs + 1}, 0
    v_mov_b32 v{vWr + 1}, 0
    v_mov_b32 v{vRb + 1}, 0
    v_mov_b32 v{vRb + 3}, 0
    v_and_b32 v{vCen + 1}, 0xffff0000, v{vCen}
    v_lshlrev_b32 v{vCen}, 16, v{vCen}
    """)
    for g in range(5):
        t = vT + 4
        rb = vRb + 2 * (g & 1)
        a(f"""
        v_lshlrev_b32 v{t + 2}, 16, v{vDist + g}
        v_sub_f32 v{t}, v{t + 2}, v{vCen}
        v_sub_f32 v{t + 1}, v{t + 2}, v{vCen + 1}
        v_cvt_pk_bf16_f32 v{t + 2}, v{t}, v{t + 1}
        v_lshlrev_b32 v{t}, 16, v{t + 2}
        v_and_b32 v{t + 1}, 0xffff0000, v{t + 2}
        v_mul_f32 v{t}, v{t}, v{t}
        v_mul_f32 v{t + 1}, v{t + 1}, v{t + 1}
        v_cvt_pk_bf16_f32 v{t + 2}, v{t}, v{t + 1}
        v_lshlrev_b32 v{t}, 16, v{t + 2}
        v_and_b32 v{t + 1}, 0xffff0000, v{t + 2}
        v_mul_f32 v{t}, 0xc1200000, v{t}
        v_mul_f32 v{t + 1}, 0xc1200000, v{t + 1}
        v_cvt_pk_bf16_f32 v{t + 2}, v{t}, v{t + 1}
        v_lshlrev_b32 v{t}, 16, v{t + 2}
        v_and_b32 v{t + 1}, 0xffff0000, v{t + 2}
        v_mul_f32 v{t}, 0x3fb8aa3b, v{t}
        v_mul_f32 v{t + 1}, 0x3fb8aa3b, v{t + 1}
        v_exp_f32 v{t}, v{t}
        v_exp_f32 v{t + 1}, v{t + 1}
        s_nop 0
        v_cvt_pk_bf16_f32 v{rb}, v{t}, v{t + 1}
        s_nop 1
        v_mfma_f32_16x16x16_bf16 {vr(vG + 4 * g, 4)}, {vr(vWs, 2)}, {vr(rb, 2)}, 0
        v_mfma_f32_16x16x16_bf16 {vr(vH + 4 * g, 4)}, {vr(vWr, 2)}, {vr(rb, 2)}, 0
        """)
    st("GH")
    a("L_main:")

    def split(src, dst, t):
        a(f"""
        v_cvt_pk_bf16_f32 v{dst}, v{src}, v{src + 1}
        v_cvt_pk_bf16_f32 v{dst + 1}, v{src + 2}, v{src + 3}
        v_lshlrev_b32 v{t}, 16, v{dst}
        v_and_b32 v{t + 1}, 0xffff0000, v{dst}
        v_lshlrev_b32 v{t + 2}, 16, v{dst + 1}
        v_and_b32 v{t + 3}, 0xffff0000, v{dst + 1}
        v_sub_f32 v{t}, v{src}, v{t}
        v_sub_f32 v{t + 1}, v{src + 1}, v{t + 1}
        v_sub_f32 v{t + 2}, v{src + 2}, v{t + 2}
        v_sub_f32 v{t + 3}, v{src + 3}, v{t + 3}
        v_cvt_pk_bf16_f32 v{dst + 2}, v{t}, v{t + 1}
        v_cvt_pk_bf16_f32 v{dst + 3}, v{t + 2}, v{t + 3}
        s_nop 1
        """)

    for h in range(2):
        for g in range(5):
            b = h * 5 + g
            acc = vAcc + 4 * g
            a(f"""
            v_readlane_b32 s{sN}, v{vSteps}, {6 * b}
            s_add_u32 s{sC}, s{sWA}, {(2 * g + h) * CAP * 4}
            s_cmp_eq_u32 s{sN}, 0
            s_cbranch_scc1 L_bin{b}_done
            L_bin{b}:
            s_ff1_i32_b64 s{sL}, s[{sM}:{sM + 1}]
            s_bitset0_b64 s[{sM}:{sM + 1}], s{sL}
            v_readlane_b32 s{sA}, v{vTab}, s{sL}
            v_add_u32 v{vT + 1}, s{sC}, v{vLH4}
            s_add_u32 m0, s{sRingB}, s{sPrev}
            v_add_u32 v{vT}, s{sA}, v{vLH4}
            v_lshrrev_b32 v{vT + 2}, 1, v{vT + 1}
            ds_read_b32 v{vT}, v{vT} offset:{AB}
            ds_read_b32 v{vT + 1}, v{vT + 1} offset:{AB}
            ds_read_u16 v{vT + 2}, v{vT + 2} offset:{BB}
            v_add_u32 v{vT + 3}, s{sCur}, v{vTr}
            s_mov_b32 s{sPrev}, s{sCur}
            s_add_u32 s{sCur}, s{sCur}, 1024
            s_and_b32 s{sCur}, s{sCur}, {R * 1024 - 1}
            s_add_u32 s{sC}, s{sC}, 128
            s_waitcnt lgkmcnt(2)
            v_and_or_b32 v{vT}, v{vT}, s{sM31}, v{vHalf16}
            buffer_load_dwordx4 v{vT}, s[{SM}:{SM + 3}], 0 offen {P["gather"]} lds
            s_waitcnt lgkmcnt(0)
            v_lshlrev_b32 v{vT + 1}, 4, v{vT + 1}
            v_and_or_b32 v{vT + 1}, v{vT + 1}, s{sF0}, v{vSc}
            ds_write_b16 v{vT + 1}, v{vT + 2}
            ds_read_b128 {vr(vSt, 4)}, v{vSrd}
            ds_write_b16 v{vT + 1}, v{vZero}
            s_sub_u32 s{sN}, s{sN}, 1
            s_waitcnt vmcnt({D})
            ds_read_b64_tr_b16 {vr(vMt, 2)}, v{vT + 3}
            ds_read_b64_tr_b16 {vr(vMt + 2, 2)}, v{vT + 3} offset:256
            s_cmp_lg_u32 s{sN}, 0
            s_waitcnt lgkmcnt(0)
            v_mfma_f32_16x16x32_bf16 {vr(acc, 4)}, {vr(vMt, 4)}, {vr(vSt, 4)}, {vr(acc, 4)}
            s_cbranch_scc1 L_bin{b}
            L_bin{b}_done:
            """)
            if g == 4 or (h == 0 and g == 0):
                st(f"bin{b}")
            if h == 1:
                x, y, t = vT + 2, vT + 6, vT + 10
                a(f"""
                s_cmp_eq_u32 s{sLast}, 0
                s_cbranch_scc1 L_epi{g}_done
                s_nop 5
                """)
                split(acc, x, t)
                a(f"""
                v_mfma_f32_16x16x32_bf16 {vr(y, 4)}, {vr(vWd, 4)}, {vr(x, 4)}, 0
                s_nop 7
                v_mul_f32 v{y}, v{y}, v{vG + 4 * g}
                v_mul_f32 v{y + 1}, v{y + 1}, v{vG + 4 * g + 1}
                v_mul_f32 v{y + 2}, v{y + 2}, v{vG + 4 * g + 2}
                v_mul_f32 v{y + 3}, v{y + 3}, v{vG + 4 * g + 3}
                """)
                split(y, x, t)
                mr = vMr + 2 * g
                a(f"""
                v_mfma_f32_16x16x32_bf16 {vr(y, 4)}, {vr(vWu, 4)}, {vr(x, 4)}, 0
                v_lshlrev_b32 v{t}, 16, v{mr}
                v_and_b32 v{t + 1}, 0xffff0000, v{mr}
                v_lshlrev_b32 v{t + 2}, 16, v{mr + 1}
                v_and_b32 v{t + 3}, 0xffff0000, v{mr + 1}
                s_nop 3
                v_fmac_f32 v{t}, v{y}, v{vH + 4 * g}
                v_fmac_f32 v{t + 1}, v{y + 1}, v{vH + 4 * g + 1}
                v_fmac_f32 v{t + 2}, v{y + 2}, v{vH + 4 * g + 2}
                v_fmac_f32 v{t + 3}, v{y + 3}, v{vH + 4 * g + 3}
                v_cvt_pk_bf16_f32 v{mr}, v{t}, v{t + 1}
                v_cvt_pk_bf16_f32 v{mr + 1}, v{t + 2}, v{t + 3}
                buffer_store_dwordx2 {vr(mr, 2)}, v{vOut4 if g == 4 else vMoff}, s[{SOUT}:{SOUT + 3}], s{sRowOff} offen offset:{512 * g} {P["out_st"]}
                L_epi{g}_done:
                """)
    a(f"""
    s_cmp_eq_u32 s{sLast}, 0
    s_cbranch_scc1 L_slow
    """)
    if P["stamps"]:
        a("s_waitcnt vmcnt(0)")
    st("end")
    st.flush(SSEG, "s2", vT)
    a("""
    L_end:
    s_endpgm
    """)
    return a.text(), 256, 102, LDS


def generate(**kw):
    P = dict(DEFAULTS)
    P.update(kw)
    body, nv, ns, lds = gen(P)
    n = NAME + "_kernel"
    out = HEADER
    out += f"; @launch grid=({NCH},1,1) block=(512,1,1) lds={lds}\n"
    out += '.amdgcn_target "amdgcn-amd-amdhsa--gfx950"\n.text\n'
    out += f".globl {n}\n.p2align 8\n.type {n},@function\n{n}:\n{body}"
    out += '.section .rodata,"a"\n.p2align 6\n' + descriptor(n, nv, ns)
    return out


if __name__ == "__main__":
    path = sys.argv[1]
    kw = {}
    for arg in sys.argv[2:]:
        k, v = arg.split("=", 1)
        kw[k] = int(v) if v.lstrip("-").isdigit() else v
    open(path, "w").write(generate(**kw))
```

```python
import sys
from gen import Asm, vr, srd, Stamps, descriptor, NAME, E, T, NCH, CH, BK, WS_SEG

SPIN_MAX = 1 << 18
CS = 53888
CAPS = (160, 160, 96)

DEFAULTS = dict(
    D=3,
    in_ld="nt",
    rec_st="sc1",
    rec_ld="",
    out_st="",
    gather="",
    sleep=4,
    xl=1,
    latespin=2,
    pf=0,
    stamps=0,
    force_slow=0,
)

HEADER = """; Kernarg layout for this problem (112 bytes, ptrs only, base s[0:1]):
;
"""


def gen(P):
    a = Asm()
    D = P["D"]
    R = D + 1
    assert R == 4
    CNT, HIST, BASE, DESC, SB, TRASH, AB = 0, 512, 1536, 2560, 3584, 11776, 14848
    ZB = AB + 40 * 4 * sum(CAPS)
    RING = ZB + 128
    STG = RING
    FLAG = CNT + 127 * 4
    LDS = 143360
    assert SB + 17 * 8192 <= LDS and STG + 7 * 8192 <= LDS and STG + 53840 <= SB + 17 * 8192
    sJ = 3
    SO, SI, SA, SRW, SSEG, SREC, SM, SOUT, SDIST, SDBG = 4, 8, 12, 16, 20, 24, 28, 32, 36, 40
    pM, pI, pO, pDist, pAng, pCen, pFreq, pWr, pWs, pWd, pWu, pOut, pDbg, pWsp = range(44, 72, 2)
    sOff, sOffA = 72, 77
    sC625, sM625, sMask, sAct, sW, sSpin, sX = 82, 83, 85, 86, 88, 89, 90
    sMk = 44
    sPend, sReady, sPrevN, sCurN, sJ4, sTk, sEarly = 60, 61, 62, 63, 64, 66, 68
    sLate, sDo, sMo = 70, 72, 73
    sLast, sFirst, sSC, sSU = 83, 84, 85, 86
    sF0, s70, sRingB, sPrev, sCur, sRowOff = 44, 45, 46, 47, 48, 49
    sNE, sL, sIA, sIE, sIP, sC, sCE = 50, 51, 52, 53, 54, 55, 56
    sT = 58
    st = Stamps(a, P, 0, 207, 98)
    vOff16, vOff8, vOne, vF = 1, 2, 3, 4
    vO, vI, vA, vJ, vR = 8, 28, 48, 58, 78
    vP = 98
    vSeg = 112
    vPar = 116
    vCtr = 124
    vLane, vLL20, vFour, vZero = 1, 2, 3, 4
    vLH4, vHalf16, vSc, vSrd, vTr, vBase, vCntA, vEnd, vPh = 5, 6, 7, 8, 9, 10, 11, 12, 13
    vMoff, vOut4 = 14, 15
    vT = 16
    vSlot = 32
    vRk = 80
    vL0, vL1 = 88, 92
    vD0, vHi, vSegA, vCb, vSegW, vDw, vDr, vDoff, vLim0, vLim1, vPfA, vPfD = range(100, 112)
    vAcc = 132
    vG, vH = 152, 172
    vMr = 192
    vDist = 202
    vWraw = 208
    vCen = 220
    vWd, vWu = 224, 228
    vWs, vWr, vRb = 232, 234, 236
    vMt, vSt = 240, 244
    vQ = 248

    def bin_addr(dst, k, tmp):
        a(f"""
        v_mul_u32_u24 v{dst}, {CAPS[0] * 4}, v{k}
        v_mul_u32_u24 v{tmp}, {CAPS[2] * 4}, v{k}
        v_add_u32 v{dst}, {AB - CAPS[0] * 4}, v{dst}
        v_add_u32 v{tmp}, {AB + 80 * CAPS[0] * 4 - 81 * CAPS[2] * 4}, v{tmp}
        v_min_u32 v{dst}, v{dst}, v{tmp}
        """)

    def cnt_init(t, stmp):
        bin_addr(t, 0, t + 1)
        a(f"""
        v_mov_b32 v{t + 1}, {TRASH}
        v_cmp_eq_u32 vcc, 0, v0
        v_mov_b32 v{t + 2}, 0
        v_lshlrev_b32 v{t + 3}, 2, v0
        v_cndmask_b32 v{t}, v{t}, v{t + 1}, vcc
        v_cmp_lt_u32 vcc, 120, v0
        s_nop 1
        v_cndmask_b32 v{t}, v{t}, v{t + 2}, vcc
        v_cmp_gt_u32 vcc, 128, v0
        s_and_saveexec_b64 s[{stmp}:{stmp + 1}], vcc
        ds_write_b32 v{t + 3}, v{t} offset:{CNT}
        s_mov_b64 exec, s[{stmp}:{stmp + 1}]
        """)

    def fill(t, rounds):
        a(f"""
        v_lshlrev_b32 v{t}, 4, v0
        v_mov_b32 v{vQ}, 0
        v_mov_b32 v{vQ + 1}, 0
        v_mov_b32 v{vQ + 2}, 0
        v_mov_b32 v{vQ + 3}, 0
        v_add_u32 v{t + 1}, {SB + 7 * 8192}, v{t}
        v_add_u32 v{t + 2}, {SB + 15 * 8192}, v{t}
        """)
        for i in range(rounds):
            if i < 7:
                a(f"ds_write_b128 v{t}, {vr(vQ, 4)} offset:{SB + i * 8192}")
            elif i < 15:
                a(f"ds_write_b128 v{t + 1}, {vr(vQ, 4)} offset:{(i - 7) * 8192}")
            else:
                a(f"ds_write_b128 v{t + 2}, {vr(vQ, 4)} offset:{(i - 15) * 8192}")

    def place_atomics(w, m, t):
        a(f"s_mov_b64 exec, s[{m}:{m + 1}]")
        for r in range(4):
            a(f"v_lshlrev_b32_sdwa v{t + r}, 2, v{w + 4} dst_sel:DWORD dst_unused:UNUSED_PAD src0_sel:DWORD src1_sel:BYTE_{r}")
            a(f"ds_add_rtn_u32 v{t + r}, v{t + r}, v{vFour} offset:{CNT}")

    def place_writes(w, m, t):
        a(f"s_mov_b64 exec, s[{m}:{m + 1}]")
        for r in range(4):
            a(f"ds_write_b32 v{t + r}, v{w + r}")

    def ctr_sum(lab_ok):
        a(f"""
        v_readlane_b32 s{sX + 4}, v{vCtr}, 0
        v_readlane_b32 s{sX + 5}, v{vCtr}, 1
        s_add_u32 s{sX + 4}, s{sX + 4}, s{sX + 5}
        v_readlane_b32 s{sX + 5}, v{vCtr}, 2
        s_add_u32 s{sX + 4}, s{sX + 4}, s{sX + 5}
        v_readlane_b32 s{sX + 5}, v{vCtr}, 3
        s_add_u32 s{sX + 4}, s{sX + 4}, s{sX + 5}
        s_cmp_ge_u32 s{sX + 4}, {NCH}
        """)

    ld = P["in_ld"]
    a(f"""
    s_cmp_ge_u32 s2, {NCH}
    s_cbranch_scc1 L_end
    """)
    st("start")
    a(f"""
    s_load_dwordx16 s[44:59], s[0:1], 0
    s_load_dwordx8 s[60:67], s[0:1], 64
    s_load_dwordx4 s[68:71], s[0:1], 96
    v_lshlrev_b32 v{vOff16}, 4, v0
    v_lshlrev_b32 v{vOff8}, 3, v0
    v_lshlrev_b32 v5, 2, v0
    v_mov_b32 v6, 0
    v_mov_b32 v{vOne}, 1
    v_lshrrev_b32 v7, 6, v0
    s_mul_i32 s{sOff}, s2, {CH * 4}
    s_mul_i32 s{sOffA}, s2, {CH * 2}
    v_readfirstlane_b32 s{sW}, v7
    ds_write_b32 v5, v6 offset:{HIST}
    """)
    for q in range(1, 5):
        a(f"s_add_u32 s{sOff + q}, s{sOff}, {q * 8000}")
        a(f"s_add_u32 s{sOffA + q}, s{sOffA}, {q * 4000}")
    if P["xl"]:
        a(f"""
        s_and_b32 s{sJ}, s2, 7
        s_lshl_b32 s{sJ}, s{sJ}, 5
        s_lshr_b32 s{sX}, s2, 3
        s_add_u32 s{sJ}, s{sJ}, s{sX}
        """)
    else:
        a(f"s_mov_b32 s{sJ}, s2")
    a(f"""
    s_mov_b32 s{sC625}, 6871948
    s_mov_b32 s{sM625}, -{BK}
    s_mov_b32 s{sMask}, 0x4007
    s_mov_b32 s{sSpin}, 0
    v_cmp_gt_u32 vcc, 500, v0
    s_lshl_b32 s{sX + 2}, s2, 10
    s_cmp_eq_u32 s{sW}, 0
    s_cselect_b64 s[{sX}:{sX + 1}], -1, 0
    s_waitcnt lgkmcnt(0)
    """)
    srd(a, SO, f"s{pO}", f"s{pO + 1}", T * 4)
    a(f"""
    s_barrier
    s_mov_b64 s[{sAct}:{sAct + 1}], vcc
    s_mov_b64 exec, vcc
    """)
    issued = []

    def ld_issue(name):
        k, q = name[0], int(name[1:] or 0)
        act = f"s_mov_b64 exec, s[{sAct}:{sAct + 1}]"
        if k == "F":
            a(f"global_load_ushort v{vF}, v6, s[{pFreq}:{pFreq + 1}]")
        elif k == "Z":
            a(f"""
            s_mov_b64 exec, s[{sX}:{sX + 1}]
            buffer_store_dwordx4 {vr(vQ, 4)}, v{vOff16}, s[{SSEG}:{SSEG + 3}], s{sX + 2} offen sc1
            {act}
            """)
        elif k == "C":
            a(f"""
            s_and_b64 exec, s[{sX}:{sX + 1}], 1
            s_and_b32 s{sX + 3}, s2, 3
            s_lshl_b32 s{sX + 3}, s{sX + 3}, 6
            buffer_atomic_add v{vOne}, v6, s[{SDBG}:{SDBG + 3}], s{sX + 3} offen
            {act}
            """)
        elif k == "X":
            a(f"""
            s_cmp_eq_u32 s{sW}, 7
            s_cselect_b32 exec_lo, 15, 0
            s_mov_b32 exec_hi, 0
            buffer_load_dword v{vCtr}, v{vCtr + 1}, s[{SDBG}:{SDBG + 3}], 0 offen sc1
            """)
        elif k == "W":
            lo, hi, dst, ptr, off = ((-1, 0, 0, pWd, 0), (0, -1, 0, pWu, -512), (0xffff, 0, 4, pWs, 0),
                                     (0xffff0000, 0, 4, pWr, -256), (0, 1, 4, pCen, -512))[q]
            a(f"""
            s_and_b32 exec_lo, s{sX}, {lo}
            s_and_b32 exec_hi, s{sX}, {hi}
            global_load_dwordx4 {vr(vPar + dst, 4)}, v{vOff16}, s[{ptr}:{ptr + 1}] offset:{off}
            """)
            if q == 4:
                a(act)
        elif k == "O":
            a(f"buffer_load_dwordx4 {vr(vO + 4 * q, 4)}, v{vOff16}, s[{SO}:{SO + 3}], s{sOff + q} offen {ld}")
        elif k == "A":
            a(f"buffer_load_dwordx2 {vr(vA + 2 * q, 2)}, v{vOff8}, s[{SA}:{SA + 3}], s{sOffA + q} offen {ld}")
        else:
            a(f"buffer_load_dwordx4 {vr(vI + 4 * q, 4)}, v{vOff16}, s[{SI}:{SI + 3}], s{sOff + q} offen {ld}")
        issued.append(name)

    def ld_wait(name):
        a(f"s_waitcnt vmcnt({len(issued) - 1 - issued.index(name)})")

    for n in ("O0", "O1", "O2", "O3", "O4", "F"):
        ld_issue(n)
    srd(a, SI, f"s{pI}", f"s{pI + 1}", T * 4)
    srd(a, SA, f"s{pAng}", f"s{pAng + 1}", T * 2)
    srd(a, SDBG, f"s{pDbg}", f"s{pDbg + 1}", 256)
    srd(a, SREC, f"s{pWsp}", f"s{pWsp + 1}", NCH * CS)
    srd(a, SM, f"s{pM}", f"s{pM + 1}", E * 32)
    srd(a, SOUT, f"s{pOut}", f"s{pOut + 1}", E * 32)
    srd(a, SDIST, f"s{pDist}", f"s{pDist + 1}", E * 2)
    a(f"""
    s_add_u32 s{SSEG}, s{pWsp}, {WS_SEG}
    s_addc_u32 s{SSEG + 1}, s{pWsp + 1}, 0
    s_and_b32 s{SSEG + 1}, s{SSEG + 1}, 0xffff
    s_mov_b32 s{SSEG + 2}, {NCH * 1024}
    s_mov_b32 s{SSEG + 3}, 0x20000
    s_mul_i32 s{sX + 3}, s2, {CS}
    s_add_u32 s{SRW}, s{pWsp}, s{sX + 3}
    s_addc_u32 s{SRW + 1}, s{pWsp + 1}, 0
    s_and_b32 s{SRW + 1}, s{SRW + 1}, 0xffff
    s_mov_b32 s{SRW + 2}, 0
    s_mov_b32 s{SRW + 3}, 0x20000
    s_mov_b64 exec, -1
    v_and_b32 v{vCtr + 1}, 3, v0
    v_lshlrev_b32 v{vCtr + 1}, 6, v{vCtr + 1}
    """)
    cnt_init(vP, sX + 4)
    fill(vP + 4, 17)
    a(f"s_mov_b64 exec, s[{sAct}:{sAct + 1}]")
    after_o = [("Z", "A0", "A1"), ("A2", "A3"), ("A4", "I0"), ("I1",), ("I2",)]
    for q in range(5):
        ld_wait(f"O{q}")
        for n in after_o[q]:
            ld_issue(n)
        if q in (0, 4):
            st(f"O{q}")
        for r in range(4):
            i = 4 * q + r
            a(f"v_mul_hi_u32_u24 v{vP + r}, s{sC625}, v{vO + i}")
            a(f"v_add_u32 v{vO + i}, 16, v{vO + i}")
        for r in range(4):
            i = 4 * q + r
            a(f"v_lshlrev_b32 v{vJ + i}, 2, v{vP + r}")
            a(f"v_mad_i32_i24 v{vO + i}, v{vP + r}, s{sM625}, v{vO + i}")
            a(f"ds_add_rtn_u32 v{vR + i}, v{vJ + i}, v{vOne} offset:{HIST}")
        for r in range(4):
            i = 4 * q + r
            a(f"v_lshl_or_b32 v{vO + i}, v{vO + i}, 11, v{vO + i}")
    for q in range(5):
        ld_issue(f"W{q}")
    a(f"""
    s_waitcnt lgkmcnt(0)
    s_barrier
    """)
    st("bar2")
    ld_issue("I3")
    ld_issue("I4")
    c, b, x, ln = vP, vP + 4, vP + 8, vP + 9
    a(f"""
    s_mov_b64 exec, -1
    v_and_b32 v{ln}, 63, v0
    v_lshlrev_b32 v{ln}, 4, v{ln}
    ds_read_b128 {vr(c, 4)}, v{ln} offset:{HIST}
    s_mov_b32 s{sX + 4}, {STG}
    s_waitcnt lgkmcnt(0)
    """)
    for k in range(4):
        a(f"v_add_u32 v{c + k}, 3, v{c + k}")
        a(f"v_lshrrev_b32 v{c + k}, 2, v{c + k}")
    a(f"""
    v_add_u32 v{b + 2}, v{c}, v{c + 1}
    v_add_u32 v{b + 3}, v{b + 2}, v{c + 2}
    v_add_u32 v{b}, v{b + 3}, v{c + 3}
    v_mov_b32 v{x}, v{b}
    s_nop 1
    v_add_u32_dpp v{x}, v{x}, v{x} row_shr:1 row_mask:0xf bank_mask:0xf
    s_nop 1
    v_add_u32_dpp v{x}, v{x}, v{x} row_shr:2 row_mask:0xf bank_mask:0xf
    s_nop 1
    v_add_u32_dpp v{x}, v{x}, v{x} row_shr:4 row_mask:0xf bank_mask:0xf
    s_nop 1
    v_add_u32_dpp v{x}, v{x}, v{x} row_shr:8 row_mask:0xf bank_mask:0xf
    s_nop 1
    v_add_u32_dpp v{x}, v{x}, v{x} row_bcast:15 row_mask:0xa bank_mask:0xf
    s_nop 1
    v_add_u32_dpp v{x}, v{x}, v{x} row_bcast:31 row_mask:0xc bank_mask:0xf
    v_sub_u32 v{b}, v{x}, v{b}
    v_add_u32 v{b + 1}, v{b}, v{c}
    v_add_u32 v{b + 2}, v{b}, v{b + 2}
    v_add_u32 v{b + 3}, v{b}, v{b + 3}
    v_readlane_b32 s{sX + 5}, v{x}, 63
    """)
    for k in range(4):
        a(f"v_lshl_or_b32 v{vSeg + k}, v{c + k}, 12, v{b + k}")
        a(f"v_mad_u32_u24 v{b + k}, v{b + k}, 20, s{sX + 4}")
    a(f"ds_write_b128 v{ln}, {vr(b, 4)} offset:{BASE}")
    for k in range(4):
        a(f"v_or_b32 v{vSeg + k}, 0x80000000, v{vSeg + k}")
    a(f"""
    s_mul_i32 s{SRW + 2}, s{sX + 5}, 20
    s_mov_b64 exec, s[{sAct}:{sAct + 1}]
    """)
    for i in range(20):
        a(f"ds_read_b32 v{vJ + i}, v{vJ + i} offset:{BASE}")
    ld_wait("Z")
    ld_issue("C")
    for q in range(5):
        ld_wait(f"A{q}")
        if q == 0:
            a(f"""
            v_readfirstlane_b32 s{sX + 5}, v{vF}
            v_lshlrev_b32 v{vF}, 16, v{vF}
            """)
        if q in (0, 4):
            st(f"A{q}")
        t = vP

        def unpack():
            for p in range(2):
                d = vA + 2 * q + p
                a(f"v_lshlrev_b32 v{t + 2 * p}, 16, v{d}")
                a(f"v_and_b32 v{t + 2 * p + 1}, 0xffff0000, v{d}")

        unpack()
        a(f"""
        s_cmp_eq_u32 s{sX + 5}, 0x3f80
        s_cbranch_scc1 L_unit{q}
        """)
        for k in range(4):
            a(f"v_mul_f32 v{t + k}, v{vF}, v{t + k}")
        for p in range(2):
            a(f"v_cvt_pk_bf16_f32 v{vA + 2 * q + p}, v{t + 2 * p}, v{t + 2 * p + 1}")
        unpack()
        a(f"L_unit{q}:")
        for k in range(4):
            a(f"v_mul_f32 v{t + k}, 0.15915494, v{t + k}")
        for k in range(4):
            a(f"v_fract_f32 v{t + k}, v{t + k}")
        for k in range(4):
            a(f"v_cos_f32 v{t + k}, v{t + k}")
        a("s_nop 0")
        for p in range(2):
            a(f"v_cvt_pkrtz_f16_f32 v{vA + 2 * q + p}, v{t + 2 * p}, v{t + 2 * p + 1}")
        for p in range(2):
            a(f"v_add_u32 v{vA + 2 * q + p}, 0x40004, v{vA + 2 * q + p}")
        for p in range(2):
            a(f"v_and_b32 v{vA + 2 * q + p}, 0xbff8bff8, v{vA + 2 * q + p}")
    a("s_waitcnt lgkmcnt(0)")
    for i in range(20):
        a(f"v_mad_u32_u24 v{vR + i}, v{vR + i}, 5, v{vJ + i}")
        a(f"v_and_b32 v{vJ + i}, -4, v{vR + i}")
        a(f"v_and_b32 v{vR + i}, 3, v{vR + i}")
        a(f"v_mad_i32_i24 v{vR + i}, v{vR + i}, -3, v{vJ + i}")
    for q in range(5):
        ld_wait(f"I{q}")
        if q in (0, 4):
            st(f"I{q}")
        for r in range(4):
            i = 4 * q + r
            a(f"v_bfe_u32 v{vP + r}, v{vO + i}, 4, 6")
            a(f"v_mad_u32_u16 v{vP + r}, v{vI + i}, 40, v{vP + r} op_sel:[1,0,0,0]")
            a(f"v_lshlrev_b32 v{vI + i}, 16, v{vI + i}")
            a(f"v_and_or_b32 v{vI + i}, v{vO + i}, s{sMask}, v{vI + i}")
            a(f"ds_write_b8 v{vR + i}, v{vP + r} offset:16")
            a(f"v_or_b32_sdwa v{vI + i}, v{vI + i}, v{vA + 2 * q + (r >> 1)} dst_sel:DWORD dst_unused:UNUSED_PAD src0_sel:DWORD src1_sel:WORD_{r & 1}")
            a(f"ds_write_b32 v{vJ + i}, v{vI + i}")
    vS = 64
    a(f"""
    s_mov_b64 exec, -1
    v_add_u32 v5, {STG}, v{vOff16}
    v_mov_b32 v{vP}, v{vOff16}
    s_waitcnt lgkmcnt(0)
    s_barrier
    """)
    st("bar3")
    for i in range(7):
        a(f"ds_read_b128 {vr(vS + 4 * i, 4)}, v5 offset:{i * 8192}")
    a(f"""
    s_mov_b64 exec, s[{sX}:{sX + 1}]
    ds_write_b128 v{vP}, {vr(vPar, 4)} offset:{HIST}
    ds_write_b128 v{vP}, {vr(vPar + 4, 4)} offset:{HIST + 1024}
    s_mov_b64 exec, -1
    """)
    for i in range(7):
        a(f"s_mov_b32 s{sX + 4}, {i * 8192}")
        a(f"s_waitcnt lgkmcnt({8 - i})")
        a(f"buffer_store_dwordx4 {vr(vS + 4 * i, 4)}, v{vP}, s[{SRW}:{SRW + 3}], s{sX + 4} offen {P['rec_st']}")
    st("stissued")

    def poll(mask):
        a(f"""
        s_mov_b32 exec_lo, {mask}
        s_mov_b32 exec_hi, 0
        buffer_load_dword v{vSegW}, v{vSegA}, s[{SSEG}:{SSEG + 3}], s{sJ4} offen sc1
        """)

    ld_issue("X")
    a(f"""
    s_mov_b64 exec, -1
    v_lshrrev_b32 v{vT}, 6, v0
    v_and_b32 v{vLane}, 63, v0
    v_and_b32 v{vT + 1}, 31, v0
    v_lshl_add_u32 v{vT + 2}, v{vT + 1}, 3, v{vT}
    v_lshlrev_b32 v{vSegA}, 10, v{vT + 2}
    s_lshl_b32 s{sJ4}, s{sJ}, 2
    v_mul_u32_u24 v{vCb}, {CS}, v{vT + 2}
    v_and_b32 v{vT + 6}, 15, v{vLane}
    v_lshrrev_b32 v{vT + 7}, 4, v{vLane}
    v_mul_u32_u24 v{vLL20}, 20, v{vT + 6}
    v_lshlrev_b32 v{vDw}, 7, v{vT}
    v_add_u32 v{vDw}, {DESC}, v{vDw}
    v_lshl_add_u32 v{vDr}, v{vT + 7}, 4, v{vDw}
    v_mul_u32_u24 v{vT + 8}, 80, v{vT}
    v_add_u32 v{vT + 8}, v{vT + 8}, v{vT + 6}
    v_lshlrev_b32 v{vMoff}, 5, v{vT + 8}
    v_lshl_add_u32 v{vMoff}, v{vT + 7}, 3, v{vMoff}
    v_cmp_gt_u32 vcc, {BK - 64}, v{vT + 8}
    v_mov_b32 v{vT + 9}, 0x7fffff00
    v_lshlrev_b32 v{vDoff}, 1, v{vT + 8}
    v_cndmask_b32 v{vOut4}, v{vT + 9}, v{vMoff}, vcc
    v_mov_b32 v{vZero}, 0
    v_mov_b32 v{vFour}, 4
    v_lshrrev_b32 v{vT + 5}, 1, v{vLane}
    v_lshlrev_b32 v{vLH4}, 2, v{vT + 5}
    v_and_b32 v{vHalf16}, 1, v{vLane}
    v_lshlrev_b32 v{vHalf16}, 4, v{vHalf16}
    v_bfe_u32 v{vT + 6}, v{vT + 5}, 2, 1
    v_bfe_u32 v{vT + 7}, v{vT + 5}, 4, 1
    v_lshl_add_u32 v{vT + 6}, v{vT + 7}, 1, v{vT + 6}
    v_and_b32 v{vT + 7}, 3, v{vT + 5}
    v_bfe_u32 v{vT + 8}, v{vT + 5}, 3, 1
    v_lshl_add_u32 v{vT + 7}, v{vT + 8}, 2, v{vT + 7}
    v_lshlrev_b32 v{vT + 7}, 1, v{vT + 7}
    v_lshl_add_u32 v{vSc}, v{vT + 6}, 8, v{vT + 7}
    v_lshlrev_b32 v{vT + 8}, 10, v{vT}
    v_add_u32 v{vT + 8}, {SB}, v{vT + 8}
    v_add_u32 v{vSc}, v{vSc}, v{vT + 8}
    v_lshl_add_u32 v{vSrd}, v{vLane}, 4, v{vT + 8}
    v_bfe_u32 v{vT + 6}, v{vLane}, 4, 1
    v_bfe_u32 v{vT + 7}, v{vLane}, 5, 1
    v_lshlrev_b32 v{vT + 7}, 4, v{vT + 7}
    v_lshl_add_u32 v{vT + 6}, v{vT + 6}, 2, v{vT + 7}
    v_bfe_u32 v{vT + 7}, v{vLane}, 2, 2
    v_add_u32 v{vT + 6}, v{vT + 6}, v{vT + 7}
    v_and_b32 v{vT + 7}, 3, v{vLane}
    v_lshlrev_b32 v{vT + 7}, 3, v{vT + 7}
    v_lshl_add_u32 v{vTr}, v{vT + 6}, 5, v{vT + 7}
    v_lshlrev_b32 v{vT + 8}, 12, v{vT}
    v_add_u32 v{vT + 8}, {RING}, v{vT + 8}
    v_add_u32 v{vTr}, v{vTr}, v{vT + 8}
    v_mul_u32_u24 v{vT + 6}, 52, v{vLane}
    v_lshrrev_b32 v{vT + 6}, 8, v{vT + 6}
    v_lshlrev_b32 v{vPh}, 21, v{vT + 6}
    v_mul_u32_u24 v{vT + 6}, 35, v{vT + 6}
    v_mul_u32_u24 v{vT + 7}, 5, v{vT}
    v_add3_u32 v{vT + 6}, v{vT + 6}, v{vT + 7}, v{vLane}
    v_add_u32 v{vT + 6}, 1, v{vT + 6}
    v_lshlrev_b32 v{vCntA}, 2, v{vT + 6}
    """)
    bin_addr(vBase, vT + 6, vT + 7)
    a(f"""
    v_cmp_lt_u32 vcc, 14, v{vLane}
    v_mov_b32 v{vT + 8}, {ZB}
    v_add_u32 v{vT + 6}, 1, v{vLane}
    v_cndmask_b32 v{vBase}, v{vBase}, v{vT + 8}, vcc
    v_cndmask_b32 v{vPh}, v{vPh}, v{vZero}, vcc
    v_cndmask_b32 v{vCntA}, v{vCntA}, v{vZero}, vcc
    """)
    bin_addr(vLim0, vT + 6, vT + 7)
    a(f"v_add_u32 v{vT + 6}, 65, v{vLane}")
    bin_addr(vLim1, vT + 6, vT + 7)
    a(f"""
    s_lshr_b32 s{sTk}, s2, 3
    s_lshl_b32 s{sTk}, s{sTk}, 3
    s_add_u32 s{sTk}, s{sTk}, s{sW}
    s_mul_i32 s{sTk}, s{sTk}, {128 * max(P["pf"], 1)}
    v_lshlrev_b32 v{vPfA}, 7, v{vLane}
    v_add_u32 v{vPfA}, s{sTk}, v{vPfA}
    v_mov_b32 v{vT + 8}, -1
    v_cmp_eq_u32 vcc, 0, v{vLane}
    v_cmp_lt_u32 s[{sTk}:{sTk + 1}], 56, v{vLane}
    s_nop 1
    v_cndmask_b32 v{vLim0}, v{vLim0}, v{vT + 8}, vcc
    v_cndmask_b32 v{vLim1}, v{vLim1}, v{vT + 8}, s[{sTk}:{sTk + 1}]
    """)
    for k in range(20):
        a(f"v_mov_b32 v{vAcc + k}, 0")
    a(f"""
    s_mov_b32 s97, 0
    s_mov_b64 s[100:101], 0
    s_mov_b32 s{sPend}, -1
    s_mov_b32 s{sReady}, 0
    s_mov_b32 s{sPrevN}, 0
    s_mov_b64 s[{sLate}:{sLate + 1}], -1
    s_mul_i32 s{sDo}, s{sJ}, {BK * 2}
    s_mul_i32 s{sMo}, s{sJ}, {BK * 32}
    s_waitcnt vmcnt(0) lgkmcnt(0)
    s_cmp_lg_u32 s{sW}, 7
    s_cbranch_scc1 L_ctr_ok
    L_ctr:
    """)
    ctr_sum(None)
    a(f"""
    s_cbranch_scc1 L_ctr_ok
    s_add_u32 s{sSpin}, s{sSpin}, 1
    s_cmp_gt_u32 s{sSpin}, {SPIN_MAX}
    s_cbranch_scc1 L_end
    s_sleep 2
    s_mov_b64 exec, 15
    buffer_load_dword v{vCtr}, v{vCtr + 1}, s[{SDBG}:{SDBG + 3}], 0 offen sc1
    s_mov_b64 exec, -1
    s_waitcnt vmcnt(0)
    s_branch L_ctr
    L_ctr_ok:
    s_mov_b32 s{sSpin}, 0
    """)
    st("drained")

    def late_loads():
        a(f"s_mov_b64 exec, s[{sLate}:{sLate + 1}]")
        for g in range(5):
            a(f"buffer_load_ushort v{vDist + g}, v{vDoff}, s[{SDIST}:{SDIST + 3}], s{sDo} offen offset:{32 * g}")
        for g in range(5):
            a(f"buffer_load_dwordx2 {vr(vMr + 2 * g, 2)}, v{vMoff}, s[{SM}:{SM + 3}], s{sMo} offen offset:{512 * g}")
        if P["pf"]:
            a(f"""
            s_and_b32 exec_hi, exec_hi, {-1 if P["pf"] == 64 else 0}
            buffer_load_dword v{vPfD}, v{vPfA}, s[{SM}:{SM + 3}], 0 offen
            """)
        a(f"s_mov_b64 s[{sLate}:{sLate + 1}], 0")

    a(f"""
    s_barrier
    s_mov_b64 exec, s[{sX}:{sX + 1}]
    buffer_store_dwordx4 {vr(vSeg, 4)}, v{vP}, s[{SSEG}:{SSEG + 3}], s{sX + 2} offen sc1
    """)
    st("pub")
    a("s_branch L_idle3")

    dbg = [0]

    def once(lane):
        if not P["stamps"]:
            return
        dbg[0] += 1
        a(f"""
        s_bitcmp1_b64 s[100:101], {lane}
        s_cbranch_scc1 L_once{dbg[0]}
        s_bitset1_b64 s[100:101], {lane}
        s_memrealtime s[98:99]
        s_waitcnt lgkmcnt(0)
        v_writelane_b32 v207, s98, {lane}
        L_once{dbg[0]}:
        """)

    def slot(bank, s):
        return vSlot + 6 * (4 * bank + s), sMk + 2 * (4 * bank + s)

    def rec_issue(bank, s):
        w, m = slot(bank, s)
        a(f"""
        s_mov_b64 exec, -1
        v_add_u32 v{w + 5}, v{vL0 + s}, v{vLL20}
        v_cmp_lt_u32 s[{m}:{m + 1}], v{vLL20}, v{vL1 + s}
        s_mov_b64 exec, s[{m}:{m + 1}]
        buffer_load_dwordx4 {vr(w, 4)}, v{w + 5}, s[{SREC}:{SREC + 3}], 0 offen {P["rec_ld"]}
        buffer_load_dword v{w + 4}, v{w + 5}, s[{SREC}:{SREC + 3}], 0 offen offset:16 {P["rec_ld"]}
        """)

    def process(bank, issue_bank, younger):
        for s in range(4):
            if issue_bank is not None:
                rec_issue(issue_bank, s)
            a(f"s_waitcnt vmcnt({younger(s)})")
            if s == 0:
                once(46)
            place_atomics(*slot(bank, s), vRk + 4 * (s & 1))
            if s > 0:
                a(f"s_waitcnt lgkmcnt({4 if s == 1 else 8})")
                place_writes(*slot(bank, s - 1), vRk + 4 * ((s - 1) & 1))
        a("s_waitcnt lgkmcnt(4)")
        place_writes(*slot(bank, 3), vRk + 4)

    for X in range(2):
        Y = 1 - X
        a(f"""
        L_top{X}:
        s_mov_b32 exec_lo, s{sPend}
        s_mov_b32 exec_hi, 0
        s_waitcnt vmcnt(8)
        v_cmp_gt_i32 vcc, 0, v{vSegW}
        s_and_b32 s{sTk}, s{sPend}, vcc_lo
        s_andn2_b32 s{sPend}, s{sPend}, s{sTk}
        s_mov_b32 exec_lo, s{sTk}
        v_and_b32 v{vT}, 0xfff, v{vSegW}
        v_bfe_u32 v{vT + 1}, v{vSegW}, 12, 12
        v_mad_u32_u24 v{vD0}, v{vT}, 20, v{vCb}
        v_mul_u32_u24 v{vHi}, 20, v{vT + 1}
        s_or_b32 s{sReady}, s{sReady}, s{sTk}
        s_cbranch_scc1 L_take{X}
        s_cmp_eq_u32 s{sPrevN}, 0
        s_cbranch_scc1 L_idle
        s_cmp_eq_u32 s{sPend}, 0
        s_cbranch_scc1 L_final{X}
        L_take{X}:
        """)
        if P["stamps"]:
            a(f"""
            s_add_u32 s97, s97, 1
            s_memrealtime s[98:99]
            s_waitcnt lgkmcnt(0)
            s_mov_b32 s96, s98
            s_cmp_eq_u32 s97, 1
            s_cbranch_scc0 L_dbg{X}
            v_writelane_b32 v207, s98, 43
            s_bcnt1_i32_b32 s99, s{sReady}
            v_writelane_b32 v207, s99, 44
            L_dbg{X}:
            """)
        a(f"""
        s_mov_b32 exec_lo, 0xffff
        v_lshl_add_u32 v{vT + 3}, v{vLane}, 2, v{vDw}
        ds_write_b32 v{vT + 3}, v{vZero} offset:64
        s_mov_b32 exec_lo, s{sReady}
        v_mbcnt_lo_u32_b32 v{vT}, s{sReady}, 0
        v_cmp_gt_u32 vcc, 16, v{vT}
        s_and_b32 s{sCurN}, s{sReady}, vcc_lo
        s_mov_b32 exec_lo, s{sCurN}
        v_and_b32 v{vT + 2}, 3, v{vT}
        v_lshrrev_b32 v{vT}, 2, v{vT}
        v_min_u32 v{vT + 1}, 320, v{vHi}
        v_lshl_add_u32 v{vT}, v{vT + 2}, 2, v{vT}
        v_sub_u32 v{vHi}, v{vHi}, v{vT + 1}
        v_lshl_add_u32 v{vT}, v{vT}, 2, v{vDw}
        ds_write_b32 v{vT}, v{vD0}
        ds_write_b32 v{vT}, v{vT + 1} offset:64
        v_cmp_lt_u32 vcc, 0, v{vHi}
        v_add_u32 v{vD0}, 320, v{vD0}
        s_andn2_b32 s{sReady}, s{sReady}, s{sCurN}
        s_and_b32 s{sTk}, s{sCurN}, vcc_lo
        s_or_b32 s{sReady}, s{sReady}, s{sTk}
        s_mov_b64 exec, -1
        ds_read_b128 {vr(vL0, 4)}, v{vDr}
        ds_read_b128 {vr(vL1, 4)}, v{vDr} offset:64
        """)
        poll(f"s{sPend}")
        a(f"""
        s_cmp_eq_u32 s{sPrevN}, 0
        s_mov_b32 s{sPrevN}, s{sCurN}
        s_waitcnt lgkmcnt(0)
        s_cbranch_scc1 L_only{X}
        """)
        process(Y, X, lambda s: 9)
        a(f"s_branch L_top{Y}")
    for X in range(2):
        a(f"L_only{X}:")
        for s in range(4):
            rec_issue(X, s)
        a(f"s_branch L_top{1 - X}")
    for X in range(2):
        a(f"L_final{X}:")
        once(45)
        late_loads()
        process(1 - X, None, lambda s: 2 * (3 - s) + 10 + (1 if P["pf"] else 0))
        a("s_branch L_taken")
    a(f"""
    L_idle:
    s_cmp_eq_u32 s{sPend}, 0
    s_cbranch_scc1 L_idle_late
    s_cmp_lt_u32 s{sSpin}, {P["latespin"]}
    s_cbranch_scc1 L_idle2
    L_idle_late:
    """)
    late_loads()
    a(f"""
    s_cmp_eq_u32 s{sPend}, 0
    s_cbranch_scc1 L_taken
    L_idle2:
    s_add_u32 s{sSpin}, s{sSpin}, 1
    s_cmp_gt_u32 s{sSpin}, {SPIN_MAX}
    s_cbranch_scc1 L_end
    s_sleep {P["sleep"]}
    L_idle3:
    """)
    poll(f"s{sPend}")
    a(f"""
    s_waitcnt vmcnt(0)
    s_branch L_top0
    L_taken:
    s_mov_b64 exec, -1
    s_mov_b32 s{sLast}, 1
    s_mov_b32 s{sFirst}, 1
    s_movk_i32 s{sF0}, 0xf0
    s_movk_i32 s{s70}, 0x70
    s_lshl_b32 s{sRingB}, s{sW}, 12
    s_add_u32 s{sRingB}, s{sRingB}, {RING}
    s_mul_i32 s{sRowOff}, s{sJ}, {BK * 32}
    v_lshlrev_b32 v{vT}, 2, v{vLane}
    s_waitcnt lgkmcnt(0)
    """)
    st("intake")
    if P["stamps"]:
        a(f"v_writelane_b32 v207, s{sSpin}, 40")
        a("v_writelane_b32 v207, s97, 41")
        a("v_writelane_b32 v207, s96, 42")
    a("s_barrier")
    st("bar5")
    a(f"""
    ds_read_b32 v{vT + 1}, v{vT} offset:{CNT}
    ds_read_b32 v{vT + 2}, v{vT} offset:{CNT + 256}
    ds_read_b32 v{vEnd}, v{vCntA} offset:{CNT}
    s_waitcnt lgkmcnt(1)
    v_cmp_gt_u32 vcc, v{vT + 1}, v{vLim0}
    v_cmp_gt_u32 s[{sT}:{sT + 1}], v{vT + 2}, v{vLim1}
    s_or_b64 vcc, vcc, s[{sT}:{sT + 1}]
    """)
    if P["force_slow"]:
        a("s_cmp_eq_u32 0, 0")
    a(f"""
    s_cbranch_scc0 L_G
    s_mov_b32 s{sSC}, 0
    s_mov_b32 s{sSU}, 0
    s_mov_b32 s{sLast}, 0
    L_slow:
    s_waitcnt vmcnt(0) lgkmcnt(0)
    s_barrier
    """)
    cnt_init(vT, sT)
    fill(vT + 4, 10)
    a(f"""
    s_waitcnt lgkmcnt(0)
    s_barrier
    s_cmp_lt_u32 s{sSC}, {NCH}
    s_cbranch_scc1 L_slow_unit
    s_mov_b32 s{sLast}, 1
    s_branch L_slow_go
    L_slow_unit:
    s_lshl_b32 s{sT}, s{sSC}, 10
    s_lshl_b32 s{sT + 1}, s{sJ}, 2
    s_add_u32 s{sT}, s{sT}, s{sT + 1}
    buffer_load_dword v{vT}, v{vZero}, s[{SSEG}:{SSEG + 3}], s{sT} offen sc1
    s_waitcnt vmcnt(0)
    v_readfirstlane_b32 s{sT + 2}, v{vT}
    s_and_b32 s{sT + 1}, s{sT + 2}, 0xfff
    s_mul_i32 s{sT + 1}, s{sT + 1}, 20
    s_bfe_u32 s{sT + 2}, s{sT + 2}, 0xc000c
    s_mul_i32 s{sT + 2}, s{sT + 2}, 20
    s_mul_i32 s{sT + 3}, s{sSC}, {CS}
    s_add_u32 s{sT + 3}, s{sT + 3}, s{sT + 1}
    s_add_u32 s{sT + 3}, s{sT + 3}, s{sSU}
    s_sub_u32 s{sT + 4}, s{sT + 2}, s{sSU}
    s_min_u32 s{sT + 4}, s{sT + 4}, 480
    s_cmp_lg_u32 s{sW}, 0
    s_cbranch_scc1 L_slow_adv
    v_mul_u32_u24 v{vT}, 20, v{vLane}
    v_cmp_gt_u32 s[{sT + 6}:{sT + 7}], s{sT + 4}, v{vT}
    s_mov_b64 exec, s[{sT + 6}:{sT + 7}]
    buffer_load_dwordx4 {vr(vSlot, 4)}, v{vT}, s[{SREC}:{SREC + 3}], s{sT + 3} offen sc1
    buffer_load_dword v{vSlot + 4}, v{vT}, s[{SREC}:{SREC + 3}], s{sT + 3} offen offset:16 sc1
    s_waitcnt vmcnt(0)
    """)
    place_atomics(vSlot, sT + 6, vRk)
    a("s_waitcnt lgkmcnt(0)")
    place_writes(vSlot, sT + 6, vRk)
    a(f"""
    s_mov_b64 exec, -1
    L_slow_adv:
    s_add_u32 s{sSU}, s{sSU}, 480
    s_cmp_lt_u32 s{sSU}, s{sT + 2}
    s_cbranch_scc1 L_slow_go
    s_add_u32 s{sSC}, s{sSC}, 1
    s_mov_b32 s{sSU}, 0
    L_slow_go:
    s_waitcnt lgkmcnt(0)
    s_barrier
    ds_read_b32 v{vEnd}, v{vCntA} offset:{CNT}
    L_G:
    v_cmp_lt_u32 vcc, 14, v{vLane}
    v_add_u32 v{vT + 1}, 128, v{vBase}
    s_mov_b32 s{sCur}, 0
    s_waitcnt lgkmcnt(0)
    v_cndmask_b32 v{vEnd}, v{vEnd}, v{vT + 1}, vcc
    v_cmp_gt_u32 vcc, v{vEnd}, v{vBase}
    v_sub_u32 v{vEnd}, v{vEnd}, v{vBase}
    v_add_u32 v{vEnd}, 127, v{vEnd}
    v_and_b32 v{vEnd}, 0xffffff80, v{vEnd}
    v_add_u32 v{vEnd}, v{vEnd}, v{vBase}
    s_and_b32 s{sNE}, vcc_lo, 0x7fff
    """)

    def next_bin():
        a(f"""
        s_ff1_i32_b32 s{sL}, s{sNE}
        s_bitset0_b32 s{sNE}, s{sL}
        v_readlane_b32 s{sIA}, v{vBase}, s{sL}
        v_readlane_b32 s{sIE}, v{vEnd}, s{sL}
        v_readlane_b32 s{sIP}, v{vPh}, s{sL}
        """)

    next_bin()
    for k in range(D):
        a(f"""
        s_add_u32 m0, s{sRingB}, {k * 1024}
        s_nop 0
        v_add_u32 v{vT + k}, s{sIA}, v{vLH4}
        ds_read_b32 v{vT + k}, v{vT + k}
        s_add_u32 s{sIA}, s{sIA}, 128
        s_waitcnt lgkmcnt(0)
        v_mad_u32_u16 v{vT + k}, v{vT + k}, 32, v{vHalf16} op_sel:[1,0,0,0]
        buffer_load_dwordx4 v{vT + k}, s[{SM}:{SM + 3}], s{sIP} offen {P["gather"]} lds
        s_cmp_lg_u32 s{sIA}, s{sIE}
        s_cbranch_scc1 L_pro{k}
        """)
        next_bin()
        a(f"L_pro{k}:")
    a(f"""
    s_movk_i32 s{sPrev}, {D * 1024}
    s_cmp_eq_u32 s{sFirst}, 0
    s_cbranch_scc1 L_main
    s_mov_b32 s{sFirst}, 0
    """)
    st("Gissued")
    a(f"""
    v_and_b32 v{vT + 4}, 15, v{vLane}
    v_lshrrev_b32 v{vT + 5}, 4, v{vLane}
    v_lshlrev_b32 v{vT + 4}, 1, v{vT + 4}
    v_lshl_add_u32 v{vT + 6}, v{vT + 5}, 6, v{vT + 4}
    v_lshl_add_u32 v{vT + 4}, v{vT + 5}, 7, v{vT + 4}
    v_lshlrev_b32 v{vT + 5}, 2, v{vT + 5}
    """)
    for k in range(4):
        a(f"ds_read_u16 v{vWraw + k}, v{vT + 4} offset:{HIST + 32 * k}")
        a(f"ds_read_u16 v{vWraw + 4 + k}, v{vT + 4} offset:{HIST + 512 + 32 * k}")
    for k in range(2):
        a(f"ds_read_u16 v{vWraw + 8 + k}, v{vT + 6} offset:{HIST + 1024 + 32 * k}")
        a(f"ds_read_u16 v{vWraw + 10 + k}, v{vT + 6} offset:{HIST + 1280 + 32 * k}")
    a(f"""
    ds_read_b32 v{vCen}, v{vT + 5} offset:{HIST + 1536}
    s_waitcnt vmcnt({D}) lgkmcnt(0)
    v_lshl_or_b32 v{vWd}, v{vWraw + 1}, 16, v{vWraw}
    v_lshl_or_b32 v{vWd + 1}, v{vWraw + 3}, 16, v{vWraw + 2}
    v_lshl_or_b32 v{vWu}, v{vWraw + 5}, 16, v{vWraw + 4}
    v_lshl_or_b32 v{vWu + 1}, v{vWraw + 7}, 16, v{vWraw + 6}
    v_lshl_or_b32 v{vWs}, v{vWraw + 9}, 16, v{vWraw + 8}
    v_lshl_or_b32 v{vWr}, v{vWraw + 11}, 16, v{vWraw + 10}
    v_mov_b32 v{vWd + 2}, v{vWd}
    v_mov_b32 v{vWd + 3}, v{vWd + 1}
    v_mov_b32 v{vWu + 2}, v{vWu}
    v_mov_b32 v{vWu + 3}, v{vWu + 1}
    v_mov_b32 v{vWs + 1}, 0
    v_mov_b32 v{vWr + 1}, 0
    v_mov_b32 v{vRb + 1}, 0
    v_mov_b32 v{vRb + 3}, 0
    v_and_b32 v{vCen + 1}, 0xffff0000, v{vCen}
    v_lshlrev_b32 v{vCen}, 16, v{vCen}
    """)
    for g in range(5):
        t = vT + 4
        rb = vRb + 2 * (g & 1)
        a(f"""
        v_lshlrev_b32 v{t + 2}, 16, v{vDist + g}
        v_sub_f32 v{t}, v{t + 2}, v{vCen}
        v_sub_f32 v{t + 1}, v{t + 2}, v{vCen + 1}
        v_cvt_pk_bf16_f32 v{t + 2}, v{t}, v{t + 1}
        v_lshlrev_b32 v{t}, 16, v{t + 2}
        v_and_b32 v{t + 1}, 0xffff0000, v{t + 2}
        v_mul_f32 v{t}, v{t}, v{t}
        v_mul_f32 v{t + 1}, v{t + 1}, v{t + 1}
        v_cvt_pk_bf16_f32 v{t + 2}, v{t}, v{t + 1}
        v_lshlrev_b32 v{t}, 16, v{t + 2}
        v_and_b32 v{t + 1}, 0xffff0000, v{t + 2}
        v_mul_f32 v{t}, 0xc1200000, v{t}
        v_mul_f32 v{t + 1}, 0xc1200000, v{t + 1}
        v_cvt_pk_bf16_f32 v{t + 2}, v{t}, v{t + 1}
        v_lshlrev_b32 v{t}, 16, v{t + 2}
        v_and_b32 v{t + 1}, 0xffff0000, v{t + 2}
        v_mul_f32 v{t}, 0x3fb8aa3b, v{t}
        v_mul_f32 v{t + 1}, 0x3fb8aa3b, v{t + 1}
        v_exp_f32 v{t}, v{t}
        v_exp_f32 v{t + 1}, v{t + 1}
        s_nop 0
        v_cvt_pk_bf16_f32 v{rb}, v{t}, v{t + 1}
        s_nop 1
        v_mfma_f32_16x16x16_bf16 {vr(vG + 4 * g, 4)}, {vr(vWs, 2)}, {vr(rb, 2)}, 0
        v_mfma_f32_16x16x16_bf16 {vr(vH + 4 * g, 4)}, {vr(vWr, 2)}, {vr(rb, 2)}, 0
        """)
    st("GH")
    a("L_main:")

    def split(src, dst, t):
        a(f"""
        v_cvt_pk_bf16_f32 v{dst}, v{src}, v{src + 1}
        v_cvt_pk_bf16_f32 v{dst + 1}, v{src + 2}, v{src + 3}
        v_lshlrev_b32 v{t}, 16, v{dst}
        v_and_b32 v{t + 1}, 0xffff0000, v{dst}
        v_lshlrev_b32 v{t + 2}, 16, v{dst + 1}
        v_and_b32 v{t + 3}, 0xffff0000, v{dst + 1}
        v_sub_f32 v{t}, v{src}, v{t}
        v_sub_f32 v{t + 1}, v{src + 1}, v{t + 1}
        v_sub_f32 v{t + 2}, v{src + 2}, v{t + 2}
        v_sub_f32 v{t + 3}, v{src + 3}, v{t + 3}
        v_cvt_pk_bf16_f32 v{dst + 2}, v{t}, v{t + 1}
        v_cvt_pk_bf16_f32 v{dst + 3}, v{t + 2}, v{t + 3}
        s_nop 1
        """)

    for p in range(3):
        for g in range(5):
            b = p * 5 + g
            acc = vAcc + 4 * g
            a(f"""
            v_readlane_b32 s{sC}, v{vBase}, {b}
            v_readlane_b32 s{sCE}, v{vEnd}, {b}
            s_cmp_eq_u32 s{sC}, s{sCE}
            s_cbranch_scc1 L_bin{b}_done
            L_bin{b}:
            s_add_u32 m0, s{sRingB}, s{sPrev}
            v_add_u32 v{vT}, s{sIA}, v{vLH4}
            v_add_u32 v{vT + 1}, s{sC}, v{vLH4}
            ds_read_b32 v{vT}, v{vT}
            ds_read_b32 v{vT + 1}, v{vT + 1}
            v_add_u32 v{vT + 3}, s{sCur}, v{vTr}
            s_mov_b32 s{sPrev}, s{sCur}
            s_add_u32 s{sCur}, s{sCur}, 1024
            s_and_b32 s{sCur}, s{sCur}, {R * 1024 - 1}
            s_add_u32 s{sC}, s{sC}, 128
            s_add_u32 s{sIA}, s{sIA}, 128
            s_cmp_eq_u32 s{sIA}, s{sIE}
            s_waitcnt lgkmcnt(1)
            v_mad_u32_u16 v{vT}, v{vT}, 32, v{vHalf16} op_sel:[1,0,0,0]
            buffer_load_dwordx4 v{vT}, s[{SM}:{SM + 3}], s{sIP} offen {P["gather"]} lds
            s_cbranch_scc1 L_nb{b}
            L_nb{b}_back:
            s_waitcnt lgkmcnt(0)
            v_and_b32 v{vT + 2}, 0xbff8, v{vT + 1}
            v_lshlrev_b32 v{vT + 4}, 4, v{vT + 1}
            v_lshrrev_b32 v{vT + 5}, 7, v{vT + 1}
            v_cvt_f32_f16 v{vT + 2}, v{vT + 2}
            v_bfi_b32 v{vT + 4}, s{s70}, v{vT + 4}, v{vT + 5}
            v_and_or_b32 v{vT + 4}, v{vT + 4}, s{sF0}, v{vSc}
            ds_write_b16_d16_hi v{vT + 4}, v{vT + 2}
            ds_read_b128 {vr(vSt, 4)}, v{vSrd}
            ds_write_b16 v{vT + 4}, v{vZero}
            s_waitcnt vmcnt({D})
            ds_read_b64_tr_b16 {vr(vMt, 2)}, v{vT + 3}
            ds_read_b64_tr_b16 {vr(vMt + 2, 2)}, v{vT + 3} offset:256
            s_cmp_lg_u32 s{sC}, s{sCE}
            s_waitcnt lgkmcnt(0)
            v_mfma_f32_16x16x32_bf16 {vr(acc, 4)}, {vr(vMt, 4)}, {vr(vSt, 4)}, {vr(acc, 4)}
            s_cbranch_scc1 L_bin{b}
            L_bin{b}_done:
            """)
            if g == 4 or b == 0:
                st(f"bin{b}")
            if p == 2:
                x, y, t = vT + 4, vT + 8, vT + 12
                a(f"""
                s_cmp_eq_u32 s{sLast}, 0
                s_cbranch_scc1 L_epi{g}_done
                s_nop 5
                """)
                split(acc, x, t)
                a(f"""
                v_mfma_f32_16x16x32_bf16 {vr(y, 4)}, {vr(vWd, 4)}, {vr(x, 4)}, 0
                s_nop 7
                v_mul_f32 v{y}, v{y}, v{vG + 4 * g}
                v_mul_f32 v{y + 1}, v{y + 1}, v{vG + 4 * g + 1}
                v_mul_f32 v{y + 2}, v{y + 2}, v{vG + 4 * g + 2}
                v_mul_f32 v{y + 3}, v{y + 3}, v{vG + 4 * g + 3}
                """)
                split(y, x, t)
                mr = vMr + 2 * g
                a(f"""
                v_mfma_f32_16x16x32_bf16 {vr(y, 4)}, {vr(vWu, 4)}, {vr(x, 4)}, 0
                v_lshlrev_b32 v{t}, 16, v{mr}
                v_and_b32 v{t + 1}, 0xffff0000, v{mr}
                v_lshlrev_b32 v{t + 2}, 16, v{mr + 1}
                v_and_b32 v{t + 3}, 0xffff0000, v{mr + 1}
                s_nop 3
                v_fmac_f32 v{t}, v{y}, v{vH + 4 * g}
                v_fmac_f32 v{t + 1}, v{y + 1}, v{vH + 4 * g + 1}
                v_fmac_f32 v{t + 2}, v{y + 2}, v{vH + 4 * g + 2}
                v_fmac_f32 v{t + 3}, v{y + 3}, v{vH + 4 * g + 3}
                v_cvt_pk_bf16_f32 v{mr}, v{t}, v{t + 1}
                v_cvt_pk_bf16_f32 v{mr + 1}, v{t + 2}, v{t + 3}
                buffer_store_dwordx2 {vr(mr, 2)}, v{vOut4 if g == 4 else vMoff}, s[{SOUT}:{SOUT + 3}], s{sRowOff} offen offset:{512 * g} {P["out_st"]}
                L_epi{g}_done:
                """)
    a(f"""
    s_cmp_eq_u32 s{sLast}, 0
    s_cbranch_scc1 L_slow
    """)
    if P["stamps"]:
        a("s_waitcnt vmcnt(0)")
    st("end")
    st.flush(SSEG, "s2", vT)
    a("""
    L_end:
    s_endpgm
    """)
    for b in range(15):
        a(f"L_nb{b}:")
        next_bin()
        a(f"s_branch L_nb{b}_back")
    return a.text(), 256, 102, LDS


def generate(**kw):
    P = dict(DEFAULTS)
    P.update(kw)
    body, nv, ns, lds = gen(P)
    n = NAME + "_kernel"
    out = HEADER
    out += f"; @launch grid=({NCH},1,1) block=(512,1,1) lds={lds}\n"
    out += '.amdgcn_target "amdgcn-amd-amdhsa--gfx950"\n.text\n'
    out += f".globl {n}\n.p2align 8\n.type {n},@function\n{n}:\n{body}"
    out += '.section .rodata,"a"\n.p2align 6\n' + descriptor(n, nv, ns)
    return out


if __name__ == "__main__":
    path = sys.argv[1]
    kw = {}
    for arg in sys.argv[2:]:
        k, v = arg.split("=", 1)
        kw[k] = int(v) if v.lstrip("-").isdigit() else v
    open(path, "w").write(generate(**kw))
```

```python
import sys
from gen import Asm, vr, srd, Stamps, descriptor, NAME, E, T, NCH, CH, BK, WS_SEG

SPIN_MAX = 1 << 18
CS = 53888
CAPS = (160, 160, 96)

DEFAULTS = dict(
    D=3,
    in_ld="nt",
    rec_st="sc1",
    rec_ld="",
    out_st="",
    gather="",
    sleep=4,
    xl=1,
    latespin=2,
    pf=0,
    stamps=0,
    force_slow=0,
)

HEADER = """; Kernarg layout for this problem (112 bytes, ptrs only, base s[0:1]):
;
"""


def gen(P):
    a = Asm()
    D = P["D"]
    R = D + 1
    assert R == 4
    CNT, HIST, BASE, DESC, SB, TRASH, AB = 0, 512, 1536, 2560, 3584, 11776, 14848
    ZB = AB + 40 * 4 * sum(CAPS)
    RING = ZB + 128
    STG = RING
    FLAG = CNT + 127 * 4
    LDS = 143360
    assert SB + 17 * 8192 <= LDS and STG + 7 * 8192 <= LDS and STG + 53840 <= SB + 17 * 8192
    sJ = 3
    SO, SI, SA, SRW, SSEG, SREC, SM, SOUT, SDIST, SDBG = 4, 8, 12, 16, 20, 24, 28, 32, 36, 40
    pM, pI, pO, pDist, pAng, pCen, pFreq, pWr, pWs, pWd, pWu, pOut, pDbg, pWsp = range(44, 72, 2)
    sOff, sOffA = 72, 77
    sC625, sM625, sMask, sAct, sW, sSpin, sX = 82, 83, 85, 86, 88, 89, 90
    sMk = 44
    sPend, sReady, sPrevN, sCurN, sJ4, sTk, sEarly = 60, 61, 62, 63, 64, 66, 68
    sLate, sDo, sMo = 70, 72, 73
    sLast, sFirst, sSC, sSU = 83, 84, 85, 86
    sF0, s70, sRingB, sPrev, sCur, sRowOff = 44, 45, 46, 47, 48, 49
    sNE, sL, sIA, sIE, sIP, sC, sCE = 50, 51, 52, 53, 54, 55, 56
    sT = 58
    st = Stamps(a, P, 0, 207, 98)
    vOff16, vOff8, vOne, vF = 1, 2, 3, 4
    vO, vI, vA, vJ, vR = 8, 28, 48, 58, 78
    vP = 98
    vSeg = 112
    vPar = 116
    vCtr = 124
    vLane, vLL20, vFour, vZero = 1, 2, 3, 4
    vLH4, vHalf16, vSc, vSrd, vTr, vBase, vCntA, vEnd, vPh = 5, 6, 7, 8, 9, 10, 11, 12, 13
    vMoff, vOut4 = 14, 15
    vT = 16
    vSlot = 32
    vRk = 80
    vL0, vL1 = 88, 92
    vD0, vHi, vSegA, vCb, vSegW, vDw, vDr, vDoff, vLim0, vLim1, vPfA, vPfD = range(100, 112)
    vAcc = 132
    vG, vH = 152, 172
    vMr = 192
    vDist = 202
    vWraw = 208
    vCen = 220
    vWd, vWu = 224, 228
    vWs, vWr, vRb = 232, 234, 236
    vMt, vSt = 240, 244
    vQ = 248

    def bin_addr(dst, k, tmp):
        a(f"""
        v_mul_u32_u24 v{dst}, {CAPS[0] * 4}, v{k}
        v_mul_u32_u24 v{tmp}, {CAPS[2] * 4}, v{k}
        v_add_u32 v{dst}, {AB - CAPS[0] * 4}, v{dst}
        v_add_u32 v{tmp}, {AB + 80 * CAPS[0] * 4 - 81 * CAPS[2] * 4}, v{tmp}
        v_min_u32 v{dst}, v{dst}, v{tmp}
        """)

    def cnt_init(t, stmp):
        bin_addr(t, 0, t + 1)
        a(f"""
        v_mov_b32 v{t + 1}, {TRASH}
        v_cmp_eq_u32 vcc, 0, v0
        v_mov_b32 v{t + 2}, 0
        v_lshlrev_b32 v{t + 3}, 2, v0
        v_cndmask_b32 v{t}, v{t}, v{t + 1}, vcc
        v_cmp_lt_u32 vcc, 120, v0
        s_nop 1
        v_cndmask_b32 v{t}, v{t}, v{t + 2}, vcc
        v_cmp_gt_u32 vcc, 128, v0
        s_and_saveexec_b64 s[{stmp}:{stmp + 1}], vcc
        ds_write_b32 v{t + 3}, v{t} offset:{CNT}
        s_mov_b64 exec, s[{stmp}:{stmp + 1}]
        """)

    def fill(t, rounds):
        a(f"""
        v_lshlrev_b32 v{t}, 4, v0
        v_mov_b32 v{vQ}, 0
        v_mov_b32 v{vQ + 1}, 0
        v_mov_b32 v{vQ + 2}, 0
        v_mov_b32 v{vQ + 3}, 0
        v_add_u32 v{t + 1}, {SB + 7 * 8192}, v{t}
        v_add_u32 v{t + 2}, {SB + 15 * 8192}, v{t}
        """)
        for i in range(rounds):
            if i < 7:
                a(f"ds_write_b128 v{t}, {vr(vQ, 4)} offset:{SB + i * 8192}")
            elif i < 15:
                a(f"ds_write_b128 v{t + 1}, {vr(vQ, 4)} offset:{(i - 7) * 8192}")
            else:
                a(f"ds_write_b128 v{t + 2}, {vr(vQ, 4)} offset:{(i - 15) * 8192}")

    def place_atomics(w, m, t):
        a(f"s_mov_b64 exec, s[{m}:{m + 1}]")
        for r in range(4):
            a(f"v_lshlrev_b32_sdwa v{t + r}, 2, v{w + 4} dst_sel:DWORD dst_unused:UNUSED_PAD src0_sel:DWORD src1_sel:BYTE_{r}")
            a(f"ds_add_rtn_u32 v{t + r}, v{t + r}, v{vFour} offset:{CNT}")

    def place_writes(w, m, t):
        a(f"s_mov_b64 exec, s[{m}:{m + 1}]")
        for r in range(4):
            a(f"ds_write_b32 v{t + r}, v{w + r}")

    def ctr_sum(lab_ok):
        a(f"""
        v_readlane_b32 s{sX + 4}, v{vCtr}, 0
        v_readlane_b32 s{sX + 5}, v{vCtr}, 1
        s_add_u32 s{sX + 4}, s{sX + 4}, s{sX + 5}
        v_readlane_b32 s{sX + 5}, v{vCtr}, 2
        s_add_u32 s{sX + 4}, s{sX + 4}, s{sX + 5}
        v_readlane_b32 s{sX + 5}, v{vCtr}, 3
        s_add_u32 s{sX + 4}, s{sX + 4}, s{sX + 5}
        s_cmp_ge_u32 s{sX + 4}, {NCH}
        """)

    ld = P["in_ld"]
    a(f"""
    s_cmp_ge_u32 s2, {NCH}
    s_cbranch_scc1 L_end
    """)
    st("start")
    a(f"""
    s_load_dwordx16 s[44:59], s[0:1], 0
    s_load_dwordx8 s[60:67], s[0:1], 64
    s_load_dwordx4 s[68:71], s[0:1], 96
    v_lshlrev_b32 v{vOff16}, 4, v0
    v_lshlrev_b32 v{vOff8}, 3, v0
    v_lshlrev_b32 v5, 2, v0
    v_mov_b32 v6, 0
    v_mov_b32 v{vOne}, 1
    v_lshrrev_b32 v7, 6, v0
    s_mul_i32 s{sOff}, s2, {CH * 4}
    s_mul_i32 s{sOffA}, s2, {CH * 2}
    v_readfirstlane_b32 s{sW}, v7
    ds_write_b32 v5, v6 offset:{HIST}
    """)
    for q in range(1, 5):
        a(f"s_add_u32 s{sOff + q}, s{sOff}, {q * 8000}")
        a(f"s_add_u32 s{sOffA + q}, s{sOffA}, {q * 4000}")
    if P["xl"]:
        a(f"""
        s_and_b32 s{sJ}, s2, 7
        s_lshl_b32 s{sJ}, s{sJ}, 5
        s_lshr_b32 s{sX}, s2, 3
        s_add_u32 s{sJ}, s{sJ}, s{sX}
        """)
    else:
        a(f"s_mov_b32 s{sJ}, s2")
    a(f"""
    s_mov_b32 s{sC625}, 6871948
    s_mov_b32 s{sM625}, -{BK}
    s_mov_b32 s{sMask}, 0x4007
    s_mov_b32 s{sSpin}, 0
    v_cmp_gt_u32 vcc, 500, v0
    s_lshl_b32 s{sX + 2}, s2, 10
    s_cmp_eq_u32 s{sW}, 0
    s_cselect_b64 s[{sX}:{sX + 1}], -1, 0
    s_waitcnt lgkmcnt(0)
    """)
    srd(a, SO, f"s{pO}", f"s{pO + 1}", T * 4)
    a(f"""
    s_barrier
    s_mov_b64 s[{sAct}:{sAct + 1}], vcc
    s_mov_b64 exec, vcc
    """)
    issued = []

    def ld_issue(name):
        k, q = name[0], int(name[1:] or 0)
        act = f"s_mov_b64 exec, s[{sAct}:{sAct + 1}]"
        if k == "F":
            a(f"global_load_ushort v{vF}, v6, s[{pFreq}:{pFreq + 1}]")
        elif k == "Z":
            a(f"""
            s_mov_b64 exec, s[{sX}:{sX + 1}]
            buffer_store_dwordx4 {vr(vQ, 4)}, v{vOff16}, s[{SSEG}:{SSEG + 3}], s{sX + 2} offen sc1
            {act}
            """)
        elif k == "C":
            a(f"""
            s_and_b64 exec, s[{sX}:{sX + 1}], 1
            s_and_b32 s{sX + 3}, s2, 3
            s_lshl_b32 s{sX + 3}, s{sX + 3}, 6
            buffer_atomic_add v{vOne}, v6, s[{SDBG}:{SDBG + 3}], s{sX + 3} offen
            {act}
            """)
        elif k == "X":
            a(f"""
            s_cmp_eq_u32 s{sW}, 7
            s_cselect_b32 exec_lo, 15, 0
            s_mov_b32 exec_hi, 0
            buffer_load_dword v{vCtr}, v{vCtr + 1}, s[{SDBG}:{SDBG + 3}], 0 offen sc1
            """)
        elif k == "W":
            lo, hi, dst, ptr, off = ((-1, 0, 0, pWd, 0), (0, -1, 0, pWu, -512), (0xffff, 0, 4, pWs, 0),
                                     (0xffff0000, 0, 4, pWr, -256), (0, 1, 4, pCen, -512))[q]
            a(f"""
            s_and_b32 exec_lo, s{sX}, {lo}
            s_and_b32 exec_hi, s{sX}, {hi}
            global_load_dwordx4 {vr(vPar + dst, 4)}, v{vOff16}, s[{ptr}:{ptr + 1}] offset:{off}
            """)
            if q == 4:
                a(act)
        elif k == "O":
            a(f"buffer_load_dwordx4 {vr(vO + 4 * q, 4)}, v{vOff16}, s[{SO}:{SO + 3}], s{sOff + q} offen {ld}")
        elif k == "A":
            a(f"buffer_load_dwordx2 {vr(vA + 2 * q, 2)}, v{vOff8}, s[{SA}:{SA + 3}], s{sOffA + q} offen {ld}")
        else:
            a(f"buffer_load_dwordx4 {vr(vI + 4 * q, 4)}, v{vOff16}, s[{SI}:{SI + 3}], s{sOff + q} offen {ld}")
        issued.append(name)

    def ld_wait(name):
        a(f"s_waitcnt vmcnt({len(issued) - 1 - issued.index(name)})")

    for n in ("O0", "O1", "O2", "O3", "O4", "F"):
        ld_issue(n)
    srd(a, SI, f"s{pI}", f"s{pI + 1}", T * 4)
    srd(a, SA, f"s{pAng}", f"s{pAng + 1}", T * 2)
    srd(a, SDBG, f"s{pDbg}", f"s{pDbg + 1}", 256)
    srd(a, SREC, f"s{pWsp}", f"s{pWsp + 1}", NCH * CS)
    srd(a, SM, f"s{pM}", f"s{pM + 1}", E * 32)
    srd(a, SOUT, f"s{pOut}", f"s{pOut + 1}", E * 32)
    srd(a, SDIST, f"s{pDist}", f"s{pDist + 1}", E * 2)
    a(f"""
    s_add_u32 s{SSEG}, s{pWsp}, {WS_SEG}
    s_addc_u32 s{SSEG + 1}, s{pWsp + 1}, 0
    s_and_b32 s{SSEG + 1}, s{SSEG + 1}, 0xffff
    s_mov_b32 s{SSEG + 2}, {NCH * 1024}
    s_mov_b32 s{SSEG + 3}, 0x20000
    s_mul_i32 s{sX + 3}, s2, {CS}
    s_add_u32 s{SRW}, s{pWsp}, s{sX + 3}
    s_addc_u32 s{SRW + 1}, s{pWsp + 1}, 0
    s_and_b32 s{SRW + 1}, s{SRW + 1}, 0xffff
    s_mov_b32 s{SRW + 2}, 0
    s_mov_b32 s{SRW + 3}, 0x20000
    s_mov_b64 exec, -1
    v_and_b32 v{vCtr + 1}, 3, v0
    v_lshlrev_b32 v{vCtr + 1}, 6, v{vCtr + 1}
    """)
    cnt_init(vP, sX + 4)
    fill(vP + 4, 17)
    a(f"s_mov_b64 exec, s[{sAct}:{sAct + 1}]")
    after_o = [("Z", "A0", "A1"), ("A2", "A3"), ("A4", "I0"), ("I1",), ("I2",)]
    for q in range(5):
        ld_wait(f"O{q}")
        for n in after_o[q]:
            ld_issue(n)
        if q in (0, 4):
            st(f"O{q}")
        for r in range(4):
            i = 4 * q + r
            a(f"v_mul_hi_u32_u24 v{vP + r}, s{sC625}, v{vO + i}")
            a(f"v_add_u32 v{vO + i}, 16, v{vO + i}")
        for r in range(4):
            i = 4 * q + r
            a(f"v_lshlrev_b32 v{vJ + i}, 2, v{vP + r}")
            a(f"v_mad_i32_i24 v{vO + i}, v{vP + r}, s{sM625}, v{vO + i}")
            a(f"ds_add_rtn_u32 v{vR + i}, v{vJ + i}, v{vOne} offset:{HIST}")
        for r in range(4):
            i = 4 * q + r
            a(f"v_lshl_or_b32 v{vO + i}, v{vO + i}, 11, v{vO + i}")
    for q in range(5):
        ld_issue(f"W{q}")
    a(f"""
    s_waitcnt lgkmcnt(0)
    s_barrier
    """)
    st("bar2")
    ld_issue("I3")
    ld_issue("I4")
    c, b, x, ln = vP, vP + 4, vP + 8, vP + 9
    a(f"""
    s_mov_b64 exec, -1
    v_and_b32 v{ln}, 63, v0
    v_lshlrev_b32 v{ln}, 4, v{ln}
    ds_read_b128 {vr(c, 4)}, v{ln} offset:{HIST}
    s_mov_b32 s{sX + 4}, {STG}
    s_waitcnt lgkmcnt(0)
    """)
    for k in range(4):
        a(f"v_add_u32 v{c + k}, 3, v{c + k}")
        a(f"v_lshrrev_b32 v{c + k}, 2, v{c + k}")
    a(f"""
    v_add_u32 v{b + 2}, v{c}, v{c + 1}
    v_add_u32 v{b + 3}, v{b + 2}, v{c + 2}
    v_add_u32 v{b}, v{b + 3}, v{c + 3}
    v_mov_b32 v{x}, v{b}
    s_nop 1
    v_add_u32_dpp v{x}, v{x}, v{x} row_shr:1 row_mask:0xf bank_mask:0xf
    s_nop 1
    v_add_u32_dpp v{x}, v{x}, v{x} row_shr:2 row_mask:0xf bank_mask:0xf
    s_nop 1
    v_add_u32_dpp v{x}, v{x}, v{x} row_shr:4 row_mask:0xf bank_mask:0xf
    s_nop 1
    v_add_u32_dpp v{x}, v{x}, v{x} row_shr:8 row_mask:0xf bank_mask:0xf
    s_nop 1
    v_add_u32_dpp v{x}, v{x}, v{x} row_bcast:15 row_mask:0xa bank_mask:0xf
    s_nop 1
    v_add_u32_dpp v{x}, v{x}, v{x} row_bcast:31 row_mask:0xc bank_mask:0xf
    v_sub_u32 v{b}, v{x}, v{b}
    v_add_u32 v{b + 1}, v{b}, v{c}
    v_add_u32 v{b + 2}, v{b}, v{b + 2}
    v_add_u32 v{b + 3}, v{b}, v{b + 3}
    v_readlane_b32 s{sX + 5}, v{x}, 63
    """)
    for k in range(4):
        a(f"v_lshl_or_b32 v{vSeg + k}, v{c + k}, 12, v{b + k}")
        a(f"v_mad_u32_u24 v{b + k}, v{b + k}, 20, s{sX + 4}")
    a(f"ds_write_b128 v{ln}, {vr(b, 4)} offset:{BASE}")
    for k in range(4):
        a(f"v_or_b32 v{vSeg + k}, 0x80000000, v{vSeg + k}")
    a(f"""
    s_mul_i32 s{SRW + 2}, s{sX + 5}, 20
    s_mov_b64 exec, s[{sAct}:{sAct + 1}]
    """)
    for i in range(20):
        a(f"ds_read_b32 v{vJ + i}, v{vJ + i} offset:{BASE}")
    ld_wait("Z")
    ld_issue("C")
    for q in range(5):
        ld_wait(f"A{q}")
        if q == 0:
            a(f"""
            v_readfirstlane_b32 s{sX + 5}, v{vF}
            v_lshlrev_b32 v{vF}, 16, v{vF}
            """)
        if q in (0, 4):
            st(f"A{q}")
        t = vP

        def unpack():
            for p in range(2):
                d = vA + 2 * q + p
                a(f"v_lshlrev_b32 v{t + 2 * p}, 16, v{d}")
                a(f"v_and_b32 v{t + 2 * p + 1}, 0xffff0000, v{d}")

        unpack()
        a(f"""
        s_cmp_eq_u32 s{sX + 5}, 0x3f80
        s_cbranch_scc1 L_unit{q}
        """)
        for k in range(4):
            a(f"v_mul_f32 v{t + k}, v{vF}, v{t + k}")
        for p in range(2):
            a(f"v_cvt_pk_bf16_f32 v{vA + 2 * q + p}, v{t + 2 * p}, v{t + 2 * p + 1}")
        unpack()
        a(f"L_unit{q}:")
        for k in range(4):
            a(f"v_mul_f32 v{t + k}, 0.15915494, v{t + k}")
        for k in range(4):
            a(f"v_fract_f32 v{t + k}, v{t + k}")
        for k in range(4):
            a(f"v_cos_f32 v{t + k}, v{t + k}")
        a("s_nop 0")
        for p in range(2):
            a(f"v_cvt_pkrtz_f16_f32 v{vA + 2 * q + p}, v{t + 2 * p}, v{t + 2 * p + 1}")
        for p in range(2):
            a(f"v_add_u32 v{vA + 2 * q + p}, 0x40004, v{vA + 2 * q + p}")
        for p in range(2):
            a(f"v_and_b32 v{vA + 2 * q + p}, 0xbff8bff8, v{vA + 2 * q + p}")
    a("s_waitcnt lgkmcnt(0)")
    for i in range(20):
        a(f"v_mad_u32_u24 v{vR + i}, v{vR + i}, 5, v{vJ + i}")
        a(f"v_and_b32 v{vJ + i}, -4, v{vR + i}")
        a(f"v_and_b32 v{vR + i}, 3, v{vR + i}")
        a(f"v_mad_i32_i24 v{vR + i}, v{vR + i}, -3, v{vJ + i}")
    for q in range(5):
        ld_wait(f"I{q}")
        if q in (0, 4):
            st(f"I{q}")
        for r in range(4):
            i = 4 * q + r
            a(f"v_bfe_u32 v{vP + r}, v{vO + i}, 4, 6")
            a(f"v_mad_u32_u16 v{vP + r}, v{vI + i}, 40, v{vP + r} op_sel:[1,0,0,0]")
            a(f"v_lshlrev_b32 v{vI + i}, 16, v{vI + i}")
            a(f"v_and_or_b32 v{vI + i}, v{vO + i}, s{sMask}, v{vI + i}")
            a(f"ds_write_b8 v{vR + i}, v{vP + r} offset:16")
            a(f"v_or_b32_sdwa v{vI + i}, v{vI + i}, v{vA + 2 * q + (r >> 1)} dst_sel:DWORD dst_unused:UNUSED_PAD src0_sel:DWORD src1_sel:WORD_{r & 1}")
            a(f"ds_write_b32 v{vJ + i}, v{vI + i}")
    vS = 64
    a(f"""
    s_mov_b64 exec, -1
    v_add_u32 v5, {STG}, v{vOff16}
    v_mov_b32 v{vP}, v{vOff16}
    s_waitcnt lgkmcnt(0)
    s_barrier
    """)
    st("bar3")
    for i in range(7):
        a(f"ds_read_b128 {vr(vS + 4 * i, 4)}, v5 offset:{i * 8192}")
    a(f"""
    s_mov_b64 exec, s[{sX}:{sX + 1}]
    ds_write_b128 v{vP}, {vr(vPar, 4)} offset:{HIST}
    ds_write_b128 v{vP}, {vr(vPar + 4, 4)} offset:{HIST + 1024}
    s_mov_b64 exec, -1
    """)
    for i in range(7):
        a(f"s_mov_b32 s{sX + 4}, {i * 8192}")
        a(f"s_waitcnt lgkmcnt({8 - i})")
        a(f"buffer_store_dwordx4 {vr(vS + 4 * i, 4)}, v{vP}, s[{SRW}:{SRW + 3}], s{sX + 4} offen {P['rec_st']}")
    st("stissued")

    def poll(mask):
        a(f"""
        s_mov_b32 exec_lo, {mask}
        s_mov_b32 exec_hi, 0
        buffer_load_dword v{vSegW}, v{vSegA}, s[{SSEG}:{SSEG + 3}], s{sJ4} offen sc1
        """)

    ld_issue("X")
    a(f"""
    s_mov_b64 exec, -1
    v_lshrrev_b32 v{vT}, 6, v0
    v_and_b32 v{vLane}, 63, v0
    v_and_b32 v{vT + 1}, 31, v0
    v_lshl_add_u32 v{vT + 2}, v{vT + 1}, 3, v{vT}
    v_lshlrev_b32 v{vSegA}, 10, v{vT + 2}
    s_lshl_b32 s{sJ4}, s{sJ}, 2
    v_mul_u32_u24 v{vCb}, {CS}, v{vT + 2}
    v_and_b32 v{vT + 6}, 15, v{vLane}
    v_lshrrev_b32 v{vT + 7}, 4, v{vLane}
    v_mul_u32_u24 v{vLL20}, 20, v{vT + 6}
    v_lshlrev_b32 v{vDw}, 7, v{vT}
    v_add_u32 v{vDw}, {DESC}, v{vDw}
    v_lshl_add_u32 v{vDr}, v{vT + 7}, 4, v{vDw}
    v_mul_u32_u24 v{vT + 8}, 80, v{vT}
    v_add_u32 v{vT + 8}, v{vT + 8}, v{vT + 6}
    v_lshlrev_b32 v{vMoff}, 5, v{vT + 8}
    v_lshl_add_u32 v{vMoff}, v{vT + 7}, 3, v{vMoff}
    v_cmp_gt_u32 vcc, {BK - 64}, v{vT + 8}
    v_mov_b32 v{vT + 9}, 0x7fffff00
    v_lshlrev_b32 v{vDoff}, 1, v{vT + 8}
    v_cndmask_b32 v{vOut4}, v{vT + 9}, v{vMoff}, vcc
    v_mov_b32 v{vZero}, 0
    v_mov_b32 v{vFour}, 4
    v_lshrrev_b32 v{vT + 5}, 1, v{vLane}
    v_lshlrev_b32 v{vLH4}, 2, v{vT + 5}
    v_and_b32 v{vHalf16}, 1, v{vLane}
    v_lshlrev_b32 v{vHalf16}, 4, v{vHalf16}
    v_bfe_u32 v{vT + 6}, v{vT + 5}, 2, 1
    v_bfe_u32 v{vT + 7}, v{vT + 5}, 4, 1
    v_lshl_add_u32 v{vT + 6}, v{vT + 7}, 1, v{vT + 6}
    v_and_b32 v{vT + 7}, 3, v{vT + 5}
    v_bfe_u32 v{vT + 8}, v{vT + 5}, 3, 1
    v_lshl_add_u32 v{vT + 7}, v{vT + 8}, 2, v{vT + 7}
    v_lshlrev_b32 v{vT + 7}, 1, v{vT + 7}
    v_lshl_add_u32 v{vSc}, v{vT + 6}, 8, v{vT + 7}
    v_lshlrev_b32 v{vT + 8}, 10, v{vT}
    v_add_u32 v{vT + 8}, {SB}, v{vT + 8}
    v_add_u32 v{vSc}, v{vSc}, v{vT + 8}
    v_lshl_add_u32 v{vSrd}, v{vLane}, 4, v{vT + 8}
    v_bfe_u32 v{vT + 6}, v{vLane}, 4, 1
    v_bfe_u32 v{vT + 7}, v{vLane}, 5, 1
    v_lshlrev_b32 v{vT + 7}, 4, v{vT + 7}
    v_lshl_add_u32 v{vT + 6}, v{vT + 6}, 2, v{vT + 7}
    v_bfe_u32 v{vT + 7}, v{vLane}, 2, 2
    v_add_u32 v{vT + 6}, v{vT + 6}, v{vT + 7}
    v_and_b32 v{vT + 7}, 3, v{vLane}
    v_lshlrev_b32 v{vT + 7}, 3, v{vT + 7}
    v_lshl_add_u32 v{vTr}, v{vT + 6}, 5, v{vT + 7}
    v_lshlrev_b32 v{vT + 8}, 12, v{vT}
    v_add_u32 v{vT + 8}, {RING}, v{vT + 8}
    v_add_u32 v{vTr}, v{vTr}, v{vT + 8}
    v_mul_u32_u24 v{vT + 6}, 52, v{vLane}
    v_lshrrev_b32 v{vT + 6}, 8, v{vT + 6}
    v_lshlrev_b32 v{vPh}, 21, v{vT + 6}
    v_mul_u32_u24 v{vT + 6}, 35, v{vT + 6}
    v_mul_u32_u24 v{vT + 7}, 5, v{vT}
    v_add3_u32 v{vT + 6}, v{vT + 6}, v{vT + 7}, v{vLane}
    v_add_u32 v{vT + 6}, 1, v{vT + 6}
    v_lshlrev_b32 v{vCntA}, 2, v{vT + 6}
    """)
    bin_addr(vBase, vT + 6, vT + 7)
    a(f"""
    v_cmp_lt_u32 vcc, 14, v{vLane}
    v_mov_b32 v{vT + 8}, {ZB}
    v_add_u32 v{vT + 6}, 1, v{vLane}
    v_cndmask_b32 v{vBase}, v{vBase}, v{vT + 8}, vcc
    v_cndmask_b32 v{vPh}, v{vPh}, v{vZero}, vcc
    v_cndmask_b32 v{vCntA}, v{vCntA}, v{vZero}, vcc
    """)
    bin_addr(vLim0, vT + 6, vT + 7)
    a(f"v_add_u32 v{vT + 6}, 65, v{vLane}")
    bin_addr(vLim1, vT + 6, vT + 7)
    a(f"""
    s_lshr_b32 s{sTk}, s2, 3
    s_lshl_b32 s{sTk}, s{sTk}, 3
    s_add_u32 s{sTk}, s{sTk}, s{sW}
    s_mul_i32 s{sTk}, s{sTk}, {128 * max(P["pf"], 1)}
    v_lshlrev_b32 v{vPfA}, 7, v{vLane}
    v_add_u32 v{vPfA}, s{sTk}, v{vPfA}
    v_mov_b32 v{vT + 8}, -1
    v_cmp_eq_u32 vcc, 0, v{vLane}
    v_cmp_lt_u32 s[{sTk}:{sTk + 1}], 56, v{vLane}
    s_nop 1
    v_cndmask_b32 v{vLim0}, v{vLim0}, v{vT + 8}, vcc
    v_cndmask_b32 v{vLim1}, v{vLim1}, v{vT + 8}, s[{sTk}:{sTk + 1}]
    """)
    for k in range(20):
        a(f"v_mov_b32 v{vAcc + k}, 0")
    if P["stamps"]:
        a("s_mov_b32 s97, 0")
        a("s_mov_b64 s[100:101], 0")
    a(f"""
    s_mov_b32 s{sPend}, -1
    s_mov_b32 s{sReady}, 0
    s_mov_b32 s{sPrevN}, 0
    s_mov_b64 s[{sLate}:{sLate + 1}], -1
    s_mul_i32 s{sDo}, s{sJ}, {BK * 2}
    s_mul_i32 s{sMo}, s{sJ}, {BK * 32}
    s_waitcnt vmcnt(0) lgkmcnt(0)
    s_cmp_lg_u32 s{sW}, 7
    s_cbranch_scc1 L_ctr_ok
    L_ctr:
    """)
    ctr_sum(None)
    a(f"""
    s_cbranch_scc1 L_ctr_ok
    s_add_u32 s{sSpin}, s{sSpin}, 1
    s_cmp_gt_u32 s{sSpin}, {SPIN_MAX}
    s_cbranch_scc1 L_end
    s_sleep 2
    s_mov_b64 exec, 15
    buffer_load_dword v{vCtr}, v{vCtr + 1}, s[{SDBG}:{SDBG + 3}], 0 offen sc1
    s_mov_b64 exec, -1
    s_waitcnt vmcnt(0)
    s_branch L_ctr
    L_ctr_ok:
    s_mov_b32 s{sSpin}, 0
    """)
    st("drained")

    def late_loads():
        a(f"s_mov_b64 exec, s[{sLate}:{sLate + 1}]")
        for g in range(5):
            a(f"buffer_load_ushort v{vDist + g}, v{vDoff}, s[{SDIST}:{SDIST + 3}], s{sDo} offen offset:{32 * g}")
        for g in range(5):
            a(f"buffer_load_dwordx2 {vr(vMr + 2 * g, 2)}, v{vMoff}, s[{SM}:{SM + 3}], s{sMo} offen offset:{512 * g}")
        if P["pf"]:
            a(f"""
            s_and_b32 exec_hi, exec_hi, {-1 if P["pf"] == 64 else 0}
            buffer_load_dword v{vPfD}, v{vPfA}, s[{SM}:{SM + 3}], 0 offen
            """)
        a(f"s_mov_b64 s[{sLate}:{sLate + 1}], 0")

    a(f"""
    s_barrier
    s_mov_b64 exec, s[{sX}:{sX + 1}]
    buffer_store_dwordx4 {vr(vSeg, 4)}, v{vP}, s[{SSEG}:{SSEG + 3}], s{sX + 2} offen sc1
    """)
    st("pub")
    a("s_branch L_idle3")

    dbg = [0]

    def once(lane):
        if not P["stamps"]:
            return
        dbg[0] += 1
        a(f"""
        s_bitcmp1_b64 s[100:101], {lane}
        s_cbranch_scc1 L_once{dbg[0]}
        s_bitset1_b64 s[100:101], {lane}
        s_memrealtime s[98:99]
        s_waitcnt lgkmcnt(0)
        v_writelane_b32 v207, s98, {lane}
        L_once{dbg[0]}:
        """)

    def slot(bank, s):
        return vSlot + 6 * (4 * bank + s), sMk + 2 * (4 * bank + s)

    def rec_issue(bank, s):
        w, m = slot(bank, s)
        a(f"""
        s_mov_b64 exec, -1
        v_add_u32 v{w + 5}, v{vL0 + s}, v{vLL20}
        v_cmp_lt_u32 s[{m}:{m + 1}], v{vLL20}, v{vL1 + s}
        s_mov_b64 exec, s[{m}:{m + 1}]
        buffer_load_dwordx4 {vr(w, 4)}, v{w + 5}, s[{SREC}:{SREC + 3}], 0 offen {P["rec_ld"]}
        buffer_load_dword v{w + 4}, v{w + 5}, s[{SREC}:{SREC + 3}], 0 offen offset:16 {P["rec_ld"]}
        """)

    def process(bank, issue_bank, younger):
        for s in range(4):
            if issue_bank is not None:
                rec_issue(issue_bank, s)
            a(f"s_waitcnt vmcnt({younger(s)})")
            if s == 0:
                once(46)
            place_atomics(*slot(bank, s), vRk + 4 * (s & 1))
            if s > 0:
                a(f"s_waitcnt lgkmcnt({4 if s == 1 else 8})")
                place_writes(*slot(bank, s - 1), vRk + 4 * ((s - 1) & 1))
        a("s_waitcnt lgkmcnt(4)")
        place_writes(*slot(bank, 3), vRk + 4)

    for X in range(2):
        Y = 1 - X
        a(f"""
        L_top{X}:
        s_mov_b32 exec_lo, s{sPend}
        s_mov_b32 exec_hi, 0
        s_waitcnt vmcnt(8)
        v_cmp_gt_i32 vcc, 0, v{vSegW}
        s_and_b32 s{sTk}, s{sPend}, vcc_lo
        s_andn2_b32 s{sPend}, s{sPend}, s{sTk}
        s_mov_b32 exec_lo, s{sTk}
        v_and_b32 v{vT}, 0xfff, v{vSegW}
        v_bfe_u32 v{vT + 1}, v{vSegW}, 12, 12
        v_mad_u32_u24 v{vD0}, v{vT}, 20, v{vCb}
        v_mul_u32_u24 v{vHi}, 20, v{vT + 1}
        s_or_b32 s{sReady}, s{sReady}, s{sTk}
        s_cbranch_scc1 L_take{X}
        s_cmp_eq_u32 s{sPrevN}, 0
        s_cbranch_scc1 L_idle
        s_cmp_eq_u32 s{sPend}, 0
        s_cbranch_scc1 L_final{X}
        L_take{X}:
        """)
        if P["stamps"]:
            a(f"""
            s_add_u32 s97, s97, 1
            s_memrealtime s[98:99]
            s_waitcnt lgkmcnt(0)
            s_mov_b32 s96, s98
            s_cmp_eq_u32 s97, 1
            s_cbranch_scc0 L_dbg{X}
            v_writelane_b32 v207, s98, 43
            s_bcnt1_i32_b32 s99, s{sReady}
            v_writelane_b32 v207, s99, 44
            L_dbg{X}:
            """)
        a(f"""
        s_mov_b32 exec_lo, 0xffff
        v_lshl_add_u32 v{vT + 3}, v{vLane}, 2, v{vDw}
        ds_write_b32 v{vT + 3}, v{vZero} offset:64
        s_mov_b32 exec_lo, s{sReady}
        v_mbcnt_lo_u32_b32 v{vT}, s{sReady}, 0
        v_cmp_gt_u32 vcc, 16, v{vT}
        s_and_b32 s{sCurN}, s{sReady}, vcc_lo
        s_mov_b32 exec_lo, s{sCurN}
        v_and_b32 v{vT + 2}, 3, v{vT}
        v_lshrrev_b32 v{vT}, 2, v{vT}
        v_min_u32 v{vT + 1}, 320, v{vHi}
        v_lshl_add_u32 v{vT}, v{vT + 2}, 2, v{vT}
        v_sub_u32 v{vHi}, v{vHi}, v{vT + 1}
        v_lshl_add_u32 v{vT}, v{vT}, 2, v{vDw}
        ds_write_b32 v{vT}, v{vD0}
        ds_write_b32 v{vT}, v{vT + 1} offset:64
        v_cmp_lt_u32 vcc, 0, v{vHi}
        v_add_u32 v{vD0}, 320, v{vD0}
        s_andn2_b32 s{sReady}, s{sReady}, s{sCurN}
        s_and_b32 s{sTk}, s{sCurN}, vcc_lo
        s_or_b32 s{sReady}, s{sReady}, s{sTk}
        s_mov_b64 exec, -1
        ds_read_b128 {vr(vL0, 4)}, v{vDr}
        ds_read_b128 {vr(vL1, 4)}, v{vDr} offset:64
        """)
        poll(f"s{sPend}")
        a(f"""
        s_cmp_eq_u32 s{sPrevN}, 0
        s_mov_b32 s{sPrevN}, s{sCurN}
        s_waitcnt lgkmcnt(0)
        s_cbranch_scc1 L_only{X}
        """)
        process(Y, X, lambda s: 9)
        a(f"s_branch L_top{Y}")
    for X in range(2):
        a(f"L_only{X}:")
        for s in range(4):
            rec_issue(X, s)
        a(f"s_branch L_top{1 - X}")
    for X in range(2):
        a(f"L_final{X}:")
        once(45)
        late_loads()
        process(1 - X, None, lambda s: 2 * (3 - s) + 10 + (1 if P["pf"] else 0))
        a("s_branch L_taken")
    a(f"""
    L_idle:
    s_cmp_eq_u32 s{sPend}, 0
    s_cbranch_scc1 L_idle_late
    s_cmp_lt_u32 s{sSpin}, {P["latespin"]}
    s_cbranch_scc1 L_idle2
    L_idle_late:
    """)
    late_loads()
    a(f"""
    s_cmp_eq_u32 s{sPend}, 0
    s_cbranch_scc1 L_taken
    L_idle2:
    s_add_u32 s{sSpin}, s{sSpin}, 1
    s_cmp_gt_u32 s{sSpin}, {SPIN_MAX}
    s_cbranch_scc1 L_end
    s_sleep {P["sleep"]}
    L_idle3:
    """)
    poll(f"s{sPend}")
    a(f"""
    s_waitcnt vmcnt(0)
    s_branch L_top0
    L_taken:
    s_mov_b64 exec, -1
    s_mov_b32 s{sLast}, 1
    s_mov_b32 s{sFirst}, 1
    s_movk_i32 s{sF0}, 0xf0
    s_movk_i32 s{s70}, 0x70
    s_lshl_b32 s{sRingB}, s{sW}, 12
    s_add_u32 s{sRingB}, s{sRingB}, {RING}
    s_mul_i32 s{sRowOff}, s{sJ}, {BK * 32}
    v_lshlrev_b32 v{vT}, 2, v{vLane}
    s_waitcnt lgkmcnt(0)
    """)
    st("intake")
    if P["stamps"]:
        a(f"v_writelane_b32 v207, s{sSpin}, 40")
        a("v_writelane_b32 v207, s97, 41")
        a("v_writelane_b32 v207, s96, 42")
    a("s_barrier")
    st("bar5")
    a(f"""
    ds_read_b32 v{vT + 1}, v{vT} offset:{CNT}
    ds_read_b32 v{vT + 2}, v{vT} offset:{CNT + 256}
    ds_read_b32 v{vEnd}, v{vCntA} offset:{CNT}
    s_waitcnt lgkmcnt(1)
    v_cmp_gt_u32 vcc, v{vT + 1}, v{vLim0}
    v_cmp_gt_u32 s[{sT}:{sT + 1}], v{vT + 2}, v{vLim1}
    s_or_b64 vcc, vcc, s[{sT}:{sT + 1}]
    """)
    if P["force_slow"]:
        a("s_cmp_eq_u32 0, 0")
    a(f"""
    s_cbranch_scc0 L_G
    s_mov_b32 s{sSC}, 0
    s_mov_b32 s{sSU}, 0
    s_mov_b32 s{sLast}, 0
    L_slow:
    s_waitcnt vmcnt(0) lgkmcnt(0)
    s_barrier
    """)
    cnt_init(vT, sT)
    fill(vT + 4, 10)
    a(f"""
    s_waitcnt lgkmcnt(0)
    s_barrier
    s_cmp_lt_u32 s{sSC}, {NCH}
    s_cbranch_scc1 L_slow_unit
    s_mov_b32 s{sLast}, 1
    s_branch L_slow_go
    L_slow_unit:
    s_lshl_b32 s{sT}, s{sSC}, 10
    s_lshl_b32 s{sT + 1}, s{sJ}, 2
    s_add_u32 s{sT}, s{sT}, s{sT + 1}
    buffer_load_dword v{vT}, v{vZero}, s[{SSEG}:{SSEG + 3}], s{sT} offen sc1
    s_waitcnt vmcnt(0)
    v_readfirstlane_b32 s{sT + 2}, v{vT}
    s_and_b32 s{sT + 1}, s{sT + 2}, 0xfff
    s_mul_i32 s{sT + 1}, s{sT + 1}, 20
    s_bfe_u32 s{sT + 2}, s{sT + 2}, 0xc000c
    s_mul_i32 s{sT + 2}, s{sT + 2}, 20
    s_mul_i32 s{sT + 3}, s{sSC}, {CS}
    s_add_u32 s{sT + 3}, s{sT + 3}, s{sT + 1}
    s_add_u32 s{sT + 3}, s{sT + 3}, s{sSU}
    s_sub_u32 s{sT + 4}, s{sT + 2}, s{sSU}
    s_min_u32 s{sT + 4}, s{sT + 4}, 480
    s_cmp_lg_u32 s{sW}, 0
    s_cbranch_scc1 L_slow_adv
    v_mul_u32_u24 v{vT}, 20, v{vLane}
    v_cmp_gt_u32 s[{sT + 6}:{sT + 7}], s{sT + 4}, v{vT}
    s_mov_b64 exec, s[{sT + 6}:{sT + 7}]
    buffer_load_dwordx4 {vr(vSlot, 4)}, v{vT}, s[{SREC}:{SREC + 3}], s{sT + 3} offen sc1
    buffer_load_dword v{vSlot + 4}, v{vT}, s[{SREC}:{SREC + 3}], s{sT + 3} offen offset:16 sc1
    s_waitcnt vmcnt(0)
    """)
    place_atomics(vSlot, sT + 6, vRk)
    a("s_waitcnt lgkmcnt(0)")
    place_writes(vSlot, sT + 6, vRk)
    a(f"""
    s_mov_b64 exec, -1
    L_slow_adv:
    s_add_u32 s{sSU}, s{sSU}, 480
    s_cmp_lt_u32 s{sSU}, s{sT + 2}
    s_cbranch_scc1 L_slow_go
    s_add_u32 s{sSC}, s{sSC}, 1
    s_mov_b32 s{sSU}, 0
    L_slow_go:
    s_waitcnt lgkmcnt(0)
    s_barrier
    ds_read_b32 v{vEnd}, v{vCntA} offset:{CNT}
    L_G:
    v_cmp_lt_u32 vcc, 14, v{vLane}
    v_add_u32 v{vT + 1}, 128, v{vBase}
    s_mov_b32 s{sCur}, 0
    s_waitcnt lgkmcnt(0)
    v_cndmask_b32 v{vEnd}, v{vEnd}, v{vT + 1}, vcc
    v_cmp_gt_u32 vcc, v{vEnd}, v{vBase}
    v_sub_u32 v{vEnd}, v{vEnd}, v{vBase}
    v_add_u32 v{vEnd}, 127, v{vEnd}
    v_and_b32 v{vEnd}, 0xffffff80, v{vEnd}
    v_add_u32 v{vEnd}, v{vEnd}, v{vBase}
    s_and_b32 s{sNE}, vcc_lo, 0x7fff
    """)

    def next_bin():
        a(f"""
        s_ff1_i32_b32 s{sL}, s{sNE}
        s_bitset0_b32 s{sNE}, s{sL}
        v_readlane_b32 s{sIA}, v{vBase}, s{sL}
        v_readlane_b32 s{sIE}, v{vEnd}, s{sL}
        v_readlane_b32 s{sIP}, v{vPh}, s{sL}
        """)

    next_bin()
    for k in range(D):
        a(f"""
        s_add_u32 m0, s{sRingB}, {k * 1024}
        s_nop 0
        v_add_u32 v{vT + k}, s{sIA}, v{vLH4}
        ds_read_b32 v{vT + k}, v{vT + k}
        s_add_u32 s{sIA}, s{sIA}, 128
        s_waitcnt lgkmcnt(0)
        v_mad_u32_u16 v{vT + k}, v{vT + k}, 32, v{vHalf16} op_sel:[1,0,0,0]
        buffer_load_dwordx4 v{vT + k}, s[{SM}:{SM + 3}], s{sIP} offen {P["gather"]} lds
        s_cmp_lg_u32 s{sIA}, s{sIE}
        s_cbranch_scc1 L_pro{k}
        """)
        next_bin()
        a(f"L_pro{k}:")
    a(f"""
    s_movk_i32 s{sPrev}, {D * 1024}
    s_cmp_eq_u32 s{sFirst}, 0
    s_cbranch_scc1 L_main
    s_mov_b32 s{sFirst}, 0
    """)
    st("Gissued")
    a(f"""
    v_and_b32 v{vT + 4}, 15, v{vLane}
    v_lshrrev_b32 v{vT + 5}, 4, v{vLane}
    v_lshlrev_b32 v{vT + 4}, 1, v{vT + 4}
    v_lshl_add_u32 v{vT + 6}, v{vT + 5}, 6, v{vT + 4}
    v_lshl_add_u32 v{vT + 4}, v{vT + 5}, 7, v{vT + 4}
    v_lshlrev_b32 v{vT + 5}, 2, v{vT + 5}
    """)
    for k in range(4):
        a(f"ds_read_u16 v{vWraw + k}, v{vT + 4} offset:{HIST + 32 * k}")
        a(f"ds_read_u16 v{vWraw + 4 + k}, v{vT + 4} offset:{HIST + 512 + 32 * k}")
    for k in range(2):
        a(f"ds_read_u16 v{vWraw + 8 + k}, v{vT + 6} offset:{HIST + 1024 + 32 * k}")
        a(f"ds_read_u16 v{vWraw + 10 + k}, v{vT + 6} offset:{HIST + 1280 + 32 * k}")
    a(f"""
    ds_read_b32 v{vCen}, v{vT + 5} offset:{HIST + 1536}
    s_waitcnt vmcnt({D}) lgkmcnt(0)
    v_lshl_or_b32 v{vWd}, v{vWraw + 1}, 16, v{vWraw}
    v_lshl_or_b32 v{vWd + 1}, v{vWraw + 3}, 16, v{vWraw + 2}
    v_lshl_or_b32 v{vWu}, v{vWraw + 5}, 16, v{vWraw + 4}
    v_lshl_or_b32 v{vWu + 1}, v{vWraw + 7}, 16, v{vWraw + 6}
    v_lshl_or_b32 v{vWs}, v{vWraw + 9}, 16, v{vWraw + 8}
    v_lshl_or_b32 v{vWr}, v{vWraw + 11}, 16, v{vWraw + 10}
    v_mov_b32 v{vWd + 2}, v{vWd}
    v_mov_b32 v{vWd + 3}, v{vWd + 1}
    v_mov_b32 v{vWu + 2}, v{vWu}
    v_mov_b32 v{vWu + 3}, v{vWu + 1}
    v_mov_b32 v{vWs + 1}, 0
    v_mov_b32 v{vWr + 1}, 0
    v_mov_b32 v{vRb + 1}, 0
    v_mov_b32 v{vRb + 3}, 0
    v_and_b32 v{vCen + 1}, 0xffff0000, v{vCen}
    v_lshlrev_b32 v{vCen}, 16, v{vCen}
    """)
    for g in range(5):
        t = vT + 4
        rb = vRb + 2 * (g & 1)
        a(f"""
        v_lshlrev_b32 v{t + 2}, 16, v{vDist + g}
        v_sub_f32 v{t}, v{t + 2}, v{vCen}
        v_sub_f32 v{t + 1}, v{t + 2}, v{vCen + 1}
        v_cvt_pk_bf16_f32 v{t + 2}, v{t}, v{t + 1}
        v_lshlrev_b32 v{t}, 16, v{t + 2}
        v_and_b32 v{t + 1}, 0xffff0000, v{t + 2}
        v_mul_f32 v{t}, v{t}, v{t}
        v_mul_f32 v{t + 1}, v{t + 1}, v{t + 1}
        v_cvt_pk_bf16_f32 v{t + 2}, v{t}, v{t + 1}
        v_lshlrev_b32 v{t}, 16, v{t + 2}
        v_and_b32 v{t + 1}, 0xffff0000, v{t + 2}
        v_mul_f32 v{t}, 0xc1200000, v{t}
        v_mul_f32 v{t + 1}, 0xc1200000, v{t + 1}
        v_cvt_pk_bf16_f32 v{t + 2}, v{t}, v{t + 1}
        v_lshlrev_b32 v{t}, 16, v{t + 2}
        v_and_b32 v{t + 1}, 0xffff0000, v{t + 2}
        v_mul_f32 v{t}, 0x3fb8aa3b, v{t}
        v_mul_f32 v{t + 1}, 0x3fb8aa3b, v{t + 1}
        v_exp_f32 v{t}, v{t}
        v_exp_f32 v{t + 1}, v{t + 1}
        s_nop 0
        v_cvt_pk_bf16_f32 v{rb}, v{t}, v{t + 1}
        s_nop 1
        v_mfma_f32_16x16x16_bf16 {vr(vG + 4 * g, 4)}, {vr(vWs, 2)}, {vr(rb, 2)}, 0
        v_mfma_f32_16x16x16_bf16 {vr(vH + 4 * g, 4)}, {vr(vWr, 2)}, {vr(rb, 2)}, 0
        """)
    st("GH")
    a("L_main:")

    def split(src, dst, t):
        a(f"""
        v_cvt_pk_bf16_f32 v{dst}, v{src}, v{src + 1}
        v_cvt_pk_bf16_f32 v{dst + 1}, v{src + 2}, v{src + 3}
        v_lshlrev_b32 v{t}, 16, v{dst}
        v_and_b32 v{t + 1}, 0xffff0000, v{dst}
        v_lshlrev_b32 v{t + 2}, 16, v{dst + 1}
        v_and_b32 v{t + 3}, 0xffff0000, v{dst + 1}
        v_sub_f32 v{t}, v{src}, v{t}
        v_sub_f32 v{t + 1}, v{src + 1}, v{t + 1}
        v_sub_f32 v{t + 2}, v{src + 2}, v{t + 2}
        v_sub_f32 v{t + 3}, v{src + 3}, v{t + 3}
        v_cvt_pk_bf16_f32 v{dst + 2}, v{t}, v{t + 1}
        v_cvt_pk_bf16_f32 v{dst + 3}, v{t + 2}, v{t + 3}
        s_nop 1
        """)

    for p in range(3):
        for g in range(5):
            b = p * 5 + g
            acc = vAcc + 4 * g
            a(f"""
            v_readlane_b32 s{sC}, v{vBase}, {b}
            v_readlane_b32 s{sCE}, v{vEnd}, {b}
            s_cmp_eq_u32 s{sC}, s{sCE}
            s_cbranch_scc1 L_bin{b}_done
            L_bin{b}:
            s_add_u32 m0, s{sRingB}, s{sPrev}
            v_add_u32 v{vT}, s{sIA}, v{vLH4}
            v_add_u32 v{vT + 1}, s{sC}, v{vLH4}
            ds_read_b32 v{vT}, v{vT}
            ds_read_b32 v{vT + 1}, v{vT + 1}
            v_add_u32 v{vT + 3}, s{sCur}, v{vTr}
            s_mov_b32 s{sPrev}, s{sCur}
            s_add_u32 s{sCur}, s{sCur}, 1024
            s_and_b32 s{sCur}, s{sCur}, {R * 1024 - 1}
            s_add_u32 s{sC}, s{sC}, 128
            s_add_u32 s{sIA}, s{sIA}, 128
            s_cmp_eq_u32 s{sIA}, s{sIE}
            s_waitcnt lgkmcnt(1)
            v_mad_u32_u16 v{vT}, v{vT}, 32, v{vHalf16} op_sel:[1,0,0,0]
            buffer_load_dwordx4 v{vT}, s[{SM}:{SM + 3}], s{sIP} offen {P["gather"]} lds
            s_cbranch_scc1 L_nb{b}
            L_nb{b}_back:
            s_waitcnt lgkmcnt(0)
            v_and_b32 v{vT + 2}, 0xbff8, v{vT + 1}
            v_lshlrev_b32 v{vT + 4}, 4, v{vT + 1}
            v_lshrrev_b32 v{vT + 5}, 7, v{vT + 1}
            v_cvt_f32_f16 v{vT + 2}, v{vT + 2}
            v_bfi_b32 v{vT + 4}, s{s70}, v{vT + 4}, v{vT + 5}
            v_and_or_b32 v{vT + 4}, v{vT + 4}, s{sF0}, v{vSc}
            ds_write_b16_d16_hi v{vT + 4}, v{vT + 2}
            ds_read_b128 {vr(vSt, 4)}, v{vSrd}
            ds_write_b16 v{vT + 4}, v{vZero}
            s_waitcnt vmcnt({D})
            ds_read_b64_tr_b16 {vr(vMt, 2)}, v{vT + 3}
            ds_read_b64_tr_b16 {vr(vMt + 2, 2)}, v{vT + 3} offset:256
            s_cmp_lg_u32 s{sC}, s{sCE}
            s_waitcnt lgkmcnt(0)
            v_mfma_f32_16x16x32_bf16 {vr(acc, 4)}, {vr(vMt, 4)}, {vr(vSt, 4)}, {vr(acc, 4)}
            s_cbranch_scc1 L_bin{b}
            L_bin{b}_done:
            """)
            if g == 4 or b == 0:
                st(f"bin{b}")
            if p == 2:
                x, y, t = vT + 4, vT + 8, vT + 12
                a(f"""
                s_cmp_eq_u32 s{sLast}, 0
                s_cbranch_scc1 L_epi{g}_done
                s_nop 5
                """)
                split(acc, x, t)
                a(f"""
                v_mfma_f32_16x16x32_bf16 {vr(y, 4)}, {vr(vWd, 4)}, {vr(x, 4)}, 0
                s_nop 7
                v_mul_f32 v{y}, v{y}, v{vG + 4 * g}
                v_mul_f32 v{y + 1}, v{y + 1}, v{vG + 4 * g + 1}
                v_mul_f32 v{y + 2}, v{y + 2}, v{vG + 4 * g + 2}
                v_mul_f32 v{y + 3}, v{y + 3}, v{vG + 4 * g + 3}
                """)
                split(y, x, t)
                mr = vMr + 2 * g
                a(f"""
                v_mfma_f32_16x16x32_bf16 {vr(y, 4)}, {vr(vWu, 4)}, {vr(x, 4)}, 0
                v_lshlrev_b32 v{t}, 16, v{mr}
                v_and_b32 v{t + 1}, 0xffff0000, v{mr}
                v_lshlrev_b32 v{t + 2}, 16, v{mr + 1}
                v_and_b32 v{t + 3}, 0xffff0000, v{mr + 1}
                s_nop 3
                v_fmac_f32 v{t}, v{y}, v{vH + 4 * g}
                v_fmac_f32 v{t + 1}, v{y + 1}, v{vH + 4 * g + 1}
                v_fmac_f32 v{t + 2}, v{y + 2}, v{vH + 4 * g + 2}
                v_fmac_f32 v{t + 3}, v{y + 3}, v{vH + 4 * g + 3}
                v_cvt_pk_bf16_f32 v{mr}, v{t}, v{t + 1}
                v_cvt_pk_bf16_f32 v{mr + 1}, v{t + 2}, v{t + 3}
                buffer_store_dwordx2 {vr(mr, 2)}, v{vOut4 if g == 4 else vMoff}, s[{SOUT}:{SOUT + 3}], s{sRowOff} offen offset:{512 * g} {P["out_st"]}
                L_epi{g}_done:
                """)
    a(f"""
    s_cmp_eq_u32 s{sLast}, 0
    s_cbranch_scc1 L_slow
    """)
    if P["stamps"]:
        a("s_waitcnt vmcnt(0)")
    st("end")
    st.flush(SSEG, "s2", vT)
    a("""
    L_end:
    s_endpgm
    """)
    for b in range(15):
        a(f"L_nb{b}:")
        next_bin()
        a(f"s_branch L_nb{b}_back")
    return a.text(), 256, 102, LDS


def generate(**kw):
    P = dict(DEFAULTS)
    P.update(kw)
    body, nv, ns, lds = gen(P)
    n = NAME + "_kernel"
    out = HEADER
    out += f"; @launch grid=({NCH},1,1) block=(512,1,1) lds={lds}\n"
    out += '.amdgcn_target "amdgcn-amd-amdhsa--gfx950"\n.text\n'
    out += f".globl {n}\n.p2align 8\n.type {n},@function\n{n}:\n{body}"
    out += '.section .rodata,"a"\n.p2align 6\n' + descriptor(n, nv, ns)
    return out


if __name__ == "__main__":
    path = sys.argv[1]
    kw = {}
    for arg in sys.argv[2:]:
        k, v = arg.split("=", 1)
        kw[k] = int(v) if v.lstrip("-").isdigit() else v
    open(path, "w").write(generate(**kw))
```

```python
import sys
from gen import Asm, vr, srd, Stamps, descriptor, NAME, E, T, NCH, CH, BK, WS_SEG

SPIN_MAX = 1 << 18
CS = 53888
CAPS = (160, 160, 96)

DEFAULTS = dict(
    D=3,
    in_ld="nt",
    rec_st="sc1",
    rec_ld="",
    out_st="",
    gather="",
    sleep=4,
    xl=1,
    latespin=2,
    order=201,
    pf=0,
    stamps=0,
    force_slow=0,
)

HEADER = """; Kernarg layout for this problem (112 bytes, ptrs only, base s[0:1]):
;
"""


def gen(P):
    a = Asm()
    D = P["D"]
    R = 4
    ORD = [int(ch) for ch in str(P["order"]).zfill(3)]
    CNT, HIST, BASE, DESC, SB, TRASH, AB = 0, 512, 1536, 2560, 3584, 11776, 14848
    ZB = AB + 40 * 4 * sum(CAPS)
    RING = ZB + 128
    STG = RING
    FLAG = CNT + 127 * 4
    LDS = 143360
    assert STG + 7 * 8192 <= LDS and SB + 9 * 8192 < RING <= SB + 10 * 8192
    sJ = 3
    SO, SI, SA, SRW, SSEG, SREC, SM, SOUT, SDIST, SDBG = 4, 8, 12, 16, 20, 24, 28, 32, 36, 40
    pM, pI, pO, pDist, pAng, pCen, pFreq, pWr, pWs, pWd, pWu, pOut, pDbg, pWsp = range(44, 72, 2)
    sOff, sOffA = 72, 77
    sC625, sM625, sMask, sAct, sW, sSpin, sX = 82, 83, 85, 86, 88, 89, 90
    sMk = 44
    sPend, sReady, sPrevN, sCurN, sJ4, sTk, sEarly = 60, 61, 62, 63, 64, 66, 68
    sLate, sDo, sMo = 70, 72, 73
    sLast, sFirst, sSC, sSU = 83, 84, 85, 86
    sF0, s70, sRingB, sPrev, sCur, sRowOff = 44, 45, 46, 47, 48, 49
    sNE, sL, sIA, sIE, sIP, sC, sCE = 50, 51, 52, 53, 54, 55, 56
    sT = 58
    st = Stamps(a, P, 0, 207, 98)
    vOff16, vOff8, vOne, vF = 1, 2, 3, 4
    vO, vI, vA, vJ, vR = 8, 28, 48, 58, 78
    vP = 98
    vSeg = 112
    vPar = 116
    vCtr = 124
    vLane, vLL20, vFour, vZero = 1, 2, 3, 4
    vLH4, vHalf16, vSc, vSrd, vTr, vBase, vCntA, vEnd, vPh = 5, 6, 7, 8, 9, 10, 11, 12, 13
    vMoff, vOut4 = 14, 15
    vT = 16
    vSlot = 32
    vRk = 80
    vL0, vL1 = 88, 92
    vD0, vHi, vSegA, vCb, vSegW, vDw, vDr, vDoff, vLim0, vLim1, vPfA, vPfD = range(100, 112)
    vAcc = 132
    vG, vH = 152, 172
    vMr = 192
    vDist = 202
    vWraw = 208
    vCen = 220
    vWd, vWu = 224, 228
    vWs, vWr, vRb = 232, 234, 236
    vMt, vSt = 240, 244
    vQ = 248

    def bin_addr(dst, k, tmp):
        a(f"""
        v_mul_u32_u24 v{dst}, {CAPS[0] * 4}, v{k}
        v_mul_u32_u24 v{tmp}, {CAPS[2] * 4}, v{k}
        v_add_u32 v{dst}, {AB - CAPS[0] * 4}, v{dst}
        v_add_u32 v{tmp}, {AB + 80 * CAPS[0] * 4 - 81 * CAPS[2] * 4}, v{tmp}
        v_min_u32 v{dst}, v{dst}, v{tmp}
        """)

    def cnt_init(t, stmp):
        bin_addr(t, 0, t + 1)
        a(f"""
        v_mov_b32 v{t + 1}, {TRASH}
        v_cmp_eq_u32 vcc, 0, v0
        v_mov_b32 v{t + 2}, 0
        v_lshlrev_b32 v{t + 3}, 2, v0
        v_cndmask_b32 v{t}, v{t}, v{t + 1}, vcc
        v_cmp_lt_u32 vcc, 120, v0
        s_nop 1
        v_cndmask_b32 v{t}, v{t}, v{t + 2}, vcc
        v_cmp_gt_u32 vcc, 128, v0
        s_and_saveexec_b64 s[{stmp}:{stmp + 1}], vcc
        ds_write_b32 v{t + 3}, v{t} offset:{CNT}
        s_mov_b64 exec, s[{stmp}:{stmp + 1}]
        """)

    def fill(t, start, rounds, clip=None):
        a(f"""
        v_lshlrev_b32 v{t}, 4, v0
        v_mov_b32 v{vQ}, 0
        v_mov_b32 v{vQ + 1}, 0
        v_mov_b32 v{vQ + 2}, 0
        v_mov_b32 v{vQ + 3}, 0
        v_add_u32 v{t}, {start}, v{t}
        v_add_u32 v{t + 1}, 65536, v{t}
        """)
        if clip:
            a(f"v_cmp_gt_u32 vcc, {(clip - start - (rounds - 1) * 8192) // 16}, v0")
        for i in range(rounds):
            if clip and i == rounds - 1:
                a("s_mov_b64 exec, vcc")
            a(f"ds_write_b128 v{t + (i >> 3)}, {vr(vQ, 4)} offset:{(i & 7) * 8192}")
        if clip:
            a("s_mov_b64 exec, -1")

    def place_atomics(w, m, t):
        a(f"s_mov_b64 exec, s[{m}:{m + 1}]")
        for r in range(4):
            a(f"v_lshlrev_b32_sdwa v{t + r}, 2, v{w + 4} dst_sel:DWORD dst_unused:UNUSED_PAD src0_sel:DWORD src1_sel:BYTE_{r}")
            a(f"ds_add_rtn_u32 v{t + r}, v{t + r}, v{vFour} offset:{CNT}")

    def place_writes(w, m, t):
        a(f"s_mov_b64 exec, s[{m}:{m + 1}]")
        for r in range(4):
            a(f"ds_write_b32 v{t + r}, v{w + r}")

    def ctr_sum(lab_ok):
        a(f"""
        v_readlane_b32 s{sX + 4}, v{vCtr}, 0
        v_readlane_b32 s{sX + 5}, v{vCtr}, 1
        s_add_u32 s{sX + 4}, s{sX + 4}, s{sX + 5}
        v_readlane_b32 s{sX + 5}, v{vCtr}, 2
        s_add_u32 s{sX + 4}, s{sX + 4}, s{sX + 5}
        v_readlane_b32 s{sX + 5}, v{vCtr}, 3
        s_add_u32 s{sX + 4}, s{sX + 4}, s{sX + 5}
        s_cmp_ge_u32 s{sX + 4}, {NCH}
        """)

    ld = P["in_ld"]
    a(f"""
    s_cmp_ge_u32 s2, {NCH}
    s_cbranch_scc1 L_end
    """)
    st("start")
    a(f"""
    s_load_dwordx16 s[44:59], s[0:1], 0
    s_load_dwordx8 s[60:67], s[0:1], 64
    s_load_dwordx4 s[68:71], s[0:1], 96
    v_lshlrev_b32 v{vOff16}, 4, v0
    v_lshlrev_b32 v{vOff8}, 3, v0
    v_lshlrev_b32 v5, 2, v0
    v_mov_b32 v6, 0
    v_mov_b32 v{vOne}, 1
    v_lshrrev_b32 v7, 6, v0
    s_mul_i32 s{sOff}, s2, {CH * 4}
    s_mul_i32 s{sOffA}, s2, {CH * 2}
    v_readfirstlane_b32 s{sW}, v7
    ds_write_b32 v5, v6 offset:{HIST}
    """)
    for q in range(1, 5):
        a(f"s_add_u32 s{sOff + q}, s{sOff}, {q * 8000}")
        a(f"s_add_u32 s{sOffA + q}, s{sOffA}, {q * 4000}")
    if P["xl"]:
        a(f"""
        s_and_b32 s{sJ}, s2, 7
        s_lshl_b32 s{sJ}, s{sJ}, 5
        s_lshr_b32 s{sX}, s2, 3
        s_add_u32 s{sJ}, s{sJ}, s{sX}
        """)
    else:
        a(f"s_mov_b32 s{sJ}, s2")
    a(f"""
    s_mov_b32 s{sC625}, 6871948
    s_mov_b32 s{sM625}, -{BK}
    s_mov_b32 s{sMask}, 0x4007
    s_mov_b32 s{sSpin}, 0
    v_cmp_gt_u32 vcc, 500, v0
    s_lshl_b32 s{sX + 2}, s2, 10
    s_cmp_eq_u32 s{sW}, 0
    s_cselect_b64 s[{sX}:{sX + 1}], -1, 0
    s_waitcnt lgkmcnt(0)
    """)
    srd(a, SO, f"s{pO}", f"s{pO + 1}", T * 4)
    a(f"""
    s_barrier
    s_mov_b64 s[{sAct}:{sAct + 1}], vcc
    s_mov_b64 exec, vcc
    """)
    issued = []

    def ld_issue(name):
        k, q = name[0], int(name[1:] or 0)
        act = f"s_mov_b64 exec, s[{sAct}:{sAct + 1}]"
        if k == "F":
            a(f"global_load_ushort v{vF}, v6, s[{pFreq}:{pFreq + 1}]")
        elif k == "Z":
            a(f"""
            s_mov_b64 exec, s[{sX}:{sX + 1}]
            buffer_store_dwordx4 {vr(vQ, 4)}, v{vOff16}, s[{SSEG}:{SSEG + 3}], s{sX + 2} offen sc1
            {act}
            """)
        elif k == "C":
            a(f"""
            s_and_b64 exec, s[{sX}:{sX + 1}], 1
            s_and_b32 s{sX + 3}, s2, 3
            s_lshl_b32 s{sX + 3}, s{sX + 3}, 6
            buffer_atomic_add v{vOne}, v6, s[{SDBG}:{SDBG + 3}], s{sX + 3} offen
            {act}
            """)
        elif k == "X":
            a(f"""
            s_cmp_eq_u32 s{sW}, 7
            s_cselect_b32 exec_lo, 15, 0
            s_mov_b32 exec_hi, 0
            buffer_load_dword v{vCtr}, v{vCtr + 1}, s[{SDBG}:{SDBG + 3}], 0 offen sc1
            """)
        elif k == "W":
            lo, hi, dst, ptr, off = ((-1, 0, 0, pWd, 0), (0, -1, 0, pWu, -512), (0xffff, 0, 4, pWs, 0),
                                     (0xffff0000, 0, 4, pWr, -256), (0, 1, 4, pCen, -512))[q]
            a(f"""
            s_and_b32 exec_lo, s{sX}, {lo}
            s_and_b32 exec_hi, s{sX}, {hi}
            global_load_dwordx4 {vr(vPar + dst, 4)}, v{vOff16}, s[{ptr}:{ptr + 1}] offset:{off}
            """)
            if q == 4:
                a(act)
        elif k == "O":
            a(f"buffer_load_dwordx4 {vr(vO + 4 * q, 4)}, v{vOff16}, s[{SO}:{SO + 3}], s{sOff + q} offen {ld}")
        elif k == "A":
            a(f"buffer_load_dwordx2 {vr(vA + 2 * q, 2)}, v{vOff8}, s[{SA}:{SA + 3}], s{sOffA + q} offen {ld}")
        else:
            a(f"buffer_load_dwordx4 {vr(vI + 4 * q, 4)}, v{vOff16}, s[{SI}:{SI + 3}], s{sOff + q} offen {ld}")
        issued.append(name)

    def ld_wait(name):
        a(f"s_waitcnt vmcnt({len(issued) - 1 - issued.index(name)})")

    for n in ("O0", "O1", "O2", "O3", "O4", "F"):
        ld_issue(n)
    srd(a, SI, f"s{pI}", f"s{pI + 1}", T * 4)
    srd(a, SA, f"s{pAng}", f"s{pAng + 1}", T * 2)
    srd(a, SDBG, f"s{pDbg}", f"s{pDbg + 1}", 256)
    srd(a, SREC, f"s{pWsp}", f"s{pWsp + 1}", NCH * CS)
    srd(a, SM, f"s{pM}", f"s{pM + 1}", E * 32)
    srd(a, SOUT, f"s{pOut}", f"s{pOut + 1}", E * 32)
    srd(a, SDIST, f"s{pDist}", f"s{pDist + 1}", E * 2)
    a(f"""
    s_add_u32 s{SSEG}, s{pWsp}, {WS_SEG}
    s_addc_u32 s{SSEG + 1}, s{pWsp + 1}, 0
    s_and_b32 s{SSEG + 1}, s{SSEG + 1}, 0xffff
    s_mov_b32 s{SSEG + 2}, {NCH * 1024}
    s_mov_b32 s{SSEG + 3}, 0x20000
    s_mul_i32 s{sX + 3}, s2, {CS}
    s_add_u32 s{SRW}, s{pWsp}, s{sX + 3}
    s_addc_u32 s{SRW + 1}, s{pWsp + 1}, 0
    s_and_b32 s{SRW + 1}, s{SRW + 1}, 0xffff
    s_mov_b32 s{SRW + 2}, 0
    s_mov_b32 s{SRW + 3}, 0x20000
    s_mov_b64 exec, -1
    v_and_b32 v{vCtr + 1}, 3, v0
    v_lshlrev_b32 v{vCtr + 1}, 6, v{vCtr + 1}
    """)
    fill(vP + 4, STG, 7)
    a(f"s_mov_b64 exec, s[{sAct}:{sAct + 1}]")
    after_o = [("Z", "A0", "A1"), ("A2", "A3"), ("A4", "I0"), ("I1",), ("I2",)]
    for q in range(5):
        ld_wait(f"O{q}")
        for n in after_o[q]:
            ld_issue(n)
        if q in (0, 4):
            st(f"O{q}")
        for r in range(4):
            i = 4 * q + r
            a(f"v_mul_hi_u32_u24 v{vP + r}, s{sC625}, v{vO + i}")
            a(f"v_add_u32 v{vO + i}, 16, v{vO + i}")
        for r in range(4):
            i = 4 * q + r
            a(f"v_lshlrev_b32 v{vJ + i}, 2, v{vP + r}")
            a(f"v_mad_i32_i24 v{vO + i}, v{vP + r}, s{sM625}, v{vO + i}")
            a(f"ds_add_rtn_u32 v{vR + i}, v{vJ + i}, v{vOne} offset:{HIST}")
        for r in range(4):
            i = 4 * q + r
            a(f"v_lshl_or_b32 v{vO + i}, v{vO + i}, 11, v{vO + i}")
    for q in range(5):
        ld_issue(f"W{q}")
    a(f"""
    s_waitcnt lgkmcnt(0)
    s_barrier
    """)
    st("bar2")
    ld_issue("I3")
    ld_issue("I4")
    c, b, x, ln = vP, vP + 4, vP + 8, vP + 9
    a(f"""
    s_mov_b64 exec, -1
    v_and_b32 v{ln}, 63, v0
    v_lshlrev_b32 v{ln}, 4, v{ln}
    ds_read_b128 {vr(c, 4)}, v{ln} offset:{HIST}
    s_mov_b32 s{sX + 4}, {STG}
    s_waitcnt lgkmcnt(0)
    """)
    for k in range(4):
        a(f"v_add_u32 v{c + k}, 3, v{c + k}")
        a(f"v_lshrrev_b32 v{c + k}, 2, v{c + k}")
    a(f"""
    v_add_u32 v{b + 2}, v{c}, v{c + 1}
    v_add_u32 v{b + 3}, v{b + 2}, v{c + 2}
    v_add_u32 v{b}, v{b + 3}, v{c + 3}
    v_mov_b32 v{x}, v{b}
    s_nop 1
    v_add_u32_dpp v{x}, v{x}, v{x} row_shr:1 row_mask:0xf bank_mask:0xf
    s_nop 1
    v_add_u32_dpp v{x}, v{x}, v{x} row_shr:2 row_mask:0xf bank_mask:0xf
    s_nop 1
    v_add_u32_dpp v{x}, v{x}, v{x} row_shr:4 row_mask:0xf bank_mask:0xf
    s_nop 1
    v_add_u32_dpp v{x}, v{x}, v{x} row_shr:8 row_mask:0xf bank_mask:0xf
    s_nop 1
    v_add_u32_dpp v{x}, v{x}, v{x} row_bcast:15 row_mask:0xa bank_mask:0xf
    s_nop 1
    v_add_u32_dpp v{x}, v{x}, v{x} row_bcast:31 row_mask:0xc bank_mask:0xf
    v_sub_u32 v{b}, v{x}, v{b}
    v_add_u32 v{b + 1}, v{b}, v{c}
    v_add_u32 v{b + 2}, v{b}, v{b + 2}
    v_add_u32 v{b + 3}, v{b}, v{b + 3}
    v_readlane_b32 s{sX + 5}, v{x}, 63
    """)
    for k in range(4):
        a(f"v_lshl_or_b32 v{vSeg + k}, v{c + k}, 12, v{b + k}")
        a(f"v_mad_u32_u24 v{b + k}, v{b + k}, 20, s{sX + 4}")
    a(f"ds_write_b128 v{ln}, {vr(b, 4)} offset:{BASE}")
    for k in range(4):
        a(f"v_or_b32 v{vSeg + k}, 0x80000000, v{vSeg + k}")
    a(f"""
    s_mul_i32 s{SRW + 2}, s{sX + 5}, 20
    s_mov_b64 exec, s[{sAct}:{sAct + 1}]
    """)
    for i in range(20):
        a(f"ds_read_b32 v{vJ + i}, v{vJ + i} offset:{BASE}")
    ld_wait("Z")
    ld_issue("C")
    for q in range(5):
        ld_wait(f"A{q}")
        if q == 0:
            a(f"""
            v_readfirstlane_b32 s{sX + 5}, v{vF}
            v_lshlrev_b32 v{vF}, 16, v{vF}
            """)
        if q in (0, 4):
            st(f"A{q}")
        t = vP

        def unpack():
            for p in range(2):
                d = vA + 2 * q + p
                a(f"v_lshlrev_b32 v{t + 2 * p}, 16, v{d}")
                a(f"v_and_b32 v{t + 2 * p + 1}, 0xffff0000, v{d}")

        unpack()
        a(f"""
        s_cmp_eq_u32 s{sX + 5}, 0x3f80
        s_cbranch_scc1 L_unit{q}
        """)
        for k in range(4):
            a(f"v_mul_f32 v{t + k}, v{vF}, v{t + k}")
        for p in range(2):
            a(f"v_cvt_pk_bf16_f32 v{vA + 2 * q + p}, v{t + 2 * p}, v{t + 2 * p + 1}")
        unpack()
        a(f"L_unit{q}:")
        for k in range(4):
            a(f"v_mul_f32 v{t + k}, 0.15915494, v{t + k}")
        for k in range(4):
            a(f"v_fract_f32 v{t + k}, v{t + k}")
        for k in range(4):
            a(f"v_cos_f32 v{t + k}, v{t + k}")
        a("s_nop 0")
        for p in range(2):
            a(f"v_cvt_pkrtz_f16_f32 v{vA + 2 * q + p}, v{t + 2 * p}, v{t + 2 * p + 1}")
        for p in range(2):
            a(f"v_add_u32 v{vA + 2 * q + p}, 0x40004, v{vA + 2 * q + p}")
        for p in range(2):
            a(f"v_and_b32 v{vA + 2 * q + p}, 0xbff8bff8, v{vA + 2 * q + p}")
    a("s_waitcnt lgkmcnt(0)")
    for i in range(20):
        a(f"v_mad_u32_u24 v{vR + i}, v{vR + i}, 5, v{vJ + i}")
        a(f"v_and_b32 v{vJ + i}, -4, v{vR + i}")
        a(f"v_and_b32 v{vR + i}, 3, v{vR + i}")
        a(f"v_mad_i32_i24 v{vR + i}, v{vR + i}, -3, v{vJ + i}")
    for q in range(5):
        ld_wait(f"I{q}")
        if q in (0, 4):
            st(f"I{q}")
        for r in range(4):
            i = 4 * q + r
            a(f"v_bfe_u32 v{vP + r}, v{vO + i}, 4, 6")
            a(f"v_mad_u32_u16 v{vP + r}, v{vI + i}, 40, v{vP + r} op_sel:[1,0,0,0]")
            a(f"v_lshlrev_b32 v{vI + i}, 16, v{vI + i}")
            a(f"v_and_or_b32 v{vI + i}, v{vO + i}, s{sMask}, v{vI + i}")
            a(f"ds_write_b8 v{vR + i}, v{vP + r} offset:16")
            a(f"v_or_b32_sdwa v{vI + i}, v{vI + i}, v{vA + 2 * q + (r >> 1)} dst_sel:DWORD dst_unused:UNUSED_PAD src0_sel:DWORD src1_sel:WORD_{r & 1}")
            a(f"ds_write_b32 v{vJ + i}, v{vI + i}")
    vS = 64
    a(f"""
    s_mov_b64 exec, -1
    v_add_u32 v5, {STG}, v{vOff16}
    v_mov_b32 v{vP}, v{vOff16}
    s_waitcnt lgkmcnt(0)
    s_barrier
    """)
    st("bar3")
    for i in range(7):
        a(f"ds_read_b128 {vr(vS + 4 * i, 4)}, v5 offset:{i * 8192}")
    a(f"""
    s_mov_b64 exec, s[{sX}:{sX + 1}]
    ds_write_b128 v{vP}, {vr(vPar, 4)} offset:{HIST}
    ds_write_b128 v{vP}, {vr(vPar + 4, 4)} offset:{HIST + 1024}
    s_mov_b64 exec, -1
    """)
    for i in range(7):
        a(f"s_mov_b32 s{sX + 4}, {i * 8192}")
        a(f"s_waitcnt lgkmcnt({8 - i})")
        a(f"buffer_store_dwordx4 {vr(vS + 4 * i, 4)}, v{vP}, s[{SRW}:{SRW + 3}], s{sX + 4} offen {P['rec_st']}")
    st("stissued")

    def poll(mask):
        a(f"""
        s_mov_b32 exec_lo, {mask}
        s_mov_b32 exec_hi, 0
        buffer_load_dword v{vSegW}, v{vSegA}, s[{SSEG}:{SSEG + 3}], s{sJ4} offen sc1
        """)

    ld_issue("X")
    a(f"""
    s_mov_b64 exec, -1
    v_lshrrev_b32 v{vT}, 6, v0
    v_and_b32 v{vLane}, 63, v0
    v_and_b32 v{vT + 1}, 31, v0
    v_lshl_add_u32 v{vT + 2}, v{vT + 1}, 3, v{vT}
    v_lshlrev_b32 v{vSegA}, 10, v{vT + 2}
    s_lshl_b32 s{sJ4}, s{sJ}, 2
    v_mul_u32_u24 v{vCb}, {CS}, v{vT + 2}
    v_and_b32 v{vT + 6}, 15, v{vLane}
    v_lshrrev_b32 v{vT + 7}, 4, v{vLane}
    v_mul_u32_u24 v{vLL20}, 20, v{vT + 6}
    v_lshlrev_b32 v{vDw}, 7, v{vT}
    v_add_u32 v{vDw}, {DESC}, v{vDw}
    v_lshl_add_u32 v{vDr}, v{vT + 7}, 4, v{vDw}
    v_mul_u32_u24 v{vT + 8}, 80, v{vT}
    v_add_u32 v{vT + 8}, v{vT + 8}, v{vT + 6}
    v_lshlrev_b32 v{vMoff}, 5, v{vT + 8}
    v_lshl_add_u32 v{vMoff}, v{vT + 7}, 3, v{vMoff}
    v_cmp_gt_u32 vcc, {BK - 64}, v{vT + 8}
    v_mov_b32 v{vT + 9}, 0x7fffff00
    v_lshlrev_b32 v{vDoff}, 1, v{vT + 8}
    v_cndmask_b32 v{vOut4}, v{vT + 9}, v{vMoff}, vcc
    v_mov_b32 v{vZero}, 0
    v_mov_b32 v{vFour}, 4
    v_lshrrev_b32 v{vT + 5}, 1, v{vLane}
    v_lshlrev_b32 v{vLH4}, 2, v{vT + 5}
    v_and_b32 v{vHalf16}, 1, v{vLane}
    v_lshlrev_b32 v{vHalf16}, 4, v{vHalf16}
    v_bfe_u32 v{vT + 6}, v{vT + 5}, 2, 1
    v_bfe_u32 v{vT + 7}, v{vT + 5}, 4, 1
    v_lshl_add_u32 v{vT + 6}, v{vT + 7}, 1, v{vT + 6}
    v_and_b32 v{vT + 7}, 3, v{vT + 5}
    v_bfe_u32 v{vT + 8}, v{vT + 5}, 3, 1
    v_lshl_add_u32 v{vT + 7}, v{vT + 8}, 2, v{vT + 7}
    v_lshlrev_b32 v{vT + 7}, 1, v{vT + 7}
    v_lshl_add_u32 v{vSc}, v{vT + 6}, 8, v{vT + 7}
    v_lshlrev_b32 v{vT + 8}, 10, v{vT}
    v_add_u32 v{vT + 8}, {SB}, v{vT + 8}
    v_add_u32 v{vSc}, v{vSc}, v{vT + 8}
    v_lshl_add_u32 v{vSrd}, v{vLane}, 4, v{vT + 8}
    v_bfe_u32 v{vT + 6}, v{vLane}, 4, 1
    v_bfe_u32 v{vT + 7}, v{vLane}, 5, 1
    v_lshlrev_b32 v{vT + 7}, 4, v{vT + 7}
    v_lshl_add_u32 v{vT + 6}, v{vT + 6}, 2, v{vT + 7}
    v_bfe_u32 v{vT + 7}, v{vLane}, 2, 2
    v_add_u32 v{vT + 6}, v{vT + 6}, v{vT + 7}
    v_and_b32 v{vT + 7}, 3, v{vLane}
    v_lshlrev_b32 v{vT + 7}, 3, v{vT + 7}
    v_lshl_add_u32 v{vTr}, v{vT + 6}, 5, v{vT + 7}
    v_lshlrev_b32 v{vT + 8}, 12, v{vT}
    v_add_u32 v{vT + 8}, {RING}, v{vT + 8}
    v_add_u32 v{vTr}, v{vTr}, v{vT + 8}
    v_mul_u32_u24 v{vT + 6}, 52, v{vLane}
    v_lshrrev_b32 v{vT + 6}, 8, v{vT + 6}
    v_mul_u32_u24 v{vT + 8}, 5, v{vT + 6}
    v_sub_u32 v{vT + 8}, v{vLane}, v{vT + 8}
    v_lshlrev_b32 v{vT + 6}, 1, v{vT + 6}
    v_mov_b32 v{vT + 7}, {ORD[0] | ORD[1] << 2 | ORD[2] << 4}
    v_bfe_u32 v{vT + 6}, v{vT + 7}, v{vT + 6}, 2
    v_lshlrev_b32 v{vPh}, 21, v{vT + 6}
    v_mul_u32_u24 v{vT + 6}, 40, v{vT + 6}
    v_mul_u32_u24 v{vT + 7}, 5, v{vT}
    v_add3_u32 v{vT + 6}, v{vT + 6}, v{vT + 7}, v{vT + 8}
    v_add_u32 v{vT + 6}, 1, v{vT + 6}
    v_lshlrev_b32 v{vCntA}, 2, v{vT + 6}
    """)
    bin_addr(vBase, vT + 6, vT + 7)
    a(f"""
    v_cmp_lt_u32 vcc, 14, v{vLane}
    v_mov_b32 v{vT + 8}, {ZB}
    v_add_u32 v{vT + 6}, 1, v{vLane}
    v_cndmask_b32 v{vBase}, v{vBase}, v{vT + 8}, vcc
    v_cndmask_b32 v{vPh}, v{vPh}, v{vZero}, vcc
    v_cndmask_b32 v{vCntA}, v{vCntA}, v{vZero}, vcc
    """)
    bin_addr(vLim0, vT + 6, vT + 7)
    a(f"v_add_u32 v{vT + 6}, 65, v{vLane}")
    bin_addr(vLim1, vT + 6, vT + 7)
    a(f"""
    s_lshr_b32 s{sTk}, s2, 3
    s_lshl_b32 s{sTk}, s{sTk}, 3
    s_add_u32 s{sTk}, s{sTk}, s{sW}
    s_mul_i32 s{sTk}, s{sTk}, {128 * max(P["pf"], 1)}
    v_lshlrev_b32 v{vPfA}, 7, v{vLane}
    v_add_u32 v{vPfA}, s{sTk}, v{vPfA}
    v_mov_b32 v{vT + 8}, -1
    v_cmp_eq_u32 vcc, 0, v{vLane}
    v_cmp_lt_u32 s[{sTk}:{sTk + 1}], 56, v{vLane}
    s_nop 1
    v_cndmask_b32 v{vLim0}, v{vLim0}, v{vT + 8}, vcc
    v_cndmask_b32 v{vLim1}, v{vLim1}, v{vT + 8}, s[{sTk}:{sTk + 1}]
    """)
    cnt_init(vT, sTk)
    fill(vT + 4, SB, 10, RING)
    for k in range(20):
        a(f"v_mov_b32 v{vAcc + k}, 0")
    if P["stamps"]:
        a("s_mov_b32 s97, 0")
        a("s_mov_b64 s[100:101], 0")
    a(f"""
    s_mov_b32 s{sPend}, -1
    s_mov_b32 s{sReady}, 0
    s_mov_b32 s{sPrevN}, 0
    s_mov_b64 s[{sLate}:{sLate + 1}], -1
    s_mul_i32 s{sDo}, s{sJ}, {BK * 2}
    s_mul_i32 s{sMo}, s{sJ}, {BK * 32}
    s_waitcnt vmcnt(0) lgkmcnt(0)
    s_cmp_lg_u32 s{sW}, 7
    s_cbranch_scc1 L_ctr_ok
    L_ctr:
    """)
    ctr_sum(None)
    a(f"""
    s_cbranch_scc1 L_ctr_ok
    s_add_u32 s{sSpin}, s{sSpin}, 1
    s_cmp_gt_u32 s{sSpin}, {SPIN_MAX}
    s_cbranch_scc1 L_end
    s_sleep 2
    s_mov_b64 exec, 15
    buffer_load_dword v{vCtr}, v{vCtr + 1}, s[{SDBG}:{SDBG + 3}], 0 offen sc1
    s_mov_b64 exec, -1
    s_waitcnt vmcnt(0)
    s_branch L_ctr
    L_ctr_ok:
    s_mov_b32 s{sSpin}, 0
    """)
    st("drained")

    def late_loads():
        a(f"s_mov_b64 exec, s[{sLate}:{sLate + 1}]")
        for g in range(5):
            a(f"buffer_load_ushort v{vDist + g}, v{vDoff}, s[{SDIST}:{SDIST + 3}], s{sDo} offen offset:{32 * g}")
        for g in range(5):
            a(f"buffer_load_dwordx2 {vr(vMr + 2 * g, 2)}, v{vMoff}, s[{SM}:{SM + 3}], s{sMo} offen offset:{512 * g}")
        if P["pf"]:
            a(f"""
            s_and_b32 exec_hi, exec_hi, {-1 if P["pf"] == 64 else 0}
            buffer_load_dword v{vPfD}, v{vPfA}, s[{SM}:{SM + 3}], 0 offen
            """)
        a(f"s_mov_b64 s[{sLate}:{sLate + 1}], 0")

    a(f"""
    s_barrier
    s_mov_b64 exec, s[{sX}:{sX + 1}]
    buffer_store_dwordx4 {vr(vSeg, 4)}, v{vP}, s[{SSEG}:{SSEG + 3}], s{sX + 2} offen sc1
    """)
    st("pub")
    a("s_branch L_idle3")

    dbg = [0]

    def once(lane):
        if not P["stamps"]:
            return
        dbg[0] += 1
        a(f"""
        s_bitcmp1_b64 s[100:101], {lane}
        s_cbranch_scc1 L_once{dbg[0]}
        s_bitset1_b64 s[100:101], {lane}
        s_memrealtime s[98:99]
        s_waitcnt lgkmcnt(0)
        v_writelane_b32 v207, s98, {lane}
        L_once{dbg[0]}:
        """)

    def slot(bank, s):
        return vSlot + 6 * (4 * bank + s), sMk + 2 * (4 * bank + s)

    def rec_issue(bank, s):
        w, m = slot(bank, s)
        a(f"""
        s_mov_b64 exec, -1
        v_add_u32 v{w + 5}, v{vL0 + s}, v{vLL20}
        v_cmp_lt_u32 s[{m}:{m + 1}], v{vLL20}, v{vL1 + s}
        s_mov_b64 exec, s[{m}:{m + 1}]
        buffer_load_dwordx4 {vr(w, 4)}, v{w + 5}, s[{SREC}:{SREC + 3}], 0 offen {P["rec_ld"]}
        buffer_load_dword v{w + 4}, v{w + 5}, s[{SREC}:{SREC + 3}], 0 offen offset:16 {P["rec_ld"]}
        """)

    def process(bank, issue_bank, younger):
        for s in range(4):
            if issue_bank is not None:
                rec_issue(issue_bank, s)
            a(f"s_waitcnt vmcnt({younger(s)})")
            if s == 0:
                once(46)
            place_atomics(*slot(bank, s), vRk + 4 * (s & 1))
            if s > 0:
                a(f"s_waitcnt lgkmcnt({4 if s == 1 else 8})")
                place_writes(*slot(bank, s - 1), vRk + 4 * ((s - 1) & 1))
        a("s_waitcnt lgkmcnt(4)")
        place_writes(*slot(bank, 3), vRk + 4)

    for X in range(2):
        Y = 1 - X
        a(f"""
        L_top{X}:
        s_mov_b32 exec_lo, s{sPend}
        s_mov_b32 exec_hi, 0
        s_waitcnt vmcnt(8)
        v_cmp_gt_i32 vcc, 0, v{vSegW}
        s_and_b32 s{sTk}, s{sPend}, vcc_lo
        s_andn2_b32 s{sPend}, s{sPend}, s{sTk}
        s_mov_b32 exec_lo, s{sTk}
        v_and_b32 v{vT}, 0xfff, v{vSegW}
        v_bfe_u32 v{vT + 1}, v{vSegW}, 12, 12
        v_mad_u32_u24 v{vD0}, v{vT}, 20, v{vCb}
        v_mul_u32_u24 v{vHi}, 20, v{vT + 1}
        s_or_b32 s{sReady}, s{sReady}, s{sTk}
        s_cbranch_scc1 L_take{X}
        s_cmp_eq_u32 s{sPrevN}, 0
        s_cbranch_scc1 L_idle
        s_cmp_eq_u32 s{sPend}, 0
        s_cbranch_scc1 L_final{X}
        L_take{X}:
        """)
        if P["stamps"]:
            a(f"""
            s_add_u32 s97, s97, 1
            s_memrealtime s[98:99]
            s_waitcnt lgkmcnt(0)
            s_mov_b32 s96, s98
            s_cmp_eq_u32 s97, 1
            s_cbranch_scc0 L_dbg{X}
            v_writelane_b32 v207, s98, 43
            s_bcnt1_i32_b32 s99, s{sReady}
            v_writelane_b32 v207, s99, 44
            L_dbg{X}:
            """)
        a(f"""
        s_mov_b32 exec_lo, 0xffff
        v_lshl_add_u32 v{vT + 3}, v{vLane}, 2, v{vDw}
        ds_write_b32 v{vT + 3}, v{vZero} offset:64
        s_mov_b32 exec_lo, s{sReady}
        v_mbcnt_lo_u32_b32 v{vT}, s{sReady}, 0
        v_cmp_gt_u32 vcc, 16, v{vT}
        s_and_b32 s{sCurN}, s{sReady}, vcc_lo
        s_mov_b32 exec_lo, s{sCurN}
        v_and_b32 v{vT + 2}, 3, v{vT}
        v_lshrrev_b32 v{vT}, 2, v{vT}
        v_min_u32 v{vT + 1}, 320, v{vHi}
        v_lshl_add_u32 v{vT}, v{vT + 2}, 2, v{vT}
        v_sub_u32 v{vHi}, v{vHi}, v{vT + 1}
        v_lshl_add_u32 v{vT}, v{vT}, 2, v{vDw}
        ds_write_b32 v{vT}, v{vD0}
        ds_write_b32 v{vT}, v{vT + 1} offset:64
        v_cmp_lt_u32 vcc, 0, v{vHi}
        v_add_u32 v{vD0}, 320, v{vD0}
        s_andn2_b32 s{sReady}, s{sReady}, s{sCurN}
        s_and_b32 s{sTk}, s{sCurN}, vcc_lo
        s_or_b32 s{sReady}, s{sReady}, s{sTk}
        s_mov_b64 exec, -1
        ds_read_b128 {vr(vL0, 4)}, v{vDr}
        ds_read_b128 {vr(vL1, 4)}, v{vDr} offset:64
        """)
        poll(f"s{sPend}")
        a(f"""
        s_cmp_eq_u32 s{sPrevN}, 0
        s_mov_b32 s{sPrevN}, s{sCurN}
        s_waitcnt lgkmcnt(0)
        s_cbranch_scc1 L_only{X}
        """)
        process(Y, X, lambda s: 9)
        a(f"s_branch L_top{Y}")
    for X in range(2):
        a(f"L_only{X}:")
        for s in range(4):
            rec_issue(X, s)
        a(f"s_branch L_top{1 - X}")
    for X in range(2):
        a(f"L_final{X}:")
        once(45)
        late_loads()
        process(1 - X, None, lambda s: 2 * (3 - s) + 10 + (1 if P["pf"] else 0))
        a("s_branch L_taken")
    a(f"""
    L_idle:
    s_cmp_eq_u32 s{sPend}, 0
    s_cbranch_scc1 L_idle_late
    s_cmp_lt_u32 s{sSpin}, {P["latespin"]}
    s_cbranch_scc1 L_idle2
    L_idle_late:
    """)
    late_loads()
    a(f"""
    s_cmp_eq_u32 s{sPend}, 0
    s_cbranch_scc1 L_taken
    L_idle2:
    s_add_u32 s{sSpin}, s{sSpin}, 1
    s_cmp_gt_u32 s{sSpin}, {SPIN_MAX}
    s_cbranch_scc1 L_end
    s_sleep {P["sleep"]}
    L_idle3:
    """)
    poll(f"s{sPend}")
    a(f"""
    s_waitcnt vmcnt(0)
    s_branch L_top0
    L_taken:
    s_mov_b64 exec, -1
    s_mov_b32 s{sLast}, 1
    s_mov_b32 s{sFirst}, 1
    s_movk_i32 s{sF0}, 0xf0
    s_movk_i32 s{s70}, 0x70
    s_lshl_b32 s{sRingB}, s{sW}, 12
    s_add_u32 s{sRingB}, s{sRingB}, {RING}
    s_mul_i32 s{sRowOff}, s{sJ}, {BK * 32}
    v_lshlrev_b32 v{vT}, 2, v{vLane}
    s_waitcnt lgkmcnt(0)
    """)
    st("intake")
    if P["stamps"]:
        a(f"v_writelane_b32 v207, s{sSpin}, 40")
        a("v_writelane_b32 v207, s97, 41")
        a("v_writelane_b32 v207, s96, 42")
    a("s_barrier")
    st("bar5")
    a(f"""
    ds_read_b32 v{vT + 1}, v{vT} offset:{CNT}
    ds_read_b32 v{vT + 2}, v{vT} offset:{CNT + 256}
    ds_read_b32 v{vEnd}, v{vCntA} offset:{CNT}
    s_waitcnt lgkmcnt(1)
    v_cmp_gt_u32 vcc, v{vT + 1}, v{vLim0}
    v_cmp_gt_u32 s[{sT}:{sT + 1}], v{vT + 2}, v{vLim1}
    s_or_b64 vcc, vcc, s[{sT}:{sT + 1}]
    """)
    if P["force_slow"]:
        a("s_cmp_eq_u32 0, 0")
    a(f"""
    s_cbranch_scc0 L_G
    s_mov_b32 s{sSC}, 0
    s_mov_b32 s{sSU}, 0
    s_mov_b32 s{sLast}, 0
    L_slow:
    s_waitcnt vmcnt(0) lgkmcnt(0)
    s_barrier
    """)
    cnt_init(vT, sT)
    fill(vT + 4, SB, 10, RING)
    a(f"""
    s_waitcnt lgkmcnt(0)
    s_barrier
    s_cmp_lt_u32 s{sSC}, {NCH}
    s_cbranch_scc1 L_slow_unit
    s_mov_b32 s{sLast}, 1
    s_branch L_slow_go
    L_slow_unit:
    s_lshl_b32 s{sT}, s{sSC}, 10
    s_lshl_b32 s{sT + 1}, s{sJ}, 2
    s_add_u32 s{sT}, s{sT}, s{sT + 1}
    buffer_load_dword v{vT}, v{vZero}, s[{SSEG}:{SSEG + 3}], s{sT} offen sc1
    s_waitcnt vmcnt(0)
    v_readfirstlane_b32 s{sT + 2}, v{vT}
    s_and_b32 s{sT + 1}, s{sT + 2}, 0xfff
    s_mul_i32 s{sT + 1}, s{sT + 1}, 20
    s_bfe_u32 s{sT + 2}, s{sT + 2}, 0xc000c
    s_mul_i32 s{sT + 2}, s{sT + 2}, 20
    s_mul_i32 s{sT + 3}, s{sSC}, {CS}
    s_add_u32 s{sT + 3}, s{sT + 3}, s{sT + 1}
    s_add_u32 s{sT + 3}, s{sT + 3}, s{sSU}
    s_sub_u32 s{sT + 4}, s{sT + 2}, s{sSU}
    s_min_u32 s{sT + 4}, s{sT + 4}, 480
    s_cmp_lg_u32 s{sW}, 0
    s_cbranch_scc1 L_slow_adv
    v_mul_u32_u24 v{vT}, 20, v{vLane}
    v_cmp_gt_u32 s[{sT + 6}:{sT + 7}], s{sT + 4}, v{vT}
    s_mov_b64 exec, s[{sT + 6}:{sT + 7}]
    buffer_load_dwordx4 {vr(vSlot, 4)}, v{vT}, s[{SREC}:{SREC + 3}], s{sT + 3} offen sc1
    buffer_load_dword v{vSlot + 4}, v{vT}, s[{SREC}:{SREC + 3}], s{sT + 3} offen offset:16 sc1
    s_waitcnt vmcnt(0)
    """)
    place_atomics(vSlot, sT + 6, vRk)
    a("s_waitcnt lgkmcnt(0)")
    place_writes(vSlot, sT + 6, vRk)
    a(f"""
    s_mov_b64 exec, -1
    L_slow_adv:
    s_add_u32 s{sSU}, s{sSU}, 480
    s_cmp_lt_u32 s{sSU}, s{sT + 2}
    s_cbranch_scc1 L_slow_go
    s_add_u32 s{sSC}, s{sSC}, 1
    s_mov_b32 s{sSU}, 0
    L_slow_go:
    s_waitcnt lgkmcnt(0)
    s_barrier
    ds_read_b32 v{vEnd}, v{vCntA} offset:{CNT}
    L_G:
    v_cmp_lt_u32 vcc, 14, v{vLane}
    v_add_u32 v{vT + 1}, 128, v{vBase}
    s_mov_b32 s{sCur}, 0
    s_waitcnt lgkmcnt(0)
    v_cndmask_b32 v{vEnd}, v{vEnd}, v{vT + 1}, vcc
    v_cmp_gt_u32 vcc, v{vEnd}, v{vBase}
    v_sub_u32 v{vEnd}, v{vEnd}, v{vBase}
    v_add_u32 v{vEnd}, 127, v{vEnd}
    v_and_b32 v{vEnd}, 0xffffff80, v{vEnd}
    v_add_u32 v{vEnd}, v{vEnd}, v{vBase}
    s_and_b32 s{sNE}, vcc_lo, 0x7fff
    """)

    def next_bin():
        a(f"""
        s_ff1_i32_b32 s{sL}, s{sNE}
        s_bitset0_b32 s{sNE}, s{sL}
        v_readlane_b32 s{sIA}, v{vBase}, s{sL}
        v_readlane_b32 s{sIE}, v{vEnd}, s{sL}
        v_readlane_b32 s{sIP}, v{vPh}, s{sL}
        """)

    next_bin()
    for k in range(D):
        a(f"""
        s_mov_b32 s{sT + k}, s{sIP}
        s_nop 0
        v_add_u32 v{vT + k}, s{sIA}, v{vLH4}
        ds_read_b32 v{vT + k}, v{vT + k}
        s_add_u32 s{sIA}, s{sIA}, 128
        s_cmp_lg_u32 s{sIA}, s{sIE}
        s_cbranch_scc1 L_pro{k}
        """)
        next_bin()
        a(f"L_pro{k}:")
    for k in range(D):
        a(f"""
        s_add_u32 m0, s{sRingB}, {k * 1024}
        s_waitcnt lgkmcnt({D - 1 - k})
        v_mad_u32_u16 v{vT + k}, v{vT + k}, 32, v{vHalf16} op_sel:[1,0,0,0]
        buffer_load_dwordx4 v{vT + k}, s[{SM}:{SM + 3}], s{sT + k} offen {P["gather"]} lds
        """)
    a(f"""
    s_movk_i32 s{sPrev}, {D * 1024}
    s_cmp_eq_u32 s{sFirst}, 0
    s_cbranch_scc1 L_main
    s_mov_b32 s{sFirst}, 0
    """)
    st("Gissued")
    a(f"""
    v_and_b32 v{vT + 4}, 15, v{vLane}
    v_lshrrev_b32 v{vT + 5}, 4, v{vLane}
    v_lshlrev_b32 v{vT + 4}, 1, v{vT + 4}
    v_lshl_add_u32 v{vT + 6}, v{vT + 5}, 6, v{vT + 4}
    v_lshl_add_u32 v{vT + 4}, v{vT + 5}, 7, v{vT + 4}
    v_lshlrev_b32 v{vT + 5}, 2, v{vT + 5}
    """)
    for k in range(4):
        a(f"ds_read_u16 v{vWraw + k}, v{vT + 4} offset:{HIST + 32 * k}")
        a(f"ds_read_u16 v{vWraw + 4 + k}, v{vT + 4} offset:{HIST + 512 + 32 * k}")
    for k in range(2):
        a(f"ds_read_u16 v{vWraw + 8 + k}, v{vT + 6} offset:{HIST + 1024 + 32 * k}")
        a(f"ds_read_u16 v{vWraw + 10 + k}, v{vT + 6} offset:{HIST + 1280 + 32 * k}")
    a(f"""
    ds_read_b32 v{vCen}, v{vT + 5} offset:{HIST + 1536}
    s_waitcnt vmcnt({D}) lgkmcnt(0)
    v_lshl_or_b32 v{vWd}, v{vWraw + 1}, 16, v{vWraw}
    v_lshl_or_b32 v{vWd + 1}, v{vWraw + 3}, 16, v{vWraw + 2}
    v_lshl_or_b32 v{vWu}, v{vWraw + 5}, 16, v{vWraw + 4}
    v_lshl_or_b32 v{vWu + 1}, v{vWraw + 7}, 16, v{vWraw + 6}
    v_lshl_or_b32 v{vWs}, v{vWraw + 9}, 16, v{vWraw + 8}
    v_lshl_or_b32 v{vWr}, v{vWraw + 11}, 16, v{vWraw + 10}
    v_mov_b32 v{vWd + 2}, v{vWd}
    v_mov_b32 v{vWd + 3}, v{vWd + 1}
    v_mov_b32 v{vWu + 2}, v{vWu}
    v_mov_b32 v{vWu + 3}, v{vWu + 1}
    v_mov_b32 v{vWs + 1}, 0
    v_mov_b32 v{vWr + 1}, 0
    v_mov_b32 v{vRb + 1}, 0
    v_mov_b32 v{vRb + 3}, 0
    v_and_b32 v{vCen + 1}, 0xffff0000, v{vCen}
    v_lshlrev_b32 v{vCen}, 16, v{vCen}
    """)
    for g in range(5):
        t = vT + 4
        rb = vRb + 2 * (g & 1)
        a(f"""
        v_lshlrev_b32 v{t + 2}, 16, v{vDist + g}
        v_sub_f32 v{t}, v{t + 2}, v{vCen}
        v_sub_f32 v{t + 1}, v{t + 2}, v{vCen + 1}
        v_cvt_pk_bf16_f32 v{t + 2}, v{t}, v{t + 1}
        v_lshlrev_b32 v{t}, 16, v{t + 2}
        v_and_b32 v{t + 1}, 0xffff0000, v{t + 2}
        v_mul_f32 v{t}, v{t}, v{t}
        v_mul_f32 v{t + 1}, v{t + 1}, v{t + 1}
        v_cvt_pk_bf16_f32 v{t + 2}, v{t}, v{t + 1}
        v_lshlrev_b32 v{t}, 16, v{t + 2}
        v_and_b32 v{t + 1}, 0xffff0000, v{t + 2}
        v_mul_f32 v{t}, 0xc1200000, v{t}
        v_mul_f32 v{t + 1}, 0xc1200000, v{t + 1}
        v_cvt_pk_bf16_f32 v{t + 2}, v{t}, v{t + 1}
        v_lshlrev_b32 v{t}, 16, v{t + 2}
        v_and_b32 v{t + 1}, 0xffff0000, v{t + 2}
        v_mul_f32 v{t}, 0x3fb8aa3b, v{t}
        v_mul_f32 v{t + 1}, 0x3fb8aa3b, v{t + 1}
        v_exp_f32 v{t}, v{t}
        v_exp_f32 v{t + 1}, v{t + 1}
        s_nop 0
        v_cvt_pk_bf16_f32 v{rb}, v{t}, v{t + 1}
        s_nop 1
        v_mfma_f32_16x16x16_bf16 {vr(vG + 4 * g, 4)}, {vr(vWs, 2)}, {vr(rb, 2)}, 0
        v_mfma_f32_16x16x16_bf16 {vr(vH + 4 * g, 4)}, {vr(vWr, 2)}, {vr(rb, 2)}, 0
        """)
    st("GH")
    a("L_main:")

    def split(src, dst, t):
        a(f"""
        v_cvt_pk_bf16_f32 v{dst}, v{src}, v{src + 1}
        v_cvt_pk_bf16_f32 v{dst + 1}, v{src + 2}, v{src + 3}
        v_lshlrev_b32 v{t}, 16, v{dst}
        v_and_b32 v{t + 1}, 0xffff0000, v{dst}
        v_lshlrev_b32 v{t + 2}, 16, v{dst + 1}
        v_and_b32 v{t + 3}, 0xffff0000, v{dst + 1}
        v_sub_f32 v{t}, v{src}, v{t}
        v_sub_f32 v{t + 1}, v{src + 1}, v{t + 1}
        v_sub_f32 v{t + 2}, v{src + 2}, v{t + 2}
        v_sub_f32 v{t + 3}, v{src + 3}, v{t + 3}
        v_cvt_pk_bf16_f32 v{dst + 2}, v{t}, v{t + 1}
        v_cvt_pk_bf16_f32 v{dst + 3}, v{t + 2}, v{t + 3}
        s_nop 1
        """)

    ring_adv = f"s_mov_b32 s{sPrev}, s{sCur}" if D == R - 1 else f"s_add_u32 s{sPrev}, s{sPrev}, 1024\ns_and_b32 s{sPrev}, s{sPrev}, {R * 1024 - 1}"
    for p in range(3):
        for g in range(5):
            b = p * 5 + g
            acc = vAcc + 4 * g
            a(f"""
            v_readlane_b32 s{sC}, v{vBase}, {b}
            v_readlane_b32 s{sCE}, v{vEnd}, {b}
            s_cmp_eq_u32 s{sC}, s{sCE}
            s_cbranch_scc1 L_bin{b}_done
            L_bin{b}:
            s_add_u32 m0, s{sRingB}, s{sPrev}
            v_add_u32 v{vT}, s{sIA}, v{vLH4}
            v_add_u32 v{vT + 1}, s{sC}, v{vLH4}
            ds_read_b32 v{vT}, v{vT}
            ds_read_b32 v{vT + 1}, v{vT + 1}
            v_add_u32 v{vT + 3}, s{sCur}, v{vTr}
            {ring_adv}
            s_add_u32 s{sCur}, s{sCur}, 1024
            s_and_b32 s{sCur}, s{sCur}, {R * 1024 - 1}
            s_add_u32 s{sC}, s{sC}, 128
            s_add_u32 s{sIA}, s{sIA}, 128
            s_cmp_eq_u32 s{sIA}, s{sIE}
            s_waitcnt lgkmcnt(1)
            v_mad_u32_u16 v{vT}, v{vT}, 32, v{vHalf16} op_sel:[1,0,0,0]
            buffer_load_dwordx4 v{vT}, s[{SM}:{SM + 3}], s{sIP} offen {P["gather"]} lds
            s_cbranch_scc1 L_nb{b}
            L_nb{b}_back:
            s_waitcnt lgkmcnt(0)
            v_and_b32 v{vT + 2}, 0xbff8, v{vT + 1}
            v_lshlrev_b32 v{vT + 4}, 4, v{vT + 1}
            v_lshrrev_b32 v{vT + 5}, 7, v{vT + 1}
            v_cvt_f32_f16 v{vT + 2}, v{vT + 2}
            v_bfi_b32 v{vT + 4}, s{s70}, v{vT + 4}, v{vT + 5}
            v_and_or_b32 v{vT + 4}, v{vT + 4}, s{sF0}, v{vSc}
            ds_write_b16_d16_hi v{vT + 4}, v{vT + 2}
            ds_read_b128 {vr(vSt, 4)}, v{vSrd}
            ds_write_b16 v{vT + 4}, v{vZero}
            s_waitcnt vmcnt({D})
            ds_read_b64_tr_b16 {vr(vMt, 2)}, v{vT + 3}
            ds_read_b64_tr_b16 {vr(vMt + 2, 2)}, v{vT + 3} offset:256
            s_cmp_lg_u32 s{sC}, s{sCE}
            s_waitcnt lgkmcnt(0)
            v_mfma_f32_16x16x32_bf16 {vr(acc, 4)}, {vr(vMt, 4)}, {vr(vSt, 4)}, {vr(acc, 4)}
            s_cbranch_scc1 L_bin{b}
            L_bin{b}_done:
            """)
            if g == 4 or b == 0:
                st(f"bin{b}")
            if p == 2:
                x, y, t = vT + 4, vT + 8, vT + 12
                a(f"""
                s_cmp_eq_u32 s{sLast}, 0
                s_cbranch_scc1 L_epi{g}_done
                s_nop 5
                """)
                split(acc, x, t)
                a(f"""
                v_mfma_f32_16x16x32_bf16 {vr(y, 4)}, {vr(vWd, 4)}, {vr(x, 4)}, 0
                s_nop 7
                v_mul_f32 v{y}, v{y}, v{vG + 4 * g}
                v_mul_f32 v{y + 1}, v{y + 1}, v{vG + 4 * g + 1}
                v_mul_f32 v{y + 2}, v{y + 2}, v{vG + 4 * g + 2}
                v_mul_f32 v{y + 3}, v{y + 3}, v{vG + 4 * g + 3}
                """)
                split(y, x, t)
                mr = vMr + 2 * g
                a(f"""
                v_mfma_f32_16x16x32_bf16 {vr(y, 4)}, {vr(vWu, 4)}, {vr(x, 4)}, 0
                v_lshlrev_b32 v{t}, 16, v{mr}
                v_and_b32 v{t + 1}, 0xffff0000, v{mr}
                v_lshlrev_b32 v{t + 2}, 16, v{mr + 1}
                v_and_b32 v{t + 3}, 0xffff0000, v{mr + 1}
                s_nop 3
                v_fmac_f32 v{t}, v{y}, v{vH + 4 * g}
                v_fmac_f32 v{t + 1}, v{y + 1}, v{vH + 4 * g + 1}
                v_fmac_f32 v{t + 2}, v{y + 2}, v{vH + 4 * g + 2}
                v_fmac_f32 v{t + 3}, v{y + 3}, v{vH + 4 * g + 3}
                v_cvt_pk_bf16_f32 v{mr}, v{t}, v{t + 1}
                v_cvt_pk_bf16_f32 v{mr + 1}, v{t + 2}, v{t + 3}
                buffer_store_dwordx2 {vr(mr, 2)}, v{vOut4 if g == 4 else vMoff}, s[{SOUT}:{SOUT + 3}], s{sRowOff} offen offset:{512 * g} {P["out_st"]}
                L_epi{g}_done:
                """)
    a(f"""
    s_cmp_eq_u32 s{sLast}, 0
    s_cbranch_scc1 L_slow
    """)
    if P["stamps"]:
        a("s_waitcnt vmcnt(0)")
    st("end")
    st.flush(SSEG, "s2", vT)
    a("""
    L_end:
    s_endpgm
    """)
    for b in range(15):
        a(f"L_nb{b}:")
        next_bin()
        a(f"s_branch L_nb{b}_back")
    return a.text(), 256, 102, LDS


def generate(**kw):
    P = dict(DEFAULTS)
    P.update(kw)
    body, nv, ns, lds = gen(P)
    n = NAME + "_kernel"
    out = HEADER
    out += f"; @launch grid=({NCH},1,1) block=(512,1,1) lds={lds}\n"
    out += '.amdgcn_target "amdgcn-amd-amdhsa--gfx950"\n.text\n'
    out += f".globl {n}\n.p2align 8\n.type {n},@function\n{n}:\n{body}"
    out += '.section .rodata,"a"\n.p2align 6\n' + descriptor(n, nv, ns)
    return out


if __name__ == "__main__":
    path = sys.argv[1]
    kw = {}
    for arg in sys.argv[2:]:
        k, v = arg.split("=", 1)
        kw[k] = int(v) if v.lstrip("-").isdigit() else v
    open(path, "w").write(generate(**kw))
```

```python
import sys
from gen import Asm, vr, srd, Stamps, descriptor, NAME, E, T, NCH, CH, BK, WS_SEG

SPIN_MAX = 1 << 18
CS = 53888
CAPS = (160, 160, 96)

DEFAULTS = dict(
    D=2,
    in_ld="nt",
    rec_st="sc1",
    rec_ld="",
    out_st="",
    gather="",
    sleep=4,
    xl=1,
    latespin=2,
    order=201,
    mid="",
    lateat="final",
    ghat=9,
    ipf=0,
    pf=0,
    stamps=0,
    force_slow=0,
)

HEADER = """; Kernarg layout for this problem (112 bytes, ptrs only, base s[0:1]):
;
"""


def gen(P):
    a = Asm()
    D = P["D"]
    R = 4
    ORD = [int(ch) for ch in str(P["order"]).zfill(3)]
    CNT, HIST, BASE, DESC, SB, TRASH, AB = 0, 512, 1536, 2560, 3584, 11776, 14848
    ZB = AB + 40 * 4 * sum(CAPS)
    RING = ZB + 128
    STG = RING
    FLAG = CNT + 127 * 4
    LDS = 143360
    assert STG + 7 * 8192 <= LDS and SB + 9 * 8192 < RING <= SB + 10 * 8192
    sJ = 3
    SO, SI, SA, SRW, SSEG, SREC, SM, SOUT, SDIST, SDBG = 4, 8, 12, 16, 20, 24, 28, 32, 36, 40
    pM, pI, pO, pDist, pAng, pCen, pFreq, pWr, pWs, pWd, pWu, pOut, pDbg, pWsp = range(44, 72, 2)
    sOff, sOffA = 72, 77
    sC625, sM625, sPre, sMask, sAct, sW, sSpin, sX = 82, 83, 84, 85, 86, 88, 89, 90
    sMk = 44
    sPend, sReady, sPrevN, sCurN, sJ4, sTk, sEarly = 60, 61, 62, 63, 64, 66, 68
    sLate, sDo, sMo = 74, 72, 73
    sLast, sFirst, sSC, sSU = 83, 84, 85, 86
    sF0, s70, sRingB, sPrev, sCur, sRowOff = 44, 45, 46, 47, 48, 49
    sNE, sL, sIA, sIE, sIP, sC, sCE = 50, 51, 52, 53, 54, 55, 56
    sT = 58
    st = Stamps(a, P, 0, 207, 98)
    vOff16, vOff8, vOne, vF = 1, 2, 3, 4
    vO, vI, vA, vJ, vR = 8, 28, 48, 58, 78
    vP = 98
    vSeg = 112
    vPar = 116
    vCtr = 124
    vLane, vLL20, vFour, vZero = 1, 2, 3, 4
    vLH4, vHalf16, vSc, vSrd, vTr, vBase, vCntA, vEnd, vPh = 5, 6, 7, 8, 9, 10, 11, 12, 13
    vMoff, vOut4 = 14, 15
    vT = 16
    vSlot = 32
    vRk = 80
    vL0, vL1 = 88, 92
    vD0, vHi, vSegA, vCb, vSegW, vDw, vDr, vDoff, vLim0, vLim1, vPfA, vPfD = range(100, 112)
    vAcc = 132
    vG, vH = 152, 172
    vMr = 192
    vDist = 202
    vWraw = 208
    vCen = 220
    vWd, vWu = 224, 228
    vWs, vWr, vRb = 232, 234, 236
    vMt, vSt = 240, 244
    vQ = 248

    def bin_addr(dst, k, tmp):
        a(f"""
        v_mul_u32_u24 v{dst}, {CAPS[0] * 4}, v{k}
        v_mul_u32_u24 v{tmp}, {CAPS[2] * 4}, v{k}
        v_add_u32 v{dst}, {AB - CAPS[0] * 4}, v{dst}
        v_add_u32 v{tmp}, {AB + 80 * CAPS[0] * 4 - 81 * CAPS[2] * 4}, v{tmp}
        v_min_u32 v{dst}, v{dst}, v{tmp}
        """)

    def cnt_init(t, stmp):
        bin_addr(t, 0, t + 1)
        a(f"""
        v_mov_b32 v{t + 1}, {TRASH}
        v_cmp_eq_u32 vcc, 0, v0
        v_mov_b32 v{t + 2}, 0
        v_lshlrev_b32 v{t + 3}, 2, v0
        v_cndmask_b32 v{t}, v{t}, v{t + 1}, vcc
        v_cmp_lt_u32 vcc, 120, v0
        s_nop 1
        v_cndmask_b32 v{t}, v{t}, v{t + 2}, vcc
        v_cmp_gt_u32 vcc, 128, v0
        s_and_saveexec_b64 s[{stmp}:{stmp + 1}], vcc
        ds_write_b32 v{t + 3}, v{t} offset:{CNT}
        s_mov_b64 exec, s[{stmp}:{stmp + 1}]
        """)

    def fill(t, start, rounds, clip=None):
        a(f"""
        v_lshlrev_b32 v{t}, 4, v0
        v_mov_b32 v{vQ}, 0
        v_mov_b32 v{vQ + 1}, 0
        v_mov_b32 v{vQ + 2}, 0
        v_mov_b32 v{vQ + 3}, 0
        v_add_u32 v{t}, {start}, v{t}
        v_add_u32 v{t + 1}, 65536, v{t}
        """)
        if clip:
            a(f"v_cmp_gt_u32 vcc, {(clip - start - (rounds - 1) * 8192) // 16}, v0")
        for i in range(rounds):
            if clip and i == rounds - 1:
                a("s_mov_b64 exec, vcc")
            a(f"ds_write_b128 v{t + (i >> 3)}, {vr(vQ, 4)} offset:{(i & 7) * 8192}")
        if clip:
            a("s_mov_b64 exec, -1")

    def place_atomics(w, m, t):
        a(f"s_mov_b64 exec, s[{m}:{m + 1}]")
        for r in range(4):
            a(f"v_lshlrev_b32_sdwa v{t + r}, 2, v{w + 4} dst_sel:DWORD dst_unused:UNUSED_PAD src0_sel:DWORD src1_sel:BYTE_{r}")
            a(f"ds_add_rtn_u32 v{t + r}, v{t + r}, v{vFour} offset:{CNT}")

    def place_writes(w, m, t):
        a(f"s_mov_b64 exec, s[{m}:{m + 1}]")
        for r in range(4):
            a(f"ds_write_b32 v{t + r}, v{w + r}")

    def ctr_sum(lab_ok):
        a(f"""
        v_readlane_b32 s{sX + 4}, v{vCtr}, 0
        v_readlane_b32 s{sX + 5}, v{vCtr}, 1
        s_add_u32 s{sX + 4}, s{sX + 4}, s{sX + 5}
        v_readlane_b32 s{sX + 5}, v{vCtr}, 2
        s_add_u32 s{sX + 4}, s{sX + 4}, s{sX + 5}
        v_readlane_b32 s{sX + 5}, v{vCtr}, 3
        s_add_u32 s{sX + 4}, s{sX + 4}, s{sX + 5}
        s_cmp_ge_u32 s{sX + 4}, {NCH}
        """)

    ld = P["in_ld"]
    a(f"""
    s_cmp_ge_u32 s2, {NCH}
    s_cbranch_scc1 L_end
    """)
    st("start")
    a(f"""
    s_load_dwordx16 s[44:59], s[0:1], 0
    s_load_dwordx8 s[60:67], s[0:1], 64
    s_load_dwordx4 s[68:71], s[0:1], 96
    v_lshlrev_b32 v{vOff16}, 4, v0
    v_lshlrev_b32 v{vOff8}, 3, v0
    v_lshlrev_b32 v5, 2, v0
    v_mov_b32 v6, 0
    v_mov_b32 v{vOne}, 1
    v_lshrrev_b32 v7, 6, v0
    s_mul_i32 s{sOff}, s2, {CH * 4}
    s_mul_i32 s{sOffA}, s2, {CH * 2}
    v_readfirstlane_b32 s{sW}, v7
    ds_write_b32 v5, v6 offset:{HIST}
    """)
    for q in range(1, 5):
        a(f"s_add_u32 s{sOff + q}, s{sOff}, {q * 8000}")
        a(f"s_add_u32 s{sOffA + q}, s{sOffA}, {q * 4000}")
    if P["xl"]:
        a(f"""
        s_and_b32 s{sJ}, s2, 7
        s_lshl_b32 s{sJ}, s{sJ}, 5
        s_lshr_b32 s{sX}, s2, 3
        s_add_u32 s{sJ}, s{sJ}, s{sX}
        """)
    else:
        a(f"s_mov_b32 s{sJ}, s2")
    a(f"""
    s_mov_b32 s{sC625}, 6871948
    s_mov_b32 s{sM625}, -{BK}
    s_mov_b32 s{sMask}, 0x4007
    s_mov_b32 s{sSpin}, 0
    v_cmp_gt_u32 vcc, 500, v0
    s_lshl_b32 s{sX + 2}, s2, 10
    s_cmp_eq_u32 s{sW}, 0
    s_cselect_b64 s[{sX}:{sX + 1}], -1, 0
    s_waitcnt lgkmcnt(0)
    """)
    srd(a, SO, f"s{pO}", f"s{pO + 1}", T * 4)
    srd(a, SM, f"s{pM}", f"s{pM + 1}", E * 32)
    srd(a, SDIST, f"s{pDist}", f"s{pDist + 1}", E * 2)
    a(f"s_mov_b32 s{sPre}, -1")
    a(f"""
    s_barrier
    s_mov_b64 s[{sAct}:{sAct + 1}], vcc
    s_mov_b64 exec, vcc
    """)
    issued = []

    def ld_issue(name):
        k, q = name[0], int(name[1:] or 0)
        act = f"s_mov_b64 exec, s[{sAct}:{sAct + 1}]"
        if k == "F":
            a(f"global_load_ushort v{vF}, v6, s[{pFreq}:{pFreq + 1}]")
        elif k == "Z":
            a(f"""
            s_mov_b64 exec, s[{sX}:{sX + 1}]
            buffer_store_dwordx4 {vr(vQ, 4)}, v{vOff16}, s[{SSEG}:{SSEG + 3}], s{sX + 2} offen sc1
            {act}
            """)
        elif k == "C":
            a(f"""
            s_and_b64 exec, s[{sX}:{sX + 1}], 1
            s_and_b32 s{sX + 3}, s2, 3
            s_lshl_b32 s{sX + 3}, s{sX + 3}, 6
            buffer_atomic_add v{vOne}, v6, s[{SDBG}:{SDBG + 3}], s{sX + 3} offen
            {act}
            """)
        elif k == "X":
            a(f"""
            s_cmp_eq_u32 s{sW}, 7
            s_cselect_b32 exec_lo, 15, 0
            s_mov_b32 exec_hi, 0
            buffer_load_dword v{vCtr}, v{vCtr + 1}, s[{SDBG}:{SDBG + 3}], 0 offen sc1
            """)
        elif k == "W":
            lo, hi, dst, ptr, off = ((-1, 0, 0, pWd, 0), (0, -1, 0, pWu, -512), (0xffff, 0, 4, pWs, 0),
                                     (0xffff0000, 0, 4, pWr, -256), (0, 1, 4, pCen, -512))[q]
            a(f"""
            s_and_b32 exec_lo, s{sX}, {lo}
            s_and_b32 exec_hi, s{sX}, {hi}
            global_load_dwordx4 {vr(vPar + dst, 4)}, v{vOff16}, s[{ptr}:{ptr + 1}] offset:{off}
            """)
            if q == 4:
                a(act)
        elif k == "M":
            if q == 0:
                a(f"""
                s_mov_b64 exec, -1
                s_mov_b32 s{sPre}, 0
                v_and_b32 v126, 15, v0
                v_bfe_u32 v127, v0, 4, 2
                v_mul_u32_u24 v128, 80, v7
                v_add_u32 v128, v128, v126
                v_lshlrev_b32 v129, 5, v128
                v_lshl_add_u32 v129, v127, 3, v129
                v_lshlrev_b32 v128, 1, v128
                s_mul_i32 s0, s{sJ}, {BK * 2}
                s_mul_i32 s1, s{sJ}, {BK * 32}
                """)
            if q < 5:
                a(f"buffer_load_dwordx2 {vr(vMr + 2 * q, 2)}, v129, s[{SM}:{SM + 3}], s1 offen offset:{512 * q}")
            else:
                a(f"buffer_load_ushort v{vDist + q - 5}, v128, s[{SDIST}:{SDIST + 3}], s0 offen offset:{32 * (q - 5)}")
            if q == 9:
                a(act)
        elif k == "O":
            a(f"buffer_load_dwordx4 {vr(vO + 4 * q, 4)}, v{vOff16}, s[{SO}:{SO + 3}], s{sOff + q} offen {ld}")
        elif k == "A":
            a(f"buffer_load_dwordx2 {vr(vA + 2 * q, 2)}, v{vOff8}, s[{SA}:{SA + 3}], s{sOffA + q} offen {ld}")
        else:
            a(f"buffer_load_dwordx4 {vr(vI + 4 * q, 4)}, v{vOff16}, s[{SI}:{SI + 3}], s{sOff + q} offen {ld}")
        issued.append(name)

    def ld_wait(name):
        a(f"s_waitcnt vmcnt({len(issued) - 1 - issued.index(name)})")

    for n in ("O0", "O1", "O2", "O3", "O4", "F"):
        ld_issue(n)
    if P["ipf"]:
        a(f"""
        s_getpc_b64 s[0:1]
        s_and_b32 s0, s0, 0xffffff00
        s_lshr_b32 s{sX + 3}, s2, 3
        s_lshl_b32 s{sX + 3}, s{sX + 3}, 3
        s_add_u32 s{sX + 3}, s{sX + 3}, s{sW}
        s_min_u32 s{sX + 3}, s{sX + 3}, {P["ipf"] - 1}
        s_lshl_b32 s{sX + 3}, s{sX + 3}, 7
        s_add_u32 s0, s0, s{sX + 3}
        s_addc_u32 s1, s1, 0
        s_load_dword s{sX + 6}, s[0:1], 0
        s_load_dword s{sX + 7}, s[0:1], 64
        """)
    srd(a, SI, f"s{pI}", f"s{pI + 1}", T * 4)
    srd(a, SA, f"s{pAng}", f"s{pAng + 1}", T * 2)
    srd(a, SDBG, f"s{pDbg}", f"s{pDbg + 1}", 256)
    srd(a, SREC, f"s{pWsp}", f"s{pWsp + 1}", NCH * CS)
    srd(a, SOUT, f"s{pOut}", f"s{pOut + 1}", E * 32)
    a(f"""
    s_add_u32 s{SSEG}, s{pWsp}, {WS_SEG}
    s_addc_u32 s{SSEG + 1}, s{pWsp + 1}, 0
    s_and_b32 s{SSEG + 1}, s{SSEG + 1}, 0xffff
    s_mov_b32 s{SSEG + 2}, {NCH * 1024}
    s_mov_b32 s{SSEG + 3}, 0x20000
    s_mul_i32 s{sX + 3}, s2, {CS}
    s_add_u32 s{SRW}, s{pWsp}, s{sX + 3}
    s_addc_u32 s{SRW + 1}, s{pWsp + 1}, 0
    s_and_b32 s{SRW + 1}, s{SRW + 1}, 0xffff
    s_mov_b32 s{SRW + 2}, 0
    s_mov_b32 s{SRW + 3}, 0x20000
    s_mov_b64 exec, -1
    v_and_b32 v{vCtr + 1}, 3, v0
    v_lshlrev_b32 v{vCtr + 1}, 6, v{vCtr + 1}
    """)
    fill(vP + 4, STG, 7)
    a(f"s_mov_b64 exec, s[{sAct}:{sAct + 1}]")
    after_o = [("Z", "A0", "A1"), ("A2", "A3"), ("A4", "I0"), ("I1",), ("I2",)]
    for q in range(5):
        ld_wait(f"O{q}")
        for n in after_o[q]:
            ld_issue(n)
        if q in (0, 4):
            st(f"O{q}")
        for r in range(4):
            i = 4 * q + r
            a(f"v_mul_hi_u32_u24 v{vP + r}, s{sC625}, v{vO + i}")
            a(f"v_add_u32 v{vO + i}, 16, v{vO + i}")
        for r in range(4):
            i = 4 * q + r
            a(f"v_lshlrev_b32 v{vJ + i}, 2, v{vP + r}")
            a(f"v_mad_i32_i24 v{vO + i}, v{vP + r}, s{sM625}, v{vO + i}")
            a(f"ds_add_rtn_u32 v{vR + i}, v{vJ + i}, v{vOne} offset:{HIST}")
        for r in range(4):
            i = 4 * q + r
            a(f"v_lshl_or_b32 v{vO + i}, v{vO + i}, 11, v{vO + i}")
    for q in range(5):
        ld_issue(f"W{q}")
    a(f"""
    s_waitcnt lgkmcnt(0)
    s_barrier
    """)
    st("bar2")
    ld_issue("I3")
    ld_issue("I4")
    if P["mid"] == "scan":
        for q in range(10):
            ld_issue(f"M{q}")
    c, b, x, ln = vP, vP + 4, vP + 8, vP + 9
    a(f"""
    s_mov_b64 exec, -1
    v_and_b32 v{ln}, 63, v0
    v_lshlrev_b32 v{ln}, 4, v{ln}
    ds_read_b128 {vr(c, 4)}, v{ln} offset:{HIST}
    s_mov_b32 s{sX + 4}, {STG}
    s_waitcnt lgkmcnt(0)
    """)
    for k in range(4):
        a(f"v_add_u32 v{c + k}, 3, v{c + k}")
        a(f"v_lshrrev_b32 v{c + k}, 2, v{c + k}")
    a(f"""
    v_add_u32 v{b + 2}, v{c}, v{c + 1}
    v_add_u32 v{b + 3}, v{b + 2}, v{c + 2}
    v_add_u32 v{b}, v{b + 3}, v{c + 3}
    v_mov_b32 v{x}, v{b}
    s_nop 1
    v_add_u32_dpp v{x}, v{x}, v{x} row_shr:1 row_mask:0xf bank_mask:0xf
    s_nop 1
    v_add_u32_dpp v{x}, v{x}, v{x} row_shr:2 row_mask:0xf bank_mask:0xf
    s_nop 1
    v_add_u32_dpp v{x}, v{x}, v{x} row_shr:4 row_mask:0xf bank_mask:0xf
    s_nop 1
    v_add_u32_dpp v{x}, v{x}, v{x} row_shr:8 row_mask:0xf bank_mask:0xf
    s_nop 1
    v_add_u32_dpp v{x}, v{x}, v{x} row_bcast:15 row_mask:0xa bank_mask:0xf
    s_nop 1
    v_add_u32_dpp v{x}, v{x}, v{x} row_bcast:31 row_mask:0xc bank_mask:0xf
    v_sub_u32 v{b}, v{x}, v{b}
    v_add_u32 v{b + 1}, v{b}, v{c}
    v_add_u32 v{b + 2}, v{b}, v{b + 2}
    v_add_u32 v{b + 3}, v{b}, v{b + 3}
    v_readlane_b32 s{sX + 5}, v{x}, 63
    """)
    for k in range(4):
        a(f"v_lshl_or_b32 v{vSeg + k}, v{c + k}, 12, v{b + k}")
        a(f"v_mad_u32_u24 v{b + k}, v{b + k}, 20, s{sX + 4}")
    a(f"ds_write_b128 v{ln}, {vr(b, 4)} offset:{BASE}")
    for k in range(4):
        a(f"v_or_b32 v{vSeg + k}, 0x80000000, v{vSeg + k}")
    a(f"""
    s_mul_i32 s{SRW + 2}, s{sX + 5}, 20
    s_mov_b64 exec, s[{sAct}:{sAct + 1}]
    """)
    for i in range(20):
        a(f"ds_read_b32 v{vJ + i}, v{vJ + i} offset:{BASE}")
    ld_wait("Z")
    ld_issue("C")
    for q in range(5):
        ld_wait(f"A{q}")
        if P["mid"] == f"A{q}":
            for qq in range(10):
                ld_issue(f"M{qq}")
        if q == 0:
            a(f"""
            v_readfirstlane_b32 s{sX + 5}, v{vF}
            v_lshlrev_b32 v{vF}, 16, v{vF}
            """)
        if q in (0, 4):
            st(f"A{q}")
        t = vP

        def unpack():
            for p in range(2):
                d = vA + 2 * q + p
                a(f"v_lshlrev_b32 v{t + 2 * p}, 16, v{d}")
                a(f"v_and_b32 v{t + 2 * p + 1}, 0xffff0000, v{d}")

        unpack()
        a(f"""
        s_cmp_eq_u32 s{sX + 5}, 0x3f80
        s_cbranch_scc1 L_unit{q}
        """)
        for k in range(4):
            a(f"v_mul_f32 v{t + k}, v{vF}, v{t + k}")
        for p in range(2):
            a(f"v_cvt_pk_bf16_f32 v{vA + 2 * q + p}, v{t + 2 * p}, v{t + 2 * p + 1}")
        unpack()
        a(f"L_unit{q}:")
        for k in range(4):
            a(f"v_mul_f32 v{t + k}, 0.15915494, v{t + k}")
        for k in range(4):
            a(f"v_fract_f32 v{t + k}, v{t + k}")
        for k in range(4):
            a(f"v_cos_f32 v{t + k}, v{t + k}")
        a("s_nop 0")
        for p in range(2):
            a(f"v_cvt_pkrtz_f16_f32 v{vA + 2 * q + p}, v{t + 2 * p}, v{t + 2 * p + 1}")
        for p in range(2):
            a(f"v_add_u32 v{vA + 2 * q + p}, 0x40004, v{vA + 2 * q + p}")
        for p in range(2):
            a(f"v_and_b32 v{vA + 2 * q + p}, 0xbff8bff8, v{vA + 2 * q + p}")
    a("s_waitcnt lgkmcnt(0)")
    for i in range(20):
        a(f"v_mad_u32_u24 v{vR + i}, v{vR + i}, 5, v{vJ + i}")
        a(f"v_and_b32 v{vJ + i}, -4, v{vR + i}")
        a(f"v_and_b32 v{vR + i}, 3, v{vR + i}")
        a(f"v_mad_i32_i24 v{vR + i}, v{vR + i}, -3, v{vJ + i}")
    for q in range(5):
        ld_wait(f"I{q}")
        if P["mid"] == f"I{q}":
            for qq in range(10):
                ld_issue(f"M{qq}")
        if q in (0, 4):
            st(f"I{q}")
        for r in range(4):
            i = 4 * q + r
            a(f"v_bfe_u32 v{vP + r}, v{vO + i}, 4, 6")
            a(f"v_mad_u32_u16 v{vP + r}, v{vI + i}, 40, v{vP + r} op_sel:[1,0,0,0]")
            a(f"v_lshlrev_b32 v{vI + i}, 16, v{vI + i}")
            a(f"v_and_or_b32 v{vI + i}, v{vO + i}, s{sMask}, v{vI + i}")
            a(f"ds_write_b8 v{vR + i}, v{vP + r} offset:16")
            a(f"v_or_b32_sdwa v{vI + i}, v{vI + i}, v{vA + 2 * q + (r >> 1)} dst_sel:DWORD dst_unused:UNUSED_PAD src0_sel:DWORD src1_sel:WORD_{r & 1}")
            a(f"ds_write_b32 v{vJ + i}, v{vI + i}")
    vS = 64
    a(f"""
    s_mov_b64 exec, -1
    v_add_u32 v5, {STG}, v{vOff16}
    v_mov_b32 v{vP}, v{vOff16}
    s_waitcnt lgkmcnt(0)
    s_barrier
    """)
    st("bar3")
    for i in range(7):
        a(f"ds_read_b128 {vr(vS + 4 * i, 4)}, v5 offset:{i * 8192}")
    a(f"""
    s_mov_b64 exec, s[{sX}:{sX + 1}]
    ds_write_b128 v{vP}, {vr(vPar, 4)} offset:{HIST}
    ds_write_b128 v{vP}, {vr(vPar + 4, 4)} offset:{HIST + 1024}
    s_mov_b64 exec, -1
    """)
    for i in range(7):
        a(f"s_mov_b32 s{sX + 4}, {i * 8192}")
        a(f"s_waitcnt lgkmcnt({8 - i})")
        a(f"buffer_store_dwordx4 {vr(vS + 4 * i, 4)}, v{vP}, s[{SRW}:{SRW + 3}], s{sX + 4} offen {P['rec_st']}")
    st("stissued")

    def poll(mask):
        a(f"""
        s_mov_b32 exec_lo, {mask}
        s_mov_b32 exec_hi, 0
        buffer_load_dword v{vSegW}, v{vSegA}, s[{SSEG}:{SSEG + 3}], s{sJ4} offen sc1
        """)

    ld_issue("X")
    a(f"""
    s_mov_b64 exec, -1
    v_lshrrev_b32 v{vT}, 6, v0
    v_and_b32 v{vLane}, 63, v0
    v_and_b32 v{vT + 1}, 31, v0
    v_lshl_add_u32 v{vT + 2}, v{vT + 1}, 3, v{vT}
    v_lshlrev_b32 v{vSegA}, 10, v{vT + 2}
    s_lshl_b32 s{sJ4}, s{sJ}, 2
    v_mul_u32_u24 v{vCb}, {CS}, v{vT + 2}
    v_and_b32 v{vT + 6}, 15, v{vLane}
    v_lshrrev_b32 v{vT + 7}, 4, v{vLane}
    v_mul_u32_u24 v{vLL20}, 20, v{vT + 6}
    v_lshlrev_b32 v{vDw}, 7, v{vT}
    v_add_u32 v{vDw}, {DESC}, v{vDw}
    v_lshl_add_u32 v{vDr}, v{vT + 7}, 4, v{vDw}
    v_mul_u32_u24 v{vT + 8}, 80, v{vT}
    v_add_u32 v{vT + 8}, v{vT + 8}, v{vT + 6}
    v_lshlrev_b32 v{vMoff}, 5, v{vT + 8}
    v_lshl_add_u32 v{vMoff}, v{vT + 7}, 3, v{vMoff}
    v_cmp_gt_u32 vcc, {BK - 64}, v{vT + 8}
    v_mov_b32 v{vT + 9}, 0x7fffff00
    v_lshlrev_b32 v{vDoff}, 1, v{vT + 8}
    v_cndmask_b32 v{vOut4}, v{vT + 9}, v{vMoff}, vcc
    v_mov_b32 v{vZero}, 0
    v_mov_b32 v{vFour}, 4
    v_lshrrev_b32 v{vT + 5}, 1, v{vLane}
    v_lshlrev_b32 v{vLH4}, 2, v{vT + 5}
    v_and_b32 v{vHalf16}, 1, v{vLane}
    v_lshlrev_b32 v{vHalf16}, 4, v{vHalf16}
    v_bfe_u32 v{vT + 6}, v{vT + 5}, 2, 1
    v_bfe_u32 v{vT + 7}, v{vT + 5}, 4, 1
    v_lshl_add_u32 v{vT + 6}, v{vT + 7}, 1, v{vT + 6}
    v_and_b32 v{vT + 7}, 3, v{vT + 5}
    v_bfe_u32 v{vT + 8}, v{vT + 5}, 3, 1
    v_lshl_add_u32 v{vT + 7}, v{vT + 8}, 2, v{vT + 7}
    v_lshlrev_b32 v{vT + 7}, 1, v{vT + 7}
    v_lshl_add_u32 v{vSc}, v{vT + 6}, 8, v{vT + 7}
    v_lshlrev_b32 v{vT + 8}, 10, v{vT}
    v_add_u32 v{vT + 8}, {SB}, v{vT + 8}
    v_add_u32 v{vSc}, v{vSc}, v{vT + 8}
    v_lshl_add_u32 v{vSrd}, v{vLane}, 4, v{vT + 8}
    v_bfe_u32 v{vT + 6}, v{vLane}, 4, 1
    v_bfe_u32 v{vT + 7}, v{vLane}, 5, 1
    v_lshlrev_b32 v{vT + 7}, 4, v{vT + 7}
    v_lshl_add_u32 v{vT + 6}, v{vT + 6}, 2, v{vT + 7}
    v_bfe_u32 v{vT + 7}, v{vLane}, 2, 2
    v_add_u32 v{vT + 6}, v{vT + 6}, v{vT + 7}
    v_and_b32 v{vT + 7}, 3, v{vLane}
    v_lshlrev_b32 v{vT + 7}, 3, v{vT + 7}
    v_lshl_add_u32 v{vTr}, v{vT + 6}, 5, v{vT + 7}
    v_lshlrev_b32 v{vT + 8}, 12, v{vT}
    v_add_u32 v{vT + 8}, {RING}, v{vT + 8}
    v_add_u32 v{vTr}, v{vTr}, v{vT + 8}
    v_mul_u32_u24 v{vT + 6}, 52, v{vLane}
    v_lshrrev_b32 v{vT + 6}, 8, v{vT + 6}
    v_mul_u32_u24 v{vT + 8}, 5, v{vT + 6}
    v_sub_u32 v{vT + 8}, v{vLane}, v{vT + 8}
    v_lshlrev_b32 v{vT + 6}, 1, v{vT + 6}
    v_mov_b32 v{vT + 7}, {ORD[0] | ORD[1] << 2 | ORD[2] << 4}
    v_bfe_u32 v{vT + 6}, v{vT + 7}, v{vT + 6}, 2
    v_lshlrev_b32 v{vPh}, 21, v{vT + 6}
    v_mul_u32_u24 v{vT + 6}, 40, v{vT + 6}
    v_mul_u32_u24 v{vT + 7}, 5, v{vT}
    v_add3_u32 v{vT + 6}, v{vT + 6}, v{vT + 7}, v{vT + 8}
    v_add_u32 v{vT + 6}, 1, v{vT + 6}
    v_lshlrev_b32 v{vCntA}, 2, v{vT + 6}
    """)
    bin_addr(vBase, vT + 6, vT + 7)
    a(f"""
    v_cmp_lt_u32 vcc, 14, v{vLane}
    v_mov_b32 v{vT + 8}, {ZB}
    v_add_u32 v{vT + 6}, 1, v{vLane}
    v_cndmask_b32 v{vBase}, v{vBase}, v{vT + 8}, vcc
    v_cndmask_b32 v{vPh}, v{vPh}, v{vZero}, vcc
    v_cndmask_b32 v{vCntA}, v{vCntA}, v{vZero}, vcc
    """)
    bin_addr(vLim0, vT + 6, vT + 7)
    a(f"v_add_u32 v{vT + 6}, 65, v{vLane}")
    bin_addr(vLim1, vT + 6, vT + 7)
    a(f"""
    s_lshr_b32 s{sTk}, s2, 3
    s_lshl_b32 s{sTk}, s{sTk}, 3
    s_add_u32 s{sTk}, s{sTk}, s{sW}
    s_mul_i32 s{sTk}, s{sTk}, {128 * max(P["pf"], 1)}
    v_lshlrev_b32 v{vPfA}, 7, v{vLane}
    v_add_u32 v{vPfA}, s{sTk}, v{vPfA}
    v_mov_b32 v{vT + 8}, -1
    v_cmp_eq_u32 vcc, 0, v{vLane}
    v_cmp_lt_u32 s[{sTk}:{sTk + 1}], 56, v{vLane}
    s_nop 1
    v_cndmask_b32 v{vLim0}, v{vLim0}, v{vT + 8}, vcc
    v_cndmask_b32 v{vLim1}, v{vLim1}, v{vT + 8}, s[{sTk}:{sTk + 1}]
    """)
    cnt_init(vT, sTk)
    fill(vT + 4, SB, 10, RING)
    for k in range(20):
        a(f"v_mov_b32 v{vAcc + k}, 0")
    if P["stamps"]:
        a("s_mov_b32 s97, 0")
        a("s_mov_b64 s[100:101], 0")
    a(f"""
    s_mov_b32 s{sPend}, -1
    s_mov_b32 s{sReady}, 0
    s_mov_b32 s{sPrevN}, 0
    s_mov_b32 s{sLate}, s{sPre}
    s_mov_b32 s{sLate + 1}, s{sPre}
    s_mul_i32 s{sDo}, s{sJ}, {BK * 2}
    s_mul_i32 s{sMo}, s{sJ}, {BK * 32}
    s_waitcnt vmcnt(0) lgkmcnt(0)
    s_cmp_lg_u32 s{sW}, 7
    s_cbranch_scc1 L_ctr_ok
    L_ctr:
    """)
    ctr_sum(None)
    a(f"""
    s_cbranch_scc1 L_ctr_ok
    s_add_u32 s{sSpin}, s{sSpin}, 1
    s_cmp_gt_u32 s{sSpin}, {SPIN_MAX}
    s_cbranch_scc1 L_end
    s_sleep 2
    s_mov_b64 exec, 15
    buffer_load_dword v{vCtr}, v{vCtr + 1}, s[{SDBG}:{SDBG + 3}], 0 offen sc1
    s_mov_b64 exec, -1
    s_waitcnt vmcnt(0)
    s_branch L_ctr
    L_ctr_ok:
    s_mov_b32 s{sSpin}, 0
    """)
    st("drained")

    def late_loads():
        a(f"s_mov_b64 exec, s[{sLate}:{sLate + 1}]")
        for g in range(5):
            a(f"buffer_load_ushort v{vDist + g}, v{vDoff}, s[{SDIST}:{SDIST + 3}], s{sDo} offen offset:{32 * g}")
        for g in range(5):
            a(f"buffer_load_dwordx2 {vr(vMr + 2 * g, 2)}, v{vMoff}, s[{SM}:{SM + 3}], s{sMo} offen offset:{512 * g}")
        if P["pf"]:
            a(f"""
            s_and_b32 exec_hi, exec_hi, {-1 if P["pf"] == 64 else 0}
            buffer_load_dword v{vPfD}, v{vPfA}, s[{SM}:{SM + 3}], 0 offen
            """)
        a(f"s_mov_b64 s[{sLate}:{sLate + 1}], 0")

    a(f"""
    s_barrier
    s_mov_b64 exec, s[{sX}:{sX + 1}]
    buffer_store_dwordx4 {vr(vSeg, 4)}, v{vP}, s[{SSEG}:{SSEG + 3}], s{sX + 2} offen sc1
    """)
    st("pub")
    a("s_branch L_idle3")

    dbg = [0]

    def once(lane):
        if P["stamps"] != 1:
            return
        dbg[0] += 1
        a(f"""
        s_bitcmp1_b64 s[100:101], {lane}
        s_cbranch_scc1 L_once{dbg[0]}
        s_bitset1_b64 s[100:101], {lane}
        s_memrealtime s[98:99]
        s_waitcnt lgkmcnt(0)
        v_writelane_b32 v207, s98, {lane}
        L_once{dbg[0]}:
        """)

    def slot(bank, s):
        return vSlot + 6 * (4 * bank + s), sMk + 2 * (4 * bank + s)

    def rec_issue(bank, s):
        w, m = slot(bank, s)
        a(f"""
        s_mov_b64 exec, -1
        v_add_u32 v{w + 5}, v{vL0 + s}, v{vLL20}
        v_cmp_lt_u32 s[{m}:{m + 1}], v{vLL20}, v{vL1 + s}
        s_mov_b64 exec, s[{m}:{m + 1}]
        buffer_load_dwordx4 {vr(w, 4)}, v{w + 5}, s[{SREC}:{SREC + 3}], 0 offen {P["rec_ld"]}
        buffer_load_dword v{w + 4}, v{w + 5}, s[{SREC}:{SREC + 3}], 0 offen offset:16 {P["rec_ld"]}
        """)

    def process(bank, issue_bank, younger):
        for s in range(4):
            if issue_bank is not None:
                rec_issue(issue_bank, s)
            a(f"s_waitcnt vmcnt({younger(s)})")
            if s == 0:
                once(46)
            place_atomics(*slot(bank, s), vRk + 4 * (s & 1))
            if s > 0:
                a(f"s_waitcnt lgkmcnt({4 if s == 1 else 8})")
                place_writes(*slot(bank, s - 1), vRk + 4 * ((s - 1) & 1))
        a("s_waitcnt lgkmcnt(4)")
        place_writes(*slot(bank, 3), vRk + 4)

    for X in range(2):
        Y = 1 - X
        a(f"""
        L_top{X}:
        s_mov_b32 exec_lo, s{sPend}
        s_mov_b32 exec_hi, 0
        s_waitcnt vmcnt(8)
        v_cmp_gt_i32 vcc, 0, v{vSegW}
        s_and_b32 s{sTk}, s{sPend}, vcc_lo
        s_andn2_b32 s{sPend}, s{sPend}, s{sTk}
        s_mov_b32 exec_lo, s{sTk}
        v_and_b32 v{vT}, 0xfff, v{vSegW}
        v_bfe_u32 v{vT + 1}, v{vSegW}, 12, 12
        v_mad_u32_u24 v{vD0}, v{vT}, 20, v{vCb}
        v_mul_u32_u24 v{vHi}, 20, v{vT + 1}
        s_or_b32 s{sReady}, s{sReady}, s{sTk}
        s_cbranch_scc1 L_take{X}
        s_cmp_eq_u32 s{sPrevN}, 0
        s_cbranch_scc1 L_idle
        s_cmp_eq_u32 s{sPend}, 0
        s_cbranch_scc1 L_final{X}
        L_take{X}:
        """)
        if P["stamps"] == 1:
            a(f"""
            s_add_u32 s97, s97, 1
            s_memrealtime s[98:99]
            s_waitcnt lgkmcnt(0)
            s_mov_b32 s96, s98
            s_cmp_eq_u32 s97, 1
            s_cbranch_scc0 L_dbg{X}
            v_writelane_b32 v207, s98, 43
            s_bcnt1_i32_b32 s99, s{sReady}
            v_writelane_b32 v207, s99, 44
            L_dbg{X}:
            """)
        a(f"""
        s_mov_b32 exec_lo, 0xffff
        v_lshl_add_u32 v{vT + 3}, v{vLane}, 2, v{vDw}
        ds_write_b32 v{vT + 3}, v{vZero} offset:64
        s_mov_b32 exec_lo, s{sReady}
        v_mbcnt_lo_u32_b32 v{vT}, s{sReady}, 0
        v_cmp_gt_u32 vcc, 16, v{vT}
        s_and_b32 s{sCurN}, s{sReady}, vcc_lo
        s_mov_b32 exec_lo, s{sCurN}
        v_and_b32 v{vT + 2}, 3, v{vT}
        v_lshrrev_b32 v{vT}, 2, v{vT}
        v_min_u32 v{vT + 1}, 320, v{vHi}
        v_lshl_add_u32 v{vT}, v{vT + 2}, 2, v{vT}
        v_sub_u32 v{vHi}, v{vHi}, v{vT + 1}
        v_lshl_add_u32 v{vT}, v{vT}, 2, v{vDw}
        ds_write_b32 v{vT}, v{vD0}
        ds_write_b32 v{vT}, v{vT + 1} offset:64
        v_cmp_lt_u32 vcc, 0, v{vHi}
        v_add_u32 v{vD0}, 320, v{vD0}
        s_andn2_b32 s{sReady}, s{sReady}, s{sCurN}
        s_and_b32 s{sTk}, s{sCurN}, vcc_lo
        s_or_b32 s{sReady}, s{sReady}, s{sTk}
        s_mov_b64 exec, -1
        ds_read_b128 {vr(vL0, 4)}, v{vDr}
        ds_read_b128 {vr(vL1, 4)}, v{vDr} offset:64
        """)
        poll(f"s{sPend}")
        a(f"""
        s_cmp_eq_u32 s{sPrevN}, 0
        s_mov_b32 s{sPrevN}, s{sCurN}
        s_waitcnt lgkmcnt(0)
        s_cbranch_scc1 L_only{X}
        """)
        process(Y, X, lambda s: 9)
        a(f"s_branch L_top{Y}")
    for X in range(2):
        a(f"L_only{X}:")
        for s in range(4):
            rec_issue(X, s)
        a(f"s_branch L_top{1 - X}")
    for X in range(2):
        a(f"L_final{X}:")
        once(45)
        if P["lateat"] == "final":
            late_loads()
        process(1 - X, None, lambda s: 2 * (3 - s) + (10 + (1 if P["pf"] else 0) if P["lateat"] == "final" else 0))
        a("s_branch L_taken")
    a(f"""
    L_idle:
    s_cmp_eq_u32 s{sPend}, 0
    s_cbranch_scc1 L_idle_late
    s_cmp_lt_u32 s{sSpin}, {P["latespin"]}
    s_cbranch_scc1 L_idle2
    L_idle_late:
    """)
    if P["lateat"] == "final":
        late_loads()
    a(f"""
    s_cmp_eq_u32 s{sPend}, 0
    s_cbranch_scc1 L_taken
    L_idle2:
    s_add_u32 s{sSpin}, s{sSpin}, 1
    s_cmp_gt_u32 s{sSpin}, {SPIN_MAX}
    s_cbranch_scc1 L_end
    s_sleep {P["sleep"]}
    L_idle3:
    """)
    poll(f"s{sPend}")
    a(f"""
    s_waitcnt vmcnt(0)
    s_branch L_top0
    L_taken:
    s_mov_b64 exec, -1
    s_mov_b32 s{sLast}, 1
    s_mov_b32 s{sFirst}, 1
    s_movk_i32 s{sF0}, 0xf0
    s_movk_i32 s{s70}, 0x70
    s_lshl_b32 s{sRingB}, s{sW}, 12
    s_add_u32 s{sRingB}, s{sRingB}, {RING}
    s_mul_i32 s{sRowOff}, s{sJ}, {BK * 32}
    v_lshlrev_b32 v{vT}, 2, v{vLane}
    s_waitcnt lgkmcnt(0)
    """)
    st("intake")
    if P["stamps"] == 1:
        a(f"v_writelane_b32 v207, s{sSpin}, 40")
        a("v_writelane_b32 v207, s97, 41")
        a("v_writelane_b32 v207, s96, 42")
    a("s_barrier")
    st("bar5")
    a(f"""
    ds_read_b32 v{vT + 1}, v{vT} offset:{CNT}
    ds_read_b32 v{vT + 2}, v{vT} offset:{CNT + 256}
    ds_read_b32 v{vEnd}, v{vCntA} offset:{CNT}
    s_waitcnt lgkmcnt(1)
    v_cmp_gt_u32 vcc, v{vT + 1}, v{vLim0}
    v_cmp_gt_u32 s[{sT}:{sT + 1}], v{vT + 2}, v{vLim1}
    s_or_b64 vcc, vcc, s[{sT}:{sT + 1}]
    """)
    if P["force_slow"]:
        a("s_cmp_eq_u32 0, 0")
    a(f"""
    s_cbranch_scc0 L_G
    s_mov_b32 s{sSC}, 0
    s_mov_b32 s{sSU}, 0
    s_mov_b32 s{sLast}, 0
    L_slow:
    s_waitcnt vmcnt(0) lgkmcnt(0)
    s_barrier
    """)
    cnt_init(vT, sT)
    fill(vT + 4, SB, 10, RING)
    a(f"""
    s_waitcnt lgkmcnt(0)
    s_barrier
    s_cmp_lt_u32 s{sSC}, {NCH}
    s_cbranch_scc1 L_slow_unit
    s_mov_b32 s{sLast}, 1
    s_branch L_slow_go
    L_slow_unit:
    s_lshl_b32 s{sT}, s{sSC}, 10
    s_lshl_b32 s{sT + 1}, s{sJ}, 2
    s_add_u32 s{sT}, s{sT}, s{sT + 1}
    buffer_load_dword v{vT}, v{vZero}, s[{SSEG}:{SSEG + 3}], s{sT} offen sc1
    s_waitcnt vmcnt(0)
    v_readfirstlane_b32 s{sT + 2}, v{vT}
    s_and_b32 s{sT + 1}, s{sT + 2}, 0xfff
    s_mul_i32 s{sT + 1}, s{sT + 1}, 20
    s_bfe_u32 s{sT + 2}, s{sT + 2}, 0xc000c
    s_mul_i32 s{sT + 2}, s{sT + 2}, 20
    s_mul_i32 s{sT + 3}, s{sSC}, {CS}
    s_add_u32 s{sT + 3}, s{sT + 3}, s{sT + 1}
    s_add_u32 s{sT + 3}, s{sT + 3}, s{sSU}
    s_sub_u32 s{sT + 4}, s{sT + 2}, s{sSU}
    s_min_u32 s{sT + 4}, s{sT + 4}, 480
    s_cmp_lg_u32 s{sW}, 0
    s_cbranch_scc1 L_slow_adv
    v_mul_u32_u24 v{vT}, 20, v{vLane}
    v_cmp_gt_u32 s[{sT + 6}:{sT + 7}], s{sT + 4}, v{vT}
    s_mov_b64 exec, s[{sT + 6}:{sT + 7}]
    buffer_load_dwordx4 {vr(vSlot, 4)}, v{vT}, s[{SREC}:{SREC + 3}], s{sT + 3} offen sc1
    buffer_load_dword v{vSlot + 4}, v{vT}, s[{SREC}:{SREC + 3}], s{sT + 3} offen offset:16 sc1
    s_waitcnt vmcnt(0)
    """)
    place_atomics(vSlot, sT + 6, vRk)
    a("s_waitcnt lgkmcnt(0)")
    place_writes(vSlot, sT + 6, vRk)
    a(f"""
    s_mov_b64 exec, -1
    L_slow_adv:
    s_add_u32 s{sSU}, s{sSU}, 480
    s_cmp_lt_u32 s{sSU}, s{sT + 2}
    s_cbranch_scc1 L_slow_go
    s_add_u32 s{sSC}, s{sSC}, 1
    s_mov_b32 s{sSU}, 0
    L_slow_go:
    s_waitcnt lgkmcnt(0)
    s_barrier
    ds_read_b32 v{vEnd}, v{vCntA} offset:{CNT}
    L_G:
    v_cmp_lt_u32 vcc, 14, v{vLane}
    v_add_u32 v{vT + 1}, 128, v{vBase}
    s_mov_b32 s{sCur}, 0
    s_waitcnt lgkmcnt(0)
    v_cndmask_b32 v{vEnd}, v{vEnd}, v{vT + 1}, vcc
    v_cmp_gt_u32 vcc, v{vEnd}, v{vBase}
    v_sub_u32 v{vEnd}, v{vEnd}, v{vBase}
    v_add_u32 v{vEnd}, 127, v{vEnd}
    v_and_b32 v{vEnd}, 0xffffff80, v{vEnd}
    v_add_u32 v{vEnd}, v{vEnd}, v{vBase}
    s_and_b32 s{sNE}, vcc_lo, 0x7fff
    """)

    def next_bin():
        a(f"""
        s_ff1_i32_b32 s{sL}, s{sNE}
        s_bitset0_b32 s{sNE}, s{sL}
        v_readlane_b32 s{sIA}, v{vBase}, s{sL}
        v_readlane_b32 s{sIE}, v{vEnd}, s{sL}
        v_readlane_b32 s{sIP}, v{vPh}, s{sL}
        """)

    next_bin()
    for k in range(D):
        a(f"""
        s_mov_b32 s{sT + k}, s{sIP}
        s_nop 0
        v_add_u32 v{vT + k}, s{sIA}, v{vLH4}
        ds_read_b32 v{vT + k}, v{vT + k}
        s_add_u32 s{sIA}, s{sIA}, 128
        s_cmp_lg_u32 s{sIA}, s{sIE}
        s_cbranch_scc1 L_pro{k}
        """)
        next_bin()
        a(f"L_pro{k}:")
    for k in range(D):
        a(f"""
        s_add_u32 m0, s{sRingB}, {k * 1024}
        s_waitcnt lgkmcnt({D - 1 - k})
        v_mad_u32_u16 v{vT + k}, v{vT + k}, 32, v{vHalf16} op_sel:[1,0,0,0]
        buffer_load_dwordx4 v{vT + k}, s[{SM}:{SM + 3}], s{sT + k} offen {P["gather"]} lds
        """)
    def gates(tag):
        a(f"""
        s_cmp_eq_u32 s{sFirst}, 0
        s_cbranch_scc1 L_gates_done
        s_mov_b32 s{sFirst}, 0
        """)
        a(f"""
        v_and_b32 v{vT + 4}, 15, v{vLane}
        v_lshrrev_b32 v{vT + 5}, 4, v{vLane}
        v_lshlrev_b32 v{vT + 4}, 1, v{vT + 4}
        v_lshl_add_u32 v{vT + 6}, v{vT + 5}, 6, v{vT + 4}
        v_lshl_add_u32 v{vT + 4}, v{vT + 5}, 7, v{vT + 4}
        v_lshlrev_b32 v{vT + 5}, 2, v{vT + 5}
        """)
        for k in range(4):
            a(f"ds_read_u16 v{vWraw + k}, v{vT + 4} offset:{HIST + 32 * k}")
            a(f"ds_read_u16 v{vWraw + 4 + k}, v{vT + 4} offset:{HIST + 512 + 32 * k}")
        for k in range(2):
            a(f"ds_read_u16 v{vWraw + 8 + k}, v{vT + 6} offset:{HIST + 1024 + 32 * k}")
            a(f"ds_read_u16 v{vWraw + 10 + k}, v{vT + 6} offset:{HIST + 1280 + 32 * k}")
        a(f"""
        ds_read_b32 v{vCen}, v{vT + 5} offset:{HIST + 1536}
        s_waitcnt vmcnt({D}) lgkmcnt(0)
        v_lshl_or_b32 v{vWd}, v{vWraw + 1}, 16, v{vWraw}
        v_lshl_or_b32 v{vWd + 1}, v{vWraw + 3}, 16, v{vWraw + 2}
        v_lshl_or_b32 v{vWu}, v{vWraw + 5}, 16, v{vWraw + 4}
        v_lshl_or_b32 v{vWu + 1}, v{vWraw + 7}, 16, v{vWraw + 6}
        v_lshl_or_b32 v{vWs}, v{vWraw + 9}, 16, v{vWraw + 8}
        v_lshl_or_b32 v{vWr}, v{vWraw + 11}, 16, v{vWraw + 10}
        v_mov_b32 v{vWd + 2}, v{vWd}
        v_mov_b32 v{vWd + 3}, v{vWd + 1}
        v_mov_b32 v{vWu + 2}, v{vWu}
        v_mov_b32 v{vWu + 3}, v{vWu + 1}
        v_mov_b32 v{vWs + 1}, 0
        v_mov_b32 v{vWr + 1}, 0
        v_mov_b32 v{vRb + 1}, 0
        v_mov_b32 v{vRb + 3}, 0
        v_and_b32 v{vCen + 1}, 0xffff0000, v{vCen}
        v_lshlrev_b32 v{vCen}, 16, v{vCen}
        """)
        for g in range(5):
            t = vT + 4
            rb = vRb + 2 * (g & 1)
            a(f"""
            v_lshlrev_b32 v{t + 2}, 16, v{vDist + g}
            v_sub_f32 v{t}, v{t + 2}, v{vCen}
            v_sub_f32 v{t + 1}, v{t + 2}, v{vCen + 1}
            v_cvt_pk_bf16_f32 v{t + 2}, v{t}, v{t + 1}
            v_lshlrev_b32 v{t}, 16, v{t + 2}
            v_and_b32 v{t + 1}, 0xffff0000, v{t + 2}
            v_mul_f32 v{t}, v{t}, v{t}
            v_mul_f32 v{t + 1}, v{t + 1}, v{t + 1}
            v_cvt_pk_bf16_f32 v{t + 2}, v{t}, v{t + 1}
            v_lshlrev_b32 v{t}, 16, v{t + 2}
            v_and_b32 v{t + 1}, 0xffff0000, v{t + 2}
            v_mul_f32 v{t}, 0xc1200000, v{t}
            v_mul_f32 v{t + 1}, 0xc1200000, v{t + 1}
            v_cvt_pk_bf16_f32 v{t + 2}, v{t}, v{t + 1}
            v_lshlrev_b32 v{t}, 16, v{t + 2}
            v_and_b32 v{t + 1}, 0xffff0000, v{t + 2}
            v_mul_f32 v{t}, 0x3fb8aa3b, v{t}
            v_mul_f32 v{t + 1}, 0x3fb8aa3b, v{t + 1}
            v_exp_f32 v{t}, v{t}
            v_exp_f32 v{t + 1}, v{t + 1}
            s_nop 0
            v_cvt_pk_bf16_f32 v{rb}, v{t}, v{t + 1}
            s_nop 1
            v_mfma_f32_16x16x16_bf16 {vr(vG + 4 * g, 4)}, {vr(vWs, 2)}, {vr(rb, 2)}, 0
            v_mfma_f32_16x16x16_bf16 {vr(vH + 4 * g, 4)}, {vr(vWr, 2)}, {vr(rb, 2)}, 0
            """)
        a("L_gates_done:")
        st("GH")

    a(f"s_movk_i32 s{sPrev}, {D * 1024}")
    st("Gissued")
    if P["lateat"] == "g0":
        late_loads()
        a("s_mov_b64 exec, -1")
    if P["lateat"] == "final":
        gates(0)
    a("L_main:")

    def split(src, dst, t):
        a(f"""
        v_cvt_pk_bf16_f32 v{dst}, v{src}, v{src + 1}
        v_cvt_pk_bf16_f32 v{dst + 1}, v{src + 2}, v{src + 3}
        v_lshlrev_b32 v{t}, 16, v{dst}
        v_and_b32 v{t + 1}, 0xffff0000, v{dst}
        v_lshlrev_b32 v{t + 2}, 16, v{dst + 1}
        v_and_b32 v{t + 3}, 0xffff0000, v{dst + 1}
        v_sub_f32 v{t}, v{src}, v{t}
        v_sub_f32 v{t + 1}, v{src + 1}, v{t + 1}
        v_sub_f32 v{t + 2}, v{src + 2}, v{t + 2}
        v_sub_f32 v{t + 3}, v{src + 3}, v{t + 3}
        v_cvt_pk_bf16_f32 v{dst + 2}, v{t}, v{t + 1}
        v_cvt_pk_bf16_f32 v{dst + 3}, v{t + 2}, v{t + 3}
        s_nop 1
        """)

    ring_adv = f"s_mov_b32 s{sPrev}, s{sCur}" if D == R - 1 else f"s_add_u32 s{sPrev}, s{sPrev}, 1024\ns_and_b32 s{sPrev}, s{sPrev}, {R * 1024 - 1}"
    for p in range(3):
        for g in range(5):
            b = p * 5 + g
            acc = vAcc + 4 * g
            a(f"""
            v_readlane_b32 s{sC}, v{vBase}, {b}
            v_readlane_b32 s{sCE}, v{vEnd}, {b}
            s_cmp_eq_u32 s{sC}, s{sCE}
            s_cbranch_scc1 L_bin{b}_done
            L_bin{b}:
            s_add_u32 m0, s{sRingB}, s{sPrev}
            v_add_u32 v{vT}, s{sIA}, v{vLH4}
            v_add_u32 v{vT + 1}, s{sC}, v{vLH4}
            ds_read_b32 v{vT}, v{vT}
            ds_read_b32 v{vT + 1}, v{vT + 1}
            v_add_u32 v{vT + 3}, s{sCur}, v{vTr}
            {ring_adv}
            s_add_u32 s{sCur}, s{sCur}, 1024
            s_and_b32 s{sCur}, s{sCur}, {R * 1024 - 1}
            s_add_u32 s{sC}, s{sC}, 128
            s_add_u32 s{sIA}, s{sIA}, 128
            s_cmp_eq_u32 s{sIA}, s{sIE}
            s_waitcnt lgkmcnt(1)
            v_mad_u32_u16 v{vT}, v{vT}, 32, v{vHalf16} op_sel:[1,0,0,0]
            buffer_load_dwordx4 v{vT}, s[{SM}:{SM + 3}], s{sIP} offen {P["gather"]} lds
            s_cbranch_scc1 L_nb{b}
            L_nb{b}_back:
            s_waitcnt lgkmcnt(0)
            v_and_b32 v{vT + 2}, 0xbff8, v{vT + 1}
            v_lshlrev_b32 v{vT + 4}, 4, v{vT + 1}
            v_lshrrev_b32 v{vT + 5}, 7, v{vT + 1}
            v_cvt_f32_f16 v{vT + 2}, v{vT + 2}
            v_bfi_b32 v{vT + 4}, s{s70}, v{vT + 4}, v{vT + 5}
            v_and_or_b32 v{vT + 4}, v{vT + 4}, s{sF0}, v{vSc}
            ds_write_b16_d16_hi v{vT + 4}, v{vT + 2}
            ds_read_b128 {vr(vSt, 4)}, v{vSrd}
            ds_write_b16 v{vT + 4}, v{vZero}
            s_waitcnt vmcnt({D})
            ds_read_b64_tr_b16 {vr(vMt, 2)}, v{vT + 3}
            ds_read_b64_tr_b16 {vr(vMt + 2, 2)}, v{vT + 3} offset:256
            s_cmp_lg_u32 s{sC}, s{sCE}
            s_waitcnt lgkmcnt(0)
            v_mfma_f32_16x16x32_bf16 {vr(acc, 4)}, {vr(vMt, 4)}, {vr(vSt, 4)}, {vr(acc, 4)}
            s_cbranch_scc1 L_bin{b}
            L_bin{b}_done:
            """)
            if g == 4 or b == 0:
                st(f"bin{b}")
            if P["lateat"] == f"b{b}":
                late_loads()
                a("s_mov_b64 exec, -1")
            if P["lateat"] != "final" and b == P["ghat"]:
                gates(0)
            if p == 2:
                x, y, t = vT + 4, vT + 8, vT + 12
                a(f"""
                s_cmp_eq_u32 s{sLast}, 0
                s_cbranch_scc1 L_epi{g}_done
                s_nop 5
                """)
                split(acc, x, t)
                a(f"""
                v_mfma_f32_16x16x32_bf16 {vr(y, 4)}, {vr(vWd, 4)}, {vr(x, 4)}, 0
                s_nop 7
                v_mul_f32 v{y}, v{y}, v{vG + 4 * g}
                v_mul_f32 v{y + 1}, v{y + 1}, v{vG + 4 * g + 1}
                v_mul_f32 v{y + 2}, v{y + 2}, v{vG + 4 * g + 2}
                v_mul_f32 v{y + 3}, v{y + 3}, v{vG + 4 * g + 3}
                """)
                split(y, x, t)
                mr = vMr + 2 * g
                a(f"""
                v_mfma_f32_16x16x32_bf16 {vr(y, 4)}, {vr(vWu, 4)}, {vr(x, 4)}, 0
                v_lshlrev_b32 v{t}, 16, v{mr}
                v_and_b32 v{t + 1}, 0xffff0000, v{mr}
                v_lshlrev_b32 v{t + 2}, 16, v{mr + 1}
                v_and_b32 v{t + 3}, 0xffff0000, v{mr + 1}
                s_nop 3
                v_fmac_f32 v{t}, v{y}, v{vH + 4 * g}
                v_fmac_f32 v{t + 1}, v{y + 1}, v{vH + 4 * g + 1}
                v_fmac_f32 v{t + 2}, v{y + 2}, v{vH + 4 * g + 2}
                v_fmac_f32 v{t + 3}, v{y + 3}, v{vH + 4 * g + 3}
                v_cvt_pk_bf16_f32 v{mr}, v{t}, v{t + 1}
                v_cvt_pk_bf16_f32 v{mr + 1}, v{t + 2}, v{t + 3}
                buffer_store_dwordx2 {vr(mr, 2)}, v{vOut4 if g == 4 else vMoff}, s[{SOUT}:{SOUT + 3}], s{sRowOff} offen offset:{512 * g} {P["out_st"]}
                L_epi{g}_done:
                """)
    a(f"""
    s_cmp_eq_u32 s{sLast}, 0
    s_cbranch_scc1 L_slow
    """)
    if P["stamps"]:
        a("s_waitcnt vmcnt(0)")
    st("end")
    st.flush(SSEG, "s2", vT)
    a("""
    L_end:
    s_endpgm
    """)
    for b in range(15):
        a(f"L_nb{b}:")
        next_bin()
        a(f"s_branch L_nb{b}_back")
    return a.text(), 256, 102, LDS


def generate(**kw):
    P = dict(DEFAULTS)
    P.update(kw)
    body, nv, ns, lds = gen(P)
    n = NAME + "_kernel"
    out = HEADER
    out += f"; @launch grid=({NCH},1,1) block=(512,1,1) lds={lds}\n"
    out += '.amdgcn_target "amdgcn-amd-amdhsa--gfx950"\n.text\n'
    out += f".globl {n}\n.p2align 8\n.type {n},@function\n{n}:\n{body}"
    out += '.section .rodata,"a"\n.p2align 6\n' + descriptor(n, nv, ns)
    return out


if __name__ == "__main__":
    path = sys.argv[1]
    kw = {}
    for arg in sys.argv[2:]:
        k, v = arg.split("=", 1)
        kw[k] = int(v) if v.lstrip("-").isdigit() else v
    open(path, "w").write(generate(**kw))
```

```python
import sys
from gen import Asm, vr, srd, Stamps, descriptor, NAME, E, T, NCH, CH, BK, WS_SEG

SPIN_MAX = 1 << 18
CS = 53888
CAPS = (160, 160, 96)

DEFAULTS = dict(
    D=2,
    in_ld="nt",
    rec_st="sc1",
    rec_ld="",
    out_st="",
    gather="",
    sleep=4,
    xl=1,
    latespin=2,
    order=201,
    mid="",
    lateat="final",
    ghat=9,
    ipf=0,
    pf=0,
    stamps=0,
    force_slow=0,
)

HEADER = """; Kernarg layout for this problem (112 bytes, ptrs only, base s[0:1]):
;
"""


def gen(P):
    a = Asm()
    D = P["D"]
    R = 4
    ORD = [int(ch) for ch in str(P["order"]).zfill(3)]
    CNT, HIST, BASE, DESC, SB, TRASH, AB = 0, 512, 1536, 2560, 3584, 11776, 14848
    ZB = AB + 40 * 4 * sum(CAPS)
    RING = ZB + 128
    STG = RING
    FLAG = CNT + 127 * 4
    LDS = 143360
    assert STG + 7 * 8192 <= LDS and SB + 9 * 8192 < RING <= SB + 10 * 8192
    sJ = 3
    SO, SI, SA, SRW, SSEG, SREC, SM, SOUT, SDIST, SDBG = 4, 8, 12, 16, 20, 24, 28, 32, 36, 40
    pM, pI, pO, pDist, pAng, pCen, pFreq, pWr, pWs, pWd, pWu, pOut, pDbg, pWsp = range(44, 72, 2)
    sOff, sOffA = 72, 77
    sC625, sM625, sPre, sMask, sAct, sW, sSpin, sX = 82, 83, 84, 85, 86, 88, 89, 90
    sMk = 44
    sPend, sReady, sPrevN, sCurN, sJ4, sTk, sEarly = 60, 61, 62, 63, 64, 66, 68
    sLate, sDo, sMo = 74, 72, 73
    sLast, sFirst, sSC, sSU = 83, 84, 85, 86
    sF0, s70, sRingB, sPrev, sCur, sRowOff = 44, 45, 46, 47, 48, 49
    sNE, sL, sIA, sIE, sIP, sC, sCE = 50, 51, 52, 53, 54, 55, 56
    sT = 58
    st = Stamps(a, P, 0, 207, 98)
    vOff16, vOff8, vOne, vF = 1, 2, 3, 4
    vO, vI, vA, vJ, vR = 8, 28, 48, 58, 78
    vP = 98
    vSeg = 112
    vPar = 116
    vCtr = 124
    vLane, vLL20, vFour, vZero = 1, 2, 3, 4
    vLH4, vHalf16, vSc, vSrd, vTr, vBase, vCntA, vEnd, vPh = 5, 6, 7, 8, 9, 10, 11, 12, 13
    vMoff, vOut4 = 14, 15
    vT = 16
    vSlot = 32
    vRk = 80
    vL0, vL1 = 88, 92
    vD0, vHi, vSegA, vCb, vSegW, vDw, vDr, vDoff, vLim0, vLim1, vPfA, vPfD = range(100, 112)
    vAcc = 132
    vG, vH = 152, 172
    vMr = 192
    vDist = 202
    vWraw = 208
    vCen = 220
    vWd, vWu = 224, 228
    vWs, vWr, vRb = 232, 234, 236
    vMt, vSt = 240, 244
    vQ = 248

    def bin_addr(dst, k, tmp):
        a(f"""
        v_mul_u32_u24 v{dst}, {CAPS[0] * 4}, v{k}
        v_mul_u32_u24 v{tmp}, {CAPS[2] * 4}, v{k}
        v_add_u32 v{dst}, {AB - CAPS[0] * 4}, v{dst}
        v_add_u32 v{tmp}, {AB + 80 * CAPS[0] * 4 - 81 * CAPS[2] * 4}, v{tmp}
        v_min_u32 v{dst}, v{dst}, v{tmp}
        """)

    def cnt_init(t, stmp):
        bin_addr(t, 0, t + 1)
        a(f"""
        v_mov_b32 v{t + 1}, {TRASH}
        v_cmp_eq_u32 vcc, 0, v0
        v_mov_b32 v{t + 2}, 0
        v_lshlrev_b32 v{t + 3}, 2, v0
        v_cndmask_b32 v{t}, v{t}, v{t + 1}, vcc
        v_cmp_lt_u32 vcc, 120, v0
        s_nop 1
        v_cndmask_b32 v{t}, v{t}, v{t + 2}, vcc
        v_cmp_gt_u32 vcc, 128, v0
        s_and_saveexec_b64 s[{stmp}:{stmp + 1}], vcc
        ds_write_b32 v{t + 3}, v{t} offset:{CNT}
        s_mov_b64 exec, s[{stmp}:{stmp + 1}]
        """)

    def fill(t, start, rounds, clip=None):
        a(f"""
        v_lshlrev_b32 v{t}, 4, v0
        v_mov_b32 v{vQ}, 0
        v_mov_b32 v{vQ + 1}, 0
        v_mov_b32 v{vQ + 2}, 0
        v_mov_b32 v{vQ + 3}, 0
        v_add_u32 v{t}, {start}, v{t}
        v_add_u32 v{t + 1}, 65536, v{t}
        """)
        if clip:
            a(f"v_cmp_gt_u32 vcc, {(clip - start - (rounds - 1) * 8192) // 16}, v0")
        for i in range(rounds):
            if clip and i == rounds - 1:
                a("s_mov_b64 exec, vcc")
            a(f"ds_write_b128 v{t + (i >> 3)}, {vr(vQ, 4)} offset:{(i & 7) * 8192}")
        if clip:
            a("s_mov_b64 exec, -1")

    def place_atomics(w, m, t):
        a(f"s_mov_b64 exec, s[{m}:{m + 1}]")
        for r in range(4):
            a(f"v_lshlrev_b32_sdwa v{t + r}, 2, v{w + 4} dst_sel:DWORD dst_unused:UNUSED_PAD src0_sel:DWORD src1_sel:BYTE_{r}")
            a(f"ds_add_rtn_u32 v{t + r}, v{t + r}, v{vFour} offset:{CNT}")

    def place_writes(w, m, t):
        a(f"s_mov_b64 exec, s[{m}:{m + 1}]")
        for r in range(4):
            a(f"ds_write_b32 v{t + r}, v{w + r}")

    def ctr_sum(lab_ok):
        a(f"""
        v_readlane_b32 s{sX + 4}, v{vCtr}, 0
        v_readlane_b32 s{sX + 5}, v{vCtr}, 1
        s_add_u32 s{sX + 4}, s{sX + 4}, s{sX + 5}
        v_readlane_b32 s{sX + 5}, v{vCtr}, 2
        s_add_u32 s{sX + 4}, s{sX + 4}, s{sX + 5}
        v_readlane_b32 s{sX + 5}, v{vCtr}, 3
        s_add_u32 s{sX + 4}, s{sX + 4}, s{sX + 5}
        s_cmp_ge_u32 s{sX + 4}, {NCH}
        """)

    ld = P["in_ld"]
    a(f"""
    s_cmp_ge_u32 s2, {NCH}
    s_cbranch_scc1 L_end
    """)
    st("start")
    a(f"""
    s_load_dwordx16 s[44:59], s[0:1], 0
    s_load_dwordx8 s[60:67], s[0:1], 64
    s_load_dwordx4 s[68:71], s[0:1], 96
    """)
    if P["ipf"]:
        a(f"""
        s_getpc_b64 s[96:97]
        s_lshr_b32 s{sX}, s2, 3
        s_mul_i32 s{sX}, s{sX}, {P["ipf"]}
        v_add_u32 v1, s{sX}, v0
        v_min_u32 v1, (L_code_end - {NAME}_kernel - 256) / 128, v1
        v_lshlrev_b32 v1, 7, v1
        v_cmp_gt_u32 vcc, {P["ipf"]}, v0
        s_and_saveexec_b64 s[{sX}:{sX + 1}], vcc
        s_cbranch_execz L_noipf
        global_load_dword v130, v1, s[96:97]
        L_noipf:
        s_mov_b64 exec, s[{sX}:{sX + 1}]
        """)
    a(f"""
    v_lshlrev_b32 v{vOff16}, 4, v0
    v_lshlrev_b32 v{vOff8}, 3, v0
    v_lshlrev_b32 v5, 2, v0
    v_mov_b32 v6, 0
    v_mov_b32 v{vOne}, 1
    v_lshrrev_b32 v7, 6, v0
    s_mul_i32 s{sOff}, s2, {CH * 4}
    s_mul_i32 s{sOffA}, s2, {CH * 2}
    v_readfirstlane_b32 s{sW}, v7
    ds_write_b32 v5, v6 offset:{HIST}
    """)
    for q in range(1, 5):
        a(f"s_add_u32 s{sOff + q}, s{sOff}, {q * 8000}")
        a(f"s_add_u32 s{sOffA + q}, s{sOffA}, {q * 4000}")
    if P["xl"]:
        a(f"""
        s_and_b32 s{sJ}, s2, 7
        s_lshl_b32 s{sJ}, s{sJ}, 5
        s_lshr_b32 s{sX}, s2, 3
        s_add_u32 s{sJ}, s{sJ}, s{sX}
        """)
    else:
        a(f"s_mov_b32 s{sJ}, s2")
    a(f"""
    s_mov_b32 s{sC625}, 6871948
    s_mov_b32 s{sM625}, -{BK}
    s_mov_b32 s{sMask}, 0x4007
    s_mov_b32 s{sSpin}, 0
    v_cmp_gt_u32 vcc, 500, v0
    s_lshl_b32 s{sX + 2}, s2, 10
    s_cmp_eq_u32 s{sW}, 0
    s_cselect_b64 s[{sX}:{sX + 1}], -1, 0
    s_waitcnt lgkmcnt(0)
    """)
    srd(a, SO, f"s{pO}", f"s{pO + 1}", T * 4)
    srd(a, SM, f"s{pM}", f"s{pM + 1}", E * 32)
    srd(a, SDIST, f"s{pDist}", f"s{pDist + 1}", E * 2)
    a(f"s_mov_b32 s{sPre}, -1")
    a(f"""
    s_barrier
    s_mov_b64 s[{sAct}:{sAct + 1}], vcc
    s_mov_b64 exec, vcc
    """)
    issued = []

    def ld_issue(name):
        k, q = name[0], int(name[1:] or 0)
        act = f"s_mov_b64 exec, s[{sAct}:{sAct + 1}]"
        if k == "F":
            a(f"global_load_ushort v{vF}, v6, s[{pFreq}:{pFreq + 1}]")
        elif k == "Z":
            a(f"""
            s_mov_b64 exec, s[{sX}:{sX + 1}]
            buffer_store_dwordx4 {vr(vQ, 4)}, v{vOff16}, s[{SSEG}:{SSEG + 3}], s{sX + 2} offen sc1
            {act}
            """)
        elif k == "C":
            a(f"""
            s_and_b64 exec, s[{sX}:{sX + 1}], 1
            s_and_b32 s{sX + 3}, s2, 3
            s_lshl_b32 s{sX + 3}, s{sX + 3}, 6
            buffer_atomic_add v{vOne}, v6, s[{SDBG}:{SDBG + 3}], s{sX + 3} offen
            {act}
            """)
        elif k == "X":
            a(f"""
            s_cmp_eq_u32 s{sW}, 7
            s_cselect_b32 exec_lo, 15, 0
            s_mov_b32 exec_hi, 0
            buffer_load_dword v{vCtr}, v{vCtr + 1}, s[{SDBG}:{SDBG + 3}], 0 offen sc1
            """)
        elif k == "W":
            lo, hi, dst, ptr, off = ((-1, 0, 0, pWd, 0), (0, -1, 0, pWu, -512), (0xffff, 0, 4, pWs, 0),
                                     (0xffff0000, 0, 4, pWr, -256), (0, 1, 4, pCen, -512))[q]
            a(f"""
            s_and_b32 exec_lo, s{sX}, {lo}
            s_and_b32 exec_hi, s{sX}, {hi}
            global_load_dwordx4 {vr(vPar + dst, 4)}, v{vOff16}, s[{ptr}:{ptr + 1}] offset:{off}
            """)
            if q == 4:
                a(act)
        elif k == "M":
            if q == 0:
                a(f"""
                s_mov_b64 exec, -1
                s_mov_b32 s{sPre}, 0
                v_and_b32 v126, 15, v0
                v_bfe_u32 v127, v0, 4, 2
                v_mul_u32_u24 v128, 80, v7
                v_add_u32 v128, v128, v126
                v_lshlrev_b32 v129, 5, v128
                v_lshl_add_u32 v129, v127, 3, v129
                v_lshlrev_b32 v128, 1, v128
                s_mul_i32 s0, s{sJ}, {BK * 2}
                s_mul_i32 s1, s{sJ}, {BK * 32}
                """)
            if q < 5:
                a(f"buffer_load_dwordx2 {vr(vMr + 2 * q, 2)}, v129, s[{SM}:{SM + 3}], s1 offen offset:{512 * q}")
            else:
                a(f"buffer_load_ushort v{vDist + q - 5}, v128, s[{SDIST}:{SDIST + 3}], s0 offen offset:{32 * (q - 5)}")
            if q == 9:
                a(act)
        elif k == "O":
            a(f"buffer_load_dwordx4 {vr(vO + 4 * q, 4)}, v{vOff16}, s[{SO}:{SO + 3}], s{sOff + q} offen {ld}")
        elif k == "A":
            a(f"buffer_load_dwordx2 {vr(vA + 2 * q, 2)}, v{vOff8}, s[{SA}:{SA + 3}], s{sOffA + q} offen {ld}")
        else:
            a(f"buffer_load_dwordx4 {vr(vI + 4 * q, 4)}, v{vOff16}, s[{SI}:{SI + 3}], s{sOff + q} offen {ld}")
        issued.append(name)

    def ld_wait(name):
        a(f"s_waitcnt vmcnt({len(issued) - 1 - issued.index(name)})")

    for n in ("O0", "O1", "O2", "O3", "O4", "F"):
        ld_issue(n)
    srd(a, SI, f"s{pI}", f"s{pI + 1}", T * 4)
    srd(a, SA, f"s{pAng}", f"s{pAng + 1}", T * 2)
    srd(a, SDBG, f"s{pDbg}", f"s{pDbg + 1}", 256)
    srd(a, SREC, f"s{pWsp}", f"s{pWsp + 1}", NCH * CS)
    srd(a, SOUT, f"s{pOut}", f"s{pOut + 1}", E * 32)
    a(f"""
    s_add_u32 s{SSEG}, s{pWsp}, {WS_SEG}
    s_addc_u32 s{SSEG + 1}, s{pWsp + 1}, 0
    s_and_b32 s{SSEG + 1}, s{SSEG + 1}, 0xffff
    s_mov_b32 s{SSEG + 2}, {NCH * 1024}
    s_mov_b32 s{SSEG + 3}, 0x20000
    s_mul_i32 s{sX + 3}, s2, {CS}
    s_add_u32 s{SRW}, s{pWsp}, s{sX + 3}
    s_addc_u32 s{SRW + 1}, s{pWsp + 1}, 0
    s_and_b32 s{SRW + 1}, s{SRW + 1}, 0xffff
    s_mov_b32 s{SRW + 2}, 0
    s_mov_b32 s{SRW + 3}, 0x20000
    s_mov_b64 exec, -1
    v_and_b32 v{vCtr + 1}, 3, v0
    v_lshlrev_b32 v{vCtr + 1}, 6, v{vCtr + 1}
    """)
    fill(vP + 4, STG, 7)
    a(f"s_mov_b64 exec, s[{sAct}:{sAct + 1}]")
    after_o = [("Z", "A0", "A1"), ("A2", "A3"), ("A4", "I0"), ("I1",), ("I2",)]
    for q in range(5):
        ld_wait(f"O{q}")
        for n in after_o[q]:
            ld_issue(n)
        if q in (0, 4):
            st(f"O{q}")
        for r in range(4):
            i = 4 * q + r
            a(f"v_mul_hi_u32_u24 v{vP + r}, s{sC625}, v{vO + i}")
            a(f"v_add_u32 v{vO + i}, 16, v{vO + i}")
        for r in range(4):
            i = 4 * q + r
            a(f"v_lshlrev_b32 v{vJ + i}, 2, v{vP + r}")
            a(f"v_mad_i32_i24 v{vO + i}, v{vP + r}, s{sM625}, v{vO + i}")
            a(f"ds_add_rtn_u32 v{vR + i}, v{vJ + i}, v{vOne} offset:{HIST}")
        for r in range(4):
            i = 4 * q + r
            a(f"v_lshl_or_b32 v{vO + i}, v{vO + i}, 11, v{vO + i}")
    for q in range(5):
        ld_issue(f"W{q}")
    a(f"""
    s_waitcnt lgkmcnt(0)
    s_barrier
    """)
    st("bar2")
    ld_issue("I3")
    ld_issue("I4")
    if P["mid"] == "scan":
        for q in range(10):
            ld_issue(f"M{q}")
    c, b, x, ln = vP, vP + 4, vP + 8, vP + 9
    a(f"""
    s_mov_b64 exec, -1
    v_and_b32 v{ln}, 63, v0
    v_lshlrev_b32 v{ln}, 4, v{ln}
    ds_read_b128 {vr(c, 4)}, v{ln} offset:{HIST}
    s_mov_b32 s{sX + 4}, {STG}
    s_waitcnt lgkmcnt(0)
    """)
    for k in range(4):
        a(f"v_add_u32 v{c + k}, 3, v{c + k}")
        a(f"v_lshrrev_b32 v{c + k}, 2, v{c + k}")
    a(f"""
    v_add_u32 v{b + 2}, v{c}, v{c + 1}
    v_add_u32 v{b + 3}, v{b + 2}, v{c + 2}
    v_add_u32 v{b}, v{b + 3}, v{c + 3}
    v_mov_b32 v{x}, v{b}
    s_nop 1
    v_add_u32_dpp v{x}, v{x}, v{x} row_shr:1 row_mask:0xf bank_mask:0xf
    s_nop 1
    v_add_u32_dpp v{x}, v{x}, v{x} row_shr:2 row_mask:0xf bank_mask:0xf
    s_nop 1
    v_add_u32_dpp v{x}, v{x}, v{x} row_shr:4 row_mask:0xf bank_mask:0xf
    s_nop 1
    v_add_u32_dpp v{x}, v{x}, v{x} row_shr:8 row_mask:0xf bank_mask:0xf
    s_nop 1
    v_add_u32_dpp v{x}, v{x}, v{x} row_bcast:15 row_mask:0xa bank_mask:0xf
    s_nop 1
    v_add_u32_dpp v{x}, v{x}, v{x} row_bcast:31 row_mask:0xc bank_mask:0xf
    v_sub_u32 v{b}, v{x}, v{b}
    v_add_u32 v{b + 1}, v{b}, v{c}
    v_add_u32 v{b + 2}, v{b}, v{b + 2}
    v_add_u32 v{b + 3}, v{b}, v{b + 3}
    v_readlane_b32 s{sX + 5}, v{x}, 63
    """)
    for k in range(4):
        a(f"v_lshl_or_b32 v{vSeg + k}, v{c + k}, 12, v{b + k}")
        a(f"v_mad_u32_u24 v{b + k}, v{b + k}, 20, s{sX + 4}")
    a(f"ds_write_b128 v{ln}, {vr(b, 4)} offset:{BASE}")
    for k in range(4):
        a(f"v_or_b32 v{vSeg + k}, 0x80000000, v{vSeg + k}")
    a(f"""
    s_mul_i32 s{SRW + 2}, s{sX + 5}, 20
    s_mov_b64 exec, s[{sAct}:{sAct + 1}]
    """)
    for i in range(20):
        a(f"ds_read_b32 v{vJ + i}, v{vJ + i} offset:{BASE}")
    ld_wait("Z")
    ld_issue("C")
    for q in range(5):
        ld_wait(f"A{q}")
        if P["mid"] == f"A{q}":
            for qq in range(10):
                ld_issue(f"M{qq}")
        if q == 0:
            a(f"""
            v_readfirstlane_b32 s{sX + 5}, v{vF}
            v_lshlrev_b32 v{vF}, 16, v{vF}
            """)
        if q in (0, 4):
            st(f"A{q}")
        t = vP

        def unpack():
            for p in range(2):
                d = vA + 2 * q + p
                a(f"v_lshlrev_b32 v{t + 2 * p}, 16, v{d}")
                a(f"v_and_b32 v{t + 2 * p + 1}, 0xffff0000, v{d}")

        unpack()
        a(f"""
        s_cmp_eq_u32 s{sX + 5}, 0x3f80
        s_cbranch_scc1 L_unit{q}
        """)
        for k in range(4):
            a(f"v_mul_f32 v{t + k}, v{vF}, v{t + k}")
        for p in range(2):
            a(f"v_cvt_pk_bf16_f32 v{vA + 2 * q + p}, v{t + 2 * p}, v{t + 2 * p + 1}")
        unpack()
        a(f"L_unit{q}:")
        for k in range(4):
            a(f"v_mul_f32 v{t + k}, 0.15915494, v{t + k}")
        for k in range(4):
            a(f"v_fract_f32 v{t + k}, v{t + k}")
        for k in range(4):
            a(f"v_cos_f32 v{t + k}, v{t + k}")
        a("s_nop 0")
        for p in range(2):
            a(f"v_cvt_pkrtz_f16_f32 v{vA + 2 * q + p}, v{t + 2 * p}, v{t + 2 * p + 1}")
        for p in range(2):
            a(f"v_add_u32 v{vA + 2 * q + p}, 0x40004, v{vA + 2 * q + p}")
        for p in range(2):
            a(f"v_and_b32 v{vA + 2 * q + p}, 0xbff8bff8, v{vA + 2 * q + p}")
    a("s_waitcnt lgkmcnt(0)")
    for i in range(20):
        a(f"v_mad_u32_u24 v{vR + i}, v{vR + i}, 5, v{vJ + i}")
        a(f"v_and_b32 v{vJ + i}, -4, v{vR + i}")
        a(f"v_and_b32 v{vR + i}, 3, v{vR + i}")
        a(f"v_mad_i32_i24 v{vR + i}, v{vR + i}, -3, v{vJ + i}")
    for q in range(5):
        ld_wait(f"I{q}")
        if P["mid"] == f"I{q}":
            for qq in range(10):
                ld_issue(f"M{qq}")
        if q in (0, 4):
            st(f"I{q}")
        for r in range(4):
            i = 4 * q + r
            a(f"v_bfe_u32 v{vP + r}, v{vO + i}, 4, 6")
            a(f"v_mad_u32_u16 v{vP + r}, v{vI + i}, 40, v{vP + r} op_sel:[1,0,0,0]")
            a(f"v_lshlrev_b32 v{vI + i}, 16, v{vI + i}")
            a(f"v_and_or_b32 v{vI + i}, v{vO + i}, s{sMask}, v{vI + i}")
            a(f"ds_write_b8 v{vR + i}, v{vP + r} offset:16")
            a(f"v_or_b32_sdwa v{vI + i}, v{vI + i}, v{vA + 2 * q + (r >> 1)} dst_sel:DWORD dst_unused:UNUSED_PAD src0_sel:DWORD src1_sel:WORD_{r & 1}")
            a(f"ds_write_b32 v{vJ + i}, v{vI + i}")
    vS = 64
    a(f"""
    s_mov_b64 exec, -1
    v_add_u32 v5, {STG}, v{vOff16}
    v_mov_b32 v{vP}, v{vOff16}
    s_waitcnt lgkmcnt(0)
    s_barrier
    """)
    st("bar3")
    for i in range(7):
        a(f"ds_read_b128 {vr(vS + 4 * i, 4)}, v5 offset:{i * 8192}")
    a(f"""
    s_mov_b64 exec, s[{sX}:{sX + 1}]
    ds_write_b128 v{vP}, {vr(vPar, 4)} offset:{HIST}
    ds_write_b128 v{vP}, {vr(vPar + 4, 4)} offset:{HIST + 1024}
    s_mov_b64 exec, -1
    """)
    for i in range(7):
        a(f"s_mov_b32 s{sX + 4}, {i * 8192}")
        a(f"s_waitcnt lgkmcnt({8 - i})")
        a(f"buffer_store_dwordx4 {vr(vS + 4 * i, 4)}, v{vP}, s[{SRW}:{SRW + 3}], s{sX + 4} offen {P['rec_st']}")
    st("stissued")

    def poll(mask):
        a(f"""
        s_mov_b32 exec_lo, {mask}
        s_mov_b32 exec_hi, 0
        buffer_load_dword v{vSegW}, v{vSegA}, s[{SSEG}:{SSEG + 3}], s{sJ4} offen sc1
        """)

    ld_issue("X")
    a(f"""
    s_mov_b64 exec, -1
    v_lshrrev_b32 v{vT}, 6, v0
    v_and_b32 v{vLane}, 63, v0
    v_and_b32 v{vT + 1}, 31, v0
    v_lshl_add_u32 v{vT + 2}, v{vT + 1}, 3, v{vT}
    v_lshlrev_b32 v{vSegA}, 10, v{vT + 2}
    s_lshl_b32 s{sJ4}, s{sJ}, 2
    v_mul_u32_u24 v{vCb}, {CS}, v{vT + 2}
    v_and_b32 v{vT + 6}, 15, v{vLane}
    v_lshrrev_b32 v{vT + 7}, 4, v{vLane}
    v_mul_u32_u24 v{vLL20}, 20, v{vT + 6}
    v_lshlrev_b32 v{vDw}, 7, v{vT}
    v_add_u32 v{vDw}, {DESC}, v{vDw}
    v_lshl_add_u32 v{vDr}, v{vT + 7}, 4, v{vDw}
    v_mul_u32_u24 v{vT + 8}, 80, v{vT}
    v_add_u32 v{vT + 8}, v{vT + 8}, v{vT + 6}
    v_lshlrev_b32 v{vMoff}, 5, v{vT + 8}
    v_lshl_add_u32 v{vMoff}, v{vT + 7}, 3, v{vMoff}
    v_cmp_gt_u32 vcc, {BK - 64}, v{vT + 8}
    v_mov_b32 v{vT + 9}, 0x7fffff00
    v_lshlrev_b32 v{vDoff}, 1, v{vT + 8}
    v_cndmask_b32 v{vOut4}, v{vT + 9}, v{vMoff}, vcc
    v_mov_b32 v{vZero}, 0
    v_mov_b32 v{vFour}, 4
    v_lshrrev_b32 v{vT + 5}, 1, v{vLane}
    v_lshlrev_b32 v{vLH4}, 2, v{vT + 5}
    v_and_b32 v{vHalf16}, 1, v{vLane}
    v_lshlrev_b32 v{vHalf16}, 4, v{vHalf16}
    v_bfe_u32 v{vT + 6}, v{vT + 5}, 2, 1
    v_bfe_u32 v{vT + 7}, v{vT + 5}, 4, 1
    v_lshl_add_u32 v{vT + 6}, v{vT + 7}, 1, v{vT + 6}
    v_and_b32 v{vT + 7}, 3, v{vT + 5}
    v_bfe_u32 v{vT + 8}, v{vT + 5}, 3, 1
    v_lshl_add_u32 v{vT + 7}, v{vT + 8}, 2, v{vT + 7}
    v_lshlrev_b32 v{vT + 7}, 1, v{vT + 7}
    v_lshl_add_u32 v{vSc}, v{vT + 6}, 8, v{vT + 7}
    v_lshlrev_b32 v{vT + 8}, 10, v{vT}
    v_add_u32 v{vT + 8}, {SB}, v{vT + 8}
    v_add_u32 v{vSc}, v{vSc}, v{vT + 8}
    v_lshl_add_u32 v{vSrd}, v{vLane}, 4, v{vT + 8}
    v_bfe_u32 v{vT + 6}, v{vLane}, 4, 1
    v_bfe_u32 v{vT + 7}, v{vLane}, 5, 1
    v_lshlrev_b32 v{vT + 7}, 4, v{vT + 7}
    v_lshl_add_u32 v{vT + 6}, v{vT + 6}, 2, v{vT + 7}
    v_bfe_u32 v{vT + 7}, v{vLane}, 2, 2
    v_add_u32 v{vT + 6}, v{vT + 6}, v{vT + 7}
    v_and_b32 v{vT + 7}, 3, v{vLane}
    v_lshlrev_b32 v{vT + 7}, 3, v{vT + 7}
    v_lshl_add_u32 v{vTr}, v{vT + 6}, 5, v{vT + 7}
    v_lshlrev_b32 v{vT + 8}, 12, v{vT}
    v_add_u32 v{vT + 8}, {RING}, v{vT + 8}
    v_add_u32 v{vTr}, v{vTr}, v{vT + 8}
    v_mul_u32_u24 v{vT + 6}, 52, v{vLane}
    v_lshrrev_b32 v{vT + 6}, 8, v{vT + 6}
    v_mul_u32_u24 v{vT + 8}, 5, v{vT + 6}
    v_sub_u32 v{vT + 8}, v{vLane}, v{vT + 8}
    v_lshlrev_b32 v{vT + 6}, 1, v{vT + 6}
    v_mov_b32 v{vT + 7}, {ORD[0] | ORD[1] << 2 | ORD[2] << 4}
    v_bfe_u32 v{vT + 6}, v{vT + 7}, v{vT + 6}, 2
    v_lshlrev_b32 v{vPh}, 21, v{vT + 6}
    v_mul_u32_u24 v{vT + 6}, 40, v{vT + 6}
    v_mul_u32_u24 v{vT + 7}, 5, v{vT}
    v_add3_u32 v{vT + 6}, v{vT + 6}, v{vT + 7}, v{vT + 8}
    v_add_u32 v{vT + 6}, 1, v{vT + 6}
    v_lshlrev_b32 v{vCntA}, 2, v{vT + 6}
    """)
    bin_addr(vBase, vT + 6, vT + 7)
    a(f"""
    v_cmp_lt_u32 vcc, 14, v{vLane}
    v_mov_b32 v{vT + 8}, {ZB}
    v_add_u32 v{vT + 6}, 1, v{vLane}
    v_cndmask_b32 v{vBase}, v{vBase}, v{vT + 8}, vcc
    v_cndmask_b32 v{vPh}, v{vPh}, v{vZero}, vcc
    v_cndmask_b32 v{vCntA}, v{vCntA}, v{vZero}, vcc
    """)
    bin_addr(vLim0, vT + 6, vT + 7)
    a(f"v_add_u32 v{vT + 6}, 65, v{vLane}")
    bin_addr(vLim1, vT + 6, vT + 7)
    a(f"""
    s_lshr_b32 s{sTk}, s2, 3
    s_lshl_b32 s{sTk}, s{sTk}, 3
    s_add_u32 s{sTk}, s{sTk}, s{sW}
    s_mul_i32 s{sTk}, s{sTk}, {128 * max(P["pf"], 1)}
    v_lshlrev_b32 v{vPfA}, 7, v{vLane}
    v_add_u32 v{vPfA}, s{sTk}, v{vPfA}
    v_mov_b32 v{vT + 8}, -1
    v_cmp_eq_u32 vcc, 0, v{vLane}
    v_cmp_lt_u32 s[{sTk}:{sTk + 1}], 56, v{vLane}
    s_nop 1
    v_cndmask_b32 v{vLim0}, v{vLim0}, v{vT + 8}, vcc
    v_cndmask_b32 v{vLim1}, v{vLim1}, v{vT + 8}, s[{sTk}:{sTk + 1}]
    """)
    cnt_init(vT, sTk)
    fill(vT + 4, SB, 10, RING)
    for k in range(20):
        a(f"v_mov_b32 v{vAcc + k}, 0")
    if P["stamps"]:
        a("s_mov_b32 s97, 0")
        a("s_mov_b64 s[100:101], 0")
    a(f"""
    s_mov_b32 s{sPend}, -1
    s_mov_b32 s{sReady}, 0
    s_mov_b32 s{sPrevN}, 0
    s_mov_b32 s{sLate}, s{sPre}
    s_mov_b32 s{sLate + 1}, s{sPre}
    s_mul_i32 s{sDo}, s{sJ}, {BK * 2}
    s_mul_i32 s{sMo}, s{sJ}, {BK * 32}
    s_waitcnt vmcnt(0) lgkmcnt(0)
    s_cmp_lg_u32 s{sW}, 7
    s_cbranch_scc1 L_ctr_ok
    L_ctr:
    """)
    ctr_sum(None)
    a(f"""
    s_cbranch_scc1 L_ctr_ok
    s_add_u32 s{sSpin}, s{sSpin}, 1
    s_cmp_gt_u32 s{sSpin}, {SPIN_MAX}
    s_cbranch_scc1 L_end
    s_sleep 2
    s_mov_b64 exec, 15
    buffer_load_dword v{vCtr}, v{vCtr + 1}, s[{SDBG}:{SDBG + 3}], 0 offen sc1
    s_mov_b64 exec, -1
    s_waitcnt vmcnt(0)
    s_branch L_ctr
    L_ctr_ok:
    s_mov_b32 s{sSpin}, 0
    """)
    st("drained")

    def late_loads():
        a(f"s_mov_b64 exec, s[{sLate}:{sLate + 1}]")
        for g in range(5):
            a(f"buffer_load_ushort v{vDist + g}, v{vDoff}, s[{SDIST}:{SDIST + 3}], s{sDo} offen offset:{32 * g}")
        for g in range(5):
            a(f"buffer_load_dwordx2 {vr(vMr + 2 * g, 2)}, v{vMoff}, s[{SM}:{SM + 3}], s{sMo} offen offset:{512 * g}")
        if P["pf"]:
            a(f"""
            s_and_b32 exec_hi, exec_hi, {-1 if P["pf"] == 64 else 0}
            buffer_load_dword v{vPfD}, v{vPfA}, s[{SM}:{SM + 3}], 0 offen
            """)
        a(f"s_mov_b64 s[{sLate}:{sLate + 1}], 0")

    a(f"""
    s_barrier
    s_mov_b64 exec, s[{sX}:{sX + 1}]
    buffer_store_dwordx4 {vr(vSeg, 4)}, v{vP}, s[{SSEG}:{SSEG + 3}], s{sX + 2} offen sc1
    """)
    st("pub")
    a("s_branch L_idle3")

    dbg = [0]

    def once(lane):
        if P["stamps"] != 1:
            return
        dbg[0] += 1
        a(f"""
        s_bitcmp1_b64 s[100:101], {lane}
        s_cbranch_scc1 L_once{dbg[0]}
        s_bitset1_b64 s[100:101], {lane}
        s_memrealtime s[98:99]
        s_waitcnt lgkmcnt(0)
        v_writelane_b32 v207, s98, {lane}
        L_once{dbg[0]}:
        """)

    def slot(bank, s):
        return vSlot + 6 * (4 * bank + s), sMk + 2 * (4 * bank + s)

    def rec_issue(bank, s):
        w, m = slot(bank, s)
        a(f"""
        s_mov_b64 exec, -1
        v_add_u32 v{w + 5}, v{vL0 + s}, v{vLL20}
        v_cmp_lt_u32 s[{m}:{m + 1}], v{vLL20}, v{vL1 + s}
        s_mov_b64 exec, s[{m}:{m + 1}]
        buffer_load_dwordx4 {vr(w, 4)}, v{w + 5}, s[{SREC}:{SREC + 3}], 0 offen {P["rec_ld"]}
        buffer_load_dword v{w + 4}, v{w + 5}, s[{SREC}:{SREC + 3}], 0 offen offset:16 {P["rec_ld"]}
        """)

    def process(bank, issue_bank, younger):
        for s in range(4):
            if issue_bank is not None:
                rec_issue(issue_bank, s)
            a(f"s_waitcnt vmcnt({younger(s)})")
            if s == 0:
                once(46)
            place_atomics(*slot(bank, s), vRk + 4 * (s & 1))
            if s > 0:
                a(f"s_waitcnt lgkmcnt({4 if s == 1 else 8})")
                place_writes(*slot(bank, s - 1), vRk + 4 * ((s - 1) & 1))
        a("s_waitcnt lgkmcnt(4)")
        place_writes(*slot(bank, 3), vRk + 4)

    for X in range(2):
        Y = 1 - X
        a(f"""
        L_top{X}:
        s_mov_b32 exec_lo, s{sPend}
        s_mov_b32 exec_hi, 0
        s_waitcnt vmcnt(8)
        v_cmp_gt_i32 vcc, 0, v{vSegW}
        s_and_b32 s{sTk}, s{sPend}, vcc_lo
        s_andn2_b32 s{sPend}, s{sPend}, s{sTk}
        s_mov_b32 exec_lo, s{sTk}
        v_and_b32 v{vT}, 0xfff, v{vSegW}
        v_bfe_u32 v{vT + 1}, v{vSegW}, 12, 12
        v_mad_u32_u24 v{vD0}, v{vT}, 20, v{vCb}
        v_mul_u32_u24 v{vHi}, 20, v{vT + 1}
        s_or_b32 s{sReady}, s{sReady}, s{sTk}
        s_cbranch_scc1 L_take{X}
        s_cmp_eq_u32 s{sPrevN}, 0
        s_cbranch_scc1 L_idle
        s_cmp_eq_u32 s{sPend}, 0
        s_cbranch_scc1 L_final{X}
        L_take{X}:
        """)
        if P["stamps"] == 1:
            a(f"""
            s_add_u32 s97, s97, 1
            s_memrealtime s[98:99]
            s_waitcnt lgkmcnt(0)
            s_mov_b32 s96, s98
            s_cmp_eq_u32 s97, 1
            s_cbranch_scc0 L_dbg{X}
            v_writelane_b32 v207, s98, 43
            s_bcnt1_i32_b32 s99, s{sReady}
            v_writelane_b32 v207, s99, 44
            L_dbg{X}:
            """)
        a(f"""
        s_mov_b32 exec_lo, 0xffff
        v_lshl_add_u32 v{vT + 3}, v{vLane}, 2, v{vDw}
        ds_write_b32 v{vT + 3}, v{vZero} offset:64
        s_mov_b32 exec_lo, s{sReady}
        v_mbcnt_lo_u32_b32 v{vT}, s{sReady}, 0
        v_cmp_gt_u32 vcc, 16, v{vT}
        s_and_b32 s{sCurN}, s{sReady}, vcc_lo
        s_mov_b32 exec_lo, s{sCurN}
        v_and_b32 v{vT + 2}, 3, v{vT}
        v_lshrrev_b32 v{vT}, 2, v{vT}
        v_min_u32 v{vT + 1}, 320, v{vHi}
        v_lshl_add_u32 v{vT}, v{vT + 2}, 2, v{vT}
        v_sub_u32 v{vHi}, v{vHi}, v{vT + 1}
        v_lshl_add_u32 v{vT}, v{vT}, 2, v{vDw}
        ds_write_b32 v{vT}, v{vD0}
        ds_write_b32 v{vT}, v{vT + 1} offset:64
        v_cmp_lt_u32 vcc, 0, v{vHi}
        v_add_u32 v{vD0}, 320, v{vD0}
        s_andn2_b32 s{sReady}, s{sReady}, s{sCurN}
        s_and_b32 s{sTk}, s{sCurN}, vcc_lo
        s_or_b32 s{sReady}, s{sReady}, s{sTk}
        s_mov_b64 exec, -1
        ds_read_b128 {vr(vL0, 4)}, v{vDr}
        ds_read_b128 {vr(vL1, 4)}, v{vDr} offset:64
        """)
        poll(f"s{sPend}")
        a(f"""
        s_cmp_eq_u32 s{sPrevN}, 0
        s_mov_b32 s{sPrevN}, s{sCurN}
        s_waitcnt lgkmcnt(0)
        s_cbranch_scc1 L_only{X}
        """)
        process(Y, X, lambda s: 9)
        a(f"s_branch L_top{Y}")
    for X in range(2):
        a(f"L_only{X}:")
        for s in range(4):
            rec_issue(X, s)
        a(f"s_branch L_top{1 - X}")
    for X in range(2):
        a(f"L_final{X}:")
        once(45)
        if P["lateat"] == "final":
            late_loads()
        process(1 - X, None, lambda s: 2 * (3 - s) + (10 + (1 if P["pf"] else 0) if P["lateat"] == "final" else 0))
        a("s_branch L_taken")
    a(f"""
    L_idle:
    s_cmp_eq_u32 s{sPend}, 0
    s_cbranch_scc1 L_idle_late
    s_cmp_lt_u32 s{sSpin}, {P["latespin"]}
    s_cbranch_scc1 L_idle2
    L_idle_late:
    """)
    if P["lateat"] == "final":
        late_loads()
    a(f"""
    s_cmp_eq_u32 s{sPend}, 0
    s_cbranch_scc1 L_taken
    L_idle2:
    s_add_u32 s{sSpin}, s{sSpin}, 1
    s_cmp_gt_u32 s{sSpin}, {SPIN_MAX}
    s_cbranch_scc1 L_end
    s_sleep {P["sleep"]}
    L_idle3:
    """)
    poll(f"s{sPend}")
    a(f"""
    s_waitcnt vmcnt(0)
    s_branch L_top0
    L_taken:
    s_mov_b64 exec, -1
    s_mov_b32 s{sLast}, 1
    s_mov_b32 s{sFirst}, 1
    s_movk_i32 s{sF0}, 0xf0
    s_movk_i32 s{s70}, 0x70
    s_lshl_b32 s{sRingB}, s{sW}, 12
    s_add_u32 s{sRingB}, s{sRingB}, {RING}
    s_mul_i32 s{sRowOff}, s{sJ}, {BK * 32}
    v_lshlrev_b32 v{vT}, 2, v{vLane}
    s_waitcnt lgkmcnt(0)
    """)
    st("intake")
    if P["stamps"] == 1:
        a(f"v_writelane_b32 v207, s{sSpin}, 40")
        a("v_writelane_b32 v207, s97, 41")
        a("v_writelane_b32 v207, s96, 42")
    a("s_barrier")
    st("bar5")
    a(f"""
    ds_read_b32 v{vT + 1}, v{vT} offset:{CNT}
    ds_read_b32 v{vT + 2}, v{vT} offset:{CNT + 256}
    ds_read_b32 v{vEnd}, v{vCntA} offset:{CNT}
    s_waitcnt lgkmcnt(1)
    v_cmp_gt_u32 vcc, v{vT + 1}, v{vLim0}
    v_cmp_gt_u32 s[{sT}:{sT + 1}], v{vT + 2}, v{vLim1}
    s_or_b64 vcc, vcc, s[{sT}:{sT + 1}]
    """)
    if P["force_slow"]:
        a("s_cmp_eq_u32 0, 0")
    a(f"""
    s_cbranch_scc0 L_G
    s_mov_b32 s{sSC}, 0
    s_mov_b32 s{sSU}, 0
    s_mov_b32 s{sLast}, 0
    L_slow:
    s_waitcnt vmcnt(0) lgkmcnt(0)
    s_barrier
    """)
    cnt_init(vT, sT)
    fill(vT + 4, SB, 10, RING)
    a(f"""
    s_waitcnt lgkmcnt(0)
    s_barrier
    s_cmp_lt_u32 s{sSC}, {NCH}
    s_cbranch_scc1 L_slow_unit
    s_mov_b32 s{sLast}, 1
    s_branch L_slow_go
    L_slow_unit:
    s_lshl_b32 s{sT}, s{sSC}, 10
    s_lshl_b32 s{sT + 1}, s{sJ}, 2
    s_add_u32 s{sT}, s{sT}, s{sT + 1}
    buffer_load_dword v{vT}, v{vZero}, s[{SSEG}:{SSEG + 3}], s{sT} offen sc1
    s_waitcnt vmcnt(0)
    v_readfirstlane_b32 s{sT + 2}, v{vT}
    s_and_b32 s{sT + 1}, s{sT + 2}, 0xfff
    s_mul_i32 s{sT + 1}, s{sT + 1}, 20
    s_bfe_u32 s{sT + 2}, s{sT + 2}, 0xc000c
    s_mul_i32 s{sT + 2}, s{sT + 2}, 20
    s_mul_i32 s{sT + 3}, s{sSC}, {CS}
    s_add_u32 s{sT + 3}, s{sT + 3}, s{sT + 1}
    s_add_u32 s{sT + 3}, s{sT + 3}, s{sSU}
    s_sub_u32 s{sT + 4}, s{sT + 2}, s{sSU}
    s_min_u32 s{sT + 4}, s{sT + 4}, 480
    s_cmp_lg_u32 s{sW}, 0
    s_cbranch_scc1 L_slow_adv
    v_mul_u32_u24 v{vT}, 20, v{vLane}
    v_cmp_gt_u32 s[{sT + 6}:{sT + 7}], s{sT + 4}, v{vT}
    s_mov_b64 exec, s[{sT + 6}:{sT + 7}]
    buffer_load_dwordx4 {vr(vSlot, 4)}, v{vT}, s[{SREC}:{SREC + 3}], s{sT + 3} offen sc1
    buffer_load_dword v{vSlot + 4}, v{vT}, s[{SREC}:{SREC + 3}], s{sT + 3} offen offset:16 sc1
    s_waitcnt vmcnt(0)
    """)
    place_atomics(vSlot, sT + 6, vRk)
    a("s_waitcnt lgkmcnt(0)")
    place_writes(vSlot, sT + 6, vRk)
    a(f"""
    s_mov_b64 exec, -1
    L_slow_adv:
    s_add_u32 s{sSU}, s{sSU}, 480
    s_cmp_lt_u32 s{sSU}, s{sT + 2}
    s_cbranch_scc1 L_slow_go
    s_add_u32 s{sSC}, s{sSC}, 1
    s_mov_b32 s{sSU}, 0
    L_slow_go:
    s_waitcnt lgkmcnt(0)
    s_barrier
    ds_read_b32 v{vEnd}, v{vCntA} offset:{CNT}
    L_G:
    v_cmp_lt_u32 vcc, 14, v{vLane}
    v_add_u32 v{vT + 1}, 128, v{vBase}
    s_mov_b32 s{sCur}, 0
    s_waitcnt lgkmcnt(0)
    v_cndmask_b32 v{vEnd}, v{vEnd}, v{vT + 1}, vcc
    v_cmp_gt_u32 vcc, v{vEnd}, v{vBase}
    v_sub_u32 v{vEnd}, v{vEnd}, v{vBase}
    v_add_u32 v{vEnd}, 127, v{vEnd}
    v_and_b32 v{vEnd}, 0xffffff80, v{vEnd}
    v_add_u32 v{vEnd}, v{vEnd}, v{vBase}
    s_and_b32 s{sNE}, vcc_lo, 0x7fff
    """)

    def next_bin():
        a(f"""
        s_ff1_i32_b32 s{sL}, s{sNE}
        s_bitset0_b32 s{sNE}, s{sL}
        v_readlane_b32 s{sIA}, v{vBase}, s{sL}
        v_readlane_b32 s{sIE}, v{vEnd}, s{sL}
        v_readlane_b32 s{sIP}, v{vPh}, s{sL}
        """)

    next_bin()
    for k in range(D):
        a(f"""
        s_mov_b32 s{sT + k}, s{sIP}
        s_nop 0
        v_add_u32 v{vT + k}, s{sIA}, v{vLH4}
        ds_read_b32 v{vT + k}, v{vT + k}
        s_add_u32 s{sIA}, s{sIA}, 128
        s_cmp_lg_u32 s{sIA}, s{sIE}
        s_cbranch_scc1 L_pro{k}
        """)
        next_bin()
        a(f"L_pro{k}:")
    for k in range(D):
        a(f"""
        s_add_u32 m0, s{sRingB}, {k * 1024}
        s_waitcnt lgkmcnt({D - 1 - k})
        v_mad_u32_u16 v{vT + k}, v{vT + k}, 32, v{vHalf16} op_sel:[1,0,0,0]
        buffer_load_dwordx4 v{vT + k}, s[{SM}:{SM + 3}], s{sT + k} offen {P["gather"]} lds
        """)
    def gates(tag):
        a(f"""
        s_cmp_eq_u32 s{sFirst}, 0
        s_cbranch_scc1 L_gates_done
        s_mov_b32 s{sFirst}, 0
        """)
        a(f"""
        v_and_b32 v{vT + 4}, 15, v{vLane}
        v_lshrrev_b32 v{vT + 5}, 4, v{vLane}
        v_lshlrev_b32 v{vT + 4}, 1, v{vT + 4}
        v_lshl_add_u32 v{vT + 6}, v{vT + 5}, 6, v{vT + 4}
        v_lshl_add_u32 v{vT + 4}, v{vT + 5}, 7, v{vT + 4}
        v_lshlrev_b32 v{vT + 5}, 2, v{vT + 5}
        """)
        for k in range(4):
            a(f"ds_read_u16 v{vWraw + k}, v{vT + 4} offset:{HIST + 32 * k}")
            a(f"ds_read_u16 v{vWraw + 4 + k}, v{vT + 4} offset:{HIST + 512 + 32 * k}")
        for k in range(2):
            a(f"ds_read_u16 v{vWraw + 8 + k}, v{vT + 6} offset:{HIST + 1024 + 32 * k}")
            a(f"ds_read_u16 v{vWraw + 10 + k}, v{vT + 6} offset:{HIST + 1280 + 32 * k}")
        a(f"""
        ds_read_b32 v{vCen}, v{vT + 5} offset:{HIST + 1536}
        s_waitcnt vmcnt({D}) lgkmcnt(0)
        v_lshl_or_b32 v{vWd}, v{vWraw + 1}, 16, v{vWraw}
        v_lshl_or_b32 v{vWd + 1}, v{vWraw + 3}, 16, v{vWraw + 2}
        v_lshl_or_b32 v{vWu}, v{vWraw + 5}, 16, v{vWraw + 4}
        v_lshl_or_b32 v{vWu + 1}, v{vWraw + 7}, 16, v{vWraw + 6}
        v_lshl_or_b32 v{vWs}, v{vWraw + 9}, 16, v{vWraw + 8}
        v_lshl_or_b32 v{vWr}, v{vWraw + 11}, 16, v{vWraw + 10}
        v_mov_b32 v{vWd + 2}, v{vWd}
        v_mov_b32 v{vWd + 3}, v{vWd + 1}
        v_mov_b32 v{vWu + 2}, v{vWu}
        v_mov_b32 v{vWu + 3}, v{vWu + 1}
        v_mov_b32 v{vWs + 1}, 0
        v_mov_b32 v{vWr + 1}, 0
        v_mov_b32 v{vRb + 1}, 0
        v_mov_b32 v{vRb + 3}, 0
        v_and_b32 v{vCen + 1}, 0xffff0000, v{vCen}
        v_lshlrev_b32 v{vCen}, 16, v{vCen}
        """)
        for g in range(5):
            t = vT + 4
            rb = vRb + 2 * (g & 1)
            a(f"""
            v_lshlrev_b32 v{t + 2}, 16, v{vDist + g}
            v_sub_f32 v{t}, v{t + 2}, v{vCen}
            v_sub_f32 v{t + 1}, v{t + 2}, v{vCen + 1}
            v_cvt_pk_bf16_f32 v{t + 2}, v{t}, v{t + 1}
            v_lshlrev_b32 v{t}, 16, v{t + 2}
            v_and_b32 v{t + 1}, 0xffff0000, v{t + 2}
            v_mul_f32 v{t}, v{t}, v{t}
            v_mul_f32 v{t + 1}, v{t + 1}, v{t + 1}
            v_cvt_pk_bf16_f32 v{t + 2}, v{t}, v{t + 1}
            v_lshlrev_b32 v{t}, 16, v{t + 2}
            v_and_b32 v{t + 1}, 0xffff0000, v{t + 2}
            v_mul_f32 v{t}, 0xc1200000, v{t}
            v_mul_f32 v{t + 1}, 0xc1200000, v{t + 1}
            v_cvt_pk_bf16_f32 v{t + 2}, v{t}, v{t + 1}
            v_lshlrev_b32 v{t}, 16, v{t + 2}
            v_and_b32 v{t + 1}, 0xffff0000, v{t + 2}
            v_mul_f32 v{t}, 0x3fb8aa3b, v{t}
            v_mul_f32 v{t + 1}, 0x3fb8aa3b, v{t + 1}
            v_exp_f32 v{t}, v{t}
            v_exp_f32 v{t + 1}, v{t + 1}
            s_nop 0
            v_cvt_pk_bf16_f32 v{rb}, v{t}, v{t + 1}
            s_nop 1
            v_mfma_f32_16x16x16_bf16 {vr(vG + 4 * g, 4)}, {vr(vWs, 2)}, {vr(rb, 2)}, 0
            v_mfma_f32_16x16x16_bf16 {vr(vH + 4 * g, 4)}, {vr(vWr, 2)}, {vr(rb, 2)}, 0
            """)
        a("L_gates_done:")
        st("GH")

    a(f"s_movk_i32 s{sPrev}, {D * 1024}")
    st("Gissued")
    if P["lateat"] == "g0":
        late_loads()
        a("s_mov_b64 exec, -1")
    if P["lateat"] == "final":
        gates(0)
    a("L_main:")

    def split(src, dst, t):
        a(f"""
        v_cvt_pk_bf16_f32 v{dst}, v{src}, v{src + 1}
        v_cvt_pk_bf16_f32 v{dst + 1}, v{src + 2}, v{src + 3}
        v_lshlrev_b32 v{t}, 16, v{dst}
        v_and_b32 v{t + 1}, 0xffff0000, v{dst}
        v_lshlrev_b32 v{t + 2}, 16, v{dst + 1}
        v_and_b32 v{t + 3}, 0xffff0000, v{dst + 1}
        v_sub_f32 v{t}, v{src}, v{t}
        v_sub_f32 v{t + 1}, v{src + 1}, v{t + 1}
        v_sub_f32 v{t + 2}, v{src + 2}, v{t + 2}
        v_sub_f32 v{t + 3}, v{src + 3}, v{t + 3}
        v_cvt_pk_bf16_f32 v{dst + 2}, v{t}, v{t + 1}
        v_cvt_pk_bf16_f32 v{dst + 3}, v{t + 2}, v{t + 3}
        s_nop 1
        """)

    ring_adv = f"s_mov_b32 s{sPrev}, s{sCur}" if D == R - 1 else f"s_add_u32 s{sPrev}, s{sPrev}, 1024\ns_and_b32 s{sPrev}, s{sPrev}, {R * 1024 - 1}"
    for p in range(3):
        for g in range(5):
            b = p * 5 + g
            acc = vAcc + 4 * g
            a(f"""
            v_readlane_b32 s{sC}, v{vBase}, {b}
            v_readlane_b32 s{sCE}, v{vEnd}, {b}
            s_cmp_eq_u32 s{sC}, s{sCE}
            s_cbranch_scc1 L_bin{b}_done
            L_bin{b}:
            s_add_u32 m0, s{sRingB}, s{sPrev}
            v_add_u32 v{vT}, s{sIA}, v{vLH4}
            v_add_u32 v{vT + 1}, s{sC}, v{vLH4}
            ds_read_b32 v{vT}, v{vT}
            ds_read_b32 v{vT + 1}, v{vT + 1}
            v_add_u32 v{vT + 3}, s{sCur}, v{vTr}
            {ring_adv}
            s_add_u32 s{sCur}, s{sCur}, 1024
            s_and_b32 s{sCur}, s{sCur}, {R * 1024 - 1}
            s_add_u32 s{sC}, s{sC}, 128
            s_add_u32 s{sIA}, s{sIA}, 128
            s_cmp_eq_u32 s{sIA}, s{sIE}
            s_waitcnt lgkmcnt(1)
            v_mad_u32_u16 v{vT}, v{vT}, 32, v{vHalf16} op_sel:[1,0,0,0]
            buffer_load_dwordx4 v{vT}, s[{SM}:{SM + 3}], s{sIP} offen {P["gather"]} lds
            s_cbranch_scc1 L_nb{b}
            L_nb{b}_back:
            s_waitcnt lgkmcnt(0)
            v_and_b32 v{vT + 2}, 0xbff8, v{vT + 1}
            v_lshlrev_b32 v{vT + 4}, 4, v{vT + 1}
            v_lshrrev_b32 v{vT + 5}, 7, v{vT + 1}
            v_cvt_f32_f16 v{vT + 2}, v{vT + 2}
            v_bfi_b32 v{vT + 4}, s{s70}, v{vT + 4}, v{vT + 5}
            v_and_or_b32 v{vT + 4}, v{vT + 4}, s{sF0}, v{vSc}
            ds_write_b16_d16_hi v{vT + 4}, v{vT + 2}
            ds_read_b128 {vr(vSt, 4)}, v{vSrd}
            ds_write_b16 v{vT + 4}, v{vZero}
            s_waitcnt vmcnt({D})
            ds_read_b64_tr_b16 {vr(vMt, 2)}, v{vT + 3}
            ds_read_b64_tr_b16 {vr(vMt + 2, 2)}, v{vT + 3} offset:256
            s_cmp_lg_u32 s{sC}, s{sCE}
            s_waitcnt lgkmcnt(0)
            v_mfma_f32_16x16x32_bf16 {vr(acc, 4)}, {vr(vMt, 4)}, {vr(vSt, 4)}, {vr(acc, 4)}
            s_cbranch_scc1 L_bin{b}
            L_bin{b}_done:
            """)
            if g == 4 or b == 0:
                st(f"bin{b}")
            if P["lateat"] == f"b{b}":
                late_loads()
                a("s_mov_b64 exec, -1")
            if P["lateat"] != "final" and b == P["ghat"]:
                gates(0)
            if p == 2:
                x, y, t = vT + 4, vT + 8, vT + 12
                a(f"""
                s_cmp_eq_u32 s{sLast}, 0
                s_cbranch_scc1 L_epi{g}_done
                s_nop 5
                """)
                split(acc, x, t)
                a(f"""
                v_mfma_f32_16x16x32_bf16 {vr(y, 4)}, {vr(vWd, 4)}, {vr(x, 4)}, 0
                s_nop 7
                v_mul_f32 v{y}, v{y}, v{vG + 4 * g}
                v_mul_f32 v{y + 1}, v{y + 1}, v{vG + 4 * g + 1}
                v_mul_f32 v{y + 2}, v{y + 2}, v{vG + 4 * g + 2}
                v_mul_f32 v{y + 3}, v{y + 3}, v{vG + 4 * g + 3}
                """)
                split(y, x, t)
                mr = vMr + 2 * g
                a(f"""
                v_mfma_f32_16x16x32_bf16 {vr(y, 4)}, {vr(vWu, 4)}, {vr(x, 4)}, 0
                v_lshlrev_b32 v{t}, 16, v{mr}
                v_and_b32 v{t + 1}, 0xffff0000, v{mr}
                v_lshlrev_b32 v{t + 2}, 16, v{mr + 1}
                v_and_b32 v{t + 3}, 0xffff0000, v{mr + 1}
                s_nop 3
                v_fmac_f32 v{t}, v{y}, v{vH + 4 * g}
                v_fmac_f32 v{t + 1}, v{y + 1}, v{vH + 4 * g + 1}
                v_fmac_f32 v{t + 2}, v{y + 2}, v{vH + 4 * g + 2}
                v_fmac_f32 v{t + 3}, v{y + 3}, v{vH + 4 * g + 3}
                v_cvt_pk_bf16_f32 v{mr}, v{t}, v{t + 1}
                v_cvt_pk_bf16_f32 v{mr + 1}, v{t + 2}, v{t + 3}
                buffer_store_dwordx2 {vr(mr, 2)}, v{vOut4 if g == 4 else vMoff}, s[{SOUT}:{SOUT + 3}], s{sRowOff} offen offset:{512 * g} {P["out_st"]}
                L_epi{g}_done:
                """)
    a(f"""
    s_cmp_eq_u32 s{sLast}, 0
    s_cbranch_scc1 L_slow
    """)
    if P["stamps"]:
        a("s_waitcnt vmcnt(0)")
    st("end")
    st.flush(SSEG, "s2", vT)
    a("""
    L_end:
    s_endpgm
    """)
    for b in range(15):
        a(f"L_nb{b}:")
        next_bin()
        a(f"s_branch L_nb{b}_back")
    a("L_code_end:")
    return a.text(), 256, 102, LDS


def generate(**kw):
    P = dict(DEFAULTS)
    P.update(kw)
    body, nv, ns, lds = gen(P)
    n = NAME + "_kernel"
    out = HEADER
    out += f"; @launch grid=({NCH},1,1) block=(512,1,1) lds={lds}\n"
    out += '.amdgcn_target "amdgcn-amd-amdhsa--gfx950"\n.text\n'
    out += f".globl {n}\n.p2align 8\n.type {n},@function\n{n}:\n{body}"
    out += '.section .rodata,"a"\n.p2align 6\n' + descriptor(n, nv, ns)
    return out


if __name__ == "__main__":
    path = sys.argv[1]
    kw = {}
    for arg in sys.argv[2:]:
        k, v = arg.split("=", 1)
        kw[k] = int(v) if v.lstrip("-").isdigit() else v
    open(path, "w").write(generate(**kw))
```

```python
import sys
from gen import Asm, vr, srd, Stamps, descriptor, NAME, E, T, NCH, CH, BK, WS_SEG

SPIN_MAX = 1 << 18
CS = 53888
CAPS = (160, 160, 96)

DEFAULTS = dict(
    D=2,
    in_ld="nt",
    rec_st="sc1",
    rec_ld="",
    out_st="",
    gather="",
    sleep=4,
    xl=1,
    latespin=2,
    order=201,
    mid="",
    lateat="final",
    ghat=9,
    ipf=5,
    pf=0,
    stamps=0,
    dbgwg=100,
    dbgw=5,
    force_slow=0,
)

HEADER = """; Kernarg layout for this problem (112 bytes, ptrs only, base s[0:1]):
;
"""


def gen(P):
    a = Asm()
    D = P["D"]
    R = 4
    ORD = [int(ch) for ch in str(P["order"]).zfill(3)]
    CNT, HIST, BASE, DESC, SB, TRASH, AB = 0, 512, 1536, 2560, 3584, 11776, 14848
    ZB = AB + 40 * 4 * sum(CAPS)
    RING = ZB + 128
    STG = RING
    FLAG = CNT + 127 * 4
    LDS = 143360
    assert STG + 7 * 8192 <= LDS and SB + 9 * 8192 < RING <= SB + 10 * 8192
    sJ = 3
    SO, SI, SA, SRW, SSEG, SREC, SM, SOUT, SDIST, SDBG = 4, 8, 12, 16, 20, 24, 28, 32, 36, 40
    pM, pI, pO, pDist, pAng, pCen, pFreq, pWr, pWs, pWd, pWu, pOut, pDbg, pWsp = range(44, 72, 2)
    sOff, sOffA = 72, 77
    sC625, sM625, sPre, sMask, sAct, sW, sSpin, sX = 82, 83, 84, 85, 86, 88, 89, 90
    sMk = 44
    sPend, sReady, sPrevN, sCurN, sJ4, sTk, sEarly = 60, 61, 62, 63, 64, 66, 68
    sLate, sDo, sMo = 74, 72, 73
    sLast, sFirst, sSC, sSU = 83, 84, 85, 86
    sF0, s70, sRingB, sPrev, sCur, sRowOff = 44, 45, 46, 47, 48, 49
    sNE, sL, sIA, sIE, sIP, sC, sCE = 50, 51, 52, 53, 54, 55, 56
    sT = 58
    st = Stamps(a, P, 0, 207, 98)
    vOff16, vOff8, vOne, vF = 1, 2, 3, 4
    vO, vI, vA, vJ, vR = 8, 28, 48, 58, 78
    vP = 98
    vSeg = 112
    vPar = 116
    vCtr = 124
    vLane, vLL20, vFour, vZero = 1, 2, 3, 4
    vLH4, vHalf16, vSc, vSrd, vTr, vBase, vCntA, vEnd, vPh = 5, 6, 7, 8, 9, 10, 11, 12, 13
    vMoff, vOut4 = 14, 15
    vT = 16
    vSlot = 32
    vRk = 80
    vL0, vL1 = 88, 92
    vD0, vHi, vSegA, vCb, vSegW, vDw, vDr, vDoff, vLim0, vLim1, vPfA, vPfD = range(100, 112)
    vAcc = 132
    vG, vH = 152, 172
    vMr = 192
    vDist = 202
    vWraw = 208
    vCen = 220
    vWd, vWu = 224, 228
    vWs, vWr, vRb = 232, 234, 236
    vMt, vSt = 240, 244
    vQ = 248

    def bin_addr(dst, k, tmp):
        a(f"""
        v_mul_u32_u24 v{dst}, {CAPS[0] * 4}, v{k}
        v_mul_u32_u24 v{tmp}, {CAPS[2] * 4}, v{k}
        v_add_u32 v{dst}, {AB - CAPS[0] * 4}, v{dst}
        v_add_u32 v{tmp}, {AB + 80 * CAPS[0] * 4 - 81 * CAPS[2] * 4}, v{tmp}
        v_min_u32 v{dst}, v{dst}, v{tmp}
        """)

    def cnt_init(t, stmp):
        bin_addr(t, 0, t + 1)
        a(f"""
        v_mov_b32 v{t + 1}, {TRASH}
        v_cmp_eq_u32 vcc, 0, v0
        v_mov_b32 v{t + 2}, 0
        v_lshlrev_b32 v{t + 3}, 2, v0
        v_cndmask_b32 v{t}, v{t}, v{t + 1}, vcc
        v_cmp_lt_u32 vcc, 120, v0
        s_nop 1
        v_cndmask_b32 v{t}, v{t}, v{t + 2}, vcc
        v_cmp_gt_u32 vcc, 128, v0
        s_and_saveexec_b64 s[{stmp}:{stmp + 1}], vcc
        ds_write_b32 v{t + 3}, v{t} offset:{CNT}
        s_mov_b64 exec, s[{stmp}:{stmp + 1}]
        """)

    def fill(t, start, rounds, clip=None):
        a(f"""
        v_lshlrev_b32 v{t}, 4, v0
        v_mov_b32 v{vQ}, 0
        v_mov_b32 v{vQ + 1}, 0
        v_mov_b32 v{vQ + 2}, 0
        v_mov_b32 v{vQ + 3}, 0
        v_add_u32 v{t}, {start}, v{t}
        v_add_u32 v{t + 1}, 65536, v{t}
        """)
        if clip:
            a(f"v_cmp_gt_u32 vcc, {(clip - start - (rounds - 1) * 8192) // 16}, v0")
        for i in range(rounds):
            if clip and i == rounds - 1:
                a("s_mov_b64 exec, vcc")
            a(f"ds_write_b128 v{t + (i >> 3)}, {vr(vQ, 4)} offset:{(i & 7) * 8192}")
        if clip:
            a("s_mov_b64 exec, -1")

    def place_atomics(w, m, t):
        a(f"s_mov_b64 exec, s[{m}:{m + 1}]")
        for r in range(4):
            a(f"v_lshlrev_b32_sdwa v{t + r}, 2, v{w + 4} dst_sel:DWORD dst_unused:UNUSED_PAD src0_sel:DWORD src1_sel:BYTE_{r}")
            a(f"ds_add_rtn_u32 v{t + r}, v{t + r}, v{vFour} offset:{CNT}")

    def place_writes(w, m, t):
        a(f"s_mov_b64 exec, s[{m}:{m + 1}]")
        for r in range(4):
            a(f"ds_write_b32 v{t + r}, v{w + r}")

    def ctr_sum(lab_ok):
        a(f"""
        v_readlane_b32 s{sX + 4}, v{vCtr}, 0
        v_readlane_b32 s{sX + 5}, v{vCtr}, 1
        s_add_u32 s{sX + 4}, s{sX + 4}, s{sX + 5}
        v_readlane_b32 s{sX + 5}, v{vCtr}, 2
        s_add_u32 s{sX + 4}, s{sX + 4}, s{sX + 5}
        v_readlane_b32 s{sX + 5}, v{vCtr}, 3
        s_add_u32 s{sX + 4}, s{sX + 4}, s{sX + 5}
        s_cmp_ge_u32 s{sX + 4}, {NCH}
        """)

    ld = P["in_ld"]
    a(f"""
    s_cmp_ge_u32 s2, {NCH}
    s_cbranch_scc1 L_end
    """)
    st("start")
    a(f"""
    s_load_dwordx16 s[44:59], s[0:1], 0
    s_load_dwordx8 s[60:67], s[0:1], 64
    s_load_dwordx4 s[68:71], s[0:1], 96
    """)
    if P["ipf"]:
        a(f"""
        s_getpc_b64 s[96:97]
        s_lshr_b32 s{sX}, s2, 3
        s_mul_i32 s{sX}, s{sX}, {P["ipf"]}
        v_add_u32 v1, s{sX}, v0
        v_min_u32 v1, (L_code_end - {NAME}_kernel - 256) / 128, v1
        v_lshlrev_b32 v1, 7, v1
        v_cmp_gt_u32 vcc, {P["ipf"]}, v0
        s_and_saveexec_b64 s[{sX}:{sX + 1}], vcc
        s_cbranch_execz L_noipf
        global_load_dword v130, v1, s[96:97]
        L_noipf:
        s_mov_b64 exec, s[{sX}:{sX + 1}]
        """)
    a(f"""
    v_lshlrev_b32 v{vOff16}, 4, v0
    v_lshlrev_b32 v{vOff8}, 3, v0
    v_lshlrev_b32 v5, 2, v0
    v_mov_b32 v6, 0
    v_mov_b32 v{vOne}, 1
    v_lshrrev_b32 v7, 6, v0
    s_mul_i32 s{sOff}, s2, {CH * 4}
    s_mul_i32 s{sOffA}, s2, {CH * 2}
    v_readfirstlane_b32 s{sW}, v7
    ds_write_b32 v5, v6 offset:{HIST}
    """)
    for q in range(1, 5):
        a(f"s_add_u32 s{sOff + q}, s{sOff}, {q * 8000}")
        a(f"s_add_u32 s{sOffA + q}, s{sOffA}, {q * 4000}")
    if P["xl"]:
        a(f"""
        s_and_b32 s{sJ}, s2, 7
        s_lshl_b32 s{sJ}, s{sJ}, 5
        s_lshr_b32 s{sX}, s2, 3
        s_add_u32 s{sJ}, s{sJ}, s{sX}
        """)
    else:
        a(f"s_mov_b32 s{sJ}, s2")
    a(f"""
    s_mov_b32 s{sC625}, 6871948
    s_mov_b32 s{sM625}, -{BK}
    s_mov_b32 s{sMask}, 0x4007
    s_mov_b32 s{sSpin}, 0
    v_cmp_gt_u32 vcc, 500, v0
    s_lshl_b32 s{sX + 2}, s2, 10
    s_cmp_eq_u32 s{sW}, 0
    s_cselect_b64 s[{sX}:{sX + 1}], -1, 0
    s_waitcnt lgkmcnt(0)
    """)
    srd(a, SO, f"s{pO}", f"s{pO + 1}", T * 4)
    srd(a, SM, f"s{pM}", f"s{pM + 1}", E * 32)
    srd(a, SDIST, f"s{pDist}", f"s{pDist + 1}", E * 2)
    a(f"s_mov_b32 s{sPre}, -1")
    a(f"""
    s_barrier
    s_mov_b64 s[{sAct}:{sAct + 1}], vcc
    s_mov_b64 exec, vcc
    """)
    issued = []

    def ld_issue(name):
        k, q = name[0], int(name[1:] or 0)
        act = f"s_mov_b64 exec, s[{sAct}:{sAct + 1}]"
        if k == "F":
            a(f"global_load_ushort v{vF}, v6, s[{pFreq}:{pFreq + 1}]")
        elif k == "Z":
            a(f"""
            s_mov_b64 exec, s[{sX}:{sX + 1}]
            buffer_store_dwordx4 {vr(vQ, 4)}, v{vOff16}, s[{SSEG}:{SSEG + 3}], s{sX + 2} offen sc1
            {act}
            """)
        elif k == "C":
            a(f"""
            s_and_b64 exec, s[{sX}:{sX + 1}], 1
            s_and_b32 s{sX + 3}, s2, 3
            s_lshl_b32 s{sX + 3}, s{sX + 3}, 6
            buffer_atomic_add v{vOne}, v6, s[{SDBG}:{SDBG + 3}], s{sX + 3} offen
            {act}
            """)
        elif k == "X":
            a(f"""
            s_cmp_eq_u32 s{sW}, 7
            s_cselect_b32 exec_lo, 15, 0
            s_mov_b32 exec_hi, 0
            buffer_load_dword v{vCtr}, v{vCtr + 1}, s[{SDBG}:{SDBG + 3}], 0 offen sc1
            """)
        elif k == "W":
            lo, hi, dst, ptr, off = ((-1, 0, 0, pWd, 0), (0, -1, 0, pWu, -512), (0xffff, 0, 4, pWs, 0),
                                     (0xffff0000, 0, 4, pWr, -256), (0, 1, 4, pCen, -512))[q]
            a(f"""
            s_and_b32 exec_lo, s{sX}, {lo}
            s_and_b32 exec_hi, s{sX}, {hi}
            global_load_dwordx4 {vr(vPar + dst, 4)}, v{vOff16}, s[{ptr}:{ptr + 1}] offset:{off}
            """)
            if q == 4:
                a(act)
        elif k == "M":
            if q == 0:
                a(f"""
                s_mov_b64 exec, -1
                s_mov_b32 s{sPre}, 0
                v_and_b32 v126, 15, v0
                v_bfe_u32 v127, v0, 4, 2
                v_mul_u32_u24 v128, 80, v7
                v_add_u32 v128, v128, v126
                v_lshlrev_b32 v129, 5, v128
                v_lshl_add_u32 v129, v127, 3, v129
                v_lshlrev_b32 v128, 1, v128
                s_mul_i32 s0, s{sJ}, {BK * 2}
                s_mul_i32 s1, s{sJ}, {BK * 32}
                """)
            if q < 5:
                a(f"buffer_load_dwordx2 {vr(vMr + 2 * q, 2)}, v129, s[{SM}:{SM + 3}], s1 offen offset:{512 * q}")
            else:
                a(f"buffer_load_ushort v{vDist + q - 5}, v128, s[{SDIST}:{SDIST + 3}], s0 offen offset:{32 * (q - 5)}")
            if q == 9:
                a(act)
        elif k == "O":
            a(f"buffer_load_dwordx4 {vr(vO + 4 * q, 4)}, v{vOff16}, s[{SO}:{SO + 3}], s{sOff + q} offen {ld}")
        elif k == "A":
            a(f"buffer_load_dwordx2 {vr(vA + 2 * q, 2)}, v{vOff8}, s[{SA}:{SA + 3}], s{sOffA + q} offen {ld}")
        else:
            a(f"buffer_load_dwordx4 {vr(vI + 4 * q, 4)}, v{vOff16}, s[{SI}:{SI + 3}], s{sOff + q} offen {ld}")
        issued.append(name)

    def ld_wait(name):
        a(f"s_waitcnt vmcnt({len(issued) - 1 - issued.index(name)})")

    for n in ("O0", "O1", "O2", "O3", "O4", "F"):
        ld_issue(n)
    srd(a, SI, f"s{pI}", f"s{pI + 1}", T * 4)
    srd(a, SA, f"s{pAng}", f"s{pAng + 1}", T * 2)
    srd(a, SDBG, f"s{pDbg}", f"s{pDbg + 1}", 256)
    srd(a, SREC, f"s{pWsp}", f"s{pWsp + 1}", NCH * CS)
    srd(a, SOUT, f"s{pOut}", f"s{pOut + 1}", E * 32)
    a(f"""
    s_add_u32 s{SSEG}, s{pWsp}, {WS_SEG}
    s_addc_u32 s{SSEG + 1}, s{pWsp + 1}, 0
    s_and_b32 s{SSEG + 1}, s{SSEG + 1}, 0xffff
    s_mov_b32 s{SSEG + 2}, {NCH * 1024}
    s_mov_b32 s{SSEG + 3}, 0x20000
    s_mul_i32 s{sX + 3}, s2, {CS}
    s_add_u32 s{SRW}, s{pWsp}, s{sX + 3}
    s_addc_u32 s{SRW + 1}, s{pWsp + 1}, 0
    s_and_b32 s{SRW + 1}, s{SRW + 1}, 0xffff
    s_mov_b32 s{SRW + 2}, 0
    s_mov_b32 s{SRW + 3}, 0x20000
    s_mov_b64 exec, -1
    v_and_b32 v{vCtr + 1}, 3, v0
    v_lshlrev_b32 v{vCtr + 1}, 6, v{vCtr + 1}
    """)
    fill(vP + 4, STG, 7)
    a(f"s_mov_b64 exec, s[{sAct}:{sAct + 1}]")
    after_o = [("Z", "A0", "A1"), ("A2", "A3"), ("A4", "I0"), ("I1",), ("I2",)]
    for q in range(5):
        ld_wait(f"O{q}")
        for n in after_o[q]:
            ld_issue(n)
        if q in (0, 4):
            st(f"O{q}")
        for r in range(4):
            i = 4 * q + r
            a(f"v_mul_hi_u32_u24 v{vP + r}, s{sC625}, v{vO + i}")
            a(f"v_add_u32 v{vO + i}, 16, v{vO + i}")
        for r in range(4):
            i = 4 * q + r
            a(f"v_lshlrev_b32 v{vJ + i}, 2, v{vP + r}")
            a(f"v_mad_i32_i24 v{vO + i}, v{vP + r}, s{sM625}, v{vO + i}")
            a(f"ds_add_rtn_u32 v{vR + i}, v{vJ + i}, v{vOne} offset:{HIST}")
        for r in range(4):
            i = 4 * q + r
            a(f"v_lshl_or_b32 v{vO + i}, v{vO + i}, 11, v{vO + i}")
    for q in range(5):
        ld_issue(f"W{q}")
    a(f"""
    s_waitcnt lgkmcnt(0)
    s_barrier
    """)
    st("bar2")
    ld_issue("I3")
    ld_issue("I4")
    if P["mid"] == "scan":
        for q in range(10):
            ld_issue(f"M{q}")
    c, b, x, ln = vP, vP + 4, vP + 8, vP + 9
    a(f"""
    s_mov_b64 exec, -1
    v_and_b32 v{ln}, 63, v0
    v_lshlrev_b32 v{ln}, 4, v{ln}
    ds_read_b128 {vr(c, 4)}, v{ln} offset:{HIST}
    s_mov_b32 s{sX + 4}, {STG}
    s_waitcnt lgkmcnt(0)
    """)
    for k in range(4):
        a(f"v_add_u32 v{c + k}, 3, v{c + k}")
        a(f"v_lshrrev_b32 v{c + k}, 2, v{c + k}")
    a(f"""
    v_add_u32 v{b + 2}, v{c}, v{c + 1}
    v_add_u32 v{b + 3}, v{b + 2}, v{c + 2}
    v_add_u32 v{b}, v{b + 3}, v{c + 3}
    v_mov_b32 v{x}, v{b}
    s_nop 1
    v_add_u32_dpp v{x}, v{x}, v{x} row_shr:1 row_mask:0xf bank_mask:0xf
    s_nop 1
    v_add_u32_dpp v{x}, v{x}, v{x} row_shr:2 row_mask:0xf bank_mask:0xf
    s_nop 1
    v_add_u32_dpp v{x}, v{x}, v{x} row_shr:4 row_mask:0xf bank_mask:0xf
    s_nop 1
    v_add_u32_dpp v{x}, v{x}, v{x} row_shr:8 row_mask:0xf bank_mask:0xf
    s_nop 1
    v_add_u32_dpp v{x}, v{x}, v{x} row_bcast:15 row_mask:0xa bank_mask:0xf
    s_nop 1
    v_add_u32_dpp v{x}, v{x}, v{x} row_bcast:31 row_mask:0xc bank_mask:0xf
    v_sub_u32 v{b}, v{x}, v{b}
    v_add_u32 v{b + 1}, v{b}, v{c}
    v_add_u32 v{b + 2}, v{b}, v{b + 2}
    v_add_u32 v{b + 3}, v{b}, v{b + 3}
    v_readlane_b32 s{sX + 5}, v{x}, 63
    """)
    for k in range(4):
        a(f"v_lshl_or_b32 v{vSeg + k}, v{c + k}, 12, v{b + k}")
        a(f"v_mad_u32_u24 v{b + k}, v{b + k}, 20, s{sX + 4}")
    a(f"ds_write_b128 v{ln}, {vr(b, 4)} offset:{BASE}")
    for k in range(4):
        a(f"v_or_b32 v{vSeg + k}, 0x80000000, v{vSeg + k}")
    a(f"""
    s_mul_i32 s{SRW + 2}, s{sX + 5}, 20
    s_mov_b64 exec, s[{sAct}:{sAct + 1}]
    """)
    for i in range(20):
        a(f"ds_read_b32 v{vJ + i}, v{vJ + i} offset:{BASE}")
    ld_wait("Z")
    ld_issue("C")
    for q in range(5):
        ld_wait(f"A{q}")
        if P["mid"] == f"A{q}":
            for qq in range(10):
                ld_issue(f"M{qq}")
        if q == 0:
            a(f"""
            v_readfirstlane_b32 s{sX + 5}, v{vF}
            v_lshlrev_b32 v{vF}, 16, v{vF}
            """)
        if q in (0, 4):
            st(f"A{q}")
        t = vP

        def unpack():
            for p in range(2):
                d = vA + 2 * q + p
                a(f"v_lshlrev_b32 v{t + 2 * p}, 16, v{d}")
                a(f"v_and_b32 v{t + 2 * p + 1}, 0xffff0000, v{d}")

        unpack()
        a(f"""
        s_cmp_eq_u32 s{sX + 5}, 0x3f80
        s_cbranch_scc1 L_unit{q}
        """)
        for k in range(4):
            a(f"v_mul_f32 v{t + k}, v{vF}, v{t + k}")
        for p in range(2):
            a(f"v_cvt_pk_bf16_f32 v{vA + 2 * q + p}, v{t + 2 * p}, v{t + 2 * p + 1}")
        unpack()
        a(f"L_unit{q}:")
        for k in range(4):
            a(f"v_mul_f32 v{t + k}, 0.15915494, v{t + k}")
        for k in range(4):
            a(f"v_fract_f32 v{t + k}, v{t + k}")
        for k in range(4):
            a(f"v_cos_f32 v{t + k}, v{t + k}")
        a("s_nop 0")
        for p in range(2):
            a(f"v_cvt_pkrtz_f16_f32 v{vA + 2 * q + p}, v{t + 2 * p}, v{t + 2 * p + 1}")
        for p in range(2):
            a(f"v_add_u32 v{vA + 2 * q + p}, 0x40004, v{vA + 2 * q + p}")
        for p in range(2):
            a(f"v_and_b32 v{vA + 2 * q + p}, 0xbff8bff8, v{vA + 2 * q + p}")
    a("s_waitcnt lgkmcnt(0)")
    for i in range(20):
        a(f"v_mad_u32_u24 v{vR + i}, v{vR + i}, 5, v{vJ + i}")
        a(f"v_and_b32 v{vJ + i}, -4, v{vR + i}")
        a(f"v_and_b32 v{vR + i}, 3, v{vR + i}")
        a(f"v_mad_i32_i24 v{vR + i}, v{vR + i}, -3, v{vJ + i}")
    for q in range(5):
        ld_wait(f"I{q}")
        if P["mid"] == f"I{q}":
            for qq in range(10):
                ld_issue(f"M{qq}")
        if q in (0, 4):
            st(f"I{q}")
        for r in range(4):
            i = 4 * q + r
            a(f"v_bfe_u32 v{vP + r}, v{vO + i}, 4, 6")
            a(f"v_mad_u32_u16 v{vP + r}, v{vI + i}, 40, v{vP + r} op_sel:[1,0,0,0]")
            a(f"v_lshlrev_b32 v{vI + i}, 16, v{vI + i}")
            a(f"v_and_or_b32 v{vI + i}, v{vO + i}, s{sMask}, v{vI + i}")
            a(f"ds_write_b8 v{vR + i}, v{vP + r} offset:16")
            a(f"v_or_b32_sdwa v{vI + i}, v{vI + i}, v{vA + 2 * q + (r >> 1)} dst_sel:DWORD dst_unused:UNUSED_PAD src0_sel:DWORD src1_sel:WORD_{r & 1}")
            a(f"ds_write_b32 v{vJ + i}, v{vI + i}")
    vS = 64
    a(f"""
    s_mov_b64 exec, -1
    v_add_u32 v5, {STG}, v{vOff16}
    v_mov_b32 v{vP}, v{vOff16}
    s_waitcnt lgkmcnt(0)
    s_barrier
    """)
    st("bar3")
    for i in range(7):
        a(f"ds_read_b128 {vr(vS + 4 * i, 4)}, v5 offset:{i * 8192}")
    a(f"""
    s_mov_b64 exec, s[{sX}:{sX + 1}]
    ds_write_b128 v{vP}, {vr(vPar, 4)} offset:{HIST}
    ds_write_b128 v{vP}, {vr(vPar + 4, 4)} offset:{HIST + 1024}
    s_mov_b64 exec, -1
    """)
    for i in range(7):
        a(f"s_mov_b32 s{sX + 4}, {i * 8192}")
        a(f"s_waitcnt lgkmcnt({8 - i})")
        a(f"buffer_store_dwordx4 {vr(vS + 4 * i, 4)}, v{vP}, s[{SRW}:{SRW + 3}], s{sX + 4} offen {P['rec_st']}")
    st("stissued")

    def poll(mask):
        a(f"""
        s_mov_b32 exec_lo, {mask}
        s_mov_b32 exec_hi, 0
        buffer_load_dword v{vSegW}, v{vSegA}, s[{SSEG}:{SSEG + 3}], s{sJ4} offen sc1
        """)

    ld_issue("X")
    a(f"""
    s_mov_b64 exec, -1
    v_lshrrev_b32 v{vT}, 6, v0
    v_and_b32 v{vLane}, 63, v0
    v_and_b32 v{vT + 1}, 31, v0
    v_lshl_add_u32 v{vT + 2}, v{vT + 1}, 3, v{vT}
    v_lshlrev_b32 v{vSegA}, 10, v{vT + 2}
    s_lshl_b32 s{sJ4}, s{sJ}, 2
    v_mul_u32_u24 v{vCb}, {CS}, v{vT + 2}
    v_and_b32 v{vT + 6}, 15, v{vLane}
    v_lshrrev_b32 v{vT + 7}, 4, v{vLane}
    v_mul_u32_u24 v{vLL20}, 20, v{vT + 6}
    v_lshlrev_b32 v{vDw}, 7, v{vT}
    v_add_u32 v{vDw}, {DESC}, v{vDw}
    v_lshl_add_u32 v{vDr}, v{vT + 7}, 4, v{vDw}
    v_mul_u32_u24 v{vT + 8}, 80, v{vT}
    v_add_u32 v{vT + 8}, v{vT + 8}, v{vT + 6}
    v_lshlrev_b32 v{vMoff}, 5, v{vT + 8}
    v_lshl_add_u32 v{vMoff}, v{vT + 7}, 3, v{vMoff}
    v_cmp_gt_u32 vcc, {BK - 64}, v{vT + 8}
    v_mov_b32 v{vT + 9}, 0x7fffff00
    v_lshlrev_b32 v{vDoff}, 1, v{vT + 8}
    v_cndmask_b32 v{vOut4}, v{vT + 9}, v{vMoff}, vcc
    v_mov_b32 v{vZero}, 0
    v_mov_b32 v{vFour}, 4
    v_lshrrev_b32 v{vT + 5}, 1, v{vLane}
    v_lshlrev_b32 v{vLH4}, 2, v{vT + 5}
    v_and_b32 v{vHalf16}, 1, v{vLane}
    v_lshlrev_b32 v{vHalf16}, 4, v{vHalf16}
    v_bfe_u32 v{vT + 6}, v{vT + 5}, 2, 1
    v_bfe_u32 v{vT + 7}, v{vT + 5}, 4, 1
    v_lshl_add_u32 v{vT + 6}, v{vT + 7}, 1, v{vT + 6}
    v_and_b32 v{vT + 7}, 3, v{vT + 5}
    v_bfe_u32 v{vT + 8}, v{vT + 5}, 3, 1
    v_lshl_add_u32 v{vT + 7}, v{vT + 8}, 2, v{vT + 7}
    v_lshlrev_b32 v{vT + 7}, 1, v{vT + 7}
    v_lshl_add_u32 v{vSc}, v{vT + 6}, 8, v{vT + 7}
    v_lshlrev_b32 v{vT + 8}, 10, v{vT}
    v_add_u32 v{vT + 8}, {SB}, v{vT + 8}
    v_add_u32 v{vSc}, v{vSc}, v{vT + 8}
    v_lshl_add_u32 v{vSrd}, v{vLane}, 4, v{vT + 8}
    v_bfe_u32 v{vT + 6}, v{vLane}, 4, 1
    v_bfe_u32 v{vT + 7}, v{vLane}, 5, 1
    v_lshlrev_b32 v{vT + 7}, 4, v{vT + 7}
    v_lshl_add_u32 v{vT + 6}, v{vT + 6}, 2, v{vT + 7}
    v_bfe_u32 v{vT + 7}, v{vLane}, 2, 2
    v_add_u32 v{vT + 6}, v{vT + 6}, v{vT + 7}
    v_and_b32 v{vT + 7}, 3, v{vLane}
    v_lshlrev_b32 v{vT + 7}, 3, v{vT + 7}
    v_lshl_add_u32 v{vTr}, v{vT + 6}, 5, v{vT + 7}
    v_lshlrev_b32 v{vT + 8}, 12, v{vT}
    v_add_u32 v{vT + 8}, {RING}, v{vT + 8}
    v_add_u32 v{vTr}, v{vTr}, v{vT + 8}
    v_mul_u32_u24 v{vT + 6}, 52, v{vLane}
    v_lshrrev_b32 v{vT + 6}, 8, v{vT + 6}
    v_mul_u32_u24 v{vT + 8}, 5, v{vT + 6}
    v_sub_u32 v{vT + 8}, v{vLane}, v{vT + 8}
    v_lshlrev_b32 v{vT + 6}, 1, v{vT + 6}
    v_mov_b32 v{vT + 7}, {ORD[0] | ORD[1] << 2 | ORD[2] << 4}
    v_bfe_u32 v{vT + 6}, v{vT + 7}, v{vT + 6}, 2
    v_lshlrev_b32 v{vPh}, 21, v{vT + 6}
    v_mul_u32_u24 v{vT + 6}, 40, v{vT + 6}
    v_mul_u32_u24 v{vT + 7}, 5, v{vT}
    v_add3_u32 v{vT + 6}, v{vT + 6}, v{vT + 7}, v{vT + 8}
    v_add_u32 v{vT + 6}, 1, v{vT + 6}
    v_lshlrev_b32 v{vCntA}, 2, v{vT + 6}
    """)
    bin_addr(vBase, vT + 6, vT + 7)
    a(f"""
    v_cmp_lt_u32 vcc, 14, v{vLane}
    v_mov_b32 v{vT + 8}, {ZB}
    v_add_u32 v{vT + 6}, 1, v{vLane}
    v_cndmask_b32 v{vBase}, v{vBase}, v{vT + 8}, vcc
    v_cndmask_b32 v{vPh}, v{vPh}, v{vZero}, vcc
    v_cndmask_b32 v{vCntA}, v{vCntA}, v{vZero}, vcc
    """)
    bin_addr(vLim0, vT + 6, vT + 7)
    a(f"v_add_u32 v{vT + 6}, 65, v{vLane}")
    bin_addr(vLim1, vT + 6, vT + 7)
    a(f"""
    s_lshr_b32 s{sTk}, s2, 3
    s_lshl_b32 s{sTk}, s{sTk}, 3
    s_add_u32 s{sTk}, s{sTk}, s{sW}
    s_mul_i32 s{sTk}, s{sTk}, {128 * max(P["pf"], 1)}
    v_lshlrev_b32 v{vPfA}, 7, v{vLane}
    v_add_u32 v{vPfA}, s{sTk}, v{vPfA}
    v_mov_b32 v{vT + 8}, -1
    v_cmp_eq_u32 vcc, 0, v{vLane}
    v_cmp_lt_u32 s[{sTk}:{sTk + 1}], 56, v{vLane}
    s_nop 1
    v_cndmask_b32 v{vLim0}, v{vLim0}, v{vT + 8}, vcc
    v_cndmask_b32 v{vLim1}, v{vLim1}, v{vT + 8}, s[{sTk}:{sTk + 1}]
    """)
    cnt_init(vT, sTk)
    fill(vT + 4, SB, 10, RING)
    for k in range(20):
        a(f"v_mov_b32 v{vAcc + k}, 0")
    if P["stamps"]:
        a("s_mov_b32 s97, 0")
        a("s_mov_b64 s[100:101], 0")
    a(f"""
    s_mov_b32 s{sPend}, -1
    s_mov_b32 s{sReady}, 0
    s_mov_b32 s{sPrevN}, 0
    s_mov_b32 s{sLate}, s{sPre}
    s_mov_b32 s{sLate + 1}, s{sPre}
    s_mul_i32 s{sDo}, s{sJ}, {BK * 2}
    s_mul_i32 s{sMo}, s{sJ}, {BK * 32}
    s_waitcnt vmcnt(0) lgkmcnt(0)
    s_cmp_lg_u32 s{sW}, 7
    s_cbranch_scc1 L_ctr_ok
    L_ctr:
    """)
    ctr_sum(None)
    a(f"""
    s_cbranch_scc1 L_ctr_ok
    s_add_u32 s{sSpin}, s{sSpin}, 1
    s_cmp_gt_u32 s{sSpin}, {SPIN_MAX}
    s_cbranch_scc1 L_end
    s_sleep 2
    s_mov_b64 exec, 15
    buffer_load_dword v{vCtr}, v{vCtr + 1}, s[{SDBG}:{SDBG + 3}], 0 offen sc1
    s_mov_b64 exec, -1
    s_waitcnt vmcnt(0)
    s_branch L_ctr
    L_ctr_ok:
    s_mov_b32 s{sSpin}, 0
    """)
    st("drained")

    def late_loads():
        a(f"s_mov_b64 exec, s[{sLate}:{sLate + 1}]")
        for g in range(5):
            a(f"buffer_load_ushort v{vDist + g}, v{vDoff}, s[{SDIST}:{SDIST + 3}], s{sDo} offen offset:{32 * g}")
        for g in range(5):
            a(f"buffer_load_dwordx2 {vr(vMr + 2 * g, 2)}, v{vMoff}, s[{SM}:{SM + 3}], s{sMo} offen offset:{512 * g}")
        if P["pf"]:
            a(f"""
            s_and_b32 exec_hi, exec_hi, {-1 if P["pf"] == 64 else 0}
            buffer_load_dword v{vPfD}, v{vPfA}, s[{SM}:{SM + 3}], 0 offen
            """)
        a(f"s_mov_b64 s[{sLate}:{sLate + 1}], 0")

    a(f"""
    s_barrier
    s_mov_b64 exec, s[{sX}:{sX + 1}]
    buffer_store_dwordx4 {vr(vSeg, 4)}, v{vP}, s[{SSEG}:{SSEG + 3}], s{sX + 2} offen sc1
    """)
    st("pub")
    a("s_branch L_idle3")

    dbg = [0]

    def once(lane):
        if P["stamps"] != 1:
            return
        dbg[0] += 1
        a(f"""
        s_bitcmp1_b64 s[100:101], {lane}
        s_cbranch_scc1 L_once{dbg[0]}
        s_bitset1_b64 s[100:101], {lane}
        s_memrealtime s[98:99]
        s_waitcnt lgkmcnt(0)
        v_writelane_b32 v207, s98, {lane}
        L_once{dbg[0]}:
        """)

    def slot(bank, s):
        return vSlot + 6 * (4 * bank + s), sMk + 2 * (4 * bank + s)

    def rec_issue(bank, s):
        w, m = slot(bank, s)
        a(f"""
        s_mov_b64 exec, -1
        v_add_u32 v{w + 5}, v{vL0 + s}, v{vLL20}
        v_cmp_lt_u32 s[{m}:{m + 1}], v{vLL20}, v{vL1 + s}
        s_mov_b64 exec, s[{m}:{m + 1}]
        buffer_load_dwordx4 {vr(w, 4)}, v{w + 5}, s[{SREC}:{SREC + 3}], 0 offen {P["rec_ld"]}
        buffer_load_dword v{w + 4}, v{w + 5}, s[{SREC}:{SREC + 3}], 0 offen offset:16 {P["rec_ld"]}
        """)

    def process(bank, issue_bank, younger):
        for s in range(4):
            if issue_bank is not None:
                rec_issue(issue_bank, s)
            a(f"s_waitcnt vmcnt({younger(s)})")
            if s == 0:
                once(46)
            place_atomics(*slot(bank, s), vRk + 4 * (s & 1))
            if s > 0:
                a(f"s_waitcnt lgkmcnt({4 if s == 1 else 8})")
                place_writes(*slot(bank, s - 1), vRk + 4 * ((s - 1) & 1))
        a("s_waitcnt lgkmcnt(4)")
        place_writes(*slot(bank, 3), vRk + 4)

    for X in range(2):
        Y = 1 - X
        a(f"""
        L_top{X}:
        s_mov_b32 exec_lo, s{sPend}
        s_mov_b32 exec_hi, 0
        s_waitcnt vmcnt(8)
        v_cmp_gt_i32 vcc, 0, v{vSegW}
        s_and_b32 s{sTk}, s{sPend}, vcc_lo
        s_andn2_b32 s{sPend}, s{sPend}, s{sTk}
        s_mov_b32 exec_lo, s{sTk}
        v_and_b32 v{vT}, 0xfff, v{vSegW}
        v_bfe_u32 v{vT + 1}, v{vSegW}, 12, 12
        v_mad_u32_u24 v{vD0}, v{vT}, 20, v{vCb}
        v_mul_u32_u24 v{vHi}, 20, v{vT + 1}
        s_or_b32 s{sReady}, s{sReady}, s{sTk}
        s_cbranch_scc1 L_take{X}
        s_cmp_eq_u32 s{sPrevN}, 0
        s_cbranch_scc1 L_idle
        s_cmp_eq_u32 s{sPend}, 0
        s_cbranch_scc1 L_final{X}
        L_take{X}:
        """)
        if P["stamps"] == 1:
            a(f"""
            s_add_u32 s97, s97, 1
            s_memrealtime s[98:99]
            s_waitcnt lgkmcnt(0)
            s_mov_b32 s96, s98
            s_cmp_eq_u32 s97, 1
            s_cbranch_scc0 L_dbg{X}
            v_writelane_b32 v207, s98, 43
            s_bcnt1_i32_b32 s99, s{sReady}
            v_writelane_b32 v207, s99, 44
            L_dbg{X}:
            """)
        a(f"""
        s_mov_b32 exec_lo, 0xffff
        v_lshl_add_u32 v{vT + 3}, v{vLane}, 2, v{vDw}
        ds_write_b32 v{vT + 3}, v{vZero} offset:64
        s_mov_b32 exec_lo, s{sReady}
        v_mbcnt_lo_u32_b32 v{vT}, s{sReady}, 0
        v_cmp_gt_u32 vcc, 16, v{vT}
        s_and_b32 s{sCurN}, s{sReady}, vcc_lo
        s_mov_b32 exec_lo, s{sCurN}
        v_and_b32 v{vT + 2}, 3, v{vT}
        v_lshrrev_b32 v{vT}, 2, v{vT}
        v_min_u32 v{vT + 1}, 320, v{vHi}
        v_lshl_add_u32 v{vT}, v{vT + 2}, 2, v{vT}
        v_sub_u32 v{vHi}, v{vHi}, v{vT + 1}
        v_lshl_add_u32 v{vT}, v{vT}, 2, v{vDw}
        ds_write_b32 v{vT}, v{vD0}
        ds_write_b32 v{vT}, v{vT + 1} offset:64
        v_cmp_lt_u32 vcc, 0, v{vHi}
        v_add_u32 v{vD0}, 320, v{vD0}
        s_andn2_b32 s{sReady}, s{sReady}, s{sCurN}
        s_and_b32 s{sTk}, s{sCurN}, vcc_lo
        s_or_b32 s{sReady}, s{sReady}, s{sTk}
        s_mov_b64 exec, -1
        ds_read_b128 {vr(vL0, 4)}, v{vDr}
        ds_read_b128 {vr(vL1, 4)}, v{vDr} offset:64
        """)
        poll(f"s{sPend}")
        a(f"""
        s_cmp_eq_u32 s{sPrevN}, 0
        s_mov_b32 s{sPrevN}, s{sCurN}
        s_waitcnt lgkmcnt(0)
        s_cbranch_scc1 L_only{X}
        """)
        process(Y, X, lambda s: 9)
        a(f"s_branch L_top{Y}")
    for X in range(2):
        a(f"L_only{X}:")
        for s in range(4):
            rec_issue(X, s)
        a(f"s_branch L_top{1 - X}")
    for X in range(2):
        a(f"L_final{X}:")
        once(45)
        if P["lateat"] == "final":
            late_loads()
        process(1 - X, None, lambda s: 2 * (3 - s) + (10 + (1 if P["pf"] else 0) if P["lateat"] == "final" else 0))
        a("s_branch L_taken")
    a(f"""
    L_idle:
    s_cmp_eq_u32 s{sPend}, 0
    s_cbranch_scc1 L_idle_late
    s_cmp_lt_u32 s{sSpin}, {P["latespin"]}
    s_cbranch_scc1 L_idle2
    L_idle_late:
    """)
    if P["lateat"] == "final":
        late_loads()
    a(f"""
    s_cmp_eq_u32 s{sPend}, 0
    s_cbranch_scc1 L_taken
    L_idle2:
    s_add_u32 s{sSpin}, s{sSpin}, 1
    s_cmp_gt_u32 s{sSpin}, {SPIN_MAX}
    s_cbranch_scc1 L_end
    s_sleep {P["sleep"]}
    L_idle3:
    """)
    poll(f"s{sPend}")
    a(f"""
    s_waitcnt vmcnt(0)
    s_branch L_top0
    L_taken:
    s_mov_b64 exec, -1
    s_mov_b32 s{sLast}, 1
    s_mov_b32 s{sFirst}, 1
    s_movk_i32 s{sF0}, 0xf0
    s_movk_i32 s{s70}, 0x70
    s_lshl_b32 s{sRingB}, s{sW}, 12
    s_add_u32 s{sRingB}, s{sRingB}, {RING}
    s_mul_i32 s{sRowOff}, s{sJ}, {BK * 32}
    v_lshlrev_b32 v{vT}, 2, v{vLane}
    s_waitcnt lgkmcnt(0)
    """)
    st("intake")
    if P["stamps"] == 1:
        a(f"v_writelane_b32 v207, s{sSpin}, 40")
        a("v_writelane_b32 v207, s97, 41")
        a("v_writelane_b32 v207, s96, 42")
    a("s_barrier")
    st("bar5")
    a(f"""
    ds_read_b32 v{vT + 1}, v{vT} offset:{CNT}
    ds_read_b32 v{vT + 2}, v{vT} offset:{CNT + 256}
    ds_read_b32 v{vEnd}, v{vCntA} offset:{CNT}
    s_waitcnt lgkmcnt(1)
    v_cmp_gt_u32 vcc, v{vT + 1}, v{vLim0}
    v_cmp_gt_u32 s[{sT}:{sT + 1}], v{vT + 2}, v{vLim1}
    s_or_b64 vcc, vcc, s[{sT}:{sT + 1}]
    """)
    if P["force_slow"]:
        a("s_cmp_eq_u32 0, 0")
    a(f"""
    s_cbranch_scc0 L_G
    s_mov_b32 s{sSC}, 0
    s_mov_b32 s{sSU}, 0
    s_mov_b32 s{sLast}, 0
    L_slow:
    s_waitcnt vmcnt(0) lgkmcnt(0)
    s_barrier
    """)
    cnt_init(vT, sT)
    fill(vT + 4, SB, 10, RING)
    a(f"""
    s_waitcnt lgkmcnt(0)
    s_barrier
    s_cmp_lt_u32 s{sSC}, {NCH}
    s_cbranch_scc1 L_slow_unit
    s_mov_b32 s{sLast}, 1
    s_branch L_slow_go
    L_slow_unit:
    s_lshl_b32 s{sT}, s{sSC}, 10
    s_lshl_b32 s{sT + 1}, s{sJ}, 2
    s_add_u32 s{sT}, s{sT}, s{sT + 1}
    buffer_load_dword v{vT}, v{vZero}, s[{SSEG}:{SSEG + 3}], s{sT} offen sc1
    s_waitcnt vmcnt(0)
    v_readfirstlane_b32 s{sT + 2}, v{vT}
    s_and_b32 s{sT + 1}, s{sT + 2}, 0xfff
    s_mul_i32 s{sT + 1}, s{sT + 1}, 20
    s_bfe_u32 s{sT + 2}, s{sT + 2}, 0xc000c
    s_mul_i32 s{sT + 2}, s{sT + 2}, 20
    s_mul_i32 s{sT + 3}, s{sSC}, {CS}
    s_add_u32 s{sT + 3}, s{sT + 3}, s{sT + 1}
    s_add_u32 s{sT + 3}, s{sT + 3}, s{sSU}
    s_sub_u32 s{sT + 4}, s{sT + 2}, s{sSU}
    s_min_u32 s{sT + 4}, s{sT + 4}, 480
    s_cmp_lg_u32 s{sW}, 0
    s_cbranch_scc1 L_slow_adv
    v_mul_u32_u24 v{vT}, 20, v{vLane}
    v_cmp_gt_u32 s[{sT + 6}:{sT + 7}], s{sT + 4}, v{vT}
    s_mov_b64 exec, s[{sT + 6}:{sT + 7}]
    buffer_load_dwordx4 {vr(vSlot, 4)}, v{vT}, s[{SREC}:{SREC + 3}], s{sT + 3} offen sc1
    buffer_load_dword v{vSlot + 4}, v{vT}, s[{SREC}:{SREC + 3}], s{sT + 3} offen offset:16 sc1
    s_waitcnt vmcnt(0)
    """)
    place_atomics(vSlot, sT + 6, vRk)
    a("s_waitcnt lgkmcnt(0)")
    place_writes(vSlot, sT + 6, vRk)
    a(f"""
    s_mov_b64 exec, -1
    L_slow_adv:
    s_add_u32 s{sSU}, s{sSU}, 480
    s_cmp_lt_u32 s{sSU}, s{sT + 2}
    s_cbranch_scc1 L_slow_go
    s_add_u32 s{sSC}, s{sSC}, 1
    s_mov_b32 s{sSU}, 0
    L_slow_go:
    s_waitcnt lgkmcnt(0)
    s_barrier
    ds_read_b32 v{vEnd}, v{vCntA} offset:{CNT}
    L_G:
    v_cmp_lt_u32 vcc, 14, v{vLane}
    v_add_u32 v{vT + 1}, 128, v{vBase}
    s_mov_b32 s{sCur}, 0
    s_waitcnt lgkmcnt(0)
    v_cndmask_b32 v{vEnd}, v{vEnd}, v{vT + 1}, vcc
    v_cmp_gt_u32 vcc, v{vEnd}, v{vBase}
    v_sub_u32 v{vEnd}, v{vEnd}, v{vBase}
    v_add_u32 v{vEnd}, 127, v{vEnd}
    v_and_b32 v{vEnd}, 0xffffff80, v{vEnd}
    v_add_u32 v{vEnd}, v{vEnd}, v{vBase}
    s_and_b32 s{sNE}, vcc_lo, 0x7fff
    """)

    def next_bin():
        a(f"""
        s_ff1_i32_b32 s{sL}, s{sNE}
        s_bitset0_b32 s{sNE}, s{sL}
        v_readlane_b32 s{sIA}, v{vBase}, s{sL}
        v_readlane_b32 s{sIE}, v{vEnd}, s{sL}
        v_readlane_b32 s{sIP}, v{vPh}, s{sL}
        """)

    next_bin()
    for k in range(D):
        a(f"""
        s_mov_b32 s{sT + k}, s{sIP}
        s_nop 0
        v_add_u32 v{vT + k}, s{sIA}, v{vLH4}
        ds_read_b32 v{vT + k}, v{vT + k}
        s_add_u32 s{sIA}, s{sIA}, 128
        s_cmp_lg_u32 s{sIA}, s{sIE}
        s_cbranch_scc1 L_pro{k}
        """)
        next_bin()
        a(f"L_pro{k}:")
    for k in range(D):
        a(f"""
        s_add_u32 m0, s{sRingB}, {k * 1024}
        s_waitcnt lgkmcnt({D - 1 - k})
        v_mad_u32_u16 v{vT + k}, v{vT + k}, 32, v{vHalf16} op_sel:[1,0,0,0]
        buffer_load_dwordx4 v{vT + k}, s[{SM}:{SM + 3}], s{sT + k} offen {P["gather"]} lds
        """)
    def gates(tag):
        a(f"""
        s_cmp_eq_u32 s{sFirst}, 0
        s_cbranch_scc1 L_gates_done
        s_mov_b32 s{sFirst}, 0
        """)
        a(f"""
        v_and_b32 v{vT + 4}, 15, v{vLane}
        v_lshrrev_b32 v{vT + 5}, 4, v{vLane}
        v_lshlrev_b32 v{vT + 4}, 1, v{vT + 4}
        v_lshl_add_u32 v{vT + 6}, v{vT + 5}, 6, v{vT + 4}
        v_lshl_add_u32 v{vT + 4}, v{vT + 5}, 7, v{vT + 4}
        v_lshlrev_b32 v{vT + 5}, 2, v{vT + 5}
        """)
        for k in range(4):
            a(f"ds_read_u16 v{vWraw + k}, v{vT + 4} offset:{HIST + 32 * k}")
            a(f"ds_read_u16 v{vWraw + 4 + k}, v{vT + 4} offset:{HIST + 512 + 32 * k}")
        for k in range(2):
            a(f"ds_read_u16 v{vWraw + 8 + k}, v{vT + 6} offset:{HIST + 1024 + 32 * k}")
            a(f"ds_read_u16 v{vWraw + 10 + k}, v{vT + 6} offset:{HIST + 1280 + 32 * k}")
        a(f"""
        ds_read_b32 v{vCen}, v{vT + 5} offset:{HIST + 1536}
        s_waitcnt vmcnt({D}) lgkmcnt(0)
        v_lshl_or_b32 v{vWd}, v{vWraw + 1}, 16, v{vWraw}
        v_lshl_or_b32 v{vWd + 1}, v{vWraw + 3}, 16, v{vWraw + 2}
        v_lshl_or_b32 v{vWu}, v{vWraw + 5}, 16, v{vWraw + 4}
        v_lshl_or_b32 v{vWu + 1}, v{vWraw + 7}, 16, v{vWraw + 6}
        v_lshl_or_b32 v{vWs}, v{vWraw + 9}, 16, v{vWraw + 8}
        v_lshl_or_b32 v{vWr}, v{vWraw + 11}, 16, v{vWraw + 10}
        v_mov_b32 v{vWd + 2}, v{vWd}
        v_mov_b32 v{vWd + 3}, v{vWd + 1}
        v_mov_b32 v{vWu + 2}, v{vWu}
        v_mov_b32 v{vWu + 3}, v{vWu + 1}
        v_mov_b32 v{vWs + 1}, 0
        v_mov_b32 v{vWr + 1}, 0
        v_mov_b32 v{vRb + 1}, 0
        v_mov_b32 v{vRb + 3}, 0
        v_and_b32 v{vCen + 1}, 0xffff0000, v{vCen}
        v_lshlrev_b32 v{vCen}, 16, v{vCen}
        """)
        for g in range(5):
            t = vT + 4
            rb = vRb + 2 * (g & 1)
            a(f"""
            v_lshlrev_b32 v{t + 2}, 16, v{vDist + g}
            v_sub_f32 v{t}, v{t + 2}, v{vCen}
            v_sub_f32 v{t + 1}, v{t + 2}, v{vCen + 1}
            v_cvt_pk_bf16_f32 v{t + 2}, v{t}, v{t + 1}
            v_lshlrev_b32 v{t}, 16, v{t + 2}
            v_and_b32 v{t + 1}, 0xffff0000, v{t + 2}
            v_mul_f32 v{t}, v{t}, v{t}
            v_mul_f32 v{t + 1}, v{t + 1}, v{t + 1}
            v_cvt_pk_bf16_f32 v{t + 2}, v{t}, v{t + 1}
            v_lshlrev_b32 v{t}, 16, v{t + 2}
            v_and_b32 v{t + 1}, 0xffff0000, v{t + 2}
            v_mul_f32 v{t}, 0xc1200000, v{t}
            v_mul_f32 v{t + 1}, 0xc1200000, v{t + 1}
            v_cvt_pk_bf16_f32 v{t + 2}, v{t}, v{t + 1}
            v_lshlrev_b32 v{t}, 16, v{t + 2}
            v_and_b32 v{t + 1}, 0xffff0000, v{t + 2}
            v_mul_f32 v{t}, 0x3fb8aa3b, v{t}
            v_mul_f32 v{t + 1}, 0x3fb8aa3b, v{t + 1}
            v_exp_f32 v{t}, v{t}
            v_exp_f32 v{t + 1}, v{t + 1}
            s_nop 0
            v_cvt_pk_bf16_f32 v{rb}, v{t}, v{t + 1}
            s_nop 1
            v_mfma_f32_16x16x16_bf16 {vr(vG + 4 * g, 4)}, {vr(vWs, 2)}, {vr(rb, 2)}, 0
            v_mfma_f32_16x16x16_bf16 {vr(vH + 4 * g, 4)}, {vr(vWr, 2)}, {vr(rb, 2)}, 0
            """)
        a("L_gates_done:")
        st("GH")

    a(f"s_movk_i32 s{sPrev}, {D * 1024}")
    st("Gissued")
    if P["lateat"] == "g0":
        late_loads()
        a("s_mov_b64 exec, -1")
    if P["lateat"] == "final":
        gates(0)
    a("L_main:")

    def split(src, dst, t):
        a(f"""
        v_cvt_pk_bf16_f32 v{dst}, v{src}, v{src + 1}
        v_cvt_pk_bf16_f32 v{dst + 1}, v{src + 2}, v{src + 3}
        v_lshlrev_b32 v{t}, 16, v{dst}
        v_and_b32 v{t + 1}, 0xffff0000, v{dst}
        v_lshlrev_b32 v{t + 2}, 16, v{dst + 1}
        v_and_b32 v{t + 3}, 0xffff0000, v{dst + 1}
        v_sub_f32 v{t}, v{src}, v{t}
        v_sub_f32 v{t + 1}, v{src + 1}, v{t + 1}
        v_sub_f32 v{t + 2}, v{src + 2}, v{t + 2}
        v_sub_f32 v{t + 3}, v{src + 3}, v{t + 3}
        v_cvt_pk_bf16_f32 v{dst + 2}, v{t}, v{t + 1}
        v_cvt_pk_bf16_f32 v{dst + 3}, v{t + 2}, v{t + 3}
        s_nop 1
        """)

    ring_adv = f"s_mov_b32 s{sPrev}, s{sCur}" if D == R - 1 else f"s_add_u32 s{sPrev}, s{sPrev}, 1024\ns_and_b32 s{sPrev}, s{sPrev}, {R * 1024 - 1}"
    for p in range(3):
        for g in range(5):
            b = p * 5 + g
            acc = vAcc + 4 * g
            a(f"""
            v_readlane_b32 s{sC}, v{vBase}, {b}
            v_readlane_b32 s{sCE}, v{vEnd}, {b}
            s_cmp_eq_u32 s{sC}, s{sCE}
            s_cbranch_scc1 L_bin{b}_done
            L_bin{b}:
            s_add_u32 m0, s{sRingB}, s{sPrev}
            v_add_u32 v{vT}, s{sIA}, v{vLH4}
            v_add_u32 v{vT + 1}, s{sC}, v{vLH4}
            ds_read_b32 v{vT}, v{vT}
            ds_read_b32 v{vT + 1}, v{vT + 1}
            v_add_u32 v{vT + 3}, s{sCur}, v{vTr}
            {ring_adv}
            s_add_u32 s{sCur}, s{sCur}, 1024
            s_and_b32 s{sCur}, s{sCur}, {R * 1024 - 1}
            s_add_u32 s{sC}, s{sC}, 128
            s_add_u32 s{sIA}, s{sIA}, 128
            s_cmp_eq_u32 s{sIA}, s{sIE}
            s_waitcnt lgkmcnt(1)
            v_mad_u32_u16 v{vT}, v{vT}, 32, v{vHalf16} op_sel:[1,0,0,0]
            buffer_load_dwordx4 v{vT}, s[{SM}:{SM + 3}], s{sIP} offen {P["gather"]} lds
            s_cbranch_scc1 L_nb{b}
            L_nb{b}_back:
            s_waitcnt lgkmcnt(0)
            v_and_b32 v{vT + 2}, 0xbff8, v{vT + 1}
            v_lshlrev_b32 v{vT + 4}, 4, v{vT + 1}
            v_lshrrev_b32 v{vT + 5}, 7, v{vT + 1}
            v_cvt_f32_f16 v{vT + 2}, v{vT + 2}
            v_bfi_b32 v{vT + 4}, s{s70}, v{vT + 4}, v{vT + 5}
            v_and_or_b32 v{vT + 4}, v{vT + 4}, s{sF0}, v{vSc}
            ds_write_b16_d16_hi v{vT + 4}, v{vT + 2}
            ds_read_b128 {vr(vSt, 4)}, v{vSrd}
            ds_write_b16 v{vT + 4}, v{vZero}
            s_waitcnt vmcnt({D})
            ds_read_b64_tr_b16 {vr(vMt, 2)}, v{vT + 3}
            ds_read_b64_tr_b16 {vr(vMt + 2, 2)}, v{vT + 3} offset:256
            s_cmp_lg_u32 s{sC}, s{sCE}
            s_waitcnt lgkmcnt(0)
            v_mfma_f32_16x16x32_bf16 {vr(acc, 4)}, {vr(vMt, 4)}, {vr(vSt, 4)}, {vr(acc, 4)}
            s_cbranch_scc1 L_bin{b}
            L_bin{b}_done:
            """)
            if g == 4 or b == 0:
                st(f"bin{b}")
            if P["lateat"] == f"b{b}":
                late_loads()
                a("s_mov_b64 exec, -1")
            if P["lateat"] != "final" and b == P["ghat"]:
                gates(0)
            if p == 2:
                x, y, t = vT + 4, vT + 8, vT + 12
                a(f"""
                s_cmp_eq_u32 s{sLast}, 0
                s_cbranch_scc1 L_epi{g}_done
                s_nop 5
                """)
                split(acc, x, t)
                a(f"""
                v_mfma_f32_16x16x32_bf16 {vr(y, 4)}, {vr(vWd, 4)}, {vr(x, 4)}, 0
                s_nop 7
                v_mul_f32 v{y}, v{y}, v{vG + 4 * g}
                v_mul_f32 v{y + 1}, v{y + 1}, v{vG + 4 * g + 1}
                v_mul_f32 v{y + 2}, v{y + 2}, v{vG + 4 * g + 2}
                v_mul_f32 v{y + 3}, v{y + 3}, v{vG + 4 * g + 3}
                """)
                split(y, x, t)
                mr = vMr + 2 * g
                a(f"""
                v_mfma_f32_16x16x32_bf16 {vr(y, 4)}, {vr(vWu, 4)}, {vr(x, 4)}, 0
                v_lshlrev_b32 v{t}, 16, v{mr}
                v_and_b32 v{t + 1}, 0xffff0000, v{mr}
                v_lshlrev_b32 v{t + 2}, 16, v{mr + 1}
                v_and_b32 v{t + 3}, 0xffff0000, v{mr + 1}
                s_nop 3
                v_fmac_f32 v{t}, v{y}, v{vH + 4 * g}
                v_fmac_f32 v{t + 1}, v{y + 1}, v{vH + 4 * g + 1}
                v_fmac_f32 v{t + 2}, v{y + 2}, v{vH + 4 * g + 2}
                v_fmac_f32 v{t + 3}, v{y + 3}, v{vH + 4 * g + 3}
                v_cvt_pk_bf16_f32 v{mr}, v{t}, v{t + 1}
                v_cvt_pk_bf16_f32 v{mr + 1}, v{t + 2}, v{t + 3}
                buffer_store_dwordx2 {vr(mr, 2)}, v{vOut4 if g == 4 else vMoff}, s[{SOUT}:{SOUT + 3}], s{sRowOff} offen offset:{512 * g} {P["out_st"]}
                L_epi{g}_done:
                """)
    a(f"""
    s_cmp_eq_u32 s{sLast}, 0
    s_cbranch_scc1 L_slow
    """)
    if P["stamps"]:
        a("s_waitcnt vmcnt(0)")
    st("end")
    if P["stamps"] == 3:
        a(f"""
        s_cmp_lg_u32 s2, {P["dbgwg"]}
        s_cbranch_scc1 L_end
        s_cmp_lg_u32 s{sW}, {P["dbgw"]}
        s_cbranch_scc1 L_end
        v_readlane_b32 s98, v207, 0
        s_mov_b64 exec, 0xfffe
        v_subrev_u32 v207, s98, v207
        v_lshlrev_b32 v{vT}, 2, v{vLane}
        buffer_store_dword v207, v{vT}, s[{SDBG}:{SDBG + 3}], 0 offen
        """)
        print("names:", ",".join(st.names), file=sys.stderr)
    else:
        st.flush(SSEG, "s2", vT)
    a("""
    L_end:
    s_endpgm
    """)
    for b in range(15):
        a(f"L_nb{b}:")
        next_bin()
        a(f"s_branch L_nb{b}_back")
    a("L_code_end:")
    return a.text(), 256, 102, LDS


def generate(**kw):
    P = dict(DEFAULTS)
    P.update(kw)
    body, nv, ns, lds = gen(P)
    n = NAME + "_kernel"
    out = HEADER
    out += f"; @launch grid=({NCH},1,1) block=(512,1,1) lds={lds}\n"
    out += '.amdgcn_target "amdgcn-amd-amdhsa--gfx950"\n.text\n'
    out += f".globl {n}\n.p2align 8\n.type {n},@function\n{n}:\n{body}"
    out += '.section .rodata,"a"\n.p2align 6\n' + descriptor(n, nv, ns)
    return out


if __name__ == "__main__":
    path = sys.argv[1]
    kw = {}
    for arg in sys.argv[2:]:
        k, v = arg.split("=", 1)
        kw[k] = int(v) if v.lstrip("-").isdigit() else v
    open(path, "w").write(generate(**kw))
```

```python
import sys
from gen import Asm, vr, srd, Stamps, descriptor, NAME, E, T, NCH, CH, BK, WS_SEG

SPIN_MAX = 1 << 18
CS = 53888


DEFAULTS = dict(
    D=2,
    in_ld="nt",
    rec_st="sc1",
    rec_ld="",
    out_st="",
    gather="",
    sleep=4,
    xl=1,
    latespin=2,
    psh=16,
    order="o201",
    sched="s2a",
    split=4,
    prio="",
    al=0,
    wb=0,
    alpad=0,
    lateat="final",
    ghat=9,
    ipf=5,
    stamps=0,
    dbgwg=100,
    dbgw=5,
    force_slow=0,
)

HEADER = """; Kernarg layout for this problem (112 bytes, ptrs only, base s[0:1]):
;
"""


def gen(P):
    a = Asm()
    D = P["D"]
    R = 4
    ORD = [int(ch) for ch in str(P["order"]).lstrip("o")]
    PSH = P["psh"]
    CAPS = {16: (160, 160, 96), 15: (96,) * 5}[PSH]
    NP = len(CAPS)
    NB = 40 * NP
    CNT, HIST, BASE, DESC, SB, TRASH, AB = 0, 1024, 2048, 3072, 4096, 12288, 15360
    ZB = AB + 40 * 4 * sum(CAPS)
    RING = ZB + 128
    STG = RING
    LDS = -(-(STG + 7 * 8192) // 1280) * 1280
    NFILL = -(-(RING - SB) // 8192)
    assert LDS <= 163840 and len(ORD) == NP
    sJ = 3
    SO, SI, SA, SRW, SSEG, SREC, SM, SOUT, SDIST, SDBG = 4, 8, 12, 16, 20, 24, 28, 32, 36, 40
    pM, pI, pO, pDist, pAng, pCen, pFreq, pWr, pWs, pWd, pWu, pOut, pDbg, pWsp = range(44, 72, 2)
    sOff, sOffA = 72, 77
    sC625, sM625, sPre, sMask, sAct, sW, sSpin, sX = 82, 83, 84, 85, 86, 88, 89, 90
    sMk = 44
    sPend, sReady, sPrevN, sCurN, sJ4, sTk, sEarly = 60, 61, 62, 63, 64, 66, 68
    sLate, sDo, sMo = 74, 72, 73
    sLast, sFirst, sSC, sSU = 83, 84, 85, 86
    sF0, s70, sRingB, sPrev, sCur, sRowOff = 44, 45, 46, 47, 48, 49
    sNE, sL, sIA, sIE, sIP, sC, sCE = 50, 51, 52, 53, 54, 55, 56
    sT = 58
    st = Stamps(a, P, 0, 207, 98)
    vOff16, vOff8, vOne, vF = 1, 2, 3, 4
    vO, vI, vA, vJ, vR = 8, 28, 48, 58, 78
    vP = 98
    vSeg = 112
    vPar = 116
    vCtr = 124
    vLane, vLL20, vFour, vZero = 1, 2, 3, 4
    vLH4, vHalf16, vSc, vSrd, vTr, vBase, vCntA, vEnd, vPh = 5, 6, 7, 8, 9, 10, 11, 12, 13
    vMoff, vOut4 = 14, 15
    vT = 16
    vSlot = 32
    vRk = 80
    vL0, vL1 = 88, 92
    vD0, vHi, vSegA, vCb, vSegW, vDw, vDr, vDoff, vLim = range(100, 109)
    vAcc = 132
    vG, vH = 152, 172
    vMr = 192
    vDist = 202
    vWraw = 208
    vCen = 220
    vWd, vWu = 224, 228
    vWs, vWr, vRb = 232, 234, 236
    vMt, vSt = 240, 244
    vQ = 248

    def bin_addr(dst, k, tmp):
        a(f"""
        v_mul_u32_u24 v{dst}, {CAPS[0] * 4}, v{k}
        v_add_u32 v{dst}, {AB - CAPS[0] * 4}, v{dst}
        """)
        if CAPS[-1] != CAPS[0]:
            a(f"""
            v_mul_u32_u24 v{tmp}, {CAPS[-1] * 4}, v{k}
            v_add_u32 v{tmp}, {AB + (NB - 40) * CAPS[0] * 4 - (NB - 39) * CAPS[-1] * 4}, v{tmp}
            v_min_u32 v{dst}, v{dst}, v{tmp}
            """)

    def cnt_init(t, stmp):
        bin_addr(t, 0, t + 1)
        a(f"""
        v_mov_b32 v{t + 1}, {TRASH}
        v_cmp_eq_u32 vcc, 0, v0
        v_mov_b32 v{t + 2}, 0
        v_lshlrev_b32 v{t + 3}, 2, v0
        v_cndmask_b32 v{t}, v{t}, v{t + 1}, vcc
        v_cmp_lt_u32 vcc, {NB}, v0
        s_nop 1
        v_cndmask_b32 v{t}, v{t}, v{t + 2}, vcc
        v_cmp_gt_u32 vcc, 256, v0
        s_and_saveexec_b64 s[{stmp}:{stmp + 1}], vcc
        ds_write_b32 v{t + 3}, v{t} offset:{CNT}
        s_mov_b64 exec, s[{stmp}:{stmp + 1}]
        """)

    def fill(t, start, rounds, clip=None):
        a(f"""
        v_lshlrev_b32 v{t}, 4, v0
        v_mov_b32 v{vQ}, 0
        v_mov_b32 v{vQ + 1}, 0
        v_mov_b32 v{vQ + 2}, 0
        v_mov_b32 v{vQ + 3}, 0
        v_add_u32 v{t}, {start}, v{t}
        v_add_u32 v{t + 1}, 65536, v{t}
        """)
        if clip:
            a(f"v_cmp_gt_u32 vcc, {(clip - start - (rounds - 1) * 8192) // 16}, v0")
        for i in range(rounds):
            if clip and i == rounds - 1:
                a("s_mov_b64 exec, vcc")
            a(f"ds_write_b128 v{t + (i >> 3)}, {vr(vQ, 4)} offset:{(i & 7) * 8192}")
        if clip:
            a("s_mov_b64 exec, -1")

    def place_atomics(w, m, t):
        a(f"s_mov_b64 exec, s[{m}:{m + 1}]")
        for r in range(4):
            a(f"v_lshlrev_b32_sdwa v{t + r}, 2, v{w + 4} dst_sel:DWORD dst_unused:UNUSED_PAD src0_sel:DWORD src1_sel:BYTE_{r}")
            a(f"ds_add_rtn_u32 v{t + r}, v{t + r}, v{vFour} offset:{CNT}")

    def place_writes(w, m, t):
        a(f"s_mov_b64 exec, s[{m}:{m + 1}]")
        for r in range(4):
            a(f"ds_write_b32 v{t + r}, v{w + r}")

    def ctr_sum(lab_ok):
        a(f"""
        v_readlane_b32 s{sX + 4}, v{vCtr}, 0
        v_readlane_b32 s{sX + 5}, v{vCtr}, 1
        s_add_u32 s{sX + 4}, s{sX + 4}, s{sX + 5}
        v_readlane_b32 s{sX + 5}, v{vCtr}, 2
        s_add_u32 s{sX + 4}, s{sX + 4}, s{sX + 5}
        v_readlane_b32 s{sX + 5}, v{vCtr}, 3
        s_add_u32 s{sX + 4}, s{sX + 4}, s{sX + 5}
        s_cmp_ge_u32 s{sX + 4}, {NCH}
        """)

    ld = P["in_ld"]
    a(f"""
    s_cmp_ge_u32 s2, {NCH}
    s_cbranch_scc1 L_end
    """)
    st("start")
    a(f"""
    s_load_dwordx16 s[44:59], s[0:1], 0
    s_load_dwordx8 s[60:67], s[0:1], 64
    s_load_dwordx4 s[68:71], s[0:1], 96
    """)
    if P["ipf"]:
        a(f"""
        s_getpc_b64 s[96:97]
        s_lshr_b32 s{sX}, s2, 3
        s_mul_i32 s{sX}, s{sX}, {P["ipf"]}
        v_add_u32 v1, s{sX}, v0
        v_min_u32 v1, (L_code_end - {NAME}_kernel - 256) / 128, v1
        v_lshlrev_b32 v1, 7, v1
        v_cmp_gt_u32 vcc, {P["ipf"]}, v0
        s_and_saveexec_b64 s[{sX}:{sX + 1}], vcc
        s_cbranch_execz L_noipf
        global_load_dword v130, v1, s[96:97]
        L_noipf:
        s_mov_b64 exec, s[{sX}:{sX + 1}]
        """)
    a(f"""
    v_lshlrev_b32 v{vOff16}, 4, v0
    v_lshlrev_b32 v{vOff8}, 3, v0
    v_lshlrev_b32 v5, 2, v0
    v_mov_b32 v6, 0
    v_mov_b32 v{vOne}, 1
    v_lshrrev_b32 v7, 6, v0
    s_mul_i32 s{sOff}, s2, {CH * 4}
    s_mul_i32 s{sOffA}, s2, {CH * 2}
    v_readfirstlane_b32 s{sW}, v7
    ds_write_b32 v5, v6 offset:{HIST}
    """)
    for q in range(1, 5):
        a(f"s_add_u32 s{sOff + q}, s{sOff}, {q * 8000}")
        a(f"s_add_u32 s{sOffA + q}, s{sOffA}, {q * 4000}")
    if P["xl"]:
        a(f"""
        s_and_b32 s{sJ}, s2, 7
        s_lshl_b32 s{sJ}, s{sJ}, 5
        s_lshr_b32 s{sX}, s2, 3
        s_add_u32 s{sJ}, s{sJ}, s{sX}
        """)
    else:
        a(f"s_mov_b32 s{sJ}, s2")
    a(f"""
    s_mov_b32 s{sC625}, 6871948
    s_mov_b32 s{sM625}, -{BK}
    s_mov_b32 s{sMask}, 0x4007
    s_mov_b32 s{sSpin}, 0
    v_cmp_gt_u32 vcc, 500, v0
    s_lshl_b32 s{sX + 2}, s2, 10
    s_cmp_eq_u32 s{sW}, 0
    s_cselect_b64 s[{sX}:{sX + 1}], -1, 0
    s_waitcnt lgkmcnt(0)
    """)
    srd(a, SO, f"s{pO}", f"s{pO + 1}", T * 4)
    srd(a, SM, f"s{pM}", f"s{pM + 1}", E * 32)
    srd(a, SDIST, f"s{pDist}", f"s{pDist + 1}", E * 2)
    a(f"""
    s_barrier
    s_mov_b64 s[{sAct}:{sAct + 1}], vcc
    s_mov_b64 exec, vcc
    """)
    issued = []

    def ld_issue(name):
        k, q = name[0], int(name[1:] or 0)
        act = f"s_mov_b64 exec, s[{sAct}:{sAct + 1}]"
        if k == "F":
            a(f"global_load_ushort v{vF}, v6, s[{pFreq}:{pFreq + 1}]")
        elif k == "O":
            a(f"buffer_load_dwordx4 {vr(vO + 4 * q, 4)}, v{vOff16}, s[{SO}:{SO + 3}], s{sOff + q} offen {ld}")
        elif k == "A":
            a(f"buffer_load_dwordx2 {vr(vA + 2 * q, 2)}, v{vOff8}, s[{SA}:{SA + 3}], s{sOffA + q} offen {ld}")
        else:
            a(f"buffer_load_dwordx4 {vr(vI + 4 * q, 4)}, v{vOff16}, s[{SI}:{SI + 3}], s{sOff + q} offen {ld}")
        issued.append(name)

    def wave0(tag, body):
        a(f"""
        s_cmp_lg_u32 s{sW}, 0
        s_cbranch_scc1 L_w0{tag}
        """)
        body()
        a(f"""
        s_mov_b64 exec, s[{sAct}:{sAct + 1}]
        L_w0{tag}:
        """)

    def row_clear():
        a(f"buffer_store_dwordx4 {vr(vQ, 4)}, v{vOff16}, s[{SSEG}:{SSEG + 3}], s{sX + 2} offen sc1")

    def weights():
        for lo, hi, dst, ptr, off in ((-1, 0, 0, pWd, 0), (0, -1, 0, pWu, -512), (0xffff, 0, 4, pWs, 0),
                                      (0xffff0000, 0, 4, pWr, -256), (0, 1, 4, pCen, -512)):
            a(f"""
            s_mov_b32 exec_lo, {lo}
            s_mov_b32 exec_hi, {hi}
            global_load_dwordx4 {vr(vPar + dst, 4)}, v{vOff16}, s[{ptr}:{ptr + 1}] offset:{off}
            """)

    def count_clear(younger):
        a(f"""
        s_cmp_lg_u32 s{sW}, 0
        s_cbranch_scc1 L_w0c
        s_waitcnt vmcnt({younger})
        L_w0c:
        s_and_b64 exec, s[{sX}:{sX + 1}], 1
        s_and_b32 s{sX + 3}, s2, 3
        s_lshl_b32 s{sX + 3}, s{sX + 3}, 6
        buffer_atomic_add v{vOne}, v6, s[{SDBG}:{SDBG + 3}], s{sX + 3} offen
        s_mov_b64 exec, s[{sAct}:{sAct + 1}]
        """)
        issued.append("C")

    def ld_wait(name):
        a(f"s_waitcnt vmcnt({len(issued) - 1 - issued.index(name)})")

    for n in ("O0", "O1", "O2", "O3", "O4", "F"):
        ld_issue(n)
    srd(a, SI, f"s{pI}", f"s{pI + 1}", T * 4)
    srd(a, SA, f"s{pAng}", f"s{pAng + 1}", T * 2)
    srd(a, SDBG, f"s{pDbg}", f"s{pDbg + 1}", 256)
    srd(a, SREC, f"s{pWsp}", f"s{pWsp + 1}", NCH * CS)
    srd(a, SOUT, f"s{pOut}", f"s{pOut + 1}", E * 32)
    a(f"""
    s_add_u32 s{SSEG}, s{pWsp}, {WS_SEG}
    s_addc_u32 s{SSEG + 1}, s{pWsp + 1}, 0
    s_and_b32 s{SSEG + 1}, s{SSEG + 1}, 0xffff
    s_mov_b32 s{SSEG + 2}, {NCH * 1024}
    s_mov_b32 s{SSEG + 3}, 0x20000
    s_mul_i32 s{sX + 3}, s2, {CS}
    s_add_u32 s{SRW}, s{pWsp}, s{sX + 3}
    s_addc_u32 s{SRW + 1}, s{pWsp + 1}, 0
    s_and_b32 s{SRW + 1}, s{SRW + 1}, 0xffff
    s_mov_b32 s{SRW + 2}, 0
    s_mov_b32 s{SRW + 3}, 0x20000
    s_mov_b64 exec, -1
    v_and_b32 v{vCtr + 1}, 3, v0
    v_lshlrev_b32 v{vCtr + 1}, 6, v{vCtr + 1}
    """)
    fill(vP + 4, STG, 7)
    a(f"s_mov_b64 exec, s[{sAct}:{sAct + 1}]")
    S2 = P["sched"] != "s1"
    rest = [f"A{q}" for q in range(5)] + [f"I{q}" for q in range(5)]
    after_o = [()] * 5 if S2 else [("A0", "A1"), ("A2", "A3"), ("A4", "I0"), ("I1",), ("I2",)]
    for q in range(5):
        ld_wait(f"O{q}")
        if q == 0:
            wave0("z", row_clear)
            nz = len(issued)
        for n in after_o[q]:
            ld_issue(n)
        if q in (0, 4):
            st(f"O{q}")
        for r in range(4):
            i = 4 * q + r
            a(f"v_mul_hi_u32_u24 v{vP + r}, s{sC625}, v{vO + i}")
            a(f"v_add_u32 v{vO + i}, 16, v{vO + i}")
        for r in range(4):
            i = 4 * q + r
            a(f"v_lshlrev_b32 v{vJ + i}, 2, v{vP + r}")
            a(f"v_mad_i32_i24 v{vO + i}, v{vP + r}, s{sM625}, v{vO + i}")
            a(f"ds_add_rtn_u32 v{vR + i}, v{vJ + i}, v{vOne} offset:{HIST}")
        for r in range(4):
            i = 4 * q + r
            a(f"v_lshl_or_b32 v{vO + i}, v{vO + i}, 11, v{vO + i}")


    def issue_rest(tag, older):
        a(f"""
        s_cmp_lt_u32 s{sW}, {P["split"]}
        s_cbranch_scc{0 if older else 1} L_rest{tag}
        """)
        keep = list(issued)
        for n in rest:
            ld_issue(n)
        if older:
            issued[:] = keep
        a(f"L_rest{tag}:")

    if S2:
        issue_rest("a", True)
    wave0("w", weights)
    a(f"""
    s_waitcnt lgkmcnt(0)
    s_barrier
    """)
    st("bar2")
    if P["sched"] == "s2a":
        issue_rest("b", False)
    if not S2:
        ld_issue("I3")
        ld_issue("I4")
    c, b, x, ln = vP, vP + 4, vP + 8, vP + 9
    a(f"""
    s_mov_b64 exec, -1
    v_and_b32 v{ln}, 63, v0
    v_lshlrev_b32 v{ln}, 4, v{ln}
    ds_read_b128 {vr(c, 4)}, v{ln} offset:{HIST}
    s_mov_b32 s{sX + 4}, {STG}
    s_waitcnt lgkmcnt(0)
    """)
    for k in range(4):
        a(f"v_add_u32 v{c + k}, 3, v{c + k}")
        a(f"v_lshrrev_b32 v{c + k}, 2, v{c + k}")
    a(f"""
    v_add_u32 v{b + 2}, v{c}, v{c + 1}
    v_add_u32 v{b + 3}, v{b + 2}, v{c + 2}
    v_add_u32 v{b}, v{b + 3}, v{c + 3}
    v_mov_b32 v{x}, v{b}
    s_nop 1
    v_add_u32_dpp v{x}, v{x}, v{x} row_shr:1 row_mask:0xf bank_mask:0xf
    s_nop 1
    v_add_u32_dpp v{x}, v{x}, v{x} row_shr:2 row_mask:0xf bank_mask:0xf
    s_nop 1
    v_add_u32_dpp v{x}, v{x}, v{x} row_shr:4 row_mask:0xf bank_mask:0xf
    s_nop 1
    v_add_u32_dpp v{x}, v{x}, v{x} row_shr:8 row_mask:0xf bank_mask:0xf
    s_nop 1
    v_add_u32_dpp v{x}, v{x}, v{x} row_bcast:15 row_mask:0xa bank_mask:0xf
    s_nop 1
    v_add_u32_dpp v{x}, v{x}, v{x} row_bcast:31 row_mask:0xc bank_mask:0xf
    v_sub_u32 v{b}, v{x}, v{b}
    v_add_u32 v{b + 1}, v{b}, v{c}
    v_add_u32 v{b + 2}, v{b}, v{b + 2}
    v_add_u32 v{b + 3}, v{b}, v{b + 3}
    v_readlane_b32 s{sX + 5}, v{x}, 63
    """)
    for k in range(4):
        a(f"v_lshl_or_b32 v{vSeg + k}, v{c + k}, 12, v{b + k}")
        a(f"v_mad_u32_u24 v{b + k}, v{b + k}, 20, s{sX + 4}")
    a(f"ds_write_b128 v{ln}, {vr(b, 4)} offset:{BASE}")
    for k in range(4):
        a(f"v_or_b32 v{vSeg + k}, 0x80000000, v{vSeg + k}")
    a(f"""
    s_mul_i32 s{SRW + 2}, s{sX + 5}, 20
    s_mov_b64 exec, s[{sAct}:{sAct + 1}]
    """)
    for i in range(20):
        a(f"ds_read_b32 v{vJ + i}, v{vJ + i} offset:{BASE}")
    if P["sched"] == "s2b":
        issue_rest("b", False)
    count_clear(len(issued) - nz + 5)
    for q in range(5):
        ld_wait(f"A{q}")
        if q == 0:
            a(f"""
            v_readfirstlane_b32 s{sX + 5}, v{vF}
            v_lshlrev_b32 v{vF}, 16, v{vF}
            """)
        if q in (0, 4):
            st(f"A{q}")
        t = vP

        def unpack():
            for p in range(2):
                d = vA + 2 * q + p
                a(f"v_lshlrev_b32 v{t + 2 * p}, 16, v{d}")
                a(f"v_and_b32 v{t + 2 * p + 1}, 0xffff0000, v{d}")

        unpack()
        a(f"""
        s_cmp_eq_u32 s{sX + 5}, 0x3f80
        s_cbranch_scc1 L_unit{q}
        """)
        for k in range(4):
            a(f"v_mul_f32 v{t + k}, v{vF}, v{t + k}")
        for p in range(2):
            a(f"v_cvt_pk_bf16_f32 v{vA + 2 * q + p}, v{t + 2 * p}, v{t + 2 * p + 1}")
        unpack()
        a(f"L_unit{q}:")
        for k in range(4):
            a(f"v_mul_f32 v{t + k}, 0.15915494, v{t + k}")
        for k in range(4):
            a(f"v_fract_f32 v{t + k}, v{t + k}")
        for k in range(4):
            a(f"v_cos_f32 v{t + k}, v{t + k}")
        a("s_nop 0")
        for p in range(2):
            a(f"v_cvt_pkrtz_f16_f32 v{vA + 2 * q + p}, v{t + 2 * p}, v{t + 2 * p + 1}")
        for p in range(2):
            a(f"v_add_u32 v{vA + 2 * q + p}, 0x40004, v{vA + 2 * q + p}")
        for p in range(2):
            a(f"v_and_b32 v{vA + 2 * q + p}, 0xbff8bff8, v{vA + 2 * q + p}")
    a("s_waitcnt lgkmcnt(0)")
    for i in range(20):
        a(f"v_mad_u32_u24 v{vR + i}, v{vR + i}, 5, v{vJ + i}")
        a(f"v_and_b32 v{vJ + i}, -4, v{vR + i}")
        a(f"v_and_b32 v{vR + i}, 3, v{vR + i}")
        a(f"v_mad_i32_i24 v{vR + i}, v{vR + i}, -3, v{vJ + i}")
    for q in range(5):
        ld_wait(f"I{q}")
        if q in (0, 4):
            st(f"I{q}")
        for r in range(4):
            i = 4 * q + r
            a(f"v_bfe_u32 v{vP + r}, v{vO + i}, 4, 6")
            if PSH == 16:
                a(f"v_mad_u32_u16 v{vP + r}, v{vI + i}, 40, v{vP + r} op_sel:[1,0,0,0]")
            else:
                a(f"v_lshrrev_b32 v{vP + 4}, {PSH}, v{vI + i}")
                a(f"v_mad_u32_u24 v{vP + r}, v{vP + 4}, 40, v{vP + r}")
            a(f"v_lshlrev_b32 v{vI + i}, 16, v{vI + i}")
            a(f"v_and_or_b32 v{vI + i}, v{vO + i}, s{sMask}, v{vI + i}")
            a(f"ds_write_b8 v{vR + i}, v{vP + r} offset:16")
            a(f"v_or_b32_sdwa v{vI + i}, v{vI + i}, v{vA + 2 * q + (r >> 1)} dst_sel:DWORD dst_unused:UNUSED_PAD src0_sel:DWORD src1_sel:WORD_{r & 1}")
            a(f"ds_write_b32 v{vJ + i}, v{vI + i}")
    vS = 64
    a(f"""
    s_mov_b64 exec, -1
    v_add_u32 v5, {STG}, v{vOff16}
    v_mov_b32 v{vP}, v{vOff16}
    s_waitcnt lgkmcnt(0)
    s_barrier
    """)
    st("bar3")
    for i in range(7):
        a(f"ds_read_b128 {vr(vS + 4 * i, 4)}, v5 offset:{i * 8192}")
    a(f"""
    s_mov_b64 exec, s[{sX}:{sX + 1}]
    ds_write_b128 v{vP}, {vr(vPar, 4)} offset:{HIST}
    ds_write_b128 v{vP}, {vr(vPar + 4, 4)} offset:{HIST + 1024}
    s_mov_b64 exec, -1
    """)
    for i in range(7):
        a(f"s_mov_b32 s{sX + 4}, {i * 8192}")
        a(f"s_waitcnt lgkmcnt({8 - i})")
        a(f"buffer_store_dwordx4 {vr(vS + 4 * i, 4)}, v{vP}, s[{SRW}:{SRW + 3}], s{sX + 4} offen {P['rec_st']}")
    st("stissued")

    def poll(mask):
        a(f"""
        s_mov_b32 exec_lo, {mask}
        s_mov_b32 exec_hi, 0
        buffer_load_dword v{vSegW}, v{vSegA}, s[{SSEG}:{SSEG + 3}], s{sJ4} offen sc1
        """)

    a(f"""
    s_cmp_lg_u32 s{sW}, 7
    s_cbranch_scc1 L_nox
    s_mov_b64 exec, 15
    buffer_load_dword v{vCtr}, v{vCtr + 1}, s[{SDBG}:{SDBG + 3}], 0 offen sc1
    s_mov_b64 exec, -1
    L_nox:
    v_lshrrev_b32 v{vT}, 6, v0
    v_and_b32 v{vLane}, 63, v0
    v_and_b32 v{vT + 1}, 31, v0
    v_lshl_add_u32 v{vT + 2}, v{vT + 1}, 3, v{vT}
    v_lshlrev_b32 v{vSegA}, 10, v{vT + 2}
    s_lshl_b32 s{sJ4}, s{sJ}, 2
    v_mul_u32_u24 v{vCb}, {CS}, v{vT + 2}
    v_and_b32 v{vT + 6}, 15, v{vLane}
    v_lshrrev_b32 v{vT + 7}, 4, v{vLane}
    v_mul_u32_u24 v{vLL20}, 20, v{vT + 6}
    v_lshlrev_b32 v{vDw}, 7, v{vT}
    v_add_u32 v{vDw}, {DESC}, v{vDw}
    v_lshl_add_u32 v{vDr}, v{vT + 7}, 4, v{vDw}
    v_mul_u32_u24 v{vT + 8}, 80, v{vT}
    v_add_u32 v{vT + 8}, v{vT + 8}, v{vT + 6}
    v_lshlrev_b32 v{vMoff}, 5, v{vT + 8}
    v_lshl_add_u32 v{vMoff}, v{vT + 7}, 3, v{vMoff}
    v_cmp_gt_u32 vcc, {BK - 64}, v{vT + 8}
    v_mov_b32 v{vT + 9}, 0x7fffff00
    v_lshlrev_b32 v{vDoff}, 1, v{vT + 8}
    v_cndmask_b32 v{vOut4}, v{vT + 9}, v{vMoff}, vcc
    v_mov_b32 v{vZero}, 0
    v_mov_b32 v{vFour}, 4
    v_lshrrev_b32 v{vT + 5}, 1, v{vLane}
    v_lshlrev_b32 v{vLH4}, 2, v{vT + 5}
    v_and_b32 v{vHalf16}, 1, v{vLane}
    v_lshlrev_b32 v{vHalf16}, 4, v{vHalf16}
    v_bfe_u32 v{vT + 6}, v{vT + 5}, 2, 1
    v_bfe_u32 v{vT + 7}, v{vT + 5}, 4, 1
    v_lshl_add_u32 v{vT + 6}, v{vT + 7}, 1, v{vT + 6}
    v_and_b32 v{vT + 7}, 3, v{vT + 5}
    v_bfe_u32 v{vT + 8}, v{vT + 5}, 3, 1
    v_lshl_add_u32 v{vT + 7}, v{vT + 8}, 2, v{vT + 7}
    v_lshlrev_b32 v{vT + 7}, 1, v{vT + 7}
    v_lshl_add_u32 v{vSc}, v{vT + 6}, 8, v{vT + 7}
    v_lshlrev_b32 v{vT + 8}, 10, v{vT}
    v_add_u32 v{vT + 8}, {SB}, v{vT + 8}
    v_add_u32 v{vSc}, v{vSc}, v{vT + 8}
    v_lshl_add_u32 v{vSrd}, v{vLane}, 4, v{vT + 8}
    v_bfe_u32 v{vT + 6}, v{vLane}, 4, 1
    v_bfe_u32 v{vT + 7}, v{vLane}, 5, 1
    v_lshlrev_b32 v{vT + 7}, 4, v{vT + 7}
    v_lshl_add_u32 v{vT + 6}, v{vT + 6}, 2, v{vT + 7}
    v_bfe_u32 v{vT + 7}, v{vLane}, 2, 2
    v_add_u32 v{vT + 6}, v{vT + 6}, v{vT + 7}
    v_and_b32 v{vT + 7}, 3, v{vLane}
    v_lshlrev_b32 v{vT + 7}, 3, v{vT + 7}
    v_lshl_add_u32 v{vTr}, v{vT + 6}, 5, v{vT + 7}
    v_lshlrev_b32 v{vT + 8}, 12, v{vT}
    v_add_u32 v{vT + 8}, {RING}, v{vT + 8}
    v_add_u32 v{vTr}, v{vTr}, v{vT + 8}
    v_mul_u32_u24 v{vT + 6}, 52, v{vLane}
    v_lshrrev_b32 v{vT + 6}, 8, v{vT + 6}
    v_mul_u32_u24 v{vT + 8}, 5, v{vT + 6}
    v_sub_u32 v{vT + 8}, v{vLane}, v{vT + 8}
    v_mul_u32_u24 v{vT + 6}, 3, v{vT + 6}
    v_mov_b32 v{vT + 7}, {sum(o << (3 * i) for i, o in enumerate(ORD))}
    v_bfe_u32 v{vT + 6}, v{vT + 7}, v{vT + 6}, 3
    v_lshrrev_b32 v{vPh}, {16 - PSH}, v{vT + 6}
    v_lshlrev_b32 v{vPh}, 21, v{vPh}
    v_mul_u32_u24 v{vT + 6}, 40, v{vT + 6}
    v_mul_u32_u24 v{vT + 7}, 5, v{vT}
    v_add3_u32 v{vT + 6}, v{vT + 6}, v{vT + 7}, v{vT + 8}
    v_add_u32 v{vT + 6}, 1, v{vT + 6}
    v_lshlrev_b32 v{vCntA}, 2, v{vT + 6}
    """)
    bin_addr(vBase, vT + 6, vT + 7)
    a(f"""
    v_cmp_lt_u32 vcc, {5 * NP - 1}, v{vLane}
    v_mov_b32 v{vT + 8}, {ZB}
    s_nop 0
    v_cndmask_b32 v{vBase}, v{vBase}, v{vT + 8}, vcc
    v_cndmask_b32 v{vPh}, v{vPh}, v{vZero}, vcc
    v_cndmask_b32 v{vCntA}, v{vCntA}, v{vZero}, vcc
    """)
    NCHK = -(-(NB + 1) // 64)
    for k in range(NCHK):
        a(f"v_add_u32 v{vT + 6}, {64 * k + 1}, v{vLane}")
        bin_addr(vLim + k, vT + 6, vT + 7)
    cnt_init(vT, sTk)
    fill(vT + 4, SB, NFILL, RING)
    for k in range(20):
        a(f"v_mov_b32 v{vAcc + k}, 0")
    if P["stamps"]:
        a("s_mov_b32 s97, 0")
        a("s_mov_b64 s[100:101], 0")
    a(f"""
    s_mov_b32 s{sPend}, -1
    s_mov_b32 s{sReady}, 0
    s_mov_b32 s{sPrevN}, 0
    s_mov_b64 s[{sLate}:{sLate + 1}], -1
    s_mul_i32 s{sDo}, s{sJ}, {BK * 2}
    s_mul_i32 s{sMo}, s{sJ}, {BK * 32}
    s_waitcnt vmcnt(0) lgkmcnt(0)
    s_cmp_lg_u32 s{sW}, 7
    s_cbranch_scc1 L_ctr_ok
    L_ctr:
    """)
    ctr_sum(None)
    a(f"""
    s_cbranch_scc1 L_ctr_ok
    s_add_u32 s{sSpin}, s{sSpin}, 1
    s_cmp_gt_u32 s{sSpin}, {SPIN_MAX}
    s_cbranch_scc1 L_end
    s_sleep 2
    s_mov_b64 exec, 15
    buffer_load_dword v{vCtr}, v{vCtr + 1}, s[{SDBG}:{SDBG + 3}], 0 offen sc1
    s_mov_b64 exec, -1
    s_waitcnt vmcnt(0)
    s_branch L_ctr
    L_ctr_ok:
    s_mov_b32 s{sSpin}, 0
    """)
    st("drained")

    def late_loads():
        a(f"s_mov_b64 exec, s[{sLate}:{sLate + 1}]")
        for g in range(5):
            a(f"buffer_load_ushort v{vDist + g}, v{vDoff}, s[{SDIST}:{SDIST + 3}], s{sDo} offen offset:{32 * g}")
        for g in range(5):
            a(f"buffer_load_dwordx2 {vr(vMr + 2 * g, 2)}, v{vMoff}, s[{SM}:{SM + 3}], s{sMo} offen offset:{512 * g}")
        a(f"s_mov_b64 s[{sLate}:{sLate + 1}], 0")

    a(f"""
    s_barrier
    s_mov_b64 exec, s[{sX}:{sX + 1}]
    buffer_store_dwordx4 {vr(vSeg, 4)}, v{vP}, s[{SSEG}:{SSEG + 3}], s{sX + 2} offen sc1
    """)
    st("pub")
    a("s_branch L_idle3")

    dbg = [0]

    def once(lane):
        if P["stamps"] != 1:
            return
        dbg[0] += 1
        a(f"""
        s_bitcmp1_b64 s[100:101], {lane}
        s_cbranch_scc1 L_once{dbg[0]}
        s_bitset1_b64 s[100:101], {lane}
        s_memrealtime s[98:99]
        s_waitcnt lgkmcnt(0)
        v_writelane_b32 v207, s98, {lane}
        L_once{dbg[0]}:
        """)

    def slot(bank, s):
        return vSlot + 6 * (4 * bank + s), sMk + 2 * (4 * bank + s)

    def rec_issue(bank, s):
        w, m = slot(bank, s)
        a(f"""
        s_mov_b64 exec, -1
        v_add_u32 v{w + 5}, v{vL0 + s}, v{vLL20}
        v_cmp_lt_u32 s[{m}:{m + 1}], v{vLL20}, v{vL1 + s}
        s_mov_b64 exec, s[{m}:{m + 1}]
        buffer_load_dwordx4 {vr(w, 4)}, v{w + 5}, s[{SREC}:{SREC + 3}], 0 offen {P["rec_ld"]}
        buffer_load_dword v{w + 4}, v{w + 5}, s[{SREC}:{SREC + 3}], 0 offen offset:16 {P["rec_ld"]}
        """)

    def process(bank, issue_bank, younger):
        for s in range(4):
            if issue_bank is not None:
                rec_issue(issue_bank, s)
            a(f"s_waitcnt vmcnt({younger(s)})")
            if s == 0:
                once(46)
            place_atomics(*slot(bank, s), vRk + 4 * (s & 1))
            if s > 0:
                a(f"s_waitcnt lgkmcnt({4 if s == 1 else 8})")
                place_writes(*slot(bank, s - 1), vRk + 4 * ((s - 1) & 1))
        a("s_waitcnt lgkmcnt(4)")
        place_writes(*slot(bank, 3), vRk + 4)

    for X in range(2):
        Y = 1 - X
        a(f"""
        L_top{X}:
        s_mov_b32 exec_lo, s{sPend}
        s_mov_b32 exec_hi, 0
        s_waitcnt vmcnt(8)
        v_cmp_gt_i32 vcc, 0, v{vSegW}
        s_and_b32 s{sTk}, s{sPend}, vcc_lo
        s_andn2_b32 s{sPend}, s{sPend}, s{sTk}
        s_mov_b32 exec_lo, s{sTk}
        v_and_b32 v{vT}, 0xfff, v{vSegW}
        v_bfe_u32 v{vT + 1}, v{vSegW}, 12, 12
        v_mad_u32_u24 v{vD0}, v{vT}, 20, v{vCb}
        v_mul_u32_u24 v{vHi}, 20, v{vT + 1}
        s_or_b32 s{sReady}, s{sReady}, s{sTk}
        s_cbranch_scc1 L_take{X}
        s_cmp_eq_u32 s{sPrevN}, 0
        s_cbranch_scc1 L_idle
        s_cmp_eq_u32 s{sPend}, 0
        s_cbranch_scc1 L_final{X}
        L_take{X}:
        """)
        if P["stamps"] == 1:
            a(f"""
            s_add_u32 s97, s97, 1
            s_memrealtime s[98:99]
            s_waitcnt lgkmcnt(0)
            s_mov_b32 s96, s98
            s_cmp_eq_u32 s97, 1
            s_cbranch_scc0 L_dbg{X}
            v_writelane_b32 v207, s98, 43
            s_bcnt1_i32_b32 s99, s{sReady}
            v_writelane_b32 v207, s99, 44
            L_dbg{X}:
            """)
        a(f"""
        s_mov_b32 exec_lo, 0xffff
        v_lshl_add_u32 v{vT + 3}, v{vLane}, 2, v{vDw}
        ds_write_b32 v{vT + 3}, v{vZero} offset:64
        s_mov_b32 exec_lo, s{sReady}
        v_mbcnt_lo_u32_b32 v{vT}, s{sReady}, 0
        v_cmp_gt_u32 vcc, 16, v{vT}
        s_and_b32 s{sCurN}, s{sReady}, vcc_lo
        s_mov_b32 exec_lo, s{sCurN}
        v_and_b32 v{vT + 2}, 3, v{vT}
        v_lshrrev_b32 v{vT}, 2, v{vT}
        v_min_u32 v{vT + 1}, 320, v{vHi}
        v_lshl_add_u32 v{vT}, v{vT + 2}, 2, v{vT}
        v_sub_u32 v{vHi}, v{vHi}, v{vT + 1}
        v_lshl_add_u32 v{vT}, v{vT}, 2, v{vDw}
        ds_write_b32 v{vT}, v{vD0}
        ds_write_b32 v{vT}, v{vT + 1} offset:64
        v_cmp_lt_u32 vcc, 0, v{vHi}
        v_add_u32 v{vD0}, 320, v{vD0}
        s_andn2_b32 s{sReady}, s{sReady}, s{sCurN}
        s_and_b32 s{sTk}, s{sCurN}, vcc_lo
        s_or_b32 s{sReady}, s{sReady}, s{sTk}
        s_mov_b64 exec, -1
        ds_read_b128 {vr(vL0, 4)}, v{vDr}
        ds_read_b128 {vr(vL1, 4)}, v{vDr} offset:64
        """)
        poll(f"s{sPend}")
        a(f"""
        s_cmp_eq_u32 s{sPrevN}, 0
        s_mov_b32 s{sPrevN}, s{sCurN}
        s_waitcnt lgkmcnt(0)
        s_cbranch_scc1 L_only{X}
        """)
        process(Y, X, lambda s: 9)
        a(f"s_branch L_top{Y}")
    for X in range(2):
        a(f"L_only{X}:")
        for s in range(4):
            rec_issue(X, s)
        a(f"s_branch L_top{1 - X}")
    for X in range(2):
        a(f"L_final{X}:")
        once(45)
        if P["lateat"] == "final":
            late_loads()
        process(1 - X, None, lambda s: 2 * (3 - s) + (10 if P["lateat"] == "final" else 0))
        a("s_branch L_taken")
    a(f"""
    L_idle:
    s_cmp_eq_u32 s{sPend}, 0
    s_cbranch_scc1 L_idle_late
    s_cmp_lt_u32 s{sSpin}, {P["latespin"]}
    s_cbranch_scc1 L_idle2
    L_idle_late:
    """)
    if P["lateat"] == "final":
        late_loads()
    a(f"""
    s_cmp_eq_u32 s{sPend}, 0
    s_cbranch_scc1 L_taken
    L_idle2:
    s_add_u32 s{sSpin}, s{sSpin}, 1
    s_cmp_gt_u32 s{sSpin}, {SPIN_MAX}
    s_cbranch_scc1 L_end
    s_sleep {P["sleep"]}
    L_idle3:
    """)
    poll(f"s{sPend}")
    a(f"""
    s_waitcnt vmcnt(0)
    s_branch L_top0
    L_taken:
    s_mov_b64 exec, -1
    s_mov_b32 s{sLast}, 1
    s_mov_b32 s{sFirst}, 1
    s_movk_i32 s{sF0}, 0xf0
    s_movk_i32 s{s70}, 0x70
    s_lshl_b32 s{sRingB}, s{sW}, 12
    s_add_u32 s{sRingB}, s{sRingB}, {RING}
    s_mul_i32 s{sRowOff}, s{sJ}, {BK * 32}
    v_lshlrev_b32 v{vT}, 2, v{vLane}
    s_waitcnt lgkmcnt(0)
    """)
    st("intake")
    if P["stamps"] == 1:
        a(f"v_writelane_b32 v207, s{sSpin}, 40")
        a("v_writelane_b32 v207, s97, 41")
        a("v_writelane_b32 v207, s96, 42")
    a("s_barrier")
    st("bar5")
    for k in range(NCHK):
        a(f"ds_read_b32 v{vT + 1 + k}, v{vT} offset:{CNT + 256 * k}")
    a(f"""
    ds_read_b32 v{vEnd}, v{vCntA} offset:{CNT}
    s_waitcnt lgkmcnt(1)
    v_cmp_gt_u32 vcc, v{vT + 1}, v{vLim}
    """)
    for k in range(1, NCHK):
        a(f"v_cmp_gt_u32 s[{sT + 2 * k}:{sT + 2 * k + 1}], v{vT + 1 + k}, v{vLim + k}")
    for k in range(1, NCHK):
        a(f"s_or_b64 vcc, vcc, s[{sT + 2 * k}:{sT + 2 * k + 1}]")
    if P["force_slow"]:
        a("s_cmp_eq_u32 0, 0")
    a(f"""
    s_cbranch_scc0 L_G
    s_mov_b32 s{sSC}, 0
    s_mov_b32 s{sSU}, 0
    s_mov_b32 s{sLast}, 0
    L_slow:
    s_waitcnt vmcnt(0) lgkmcnt(0)
    s_barrier
    """)
    cnt_init(vT, sT)
    fill(vT + 4, SB, NFILL, RING)
    a(f"""
    s_waitcnt lgkmcnt(0)
    s_barrier
    s_cmp_lt_u32 s{sSC}, {NCH}
    s_cbranch_scc1 L_slow_unit
    s_mov_b32 s{sLast}, 1
    s_branch L_slow_go
    L_slow_unit:
    s_lshl_b32 s{sT}, s{sSC}, 10
    s_lshl_b32 s{sT + 1}, s{sJ}, 2
    s_add_u32 s{sT}, s{sT}, s{sT + 1}
    buffer_load_dword v{vT}, v{vZero}, s[{SSEG}:{SSEG + 3}], s{sT} offen sc1
    s_waitcnt vmcnt(0)
    v_readfirstlane_b32 s{sT + 2}, v{vT}
    s_and_b32 s{sT + 1}, s{sT + 2}, 0xfff
    s_mul_i32 s{sT + 1}, s{sT + 1}, 20
    s_bfe_u32 s{sT + 2}, s{sT + 2}, 0xc000c
    s_mul_i32 s{sT + 2}, s{sT + 2}, 20
    s_mul_i32 s{sT + 3}, s{sSC}, {CS}
    s_add_u32 s{sT + 3}, s{sT + 3}, s{sT + 1}
    s_add_u32 s{sT + 3}, s{sT + 3}, s{sSU}
    s_sub_u32 s{sT + 4}, s{sT + 2}, s{sSU}
    s_min_u32 s{sT + 4}, s{sT + 4}, 480
    s_cmp_lg_u32 s{sW}, 0
    s_cbranch_scc1 L_slow_adv
    v_mul_u32_u24 v{vT}, 20, v{vLane}
    v_cmp_gt_u32 s[{sT + 6}:{sT + 7}], s{sT + 4}, v{vT}
    s_mov_b64 exec, s[{sT + 6}:{sT + 7}]
    buffer_load_dwordx4 {vr(vSlot, 4)}, v{vT}, s[{SREC}:{SREC + 3}], s{sT + 3} offen sc1
    buffer_load_dword v{vSlot + 4}, v{vT}, s[{SREC}:{SREC + 3}], s{sT + 3} offen offset:16 sc1
    s_waitcnt vmcnt(0)
    """)
    place_atomics(vSlot, sT + 6, vRk)
    a("s_waitcnt lgkmcnt(0)")
    place_writes(vSlot, sT + 6, vRk)
    a(f"""
    s_mov_b64 exec, -1
    L_slow_adv:
    s_add_u32 s{sSU}, s{sSU}, 480
    s_cmp_lt_u32 s{sSU}, s{sT + 2}
    s_cbranch_scc1 L_slow_go
    s_add_u32 s{sSC}, s{sSC}, 1
    s_mov_b32 s{sSU}, 0
    L_slow_go:
    s_waitcnt lgkmcnt(0)
    s_barrier
    ds_read_b32 v{vEnd}, v{vCntA} offset:{CNT}
    L_G:
    v_cmp_lt_u32 vcc, {5 * NP - 1}, v{vLane}
    v_add_u32 v{vT + 1}, 128, v{vBase}
    s_mov_b32 s{sCur}, 0
    s_waitcnt lgkmcnt(0)
    v_cndmask_b32 v{vEnd}, v{vEnd}, v{vT + 1}, vcc
    v_cmp_gt_u32 vcc, v{vEnd}, v{vBase}
    v_sub_u32 v{vEnd}, v{vEnd}, v{vBase}
    v_add_u32 v{vEnd}, 127, v{vEnd}
    v_and_b32 v{vEnd}, 0xffffff80, v{vEnd}
    v_add_u32 v{vEnd}, v{vEnd}, v{vBase}
    s_and_b32 s{sNE}, vcc_lo, {(1 << 5 * NP) - 1}
    """)

    def next_bin():
        a(f"""
        s_ff1_i32_b32 s{sL}, s{sNE}
        s_bitset0_b32 s{sNE}, s{sL}
        v_readlane_b32 s{sIA}, v{vBase}, s{sL}
        v_readlane_b32 s{sIE}, v{vEnd}, s{sL}
        v_readlane_b32 s{sIP}, v{vPh}, s{sL}
        """)

    next_bin()
    for k in range(D):
        a(f"""
        s_mov_b32 s{sT + k}, s{sIP}
        s_nop 0
        v_add_u32 v{vT + k}, s{sIA}, v{vLH4}
        ds_read_b32 v{vT + k}, v{vT + k}
        s_add_u32 s{sIA}, s{sIA}, 128
        s_cmp_lg_u32 s{sIA}, s{sIE}
        s_cbranch_scc1 L_pro{k}
        """)
        next_bin()
        a(f"L_pro{k}:")
    for k in range(D):
        a(f"""
        s_add_u32 m0, s{sRingB}, {k * 1024}
        s_waitcnt lgkmcnt({D - 1 - k})
        v_mad_u32_u16 v{vT + k}, v{vT + k}, 32, v{vHalf16} op_sel:[1,0,0,0]
        buffer_load_dwordx4 v{vT + k}, s[{SM}:{SM + 3}], s{sT + k} offen {P["gather"]} lds
        """)
    def gates(tag):
        a(f"""
        s_cmp_eq_u32 s{sFirst}, 0
        s_cbranch_scc1 L_gates_done
        s_mov_b32 s{sFirst}, 0
        """)
        a(f"""
        v_and_b32 v{vT + 4}, 15, v{vLane}
        v_lshrrev_b32 v{vT + 5}, 4, v{vLane}
        v_lshlrev_b32 v{vT + 4}, 1, v{vT + 4}
        v_lshl_add_u32 v{vT + 6}, v{vT + 5}, 6, v{vT + 4}
        v_lshl_add_u32 v{vT + 4}, v{vT + 5}, 7, v{vT + 4}
        v_lshlrev_b32 v{vT + 5}, 2, v{vT + 5}
        """)
        for k in range(4):
            a(f"ds_read_u16 v{vWraw + k}, v{vT + 4} offset:{HIST + 32 * k}")
            a(f"ds_read_u16 v{vWraw + 4 + k}, v{vT + 4} offset:{HIST + 512 + 32 * k}")
        for k in range(2):
            a(f"ds_read_u16 v{vWraw + 8 + k}, v{vT + 6} offset:{HIST + 1024 + 32 * k}")
            a(f"ds_read_u16 v{vWraw + 10 + k}, v{vT + 6} offset:{HIST + 1280 + 32 * k}")
        a(f"""
        ds_read_b32 v{vCen}, v{vT + 5} offset:{HIST + 1536}
        s_waitcnt vmcnt({D}) lgkmcnt(0)
        v_lshl_or_b32 v{vWd}, v{vWraw + 1}, 16, v{vWraw}
        v_lshl_or_b32 v{vWd + 1}, v{vWraw + 3}, 16, v{vWraw + 2}
        v_lshl_or_b32 v{vWu}, v{vWraw + 5}, 16, v{vWraw + 4}
        v_lshl_or_b32 v{vWu + 1}, v{vWraw + 7}, 16, v{vWraw + 6}
        v_lshl_or_b32 v{vWs}, v{vWraw + 9}, 16, v{vWraw + 8}
        v_lshl_or_b32 v{vWr}, v{vWraw + 11}, 16, v{vWraw + 10}
        v_mov_b32 v{vWd + 2}, v{vWd}
        v_mov_b32 v{vWd + 3}, v{vWd + 1}
        v_mov_b32 v{vWu + 2}, v{vWu}
        v_mov_b32 v{vWu + 3}, v{vWu + 1}
        v_mov_b32 v{vWs + 1}, 0
        v_mov_b32 v{vWr + 1}, 0
        v_mov_b32 v{vRb + 1}, 0
        v_mov_b32 v{vRb + 3}, 0
        v_and_b32 v{vCen + 1}, 0xffff0000, v{vCen}
        v_lshlrev_b32 v{vCen}, 16, v{vCen}
        """)
        for g in range(5):
            t = vT + 4
            rb = vRb + 2 * (g & 1)
            a(f"""
            v_lshlrev_b32 v{t + 2}, 16, v{vDist + g}
            v_sub_f32 v{t}, v{t + 2}, v{vCen}
            v_sub_f32 v{t + 1}, v{t + 2}, v{vCen + 1}
            v_cvt_pk_bf16_f32 v{t + 2}, v{t}, v{t + 1}
            v_lshlrev_b32 v{t}, 16, v{t + 2}
            v_and_b32 v{t + 1}, 0xffff0000, v{t + 2}
            v_mul_f32 v{t}, v{t}, v{t}
            v_mul_f32 v{t + 1}, v{t + 1}, v{t + 1}
            v_cvt_pk_bf16_f32 v{t + 2}, v{t}, v{t + 1}
            v_lshlrev_b32 v{t}, 16, v{t + 2}
            v_and_b32 v{t + 1}, 0xffff0000, v{t + 2}
            v_mul_f32 v{t}, 0xc1200000, v{t}
            v_mul_f32 v{t + 1}, 0xc1200000, v{t + 1}
            v_cvt_pk_bf16_f32 v{t + 2}, v{t}, v{t + 1}
            v_lshlrev_b32 v{t}, 16, v{t + 2}
            v_and_b32 v{t + 1}, 0xffff0000, v{t + 2}
            v_mul_f32 v{t}, 0x3fb8aa3b, v{t}
            v_mul_f32 v{t + 1}, 0x3fb8aa3b, v{t + 1}
            v_exp_f32 v{t}, v{t}
            v_exp_f32 v{t + 1}, v{t + 1}
            s_nop 0
            v_cvt_pk_bf16_f32 v{rb}, v{t}, v{t + 1}
            s_nop 1
            v_mfma_f32_16x16x16_bf16 {vr(vG + 4 * g, 4)}, {vr(vWs, 2)}, {vr(rb, 2)}, 0
            v_mfma_f32_16x16x16_bf16 {vr(vH + 4 * g, 4)}, {vr(vWr, 2)}, {vr(rb, 2)}, 0
            """)
        a("L_gates_done:")
        st("GH")

    a(f"s_movk_i32 s{sPrev}, {D * 1024}")
    st("Gissued")
    if P["lateat"] == "g0":
        late_loads()
        a("s_mov_b64 exec, -1")
    if P["lateat"] == "final":
        gates(0)
    a("L_main:")

    def split(src, dst, t):
        a(f"""
        v_cvt_pk_bf16_f32 v{dst}, v{src}, v{src + 1}
        v_cvt_pk_bf16_f32 v{dst + 1}, v{src + 2}, v{src + 3}
        v_lshlrev_b32 v{t}, 16, v{dst}
        v_and_b32 v{t + 1}, 0xffff0000, v{dst}
        v_lshlrev_b32 v{t + 2}, 16, v{dst + 1}
        v_and_b32 v{t + 3}, 0xffff0000, v{dst + 1}
        v_sub_f32 v{t}, v{src}, v{t}
        v_sub_f32 v{t + 1}, v{src + 1}, v{t + 1}
        v_sub_f32 v{t + 2}, v{src + 2}, v{t + 2}
        v_sub_f32 v{t + 3}, v{src + 3}, v{t + 3}
        v_cvt_pk_bf16_f32 v{dst + 2}, v{t}, v{t + 1}
        v_cvt_pk_bf16_f32 v{dst + 3}, v{t + 2}, v{t + 3}
        s_nop 1
        """)

    def prio(b):
        pat = P["prio"]
        if not pat:
            return ""
        cur = pat[b % len(pat)]
        if b and cur == pat[(b - 1) % len(pat)]:
            return ""
        return f"""s_cmp_lt_u32 s{sW}, 4
        s_cbranch_scc1 L_pr{b}
        s_setprio {1 if cur == "y" else 0}
        L_pr{b}:"""

    align = f".p2align {P['al']}" + "\ns_nop 0" * P["alpad"] if P["al"] else ""
    ring_adv = f"s_mov_b32 s{sPrev}, s{sCur}" if D == R - 1 else f"s_add_u32 s{sPrev}, s{sPrev}, 1024\ns_and_b32 s{sPrev}, s{sPrev}, {R * 1024 - 1}"
    for p in range(NP):
        for g in range(5):
            b = p * 5 + g
            acc = vAcc + 4 * g
            a(f"""
            {prio(b)}
            v_readlane_b32 s{sC}, v{vBase}, {b}
            v_readlane_b32 s{sCE}, v{vEnd}, {b}
            s_cmp_eq_u32 s{sC}, s{sCE}
            s_cbranch_scc1 L_bin{b}_done
            {align}
            L_bin{b}:
            s_add_u32 m0, s{sRingB}, s{sPrev}
            v_add_u32 v{vT}, s{sIA}, v{vLH4}
            v_add_u32 v{vT + 1}, s{sC}, v{vLH4}
            ds_read_b32 v{vT}, v{vT}
            ds_read_b32 v{vT + 1}, v{vT + 1}
            v_add_u32 v{vT + 3}, s{sCur}, v{vTr}
            {ring_adv}
            s_add_u32 s{sCur}, s{sCur}, 1024
            s_and_b32 s{sCur}, s{sCur}, {R * 1024 - 1}
            s_add_u32 s{sC}, s{sC}, 128
            s_add_u32 s{sIA}, s{sIA}, 128
            s_cmp_eq_u32 s{sIA}, s{sIE}
            s_waitcnt lgkmcnt(1)
            v_mad_u32_u16 v{vT}, v{vT}, 32, v{vHalf16} op_sel:[1,0,0,0]
            buffer_load_dwordx4 v{vT}, s[{SM}:{SM + 3}], s{sIP} offen {P["gather"]} lds
            s_cbranch_scc1 L_nb{b}
            L_nb{b}_back:
            s_waitcnt lgkmcnt(0)
            v_and_b32 v{vT + 2}, 0xbff8, v{vT + 1}
            v_lshlrev_b32 v{vT + 4}, 4, v{vT + 1}
            v_lshrrev_b32 v{vT + 5}, 7, v{vT + 1}
            v_cvt_f32_f16 v{vT + 2}, v{vT + 2}
            v_bfi_b32 v{vT + 4}, s{s70}, v{vT + 4}, v{vT + 5}
            v_and_or_b32 v{vT + 4}, v{vT + 4}, s{sF0}, v{vSc}
            ds_write_b16_d16_hi v{vT + 4}, v{vT + 2}
            ds_read_b128 {vr(vSt, 4)}, v{vSrd}
            ds_write_b16 v{vT + 4}, v{vZero}
            s_waitcnt vmcnt({D})
            ds_read_b64_tr_b16 {vr(vMt, 2)}, v{vT + 3}
            ds_read_b64_tr_b16 {vr(vMt + 2, 2)}, v{vT + 3} offset:256
            s_cmp_lg_u32 s{sC}, s{sCE}
            s_waitcnt lgkmcnt(0)
            v_mfma_f32_16x16x32_bf16 {vr(acc, 4)}, {vr(vMt, 4)}, {vr(vSt, 4)}, {vr(acc, 4)}
            s_cbranch_scc1 L_bin{b}
            L_bin{b}_done:
            """)
            if g == 4 or b == 0:
                st(f"bin{b}")
            if P["lateat"] == f"b{b}":
                late_loads()
                a("s_mov_b64 exec, -1")
            if P["lateat"] != "final" and b == P["ghat"]:
                gates(0)
            if p == NP - 1:
                x, y, t = vT + 4, vT + 8, vT + 12
                a(f"""
                s_cmp_eq_u32 s{sLast}, 0
                s_cbranch_scc1 L_epi{g}_done
                s_nop 5
                """)
                split(acc, x, t)
                a(f"""
                v_mfma_f32_16x16x32_bf16 {vr(y, 4)}, {vr(vWd, 4)}, {vr(x, 4)}, 0
                s_nop 7
                v_mul_f32 v{y}, v{y}, v{vG + 4 * g}
                v_mul_f32 v{y + 1}, v{y + 1}, v{vG + 4 * g + 1}
                v_mul_f32 v{y + 2}, v{y + 2}, v{vG + 4 * g + 2}
                v_mul_f32 v{y + 3}, v{y + 3}, v{vG + 4 * g + 3}
                """)
                split(y, x, t)
                mr = vMr + 2 * g
                a(f"""
                v_mfma_f32_16x16x32_bf16 {vr(y, 4)}, {vr(vWu, 4)}, {vr(x, 4)}, 0
                v_lshlrev_b32 v{t}, 16, v{mr}
                v_and_b32 v{t + 1}, 0xffff0000, v{mr}
                v_lshlrev_b32 v{t + 2}, 16, v{mr + 1}
                v_and_b32 v{t + 3}, 0xffff0000, v{mr + 1}
                s_nop 3
                v_fmac_f32 v{t}, v{y}, v{vH + 4 * g}
                v_fmac_f32 v{t + 1}, v{y + 1}, v{vH + 4 * g + 1}
                v_fmac_f32 v{t + 2}, v{y + 2}, v{vH + 4 * g + 2}
                v_fmac_f32 v{t + 3}, v{y + 3}, v{vH + 4 * g + 3}
                v_cvt_pk_bf16_f32 v{mr}, v{t}, v{t + 1}
                v_cvt_pk_bf16_f32 v{mr + 1}, v{t + 2}, v{t + 3}
                buffer_store_dwordx2 {vr(mr, 2)}, v{vOut4 if g == 4 else vMoff}, s[{SOUT}:{SOUT + 3}], s{sRowOff} offen offset:{512 * g} {P["out_st"]}
                L_epi{g}_done:
                """)
    a(f"""
    s_cmp_eq_u32 s{sLast}, 0
    s_cbranch_scc1 L_slow
    """)
    if P["wb"]:
        a(f"""
        s_cmp_lg_u32 s{sW}, 7
        s_cbranch_scc1 L_nowb
        s_cmp_ge_u32 s2, {8 * P["wb"]}
        s_cbranch_scc1 L_nowb
        buffer_wbl2 sc1
        L_nowb:
        """)
    if P["stamps"]:
        a("s_waitcnt vmcnt(0)")
    st("end")
    if P["stamps"] == 3:
        a(f"""
        s_cmp_lg_u32 s2, {P["dbgwg"]}
        s_cbranch_scc1 L_end
        s_cmp_lg_u32 s{sW}, {P["dbgw"]}
        s_cbranch_scc1 L_end
        v_readlane_b32 s98, v207, 0
        s_mov_b64 exec, 0xfffe
        v_subrev_u32 v207, s98, v207
        v_lshlrev_b32 v{vT}, 2, v{vLane}
        buffer_store_dword v207, v{vT}, s[{SDBG}:{SDBG + 3}], 0 offen
        """)
        print("names:", ",".join(st.names), file=sys.stderr)
    else:
        st.flush(SSEG, "s2", vT)
    a("""
    L_end:
    s_endpgm
    """)
    for b in range(5 * NP):
        a(f"L_nb{b}:")
        next_bin()
        a(f"s_branch L_nb{b}_back")
    a("L_code_end:")
    return a.text(), 256, 102, LDS


def generate(**kw):
    P = dict(DEFAULTS)
    P.update(kw)
    body, nv, ns, lds = gen(P)
    n = NAME + "_kernel"
    out = HEADER
    out += f"; @launch grid=({NCH},1,1) block=(512,1,1) lds={lds}\n"
    out += '.amdgcn_target "amdgcn-amd-amdhsa--gfx950"\n.text\n'
    out += f".globl {n}\n.p2align 8\n.type {n},@function\n{n}:\n{body}"
    out += '.section .rodata,"a"\n.p2align 6\n' + descriptor(n, nv, ns)
    return out


if __name__ == "__main__":
    path = sys.argv[1]
    kw = {}
    for arg in sys.argv[2:]:
        k, v = arg.split("=", 1)
        kw[k] = int(v) if v.lstrip("-").isdigit() else v
    open(path, "w").write(generate(**kw))
```

```python
import sys
from gen import Asm, vr, srd, Stamps, descriptor, NAME, E, T, NCH, CH, BK, WS_SEG

SPIN_MAX = 1 << 18
CS = 53888


DEFAULTS = dict(
    D=2,
    in_ld="nt",
    rec_st="sc1",
    rec_ld="",
    out_st="",
    gather="",
    sleep=4,
    xl=1,
    latespin=2,
    psh=15,
    order="o40123",
    sched="s2a",
    split=4,
    prio="yo",
    al=0,
    wb=0,
    sp=1,
    pollpos=0,
    bar1late=0,
    dma=1,
    alpad=0,
    lateat="final",
    ghat=9,
    ipf=6,
    stamps=0,
    dbgwg=100,
    dbgw=5,
    force_slow=0,
)

HEADER = """; Kernarg layout for this problem (112 bytes, ptrs only, base s[0:1]):
;
; in d_debug; a row is trusted only once all 256 have been cleared.
"""


def gen(P):
    a = Asm()
    D = P["D"]
    R = 4
    ORD = [int(ch) for ch in str(P["order"]).lstrip("o")]
    PSH = P["psh"]
    CAPS = {16: (160, 160, 96), 15: (96,) * 5}[PSH]
    NP = len(CAPS)
    NB = 40 * NP
    CNT, HIST, BASE, DESC, SB, TRASH, AB = 0, 1024, 2048, 3072, 4096, 12288, 15360
    ZB = AB + 40 * 4 * sum(CAPS)
    RING = ZB + 128
    STG = RING
    LDS = -(-(STG + 7 * 8192) // 1280) * 1280
    RES, RESW = RING + 8 * R * 1024, 2816
    NFILL = -(-(RING - SB) // 8192)
    assert LDS <= 163840 and len(ORD) == NP
    sJ = 3
    SO, SI, SA, SRW, SSEG, SREC, SM, SOUT, SDIST, SDBG = 4, 8, 12, 16, 20, 24, 28, 32, 36, 40
    pM, pI, pO, pDist, pAng, pCen, pFreq, pWr, pWs, pWd, pWu, pOut, pDbg, pWsp = range(44, 72, 2)
    sOff, sOffA = 72, 77
    sC625, sM625, sPre, sMask, sAct, sW, sSpin, sX = 82, 83, 84, 85, 86, 88, 89, 90
    sMk = 44
    sPend, sReady, sPrevN, sCurN, sJ4, sTk, sEarly = 60, 61, 62, 63, 64, 66, 68
    sLate, sDo, sMo, sRes = 74, 72, 73, 76
    sLast, sFirst, sSC, sSU = 83, 84, 85, 86
    sF0, s70, sRingB, sPrev, sCur, sRowOff = 44, 45, 46, 47, 48, 49
    sNE, sL, sIA, sIE, sIP, sC, sCE, sIPn = 50, 51, 52, 53, 54, 55, 56, 57
    sT = 58
    st = Stamps(a, P, 0, 207, 98)
    vOff16, vOff8, vOne, vF = 1, 2, 3, 4
    vO, vI, vA, vJ, vR = 8, 28, 48, 58, 78
    vP = 98
    vSeg = 112
    vPar = 116
    vCtr = 124
    vLane, vLL20, vFour, vZero = 1, 2, 3, 4
    vLH4, vHalf16, vSc, vSrd, vTr, vBase, vCntA, vEnd, vPh = 5, 6, 7, 8, 9, 10, 11, 12, 13
    vMoff, vOut4 = 14, 15
    vT = 16
    vSlot = 32
    vRk = 80
    vL0, vL1 = 88, 92
    vD0, vHi, vSegA, vCb, vSegW, vDw, vDr, vDoff, vLim = range(100, 109)
    vResG, vResL, vDstL = 126, 127, 128
    vWq = 96
    vAcc = 132
    vG, vH = 152, 172
    vMr = 192
    vDist = 202
    vWraw = 208
    vCen = 220
    vWd, vWu = 224, 228
    vWs, vWr, vRb = 232, 234, 236
    vMt, vSt = 240, 244
    vQ = 248

    def bin_addr(dst, k, tmp):
        a(f"""
        v_mul_u32_u24 v{dst}, {CAPS[0] * 4}, v{k}
        v_add_u32 v{dst}, {AB - CAPS[0] * 4}, v{dst}
        """)
        if CAPS[-1] != CAPS[0]:
            a(f"""
            v_mul_u32_u24 v{tmp}, {CAPS[-1] * 4}, v{k}
            v_add_u32 v{tmp}, {AB + (NB - 40) * CAPS[0] * 4 - (NB - 39) * CAPS[-1] * 4}, v{tmp}
            v_min_u32 v{dst}, v{dst}, v{tmp}
            """)

    def cnt_init(t, stmp):
        bin_addr(t, 0, t + 1)
        a(f"""
        v_mov_b32 v{t + 1}, {TRASH}
        v_cmp_eq_u32 vcc, 0, v0
        v_mov_b32 v{t + 2}, 0
        v_lshlrev_b32 v{t + 3}, 2, v0
        v_cndmask_b32 v{t}, v{t}, v{t + 1}, vcc
        v_cmp_lt_u32 vcc, {NB}, v0
        s_nop 1
        v_cndmask_b32 v{t}, v{t}, v{t + 2}, vcc
        v_cmp_gt_u32 vcc, 256, v0
        s_and_saveexec_b64 s[{stmp}:{stmp + 1}], vcc
        ds_write_b32 v{t + 3}, v{t} offset:{CNT}
        s_mov_b64 exec, s[{stmp}:{stmp + 1}]
        """)

    def fill(t, start, rounds, clip=None):
        a(f"""
        v_lshlrev_b32 v{t}, 4, v0
        v_mov_b32 v{vQ}, 0
        v_mov_b32 v{vQ + 1}, 0
        v_mov_b32 v{vQ + 2}, 0
        v_mov_b32 v{vQ + 3}, 0
        v_add_u32 v{t}, {start}, v{t}
        v_add_u32 v{t + 1}, 65536, v{t}
        """)
        if clip:
            a(f"v_cmp_gt_u32 vcc, {(clip - start - (rounds - 1) * 8192) // 16}, v0")
        for i in range(rounds):
            if clip and i == rounds - 1:
                a("s_mov_b64 exec, vcc")
            a(f"ds_write_b128 v{t + (i >> 3)}, {vr(vQ, 4)} offset:{(i & 7) * 8192}")
        if clip:
            a("s_mov_b64 exec, -1")

    def place_atomics(w, m, t):
        a(f"s_mov_b64 exec, s[{m}:{m + 1}]")
        for r in range(4):
            a(f"v_lshlrev_b32_sdwa v{t + r}, 2, v{w + 4} dst_sel:DWORD dst_unused:UNUSED_PAD src0_sel:DWORD src1_sel:BYTE_{r}")
            a(f"ds_add_rtn_u32 v{t + r}, v{t + r}, v{vFour} offset:{CNT}")

    def place_writes(w, m, t):
        a(f"s_mov_b64 exec, s[{m}:{m + 1}]")
        for r in range(4):
            a(f"ds_write_b32 v{t + r}, v{w + r}")

    def ctr_sum(lab_ok):
        a(f"""
        v_readlane_b32 s{sX + 4}, v{vCtr}, 0
        v_readlane_b32 s{sX + 5}, v{vCtr}, 1
        s_add_u32 s{sX + 4}, s{sX + 4}, s{sX + 5}
        v_readlane_b32 s{sX + 5}, v{vCtr}, 2
        s_add_u32 s{sX + 4}, s{sX + 4}, s{sX + 5}
        v_readlane_b32 s{sX + 5}, v{vCtr}, 3
        s_add_u32 s{sX + 4}, s{sX + 4}, s{sX + 5}
        s_cmp_ge_u32 s{sX + 4}, {NCH}
        """)

    ld = P["in_ld"]
    a(f"""
    s_cmp_ge_u32 s2, {NCH}
    s_cbranch_scc1 L_end
    """)
    st("start")
    a(f"""
    s_load_dwordx16 s[44:59], s[0:1], 0
    s_load_dwordx8 s[60:67], s[0:1], 64
    s_load_dwordx4 s[68:71], s[0:1], 96
    """)
    if P["ipf"]:
        a(f"""
        s_getpc_b64 s[96:97]
        s_lshr_b32 s{sX}, s2, 3
        s_mul_i32 s{sX}, s{sX}, {P["ipf"]}
        v_add_u32 v1, s{sX}, v0
        v_min_u32 v1, (L_code_end - {NAME}_kernel - 256) / 128, v1
        v_lshlrev_b32 v1, 7, v1
        v_cmp_gt_u32 vcc, {P["ipf"]}, v0
        s_and_saveexec_b64 s[{sX}:{sX + 1}], vcc
        s_cbranch_execz L_noipf
        global_load_dword v130, v1, s[96:97]
        L_noipf:
        s_mov_b64 exec, s[{sX}:{sX + 1}]
        """)
    a(f"""
    v_lshlrev_b32 v{vOff16}, 4, v0
    v_lshlrev_b32 v{vOff8}, 3, v0
    v_lshlrev_b32 v5, 2, v0
    v_mov_b32 v6, 0
    v_mov_b32 v{vOne}, 1
    v_lshrrev_b32 v7, 6, v0
    s_mul_i32 s{sOff}, s2, {CH * 4}
    s_mul_i32 s{sOffA}, s2, {CH * 2}
    v_readfirstlane_b32 s{sW}, v7
    ds_write_b32 v5, v6 offset:{HIST}
    """)
    for q in range(1, 5):
        a(f"s_add_u32 s{sOff + q}, s{sOff}, {q * 8000}")
        a(f"s_add_u32 s{sOffA + q}, s{sOffA}, {q * 4000}")
    if P["xl"]:
        a(f"""
        s_and_b32 s{sJ}, s2, 7
        s_lshl_b32 s{sJ}, s{sJ}, 5
        s_lshr_b32 s{sX}, s2, 3
        s_add_u32 s{sJ}, s{sJ}, s{sX}
        """)
    else:
        a(f"s_mov_b32 s{sJ}, s2")
    a(f"""
    s_mov_b32 s{sC625}, 6871948
    s_mov_b32 s{sM625}, -{BK}
    s_mov_b32 s{sMask}, 0x4007
    s_mov_b32 s{sSpin}, 0
    v_cmp_gt_u32 vcc, 500, v0
    s_lshl_b32 s{sX + 2}, s2, 10
    s_cmp_eq_u32 s{sW}, 0
    s_cselect_b64 s[{sX}:{sX + 1}], -1, 0
    s_waitcnt lgkmcnt(0)
    """)
    srd(a, SO, f"s{pO}", f"s{pO + 1}", T * 4)
    if not P["bar1late"]:
        a("s_barrier")
    a(f"""
    s_mov_b64 s[{sAct}:{sAct + 1}], vcc
    s_mov_b64 exec, vcc
    """)
    issued = []

    def ld_issue(name):
        k, q = name[0], int(name[1:] or 0)
        act = f"s_mov_b64 exec, s[{sAct}:{sAct + 1}]"
        if k == "F":
            a(f"global_load_ushort v{vF}, v6, s[{pFreq}:{pFreq + 1}]")
        elif k == "O":
            a(f"buffer_load_dwordx4 {vr(vO + 4 * q, 4)}, v{vOff16}, s[{SO}:{SO + 3}], s{sOff + q} offen {ld}")
        elif k == "A":
            a(f"buffer_load_dwordx2 {vr(vA + 2 * q, 2)}, v{vOff8}, s[{SA}:{SA + 3}], s{sOffA + q} offen {ld}")
        else:
            a(f"buffer_load_dwordx4 {vr(vI + 4 * q, 4)}, v{vOff16}, s[{SI}:{SI + 3}], s{sOff + q} offen {ld}")
        issued.append(name)

    def wave0(tag, body):
        a(f"""
        s_cmp_lg_u32 s{sW}, 0
        s_cbranch_scc1 L_w0{tag}
        """)
        body()
        a(f"""
        s_mov_b64 exec, s[{sAct}:{sAct + 1}]
        L_w0{tag}:
        """)

    def row_clear():
        a(f"buffer_store_dwordx4 {vr(vQ, 4)}, v{vOff16}, s[{SSEG}:{SSEG + 3}], s{sX + 2} offen sc1")

    def weights():
        for lo, hi, dst, ptr, off in ((-1, 0, 0, pWd, 0), (0, -1, 0, pWu, -512), (0xffff, 0, 4, pWs, 0),
                                      (0xffff0000, 0, 4, pWr, -256), (0, 1, 4, pCen, -512)):
            a(f"""
            s_mov_b32 exec_lo, {lo}
            s_mov_b32 exec_hi, {hi}
            global_load_dwordx4 {vr(vPar + dst, 4)}, v{vOff16}, s[{ptr}:{ptr + 1}] offset:{off}
            """)

    def count_clear(younger):
        a(f"""
        s_cmp_lg_u32 s{sW}, 0
        s_cbranch_scc1 L_w0c
        s_waitcnt vmcnt({younger})
        L_w0c:
        s_and_b64 exec, s[{sX}:{sX + 1}], 1
        s_and_b32 s{sX + 3}, s2, 3
        s_lshl_b32 s{sX + 3}, s{sX + 3}, 6
        buffer_atomic_add v{vOne}, v6, s[{SDBG}:{SDBG + 3}], s{sX + 3} offen
        s_mov_b64 exec, s[{sAct}:{sAct + 1}]
        """)
        issued.append("C")

    def ld_wait(name):
        a(f"s_waitcnt vmcnt({len(issued) - 1 - issued.index(name)})")

    for n in ("O0", "O1", "O2", "O3", "O4", "F"):
        ld_issue(n)
    srd(a, SI, f"s{pI}", f"s{pI + 1}", T * 4)
    srd(a, SA, f"s{pAng}", f"s{pAng + 1}", T * 2)
    srd(a, SDBG, f"s{pDbg}", f"s{pDbg + 1}", 256)
    srd(a, SREC, f"s{pWsp}", f"s{pWsp + 1}", NCH * CS)
    srd(a, SOUT, f"s{pOut}", f"s{pOut + 1}", E * 32)
    srd(a, SM, f"s{pM}", f"s{pM + 1}", E * 32)
    srd(a, SDIST, f"s{pDist}", f"s{pDist + 1}", E * 2)
    a(f"""
    s_add_u32 s{SSEG}, s{pWsp}, {WS_SEG}
    s_addc_u32 s{SSEG + 1}, s{pWsp + 1}, 0
    s_and_b32 s{SSEG + 1}, s{SSEG + 1}, 0xffff
    s_mov_b32 s{SSEG + 2}, {NCH * 1024}
    s_mov_b32 s{SSEG + 3}, 0x20000
    s_mul_i32 s{sX + 3}, s2, {CS}
    s_add_u32 s{SRW}, s{pWsp}, s{sX + 3}
    s_addc_u32 s{SRW + 1}, s{pWsp + 1}, 0
    s_and_b32 s{SRW + 1}, s{SRW + 1}, 0xffff
    s_mov_b32 s{SRW + 2}, 0
    s_mov_b32 s{SRW + 3}, 0x20000
    s_mov_b64 exec, -1
    v_and_b32 v{vCtr + 1}, 3, v0
    v_lshlrev_b32 v{vCtr + 1}, 6, v{vCtr + 1}
    """)
    if P["bar1late"]:
        a("s_barrier")
    fill(vP + 4, STG, 7)
    a(f"s_mov_b64 exec, s[{sAct}:{sAct + 1}]")
    S2 = P["sched"] != "s1"
    rest = [f"A{q}" for q in range(5)] + [f"I{q}" for q in range(5)]
    after_o = [()] * 5 if S2 else [("A0", "A1"), ("A2", "A3"), ("A4", "I0"), ("I1",), ("I2",)]
    for q in range(5):
        ld_wait(f"O{q}")
        if q == 0:
            wave0("z", row_clear)
            nz = len(issued)
        for n in after_o[q]:
            ld_issue(n)
        if q in (0, 4):
            st(f"O{q}")
        for r in range(4):
            i = 4 * q + r
            a(f"v_mul_hi_u32_u24 v{vP + r}, s{sC625}, v{vO + i}")
            a(f"v_add_u32 v{vO + i}, 16, v{vO + i}")
        for r in range(4):
            i = 4 * q + r
            a(f"v_lshlrev_b32 v{vJ + i}, 2, v{vP + r}")
            a(f"v_mad_i32_i24 v{vO + i}, v{vP + r}, s{sM625}, v{vO + i}")
            a(f"ds_add_rtn_u32 v{vR + i}, v{vJ + i}, v{vOne} offset:{HIST}")
        for r in range(4):
            i = 4 * q + r
            a(f"v_lshl_or_b32 v{vO + i}, v{vO + i}, 11, v{vO + i}")


    def issue_rest(tag, older):
        a(f"""
        s_cmp_lt_u32 s{sW}, {P["split"]}
        s_cbranch_scc{0 if older else 1} L_rest{tag}
        """)
        keep = list(issued)
        for n in rest:
            ld_issue(n)
        if older:
            issued[:] = keep
        a(f"L_rest{tag}:")

    if S2:
        issue_rest("a", True)
    wave0("w", weights)
    a(f"""
    s_waitcnt lgkmcnt(0)
    s_barrier
    """)
    st("bar2")
    if P["sched"] == "s2a":
        issue_rest("b", False)
    if not S2:
        ld_issue("I3")
        ld_issue("I4")
    c, b, x, ln = vP, vP + 4, vP + 8, vP + 9
    a(f"""
    s_mov_b64 exec, -1
    v_and_b32 v{ln}, 63, v0
    v_lshlrev_b32 v{ln}, 4, v{ln}
    ds_read_b128 {vr(c, 4)}, v{ln} offset:{HIST}
    s_mov_b32 s{sX + 4}, {STG}
    s_waitcnt lgkmcnt(0)
    """)
    for k in range(4):
        a(f"v_add_u32 v{c + k}, 3, v{c + k}")
        a(f"v_lshrrev_b32 v{c + k}, 2, v{c + k}")
    a(f"""
    v_add_u32 v{b + 2}, v{c}, v{c + 1}
    v_add_u32 v{b + 3}, v{b + 2}, v{c + 2}
    v_add_u32 v{b}, v{b + 3}, v{c + 3}
    v_mov_b32 v{x}, v{b}
    s_nop 1
    v_add_u32_dpp v{x}, v{x}, v{x} row_shr:1 row_mask:0xf bank_mask:0xf
    s_nop 1
    v_add_u32_dpp v{x}, v{x}, v{x} row_shr:2 row_mask:0xf bank_mask:0xf
    s_nop 1
    v_add_u32_dpp v{x}, v{x}, v{x} row_shr:4 row_mask:0xf bank_mask:0xf
    s_nop 1
    v_add_u32_dpp v{x}, v{x}, v{x} row_shr:8 row_mask:0xf bank_mask:0xf
    s_nop 1
    v_add_u32_dpp v{x}, v{x}, v{x} row_bcast:15 row_mask:0xa bank_mask:0xf
    s_nop 1
    v_add_u32_dpp v{x}, v{x}, v{x} row_bcast:31 row_mask:0xc bank_mask:0xf
    v_sub_u32 v{b}, v{x}, v{b}
    v_add_u32 v{b + 1}, v{b}, v{c}
    v_add_u32 v{b + 2}, v{b}, v{b + 2}
    v_add_u32 v{b + 3}, v{b}, v{b + 3}
    v_readlane_b32 s{sX + 5}, v{x}, 63
    """)
    for k in range(4):
        a(f"v_lshl_or_b32 v{vSeg + k}, v{c + k}, 12, v{b + k}")
        a(f"v_mad_u32_u24 v{b + k}, v{b + k}, 20, s{sX + 4}")
    a(f"ds_write_b128 v{ln}, {vr(b, 4)} offset:{BASE}")
    for k in range(4):
        a(f"v_or_b32 v{vSeg + k}, 0x80000000, v{vSeg + k}")
    a(f"""
    s_mul_i32 s{SRW + 2}, s{sX + 5}, 20
    s_mov_b64 exec, s[{sAct}:{sAct + 1}]
    """)
    for i in range(20):
        a(f"ds_read_b32 v{vJ + i}, v{vJ + i} offset:{BASE}")
    if P["sched"] == "s2b":
        issue_rest("b", False)
    count_clear(len(issued) - nz + 5)
    for q in range(5):
        ld_wait(f"A{q}")
        if q == 0:
            a(f"""
            v_readfirstlane_b32 s{sX + 5}, v{vF}
            v_lshlrev_b32 v{vF}, 16, v{vF}
            """)
        if q in (0, 4):
            st(f"A{q}")
        t = vP

        def unpack():
            for p in range(2):
                d = vA + 2 * q + p
                a(f"v_lshlrev_b32 v{t + 2 * p}, 16, v{d}")
                a(f"v_and_b32 v{t + 2 * p + 1}, 0xffff0000, v{d}")

        unpack()
        a(f"""
        s_cmp_eq_u32 s{sX + 5}, 0x3f80
        s_cbranch_scc1 L_unit{q}
        """)
        for k in range(4):
            a(f"v_mul_f32 v{t + k}, v{vF}, v{t + k}")
        for p in range(2):
            a(f"v_cvt_pk_bf16_f32 v{vA + 2 * q + p}, v{t + 2 * p}, v{t + 2 * p + 1}")
        unpack()
        a(f"L_unit{q}:")
        for k in range(4):
            a(f"v_mul_f32 v{t + k}, 0.15915494, v{t + k}")
        for k in range(4):
            a(f"v_fract_f32 v{t + k}, v{t + k}")
        for k in range(4):
            a(f"v_cos_f32 v{t + k}, v{t + k}")
        a("s_nop 0")
        for p in range(2):
            a(f"v_cvt_pkrtz_f16_f32 v{vA + 2 * q + p}, v{t + 2 * p}, v{t + 2 * p + 1}")
        for p in range(2):
            a(f"v_add_u32 v{vA + 2 * q + p}, 0x40004, v{vA + 2 * q + p}")
        for p in range(2):
            a(f"v_and_b32 v{vA + 2 * q + p}, 0xbff8bff8, v{vA + 2 * q + p}")
    a("s_waitcnt lgkmcnt(0)")
    for i in range(20):
        a(f"v_mad_u32_u24 v{vR + i}, v{vR + i}, 5, v{vJ + i}")
        a(f"v_and_b32 v{vJ + i}, -4, v{vR + i}")
        a(f"v_and_b32 v{vR + i}, 3, v{vR + i}")
        a(f"v_mad_i32_i24 v{vR + i}, v{vR + i}, -3, v{vJ + i}")
    for q in range(5):
        ld_wait(f"I{q}")
        if q in (0, 4):
            st(f"I{q}")
        for r in range(4):
            i = 4 * q + r
            a(f"v_bfe_u32 v{vP + r}, v{vO + i}, 4, 6")
            if PSH == 16:
                a(f"v_mad_u32_u16 v{vP + r}, v{vI + i}, 40, v{vP + r} op_sel:[1,0,0,0]")
            else:
                a(f"v_lshrrev_b32 v{vP + 4}, {PSH}, v{vI + i}")
                a(f"v_mad_u32_u24 v{vP + r}, v{vP + 4}, 40, v{vP + r}")
            a(f"v_lshlrev_b32 v{vI + i}, 16, v{vI + i}")
            a(f"v_and_or_b32 v{vI + i}, v{vO + i}, s{sMask}, v{vI + i}")
            a(f"ds_write_b8 v{vR + i}, v{vP + r} offset:16")
            a(f"v_or_b32_sdwa v{vI + i}, v{vI + i}, v{vA + 2 * q + (r >> 1)} dst_sel:DWORD dst_unused:UNUSED_PAD src0_sel:DWORD src1_sel:WORD_{r & 1}")
            a(f"ds_write_b32 v{vJ + i}, v{vI + i}")
    vS = 64
    a(f"""
    s_mov_b64 exec, -1
    v_add_u32 v5, {STG}, v{vOff16}
    v_mov_b32 v{vP}, v{vOff16}
    s_waitcnt lgkmcnt(0)
    s_barrier
    """)
    st("bar3")
    for i in range(7):
        a(f"ds_read_b128 {vr(vS + 4 * i, 4)}, v5 offset:{i * 8192}")
    a(f"""
    s_mov_b64 exec, s[{sX}:{sX + 1}]
    ds_write_b128 v{vP}, {vr(vPar, 4)} offset:{HIST}
    ds_write_b128 v{vP}, {vr(vPar + 4, 4)} offset:{HIST + 1024}
    s_mov_b64 exec, -1
    """)
    for i in range(7):
        a(f"s_mov_b32 s{sX + 4}, {i * 8192}")
        a(f"s_waitcnt lgkmcnt({8 - i})")
        a(f"buffer_store_dwordx4 {vr(vS + 4 * i, 4)}, v{vP}, s[{SRW}:{SRW + 3}], s{sX + 4} offen {P['rec_st']}")
    st("stissued")

    def poll(mask):
        a(f"""
        s_mov_b32 exec_lo, {mask}
        s_mov_b32 exec_hi, 0
        buffer_load_dword v{vSegW}, v{vSegA}, s[{SSEG}:{SSEG + 3}], s{sJ4} offen sc1
        """)

    a(f"""
    s_cmp_lg_u32 s{sW}, 7
    s_cbranch_scc1 L_nox
    s_mov_b64 exec, 15
    buffer_load_dword v{vCtr}, v{vCtr + 1}, s[{SDBG}:{SDBG + 3}], 0 offen sc1
    s_mov_b64 exec, -1
    L_nox:
    v_lshrrev_b32 v{vT}, 6, v0
    v_and_b32 v{vLane}, 63, v0
    v_and_b32 v{vT + 1}, 31, v0
    v_lshl_add_u32 v{vT + 2}, v{vT + 1}, 3, v{vT}
    v_lshlrev_b32 v{vSegA}, 10, v{vT + 2}
    s_lshl_b32 s{sJ4}, s{sJ}, 2
    v_mul_u32_u24 v{vCb}, {CS}, v{vT + 2}
    v_and_b32 v{vT + 6}, 15, v{vLane}
    v_lshrrev_b32 v{vT + 7}, 4, v{vLane}
    v_mul_u32_u24 v{vLL20}, 20, v{vT + 6}
    v_lshlrev_b32 v{vDw}, 7, v{vT}
    v_add_u32 v{vDw}, {DESC}, v{vDw}
    v_lshl_add_u32 v{vDr}, v{vT + 7}, 4, v{vDw}
    v_mul_u32_u24 v{vT + 8}, 80, v{vT}
    v_add_u32 v{vT + 8}, v{vT + 8}, v{vT + 6}
    v_lshlrev_b32 v{vMoff}, 5, v{vT + 8}
    v_lshl_add_u32 v{vMoff}, v{vT + 7}, 3, v{vMoff}
    v_cmp_gt_u32 vcc, {BK - 64}, v{vT + 8}
    v_mov_b32 v{vT + 9}, 0x7fffff00
    v_lshlrev_b32 v{vDoff}, 1, v{vT + 8}
    v_cndmask_b32 v{vOut4}, v{vT + 9}, v{vMoff}, vcc
    v_mov_b32 v{vZero}, 0
    v_mov_b32 v{vFour}, 4
    v_lshrrev_b32 v{vT + 5}, 1, v{vLane}
    v_lshlrev_b32 v{vLH4}, 2, v{vT + 5}
    v_and_b32 v{vHalf16}, 1, v{vLane}
    v_lshlrev_b32 v{vHalf16}, 4, v{vHalf16}
    v_bfe_u32 v{vT + 6}, v{vT + 5}, 2, 1
    v_bfe_u32 v{vT + 7}, v{vT + 5}, 4, 1
    v_lshl_add_u32 v{vT + 6}, v{vT + 7}, 1, v{vT + 6}
    v_and_b32 v{vT + 7}, 3, v{vT + 5}
    v_bfe_u32 v{vT + 8}, v{vT + 5}, 3, 1
    v_lshl_add_u32 v{vT + 7}, v{vT + 8}, 2, v{vT + 7}
    v_lshlrev_b32 v{vT + 7}, 1, v{vT + 7}
    v_lshl_add_u32 v{vSc}, v{vT + 6}, 8, v{vT + 7}
    v_lshlrev_b32 v{vT + 8}, 10, v{vT}
    v_add_u32 v{vT + 8}, {SB}, v{vT + 8}
    v_add_u32 v{vSc}, v{vSc}, v{vT + 8}
    v_lshl_add_u32 v{vSrd}, v{vLane}, 4, v{vT + 8}
    v_bfe_u32 v{vT + 6}, v{vLane}, 4, 1
    v_bfe_u32 v{vT + 7}, v{vLane}, 5, 1
    v_lshlrev_b32 v{vT + 7}, 4, v{vT + 7}
    v_lshl_add_u32 v{vT + 6}, v{vT + 6}, 2, v{vT + 7}
    v_bfe_u32 v{vT + 7}, v{vLane}, 2, 2
    v_add_u32 v{vT + 6}, v{vT + 6}, v{vT + 7}
    v_and_b32 v{vT + 7}, 3, v{vLane}
    v_lshlrev_b32 v{vT + 7}, 3, v{vT + 7}
    v_lshl_add_u32 v{vTr}, v{vT + 6}, 5, v{vT + 7}
    v_lshlrev_b32 v{vT + 8}, 12, v{vT}
    v_add_u32 v{vT + 8}, {RING}, v{vT + 8}
    v_add_u32 v{vTr}, v{vTr}, v{vT + 8}
    v_mul_u32_u24 v{vT + 6}, 52, v{vLane}
    v_lshrrev_b32 v{vT + 6}, 8, v{vT + 6}
    v_mul_u32_u24 v{vT + 8}, 5, v{vT + 6}
    v_sub_u32 v{vT + 8}, v{vLane}, v{vT + 8}
    v_mul_u32_u24 v{vT + 6}, 3, v{vT + 6}
    v_mov_b32 v{vT + 7}, {sum(o << (3 * i) for i, o in enumerate(ORD))}
    v_bfe_u32 v{vT + 6}, v{vT + 7}, v{vT + 6}, 3
    v_lshrrev_b32 v{vPh}, {16 - PSH}, v{vT + 6}
    v_lshlrev_b32 v{vPh}, 21, v{vPh}
    v_mul_u32_u24 v{vT + 6}, 40, v{vT + 6}
    v_mul_u32_u24 v{vT + 7}, 5, v{vT}
    v_add3_u32 v{vT + 6}, v{vT + 6}, v{vT + 7}, v{vT + 8}
    v_add_u32 v{vT + 6}, 1, v{vT + 6}
    v_lshlrev_b32 v{vCntA}, 2, v{vT + 6}
    """)
    bin_addr(vBase, vT + 6, vT + 7)
    a(f"""
    v_cmp_lt_u32 vcc, {5 * NP - 1}, v{vLane}
    v_mov_b32 v{vT + 8}, {ZB}
    s_nop 0
    v_cndmask_b32 v{vBase}, v{vBase}, v{vT + 8}, vcc
    v_cndmask_b32 v{vPh}, v{vPh}, v{vZero}, vcc
    v_cndmask_b32 v{vCntA}, v{vCntA}, v{vZero}, vcc
    """)
    NCHK = -(-(NB + 1) // 64)
    for k in range(NCHK):
        a(f"v_add_u32 v{vT + 6}, {64 * k + 1}, v{vLane}")
        bin_addr(vLim + k, vT + 6, vT + 7)
    cnt_init(vT, sTk)
    fill(vT + 4, SB, NFILL, RING)
    for k in range(20):
        a(f"v_mov_b32 v{vAcc + k}, 0")
    if P["stamps"]:
        a("s_mov_b32 s97, 0")
        a("s_mov_b64 s[100:101], 0")
    a(f"""
    s_mov_b32 s{sPend}, -1
    s_mov_b32 s{sReady}, 0
    s_mov_b32 s{sPrevN}, 0
    s_mov_b64 s[{sLate}:{sLate + 1}], -1
    s_mul_i32 s{sDo}, s{sJ}, {BK * 2}
    s_mul_i32 s{sMo}, s{sJ}, {BK * 32}
    """)
    if P["dma"]:
        a(f"""
        s_mul_i32 s{sRes}, s{sW}, {RESW}
        s_add_u32 s{sRes}, s{sRes}, {RES}
        s_mul_i32 s{sTk}, s{sW}, 2560
        v_lshlrev_b32 v{vResG}, 4, v{vLane}
        v_add_u32 v{vResG}, s{sTk}, v{vResG}
        v_subrev_u32 v{vResL}, s{sTk}, v{vMoff}
        v_add_u32 v{vResL}, s{sRes}, v{vResL}
        s_mul_i32 s{sTk}, s{sW}, 160
        v_subrev_u32 v{vDstL}, s{sTk}, v{vDoff}
        v_lshlrev_b32 v{vDoff}, 2, v{vLane}
        v_add_u32 v{vDoff}, s{sTk}, v{vDoff}
        s_and_b32 s{sTk}, s{sDo}, 2
        s_and_b32 s{sDo}, s{sDo}, -4
        s_add_u32 s{sTk}, s{sTk}, s{sRes}
        v_add_u32 v{vDstL}, s{sTk}, v{vDstL}
        """)
    a(f"""
    s_waitcnt vmcnt(0) lgkmcnt(0)
    s_cmp_lg_u32 s{sW}, 7
    s_cbranch_scc1 L_ctr_ok
    L_ctr:
    """)
    ctr_sum(None)
    a(f"""
    s_cbranch_scc1 L_ctr_ok
    s_add_u32 s{sSpin}, s{sSpin}, 1
    s_cmp_gt_u32 s{sSpin}, {SPIN_MAX}
    s_cbranch_scc1 L_end
    s_sleep 2
    s_mov_b64 exec, 15
    buffer_load_dword v{vCtr}, v{vCtr + 1}, s[{SDBG}:{SDBG + 3}], 0 offen sc1
    s_mov_b64 exec, -1
    s_waitcnt vmcnt(0)
    s_branch L_ctr
    L_ctr_ok:
    s_mov_b32 s{sSpin}, 0
    """)
    st("drained")

    NLATE = 4 if P["dma"] else 10

    def late_loads():
        a(f"s_mov_b64 exec, s[{sLate}:{sLate + 1}]")
        if P["dma"]:
            for k in range(3):
                a(f"s_add_u32 m0, s{sRes}, 0")
                if k == 2:
                    a("s_mov_b32 exec_hi, 0")
                else:
                    a("s_nop 0")
                a(f"buffer_load_dwordx4 v{vResG}, s[{SM}:{SM + 3}], s{sMo} offen offset:{1024 * k} lds")
            a(f"""
            s_add_u32 m0, s{sRes}, 2560
            s_and_b32 exec_hi, s{sLate + 1}, 0x1ff
            buffer_load_dword v{vDoff}, s[{SDIST}:{SDIST + 3}], s{sDo} offen lds
            """)
        else:
            for g in range(5):
                a(f"buffer_load_ushort v{vDist + g}, v{vDoff}, s[{SDIST}:{SDIST + 3}], s{sDo} offen offset:{32 * g}")
            for g in range(5):
                a(f"buffer_load_dwordx2 {vr(vMr + 2 * g, 2)}, v{vMoff}, s[{SM}:{SM + 3}], s{sMo} offen offset:{512 * g}")
        a(f"s_mov_b64 s[{sLate}:{sLate + 1}], 0")

    a(f"""
    s_barrier
    s_mov_b64 exec, s[{sX}:{sX + 1}]
    buffer_store_dwordx4 {vr(vSeg, 4)}, v{vP}, s[{SSEG}:{SSEG + 3}], s{sX + 2} offen sc1
    """)
    st("pub")
    if P["lateat"] == "pub":
        poll(f"s{sPend}")
        late_loads()
        a(f"s_waitcnt vmcnt({NLATE})")
    elif P["lateat"] == "only":
        poll(f"s{sPend}")
        a("s_waitcnt vmcnt(0)")
    else:
        a("s_branch L_idle3")

    dbg = [0]

    def once(lane):
        if P["stamps"] != 1:
            return
        dbg[0] += 1
        a(f"""
        s_bitcmp1_b64 s[100:101], {lane}
        s_cbranch_scc1 L_once{dbg[0]}
        s_bitset1_b64 s[100:101], {lane}
        s_memrealtime s[98:99]
        s_waitcnt lgkmcnt(0)
        v_writelane_b32 v207, s98, {lane}
        L_once{dbg[0]}:
        """)

    def slot(bank, s):
        return vSlot + 6 * (4 * bank + s), sMk + 2 * (4 * bank + s)

    def rec_issue(bank, s):
        w, m = slot(bank, s)
        a(f"""
        s_mov_b64 exec, -1
        v_add_u32 v{w + 5}, v{vL0 + s}, v{vLL20}
        v_cmp_lt_u32 s[{m}:{m + 1}], v{vLL20}, v{vL1 + s}
        s_mov_b64 exec, s[{m}:{m + 1}]
        buffer_load_dwordx4 {vr(w, 4)}, v{w + 5}, s[{SREC}:{SREC + 3}], 0 offen {P["rec_ld"]}
        buffer_load_dword v{w + 4}, v{w + 5}, s[{SREC}:{SREC + 3}], 0 offen offset:16 {P["rec_ld"]}
        """)

    PP = P["pollpos"]

    def round_ops(upto):
        ops = []
        for s in range(upto + 1):
            if s == PP:
                ops.append("P")
            ops += [s, s]
        if upto == 3 and PP == 4:
            ops.append("P")
        return ops

    def issue_slot(bank, s):
        if s == PP:
            poll(f"s{sPend}")
        rec_issue(bank, s)
        if s == 3 and PP == 4:
            poll(f"s{sPend}")

    def process(bank, issue_bank, extra):
        prev = round_ops(3)
        for s in range(4):
            n = len(prev) - 1 - (len(prev) - 1 - prev[::-1].index(s)) + extra
            if issue_bank is not None:
                issue_slot(issue_bank, s)
                n += len(round_ops(s))
            a(f"s_waitcnt vmcnt({n})")
            if s == 0:
                once(46)
            place_atomics(*slot(bank, s), vRk + 4 * (s & 1))
            if s > 0:
                a(f"s_waitcnt lgkmcnt({4 if s == 1 else 8})")
                place_writes(*slot(bank, s - 1), vRk + 4 * ((s - 1) & 1))
        a("s_waitcnt lgkmcnt(4)")
        place_writes(*slot(bank, 3), vRk + 4)

    for X in range(2):
        Y = 1 - X
        a(f"""
        L_top{X}:
        s_mov_b32 exec_lo, s{sPend}
        s_mov_b32 exec_hi, 0
        s_cbranch_execz L_nowait{X}
        s_waitcnt vmcnt({8 - 2 * PP})
        L_nowait{X}:
        v_cmp_gt_i32 vcc, 0, v{vSegW}
        s_and_b32 s{sTk}, s{sPend}, vcc_lo
        s_andn2_b32 s{sPend}, s{sPend}, s{sTk}
        s_mov_b32 exec_lo, s{sTk}
        v_and_b32 v{vT}, 0xfff, v{vSegW}
        v_bfe_u32 v{vT + 1}, v{vSegW}, 12, 12
        v_mad_u32_u24 v{vD0}, v{vT}, 20, v{vCb}
        v_mul_u32_u24 v{vHi}, 20, v{vT + 1}
        s_or_b32 s{sReady}, s{sReady}, s{sTk}
        s_cbranch_scc1 L_take{X}
        s_cmp_eq_u32 s{sPrevN}, 0
        s_cbranch_scc1 L_idle
        s_cmp_eq_u32 s{sPend}, 0
        s_cbranch_scc1 L_final{X}
        L_take{X}:
        """)
        if P["stamps"] == 1:
            a(f"""
            s_add_u32 s97, s97, 1
            s_memrealtime s[98:99]
            s_waitcnt lgkmcnt(0)
            s_mov_b32 s96, s98
            s_cmp_eq_u32 s97, 1
            s_cbranch_scc0 L_dbg{X}
            v_writelane_b32 v207, s98, 43
            s_bcnt1_i32_b32 s99, s{sReady}
            v_writelane_b32 v207, s99, 44
            L_dbg{X}:
            """)
        a(f"""
        s_mov_b32 exec_lo, 0xffff
        v_lshl_add_u32 v{vT + 3}, v{vLane}, 2, v{vDw}
        ds_write_b32 v{vT + 3}, v{vZero} offset:64
        s_mov_b32 exec_lo, s{sReady}
        v_mbcnt_lo_u32_b32 v{vT}, s{sReady}, 0
        v_cmp_gt_u32 vcc, 16, v{vT}
        s_and_b32 s{sCurN}, s{sReady}, vcc_lo
        s_mov_b32 exec_lo, s{sCurN}
        v_and_b32 v{vT + 2}, 3, v{vT}
        v_lshrrev_b32 v{vT}, 2, v{vT}
        v_min_u32 v{vT + 1}, 320, v{vHi}
        v_lshl_add_u32 v{vT}, v{vT + 2}, 2, v{vT}
        v_sub_u32 v{vHi}, v{vHi}, v{vT + 1}
        v_lshl_add_u32 v{vT}, v{vT}, 2, v{vDw}
        ds_write_b32 v{vT}, v{vD0}
        ds_write_b32 v{vT}, v{vT + 1} offset:64
        v_cmp_lt_u32 vcc, 0, v{vHi}
        v_add_u32 v{vD0}, 320, v{vD0}
        s_andn2_b32 s{sReady}, s{sReady}, s{sCurN}
        s_and_b32 s{sTk}, s{sCurN}, vcc_lo
        s_or_b32 s{sReady}, s{sReady}, s{sTk}
        s_mov_b64 exec, -1
        ds_read_b128 {vr(vL0, 4)}, v{vDr}
        ds_read_b128 {vr(vL1, 4)}, v{vDr} offset:64
        s_cmp_eq_u32 s{sPrevN}, 0
        s_mov_b32 s{sPrevN}, s{sCurN}
        s_waitcnt lgkmcnt(0)
        s_cbranch_scc1 L_only{X}
        """)
        process(Y, X, 0)
        a(f"s_branch L_top{Y}")
    for X in range(2):
        a(f"L_only{X}:")
        for s in range(4):
            issue_slot(X, s)
        a(f"s_branch L_top{1 - X}")
    for X in range(2):
        a(f"L_final{X}:")
        once(45)
        if P["lateat"] == "final":
            late_loads()
        process(1 - X, None, NLATE if P["lateat"] == "final" else 0)
        a("s_branch L_taken")
    a(f"""
    L_idle:
    s_cmp_eq_u32 s{sPend}, 0
    s_cbranch_scc1 L_idle_late
    s_cmp_lt_u32 s{sSpin}, {P["latespin"]}
    s_cbranch_scc1 L_idle2
    L_idle_late:
    """)
    if P["lateat"] in ("final", "taken", "pub"):
        late_loads()
    a(f"""
    s_cmp_eq_u32 s{sPend}, 0
    s_cbranch_scc1 L_taken
    L_idle2:
    s_add_u32 s{sSpin}, s{sSpin}, 1
    s_cmp_gt_u32 s{sSpin}, {SPIN_MAX}
    s_cbranch_scc1 L_end
    s_sleep {P["sleep"]}
    L_idle3:
    """)
    poll(f"s{sPend}")
    a(f"""
    s_waitcnt vmcnt(0)
    s_branch L_top0
    L_taken:
    """)
    if P["lateat"] == "taken":
        late_loads()
    a(f"""
    s_mov_b64 exec, -1
    s_mov_b32 s{sLast}, 1
    s_mov_b32 s{sFirst}, 1
    s_movk_i32 s{sF0}, 0xf0
    s_movk_i32 s{s70}, 0x70
    s_lshl_b32 s{sRingB}, s{sW}, 12
    s_add_u32 s{sRingB}, s{sRingB}, {RING}
    s_mul_i32 s{sRowOff}, s{sJ}, {BK * 32}
    v_lshlrev_b32 v{vT}, 2, v{vLane}
    s_waitcnt lgkmcnt(0)
    """)
    st("intake")
    if P["stamps"] == 1:
        a(f"v_writelane_b32 v207, s{sSpin}, 40")
        a("v_writelane_b32 v207, s97, 41")
        a("v_writelane_b32 v207, s96, 42")
    a("s_barrier")
    st("bar5")
    for k in range(NCHK):
        a(f"ds_read_b32 v{vT + 1 + k}, v{vT} offset:{CNT + 256 * k}")
    a(f"""
    ds_read_b32 v{vEnd}, v{vCntA} offset:{CNT}
    s_waitcnt lgkmcnt(1)
    v_cmp_gt_u32 vcc, v{vT + 1}, v{vLim}
    """)
    for k in range(1, NCHK):
        a(f"v_cmp_gt_u32 s[{sT + 2 * k}:{sT + 2 * k + 1}], v{vT + 1 + k}, v{vLim + k}")
    for k in range(1, NCHK):
        a(f"s_or_b64 vcc, vcc, s[{sT + 2 * k}:{sT + 2 * k + 1}]")
    if P["force_slow"]:
        a("s_cmp_eq_u32 0, 0")
    a(f"""
    s_cbranch_scc0 L_G
    s_mov_b32 s{sSC}, 0
    s_mov_b32 s{sSU}, 0
    s_mov_b32 s{sLast}, 0
    s_mov_b64 s[{sLate}:{sLate + 1}], -1
    L_slow:
    s_waitcnt vmcnt(0) lgkmcnt(0)
    s_barrier
    """)
    if P["dma"]:
        late_loads()
        a("s_mov_b64 exec, -1")
    cnt_init(vT, sT)
    fill(vT + 4, SB, NFILL, RING)
    a(f"""
    s_waitcnt lgkmcnt(0)
    s_barrier
    s_cmp_lt_u32 s{sSC}, {NCH}
    s_cbranch_scc1 L_slow_unit
    s_mov_b32 s{sLast}, 1
    s_branch L_slow_go
    L_slow_unit:
    s_lshl_b32 s{sT}, s{sSC}, 10
    s_lshl_b32 s{sT + 1}, s{sJ}, 2
    s_add_u32 s{sT}, s{sT}, s{sT + 1}
    buffer_load_dword v{vT}, v{vZero}, s[{SSEG}:{SSEG + 3}], s{sT} offen sc1
    s_waitcnt vmcnt(0)
    v_readfirstlane_b32 s{sT + 2}, v{vT}
    s_and_b32 s{sT + 1}, s{sT + 2}, 0xfff
    s_mul_i32 s{sT + 1}, s{sT + 1}, 20
    s_bfe_u32 s{sT + 2}, s{sT + 2}, 0xc000c
    s_mul_i32 s{sT + 2}, s{sT + 2}, 20
    s_mul_i32 s{sT + 3}, s{sSC}, {CS}
    s_add_u32 s{sT + 3}, s{sT + 3}, s{sT + 1}
    s_add_u32 s{sT + 3}, s{sT + 3}, s{sSU}
    s_sub_u32 s{sT + 4}, s{sT + 2}, s{sSU}
    s_min_u32 s{sT + 4}, s{sT + 4}, 480
    s_cmp_lg_u32 s{sW}, 0
    s_cbranch_scc1 L_slow_adv
    v_mul_u32_u24 v{vT}, 20, v{vLane}
    v_cmp_gt_u32 s[{sT + 6}:{sT + 7}], s{sT + 4}, v{vT}
    s_mov_b64 exec, s[{sT + 6}:{sT + 7}]
    buffer_load_dwordx4 {vr(vSlot, 4)}, v{vT}, s[{SREC}:{SREC + 3}], s{sT + 3} offen sc1
    buffer_load_dword v{vSlot + 4}, v{vT}, s[{SREC}:{SREC + 3}], s{sT + 3} offen offset:16 sc1
    s_waitcnt vmcnt(0)
    """)
    place_atomics(vSlot, sT + 6, vRk)
    a("s_waitcnt lgkmcnt(0)")
    place_writes(vSlot, sT + 6, vRk)
    a(f"""
    s_mov_b64 exec, -1
    L_slow_adv:
    s_add_u32 s{sSU}, s{sSU}, 480
    s_cmp_lt_u32 s{sSU}, s{sT + 2}
    s_cbranch_scc1 L_slow_go
    s_add_u32 s{sSC}, s{sSC}, 1
    s_mov_b32 s{sSU}, 0
    L_slow_go:
    s_waitcnt lgkmcnt(0)
    s_barrier
    ds_read_b32 v{vEnd}, v{vCntA} offset:{CNT}
    L_G:
    v_cmp_lt_u32 vcc, {5 * NP - 1}, v{vLane}
    v_add_u32 v{vT + 1}, 128, v{vBase}
    s_mov_b32 s{sCur}, 0
    s_waitcnt lgkmcnt(0)
    v_cndmask_b32 v{vEnd}, v{vEnd}, v{vT + 1}, vcc
    v_cmp_gt_u32 vcc, v{vEnd}, v{vBase}
    v_sub_u32 v{vEnd}, v{vEnd}, v{vBase}
    v_add_u32 v{vEnd}, 127, v{vEnd}
    v_and_b32 v{vEnd}, 0xffffff80, v{vEnd}
    v_add_u32 v{vEnd}, v{vEnd}, v{vBase}
    s_and_b32 s{sNE}, vcc_lo, {(1 << 5 * NP) - 1}
    """)

    def next_bin():
        a(f"""
        s_ff1_i32_b32 s{sL}, s{sNE}
        s_bitset0_b32 s{sNE}, s{sL}
        v_readlane_b32 s{sIA}, v{vBase}, s{sL}
        v_readlane_b32 s{sIE}, v{vEnd}, s{sL}
        v_readlane_b32 s{sIP}, v{vPh}, s{sL}
        """)

    next_bin()
    NRD = D + 1 if P["sp"] else D
    for k in range(NRD):
        a(f"""
        s_mov_b32 s{sT + k}, s{sIP}
        s_nop 0
        v_add_u32 v{vT + k}, s{sIA}, v{vLH4}
        ds_read_b32 v{vWq + k}, v{vT + k}
        s_add_u32 s{sIA}, s{sIA}, 128
        s_cmp_lg_u32 s{sIA}, s{sIE}
        s_cbranch_scc1 L_pro{k}
        """)
        next_bin()
        a(f"L_pro{k}:")
    for k in range(D):
        a(f"""
        s_add_u32 m0, s{sRingB}, {k * 1024}
        s_waitcnt lgkmcnt({NRD - 1 - k})
        v_mad_u32_u16 v{vT + k}, v{vWq + k}, 32, v{vHalf16} op_sel:[1,0,0,0]
        buffer_load_dwordx4 v{vT + k}, s[{SM}:{SM + 3}], s{sT + k} offen {P["gather"]} lds
        """)
    if P["sp"]:
        a(f"""
        s_mov_b32 s{sIPn}, s{sT + D}
        s_waitcnt lgkmcnt(0)
        """)

    def gates(tag):
        a(f"""
        s_cmp_eq_u32 s{sFirst}, 0
        s_cbranch_scc1 L_gates_done
        s_mov_b32 s{sFirst}, 0
        """)
        a(f"""
        v_and_b32 v{vT + 4}, 15, v{vLane}
        v_lshrrev_b32 v{vT + 5}, 4, v{vLane}
        v_lshlrev_b32 v{vT + 4}, 1, v{vT + 4}
        v_lshl_add_u32 v{vT + 6}, v{vT + 5}, 6, v{vT + 4}
        v_lshl_add_u32 v{vT + 4}, v{vT + 5}, 7, v{vT + 4}
        v_lshlrev_b32 v{vT + 5}, 2, v{vT + 5}
        """)
        for k in range(4):
            a(f"ds_read_u16 v{vWraw + k}, v{vT + 4} offset:{HIST + 32 * k}")
            a(f"ds_read_u16 v{vWraw + 4 + k}, v{vT + 4} offset:{HIST + 512 + 32 * k}")
        for k in range(2):
            a(f"ds_read_u16 v{vWraw + 8 + k}, v{vT + 6} offset:{HIST + 1024 + 32 * k}")
            a(f"ds_read_u16 v{vWraw + 10 + k}, v{vT + 6} offset:{HIST + 1280 + 32 * k}")
        a(f"""
        ds_read_b32 v{vCen}, v{vT + 5} offset:{HIST + 1536}
        s_waitcnt vmcnt({D})
        """)
        if P["dma"]:
            for g in range(5):
                a(f"ds_read_u16 v{vDist + g}, v{vDstL} offset:{2560 + 32 * g}")
            for g in range(5):
                a(f"ds_read_b64 {vr(vMr + 2 * g, 2)}, v{vResL} offset:{512 * g}")
        a(f"""
        s_waitcnt lgkmcnt(0)
        v_lshl_or_b32 v{vWd}, v{vWraw + 1}, 16, v{vWraw}
        v_lshl_or_b32 v{vWd + 1}, v{vWraw + 3}, 16, v{vWraw + 2}
        v_lshl_or_b32 v{vWu}, v{vWraw + 5}, 16, v{vWraw + 4}
        v_lshl_or_b32 v{vWu + 1}, v{vWraw + 7}, 16, v{vWraw + 6}
        v_lshl_or_b32 v{vWs}, v{vWraw + 9}, 16, v{vWraw + 8}
        v_lshl_or_b32 v{vWr}, v{vWraw + 11}, 16, v{vWraw + 10}
        v_mov_b32 v{vWd + 2}, v{vWd}
        v_mov_b32 v{vWd + 3}, v{vWd + 1}
        v_mov_b32 v{vWu + 2}, v{vWu}
        v_mov_b32 v{vWu + 3}, v{vWu + 1}
        v_mov_b32 v{vWs + 1}, 0
        v_mov_b32 v{vWr + 1}, 0
        v_mov_b32 v{vRb + 1}, 0
        v_mov_b32 v{vRb + 3}, 0
        v_and_b32 v{vCen + 1}, 0xffff0000, v{vCen}
        v_lshlrev_b32 v{vCen}, 16, v{vCen}
        """)
        for g in range(5):
            t = vT + 4
            rb = vRb + 2 * (g & 1)
            a(f"""
            v_lshlrev_b32 v{t + 2}, 16, v{vDist + g}
            v_sub_f32 v{t}, v{t + 2}, v{vCen}
            v_sub_f32 v{t + 1}, v{t + 2}, v{vCen + 1}
            v_cvt_pk_bf16_f32 v{t + 2}, v{t}, v{t + 1}
            v_lshlrev_b32 v{t}, 16, v{t + 2}
            v_and_b32 v{t + 1}, 0xffff0000, v{t + 2}
            v_mul_f32 v{t}, v{t}, v{t}
            v_mul_f32 v{t + 1}, v{t + 1}, v{t + 1}
            v_cvt_pk_bf16_f32 v{t + 2}, v{t}, v{t + 1}
            v_lshlrev_b32 v{t}, 16, v{t + 2}
            v_and_b32 v{t + 1}, 0xffff0000, v{t + 2}
            v_mul_f32 v{t}, 0xc1200000, v{t}
            v_mul_f32 v{t + 1}, 0xc1200000, v{t + 1}
            v_cvt_pk_bf16_f32 v{t + 2}, v{t}, v{t + 1}
            v_lshlrev_b32 v{t}, 16, v{t + 2}
            v_and_b32 v{t + 1}, 0xffff0000, v{t + 2}
            v_mul_f32 v{t}, 0x3fb8aa3b, v{t}
            v_mul_f32 v{t + 1}, 0x3fb8aa3b, v{t + 1}
            v_exp_f32 v{t}, v{t}
            v_exp_f32 v{t + 1}, v{t + 1}
            s_nop 0
            v_cvt_pk_bf16_f32 v{rb}, v{t}, v{t + 1}
            s_nop 1
            v_mfma_f32_16x16x16_bf16 {vr(vG + 4 * g, 4)}, {vr(vWs, 2)}, {vr(rb, 2)}, 0
            v_mfma_f32_16x16x16_bf16 {vr(vH + 4 * g, 4)}, {vr(vWr, 2)}, {vr(rb, 2)}, 0
            """)
        a("L_gates_done:")
        st("GH")

    a(f"s_movk_i32 s{sPrev}, {D * 1024}")
    st("Gissued")
    if P["lateat"] == "g0":
        late_loads()
        a("s_mov_b64 exec, -1")
    if P["lateat"] in ("final", "taken", "pub"):
        gates(0)
    a("L_main:")

    def split(src, dst, t):
        a(f"""
        v_cvt_pk_bf16_f32 v{dst}, v{src}, v{src + 1}
        v_cvt_pk_bf16_f32 v{dst + 1}, v{src + 2}, v{src + 3}
        v_lshlrev_b32 v{t}, 16, v{dst}
        v_and_b32 v{t + 1}, 0xffff0000, v{dst}
        v_lshlrev_b32 v{t + 2}, 16, v{dst + 1}
        v_and_b32 v{t + 3}, 0xffff0000, v{dst + 1}
        v_sub_f32 v{t}, v{src}, v{t}
        v_sub_f32 v{t + 1}, v{src + 1}, v{t + 1}
        v_sub_f32 v{t + 2}, v{src + 2}, v{t + 2}
        v_sub_f32 v{t + 3}, v{src + 3}, v{t + 3}
        v_cvt_pk_bf16_f32 v{dst + 2}, v{t}, v{t + 1}
        v_cvt_pk_bf16_f32 v{dst + 3}, v{t + 2}, v{t + 3}
        s_nop 1
        """)

    def prio(b):
        pat = P["prio"]
        if not pat:
            return ""
        cur = pat[b % len(pat)]
        if b and cur == pat[(b - 1) % len(pat)]:
            return ""
        return f"""s_cmp_lt_u32 s{sW}, 4
        s_cbranch_scc1 L_pr{b}
        s_setprio {1 if cur == "y" else 0}
        L_pr{b}:"""

    align = f".p2align {P['al']}" + "\ns_nop 0" * P["alpad"] if P["al"] else ""
    ring_adv = f"s_mov_b32 s{sPrev}, s{sCur}" if D == R - 1 else f"s_add_u32 s{sPrev}, s{sPrev}, 1024\ns_and_b32 s{sPrev}, s{sPrev}, {R * 1024 - 1}"
    def step(b, acc):
        if not P["sp"]:
            return f"""
            s_add_u32 m0, s{sRingB}, s{sPrev}
            v_add_u32 v{vT}, s{sIA}, v{vLH4}
            v_add_u32 v{vT + 1}, s{sC}, v{vLH4}
            ds_read_b32 v{vT}, v{vT}
            ds_read_b32 v{vT + 1}, v{vT + 1}
            v_add_u32 v{vT + 3}, s{sCur}, v{vTr}
            {ring_adv}
            s_add_u32 s{sCur}, s{sCur}, 1024
            s_and_b32 s{sCur}, s{sCur}, {R * 1024 - 1}
            s_add_u32 s{sC}, s{sC}, 128
            s_add_u32 s{sIA}, s{sIA}, 128
            s_cmp_eq_u32 s{sIA}, s{sIE}
            s_waitcnt lgkmcnt(1)
            v_mad_u32_u16 v{vT}, v{vT}, 32, v{vHalf16} op_sel:[1,0,0,0]
            buffer_load_dwordx4 v{vT}, s[{SM}:{SM + 3}], s{sIP} offen {P["gather"]} lds
            s_cbranch_scc1 L_nb{b}
            L_nb{b}_back:
            s_waitcnt lgkmcnt(0)
            v_and_b32 v{vT + 2}, 0xbff8, v{vT + 1}
            v_lshlrev_b32 v{vT + 4}, 4, v{vT + 1}
            v_lshrrev_b32 v{vT + 5}, 7, v{vT + 1}
            v_cvt_f32_f16 v{vT + 2}, v{vT + 2}
            v_bfi_b32 v{vT + 4}, s{s70}, v{vT + 4}, v{vT + 5}
            v_and_or_b32 v{vT + 4}, v{vT + 4}, s{sF0}, v{vSc}
            ds_write_b16_d16_hi v{vT + 4}, v{vT + 2}
            ds_read_b128 {vr(vSt, 4)}, v{vSrd}
            ds_write_b16 v{vT + 4}, v{vZero}
            s_waitcnt vmcnt({D})
            ds_read_b64_tr_b16 {vr(vMt, 2)}, v{vT + 3}
            ds_read_b64_tr_b16 {vr(vMt + 2, 2)}, v{vT + 3} offset:256
            s_cmp_lg_u32 s{sC}, s{sCE}
            s_waitcnt lgkmcnt(0)
            v_mfma_f32_16x16x32_bf16 {vr(acc, 4)}, {vr(vMt, 4)}, {vr(vSt, 4)}, {vr(acc, 4)}
            s_cbranch_scc1 L_bin{b}
"""
        shift = "\n".join(f"v_mov_b32 v{vWq + k}, v{vWq + k + 1}" for k in range(D))
        return f"""
            s_add_u32 m0, s{sRingB}, s{sPrev}
            v_mad_u32_u16 v{vT}, v{vWq + D}, 32, v{vHalf16} op_sel:[1,0,0,0]
            v_and_b32 v{vT + 2}, 0xbff8, v{vWq}
            v_lshlrev_b32 v{vT + 4}, 4, v{vWq}
            buffer_load_dwordx4 v{vT}, s[{SM}:{SM + 3}], s{sIPn} offen {P["gather"]} lds
            v_lshrrev_b32 v{vT + 5}, 7, v{vWq}
            v_cvt_f32_f16 v{vT + 2}, v{vT + 2}
            v_bfi_b32 v{vT + 4}, s{s70}, v{vT + 4}, v{vT + 5}
            v_add_u32 v{vT + 1}, s{sIA}, v{vLH4}
            v_and_or_b32 v{vT + 4}, v{vT + 4}, s{sF0}, v{vSc}
            {shift}
            ds_write_b16_d16_hi v{vT + 4}, v{vT + 2}
            ds_read_b128 {vr(vSt, 4)}, v{vSrd}
            ds_write_b16 v{vT + 4}, v{vZero}
            ds_read_b32 v{vWq + D}, v{vT + 1}
            v_add_u32 v{vT + 3}, s{sCur}, v{vTr}
            s_mov_b32 s{sIPn}, s{sIP}
            s_add_u32 s{sIA}, s{sIA}, 128
            s_cmp_eq_u32 s{sIA}, s{sIE}
            s_cbranch_scc1 L_nb{b}
            L_nb{b}_back:
            s_waitcnt vmcnt({D})
            ds_read_b64_tr_b16 {vr(vMt, 2)}, v{vT + 3}
            ds_read_b64_tr_b16 {vr(vMt + 2, 2)}, v{vT + 3} offset:256
            {ring_adv}
            s_add_u32 s{sCur}, s{sCur}, 1024
            s_and_b32 s{sCur}, s{sCur}, {R * 1024 - 1}
            s_add_u32 s{sC}, s{sC}, 128
            s_cmp_lg_u32 s{sC}, s{sCE}
            s_waitcnt lgkmcnt(0)
            v_mfma_f32_16x16x32_bf16 {vr(acc, 4)}, {vr(vMt, 4)}, {vr(vSt, 4)}, {vr(acc, 4)}
            s_cbranch_scc1 L_bin{b}
"""

    for p in range(NP):
        for g in range(5):
            b = p * 5 + g
            acc = vAcc + 4 * g
            a(f"""
            {prio(b)}
            v_readlane_b32 s{sC}, v{vBase}, {b}
            v_readlane_b32 s{sCE}, v{vEnd}, {b}
            s_cmp_eq_u32 s{sC}, s{sCE}
            s_cbranch_scc1 L_bin{b}_done
            {align}
            L_bin{b}:
            {step(b, acc)}
            L_bin{b}_done:
            """)
            if g == 4 or b == 0:
                st(f"bin{b}")
            if P["lateat"] == f"b{b}":
                late_loads()
                a("s_mov_b64 exec, -1")
            if P["lateat"] not in ("final", "taken", "pub") and b == P["ghat"]:
                gates(0)
            if p == NP - 1:
                x, y, t = vT + 4, vT + 8, vT + 12
                a(f"""
                s_cmp_eq_u32 s{sLast}, 0
                s_cbranch_scc1 L_epi{g}_done
                s_nop 5
                """)
                split(acc, x, t)
                a(f"""
                v_mfma_f32_16x16x32_bf16 {vr(y, 4)}, {vr(vWd, 4)}, {vr(x, 4)}, 0
                s_nop 7
                v_mul_f32 v{y}, v{y}, v{vG + 4 * g}
                v_mul_f32 v{y + 1}, v{y + 1}, v{vG + 4 * g + 1}
                v_mul_f32 v{y + 2}, v{y + 2}, v{vG + 4 * g + 2}
                v_mul_f32 v{y + 3}, v{y + 3}, v{vG + 4 * g + 3}
                """)
                split(y, x, t)
                mr = vMr + 2 * g
                a(f"""
                v_mfma_f32_16x16x32_bf16 {vr(y, 4)}, {vr(vWu, 4)}, {vr(x, 4)}, 0
                v_lshlrev_b32 v{t}, 16, v{mr}
                v_and_b32 v{t + 1}, 0xffff0000, v{mr}
                v_lshlrev_b32 v{t + 2}, 16, v{mr + 1}
                v_and_b32 v{t + 3}, 0xffff0000, v{mr + 1}
                s_nop 3
                v_fmac_f32 v{t}, v{y}, v{vH + 4 * g}
                v_fmac_f32 v{t + 1}, v{y + 1}, v{vH + 4 * g + 1}
                v_fmac_f32 v{t + 2}, v{y + 2}, v{vH + 4 * g + 2}
                v_fmac_f32 v{t + 3}, v{y + 3}, v{vH + 4 * g + 3}
                v_cvt_pk_bf16_f32 v{mr}, v{t}, v{t + 1}
                v_cvt_pk_bf16_f32 v{mr + 1}, v{t + 2}, v{t + 3}
                buffer_store_dwordx2 {vr(mr, 2)}, v{vOut4 if g == 4 else vMoff}, s[{SOUT}:{SOUT + 3}], s{sRowOff} offen offset:{512 * g} {P["out_st"]}
                L_epi{g}_done:
                """)
    a(f"""
    s_cmp_eq_u32 s{sLast}, 0
    s_cbranch_scc1 L_slow
    """)
    if P["wb"]:
        a(f"""
        s_cmp_lg_u32 s{sW}, 7
        s_cbranch_scc1 L_nowb
        s_cmp_ge_u32 s2, {8 * P["wb"]}
        s_cbranch_scc1 L_nowb
        buffer_wbl2 sc1
        L_nowb:
        """)
    if P["stamps"]:
        a("s_waitcnt vmcnt(0)")
    st("end")
    if P["stamps"] == 3:
        a(f"""
        s_cmp_lg_u32 s2, {P["dbgwg"]}
        s_cbranch_scc1 L_end
        s_cmp_lg_u32 s{sW}, {P["dbgw"]}
        s_cbranch_scc1 L_end
        v_readlane_b32 s98, v207, 0
        s_mov_b64 exec, 0xfffe
        v_subrev_u32 v207, s98, v207
        v_lshlrev_b32 v{vT}, 2, v{vLane}
        buffer_store_dword v207, v{vT}, s[{SDBG}:{SDBG + 3}], 0 offen
        """)
        print("names:", ",".join(st.names), file=sys.stderr)
    else:
        st.flush(SSEG, "s2", vT)
    a("""
    L_end:
    s_endpgm
    """)
    for b in range(5 * NP):
        a(f"L_nb{b}:")
        next_bin()
        a(f"s_branch L_nb{b}_back")
    a("L_code_end:")
    return a.text(), 256, 102, LDS


def generate(**kw):
    P = dict(DEFAULTS)
    P.update(kw)
    body, nv, ns, lds = gen(P)
    n = NAME + "_kernel"
    out = HEADER
    out += f"; @launch grid=({NCH},1,1) block=(512,1,1) lds={lds}\n"
    out += '.amdgcn_target "amdgcn-amd-amdhsa--gfx950"\n.text\n'
    out += f".globl {n}\n.p2align 8\n.type {n},@function\n{n}:\n{body}"
    out += '.section .rodata,"a"\n.p2align 6\n' + descriptor(n, nv, ns)
    return out


if __name__ == "__main__":
    path = sys.argv[1]
    kw = {}
    for arg in sys.argv[2:]:
        k, v = arg.split("=", 1)
        kw[k] = int(v) if v.lstrip("-").isdigit() else v
    open(path, "w").write(generate(**kw))
```

```python
import sys
from gen import Asm, vr, srd, Stamps, descriptor, NAME, E, T, NCH, CH, BK, WS_SEG

SPIN_MAX = 1 << 20
CS = 53888


DEFAULTS = dict(
    D=2,
    in_ld="nt",
    rec_st="sc1",
    rec_ld="",
    out_st="",
    gather="",
    xl=1,
    latespin=2,
    psh=15,
    order="o40123",
    sched="s2a",
    split=4,
    prio="yo",
    sp=1,
    pollpos=0,
    cmap=0,
    rot=5,
    lateiss=15,
    dma=1,
    ipf=6,
    stamps=0,
    dbgwg=100,
    dbgw=5,
    force_slow=0,
)

HEADER = """; Kernarg layout for this problem (112 bytes, ptrs only, base s[0:1]):
;
"""


def gen(P):
    a = Asm()
    D = P["D"]
    R = 4
    ORD = [int(ch) for ch in str(P["order"]).lstrip("o")]
    PSH = P["psh"]
    CAPS = {16: (160, 160, 96), 15: (96,) * 5}[PSH]
    NP = len(CAPS)
    NB = 40 * NP
    CNT, HIST, BASE, DESC, SB, TRASH, AB = 0, 1024, 2048, 3072, 4096, 12288, 15360
    ZB = AB + 40 * 4 * sum(CAPS)
    RING = ZB + 128
    STG = RING
    LDS = -(-(STG + 53840) // 1280) * 1280
    RES, RESW = RING + 8 * R * 1024, 2736
    NFILL = -(-(RING - SB) // 8192)
    assert LDS <= 163840 and len(ORD) == NP and RES + 8 * RESW <= LDS
    sJ = 3
    SO, SI, SA, SRW, SSEG, SREC, SM, SOUT, SDIST, SDBG = 4, 8, 12, 16, 20, 24, 28, 32, 36, 40
    pM, pI, pO, pDist, pAng, pCen, pFreq, pWr, pWs, pWd, pWu, pOut, pDbg, pWsp = range(44, 72, 2)
    sOff, sOffA = 72, 77
    sC625, sM625, sPre, sMask, sAct, sW, sSpin, sX = 82, 83, 84, 85, 86, 88, 89, 90
    sMk = 44
    sPend, sReady, sPrevN, sCurN, sJ4, sTk, sEarly = 60, 61, 62, 63, 64, 66, 68
    sLate, sDo, sMo, sRes = 74, 72, 73, 76
    sLast, sFirst, sSC, sSU = 83, 84, 85, 86
    sF0, s70, sRingB, sPrev, sCur, sRowOff = 44, 45, 46, 47, 48, 49
    sNE, sL, sIA, sIE, sIP, sC, sCE, sIPn = 50, 51, 52, 53, 54, 55, 56, 57
    sT = 58
    st = Stamps(a, P, 0, 207, 98)
    vOff16, vOff8, vOne, vF = 1, 2, 3, 4
    vO, vI, vA, vJ, vR = 8, 28, 48, 58, 78
    vP = 98
    vSeg = 112
    vPar = 116
    vCtr = 124
    vLane, vLL20, vFour, vZero = 1, 2, 3, 4
    vLH4, vHalf16, vSc, vSrd, vTr, vBase, vCntA, vEnd, vPh = 5, 6, 7, 8, 9, 10, 11, 12, 13
    vMoff, vOut4 = 14, 15
    vT = 16
    vSlot = 32
    vRk = 80
    vL0, vL1 = 88, 92
    vD0, vHi, vSegA, vCb, vSegW, vDw, vDr, vDoff, vLim = range(100, 109)
    vResG, vResL, vDstL = 126, 127, 128
    vWq = 96
    vAcc = 132
    vG, vH = 152, 172
    vMr = 192
    vDist = 202
    vWraw = 208
    vCen = 220
    vWd, vWu = 224, 228
    vWs, vWr, vRb = 232, 234, 236
    vMt, vSt = 240, 244
    vQ = 248

    def bin_addr(dst, k, tmp):
        a(f"""
        v_mul_u32_u24 v{dst}, {CAPS[0] * 4}, v{k}
        v_add_u32 v{dst}, {AB - CAPS[0] * 4}, v{dst}
        """)
        if CAPS[-1] != CAPS[0]:
            a(f"""
            v_mul_u32_u24 v{tmp}, {CAPS[-1] * 4}, v{k}
            v_add_u32 v{tmp}, {AB + (NB - 40) * CAPS[0] * 4 - (NB - 39) * CAPS[-1] * 4}, v{tmp}
            v_min_u32 v{dst}, v{dst}, v{tmp}
            """)

    def cnt_init(t, stmp):
        bin_addr(t, 0, t + 1)
        a(f"""
        v_mov_b32 v{t + 1}, {TRASH}
        v_cmp_eq_u32 vcc, 0, v0
        v_mov_b32 v{t + 2}, 0
        v_lshlrev_b32 v{t + 3}, 2, v0
        v_cndmask_b32 v{t}, v{t}, v{t + 1}, vcc
        v_cmp_lt_u32 vcc, {NB}, v0
        s_nop 1
        v_cndmask_b32 v{t}, v{t}, v{t + 2}, vcc
        v_cmp_gt_u32 vcc, 256, v0
        s_and_saveexec_b64 s[{stmp}:{stmp + 1}], vcc
        ds_write_b32 v{t + 3}, v{t} offset:{CNT}
        s_mov_b64 exec, s[{stmp}:{stmp + 1}]
        """)

    def fill(t, start, rounds, clip=None):
        a(f"""
        v_lshlrev_b32 v{t}, 4, v0
        v_mov_b32 v{vQ}, 0
        v_mov_b32 v{vQ + 1}, 0
        v_mov_b32 v{vQ + 2}, 0
        v_mov_b32 v{vQ + 3}, 0
        v_add_u32 v{t}, {start}, v{t}
        v_add_u32 v{t + 1}, 65536, v{t}
        """)
        if clip:
            a(f"v_cmp_gt_u32 vcc, {(clip - start - (rounds - 1) * 8192) // 16}, v0")
        for i in range(rounds):
            if clip and i == rounds - 1:
                a("s_mov_b64 exec, vcc")
            a(f"ds_write_b128 v{t + (i >> 3)}, {vr(vQ, 4)} offset:{(i & 7) * 8192}")
        if clip:
            a("s_mov_b64 exec, -1")

    def place_atomics(w, m, t):
        a(f"s_mov_b64 exec, s[{m}:{m + 1}]")
        for r in range(4):
            a(f"v_lshlrev_b32_sdwa v{t + r}, 2, v{w + 4} dst_sel:DWORD dst_unused:UNUSED_PAD src0_sel:DWORD src1_sel:BYTE_{r}")
            a(f"ds_add_rtn_u32 v{t + r}, v{t + r}, v{vFour} offset:{CNT}")

    def place_writes(w, m, t):
        a(f"s_mov_b64 exec, s[{m}:{m + 1}]")
        for r in range(4):
            a(f"ds_write_b32 v{t + r}, v{w + r}")

    def ctr_sum(lab_ok):
        a(f"""
        v_readlane_b32 s{sX + 4}, v{vCtr}, 0
        v_readlane_b32 s{sX + 5}, v{vCtr}, 1
        s_add_u32 s{sX + 4}, s{sX + 4}, s{sX + 5}
        v_readlane_b32 s{sX + 5}, v{vCtr}, 2
        s_add_u32 s{sX + 4}, s{sX + 4}, s{sX + 5}
        v_readlane_b32 s{sX + 5}, v{vCtr}, 3
        s_add_u32 s{sX + 4}, s{sX + 4}, s{sX + 5}
        s_cmp_ge_u32 s{sX + 4}, {NCH}
        """)

    ld = P["in_ld"]
    a(f"""
    s_cmp_ge_u32 s2, {NCH}
    s_cbranch_scc1 L_end
    """)
    st("start")
    a(f"""
    s_load_dwordx16 s[44:59], s[0:1], 0
    s_load_dwordx8 s[60:67], s[0:1], 64
    s_load_dwordx4 s[68:71], s[0:1], 96
    """)
    if P["ipf"]:
        a(f"""
        s_getpc_b64 s[96:97]
        s_lshr_b32 s{sX}, s2, 3
        s_mul_i32 s{sX}, s{sX}, {P["ipf"]}
        v_add_u32 v1, s{sX}, v0
        v_min_u32 v1, (L_code_end - {NAME}_kernel - 256) / 128, v1
        v_lshlrev_b32 v1, 7, v1
        v_cmp_gt_u32 vcc, {P["ipf"]}, v0
        s_and_saveexec_b64 s[{sX}:{sX + 1}], vcc
        s_cbranch_execz L_noipf
        global_load_dword v130, v1, s[96:97]
        L_noipf:
        s_mov_b64 exec, s[{sX}:{sX + 1}]
        """)
    a(f"""
    v_lshlrev_b32 v{vOff16}, 4, v0
    v_lshlrev_b32 v{vOff8}, 3, v0
    v_lshlrev_b32 v5, 2, v0
    v_mov_b32 v6, 0
    v_mov_b32 v{vOne}, 1
    v_lshrrev_b32 v7, 6, v0
    s_mul_i32 s{sOff}, s2, {CH * 4}
    s_mul_i32 s{sOffA}, s2, {CH * 2}
    v_readfirstlane_b32 s{sW}, v7
    ds_write_b32 v5, v6 offset:{HIST}
    """)
    for q in range(1, 5):
        a(f"s_add_u32 s{sOff + q}, s{sOff}, {q * 8000}")
        a(f"s_add_u32 s{sOffA + q}, s{sOffA}, {q * 4000}")
    if P["xl"]:
        a(f"""
        s_and_b32 s{sJ}, s2, 7
        s_lshl_b32 s{sJ}, s{sJ}, 5
        s_lshr_b32 s{sX}, s2, 3
        s_add_u32 s{sJ}, s{sJ}, s{sX}
        """)
    else:
        a(f"s_mov_b32 s{sJ}, s2")
    a(f"""
    s_mov_b32 s{sC625}, 6871948
    s_mov_b32 s{sM625}, -{BK}
    s_mov_b32 s{sMask}, 0x4007
    s_mov_b32 s{sSpin}, 0
    v_cmp_gt_u32 vcc, 500, v0
    s_lshl_b32 s{sX + 2}, s2, 10
    s_cmp_eq_u32 s{sW}, 0
    s_cselect_b64 s[{sX}:{sX + 1}], -1, 0
    s_waitcnt lgkmcnt(0)
    """)
    srd(a, SO, f"s{pO}", f"s{pO + 1}", T * 4)
    a("s_barrier")
    a(f"""
    s_mov_b64 s[{sAct}:{sAct + 1}], vcc
    s_mov_b64 exec, vcc
    """)
    issued = []

    def ld_issue(name):
        k, q = name[0], int(name[1:] or 0)
        act = f"s_mov_b64 exec, s[{sAct}:{sAct + 1}]"
        if k == "F":
            a(f"global_load_ushort v{vF}, v6, s[{pFreq}:{pFreq + 1}]")
        elif k == "O":
            a(f"buffer_load_dwordx4 {vr(vO + 4 * q, 4)}, v{vOff16}, s[{SO}:{SO + 3}], s{sOff + q} offen {ld}")
        elif k == "A":
            a(f"buffer_load_dwordx2 {vr(vA + 2 * q, 2)}, v{vOff8}, s[{SA}:{SA + 3}], s{sOffA + q} offen {ld}")
        else:
            a(f"buffer_load_dwordx4 {vr(vI + 4 * q, 4)}, v{vOff16}, s[{SI}:{SI + 3}], s{sOff + q} offen {ld}")
        issued.append(name)

    def wave0(tag, body):
        a(f"""
        s_cmp_lg_u32 s{sW}, 0
        s_cbranch_scc1 L_w0{tag}
        """)
        body()
        a(f"""
        s_mov_b64 exec, s[{sAct}:{sAct + 1}]
        L_w0{tag}:
        """)

    def row_clear():
        a(f"buffer_store_dwordx4 {vr(vQ, 4)}, v{vOff16}, s[{SSEG}:{SSEG + 3}], s{sX + 2} offen sc1")

    def weights():
        for lo, hi, dst, ptr, off in ((-1, 0, 0, pWd, 0), (0, -1, 0, pWu, -512), (0xffff, 0, 4, pWs, 0),
                                      (0xffff0000, 0, 4, pWr, -256), (0, 1, 4, pCen, -512)):
            a(f"""
            s_mov_b32 exec_lo, {lo}
            s_mov_b32 exec_hi, {hi}
            global_load_dwordx4 {vr(vPar + dst, 4)}, v{vOff16}, s[{ptr}:{ptr + 1}] offset:{off}
            """)

    def count_clear(younger):
        a(f"""
        s_cmp_lg_u32 s{sW}, 0
        s_cbranch_scc1 L_w0c
        s_waitcnt vmcnt({younger})
        L_w0c:
        s_and_b64 exec, s[{sX}:{sX + 1}], 1
        s_and_b32 s{sX + 3}, s2, 3
        s_lshl_b32 s{sX + 3}, s{sX + 3}, 6
        buffer_atomic_add v{vOne}, v6, s[{SDBG}:{SDBG + 3}], s{sX + 3} offen
        s_mov_b64 exec, s[{sAct}:{sAct + 1}]
        """)
        issued.append("C")

    def ld_wait(name):
        a(f"s_waitcnt vmcnt({len(issued) - 1 - issued.index(name)})")

    for n in ("O0", "O1", "O2", "O3", "O4", "F"):
        ld_issue(n)
    srd(a, SI, f"s{pI}", f"s{pI + 1}", T * 4)
    srd(a, SA, f"s{pAng}", f"s{pAng + 1}", T * 2)
    srd(a, SDBG, f"s{pDbg}", f"s{pDbg + 1}", 256)
    srd(a, SREC, f"s{pWsp}", f"s{pWsp + 1}", NCH * CS)
    srd(a, SOUT, f"s{pOut}", f"s{pOut + 1}", E * 32)
    srd(a, SM, f"s{pM}", f"s{pM + 1}", E * 32)
    srd(a, SDIST, f"s{pDist}", f"s{pDist + 1}", E * 2)
    a(f"""
    s_add_u32 s{SSEG}, s{pWsp}, {WS_SEG}
    s_addc_u32 s{SSEG + 1}, s{pWsp + 1}, 0
    s_and_b32 s{SSEG + 1}, s{SSEG + 1}, 0xffff
    s_mov_b32 s{SSEG + 2}, {NCH * 1024}
    s_mov_b32 s{SSEG + 3}, 0x20000
    s_mul_i32 s{sX + 3}, s2, {CS}
    s_add_u32 s{SRW}, s{pWsp}, s{sX + 3}
    s_addc_u32 s{SRW + 1}, s{pWsp + 1}, 0
    s_and_b32 s{SRW + 1}, s{SRW + 1}, 0xffff
    s_mov_b32 s{SRW + 2}, 0
    s_mov_b32 s{SRW + 3}, 0x20000
    s_mov_b64 exec, -1
    v_and_b32 v{vCtr + 1}, 3, v0
    v_lshlrev_b32 v{vCtr + 1}, 6, v{vCtr + 1}
    """)
    fill(vP + 4, STG, 7)
    a(f"s_mov_b64 exec, s[{sAct}:{sAct + 1}]")
    S2 = P["sched"] != "s1"
    rest = [f"A{q}" for q in range(5)] + [f"I{q}" for q in range(5)]
    after_o = [()] * 5 if S2 else [("A0", "A1"), ("A2", "A3"), ("A4", "I0"), ("I1",), ("I2",)]
    for q in range(5):
        ld_wait(f"O{q}")
        if q == 0:
            wave0("z", row_clear)
            nz = len(issued)
        for n in after_o[q]:
            ld_issue(n)
        if q in (0, 4):
            st(f"O{q}")
        for r in range(4):
            i = 4 * q + r
            a(f"v_mul_hi_u32_u24 v{vP + r}, s{sC625}, v{vO + i}")
            a(f"v_add_u32 v{vO + i}, 16, v{vO + i}")
        for r in range(4):
            i = 4 * q + r
            a(f"v_lshlrev_b32 v{vJ + i}, 2, v{vP + r}")
            a(f"v_mad_i32_i24 v{vO + i}, v{vP + r}, s{sM625}, v{vO + i}")
            a(f"ds_add_rtn_u32 v{vR + i}, v{vJ + i}, v{vOne} offset:{HIST}")
        for r in range(4):
            i = 4 * q + r
            a(f"v_lshl_or_b32 v{vO + i}, v{vO + i}, 11, v{vO + i}")


    def issue_rest(tag, older):
        a(f"""
        s_cmp_lt_u32 s{sW}, {P["split"]}
        s_cbranch_scc{0 if older else 1} L_rest{tag}
        """)
        keep = list(issued)
        for n in rest:
            ld_issue(n)
        if older:
            issued[:] = keep
        a(f"L_rest{tag}:")

    if S2:
        issue_rest("a", True)
    wave0("w", weights)
    a(f"""
    s_waitcnt lgkmcnt(0)
    s_barrier
    """)
    st("bar2")
    if P["sched"] == "s2a":
        issue_rest("b", False)
    if not S2:
        ld_issue("I3")
        ld_issue("I4")
    c, b, x, ln = vP, vP + 4, vP + 8, vP + 9
    a(f"""
    s_mov_b64 exec, -1
    v_and_b32 v{ln}, 63, v0
    v_lshlrev_b32 v{ln}, 4, v{ln}
    ds_read_b128 {vr(c, 4)}, v{ln} offset:{HIST}
    s_mov_b32 s{sX + 4}, {STG}
    s_waitcnt lgkmcnt(0)
    """)
    for k in range(4):
        a(f"v_add_u32 v{c + k}, 3, v{c + k}")
        a(f"v_lshrrev_b32 v{c + k}, 2, v{c + k}")
    a(f"""
    v_add_u32 v{b + 2}, v{c}, v{c + 1}
    v_add_u32 v{b + 3}, v{b + 2}, v{c + 2}
    v_add_u32 v{b}, v{b + 3}, v{c + 3}
    v_mov_b32 v{x}, v{b}
    s_nop 1
    v_add_u32_dpp v{x}, v{x}, v{x} row_shr:1 row_mask:0xf bank_mask:0xf
    s_nop 1
    v_add_u32_dpp v{x}, v{x}, v{x} row_shr:2 row_mask:0xf bank_mask:0xf
    s_nop 1
    v_add_u32_dpp v{x}, v{x}, v{x} row_shr:4 row_mask:0xf bank_mask:0xf
    s_nop 1
    v_add_u32_dpp v{x}, v{x}, v{x} row_shr:8 row_mask:0xf bank_mask:0xf
    s_nop 1
    v_add_u32_dpp v{x}, v{x}, v{x} row_bcast:15 row_mask:0xa bank_mask:0xf
    s_nop 1
    v_add_u32_dpp v{x}, v{x}, v{x} row_bcast:31 row_mask:0xc bank_mask:0xf
    v_sub_u32 v{b}, v{x}, v{b}
    v_add_u32 v{b + 1}, v{b}, v{c}
    v_add_u32 v{b + 2}, v{b}, v{b + 2}
    v_add_u32 v{b + 3}, v{b}, v{b + 3}
    v_readlane_b32 s{sX + 5}, v{x}, 63
    """)
    for k in range(4):
        a(f"v_lshl_or_b32 v{vSeg + k}, v{c + k}, 12, v{b + k}")
        a(f"v_mad_u32_u24 v{b + k}, v{b + k}, 20, s{sX + 4}")
    a(f"ds_write_b128 v{ln}, {vr(b, 4)} offset:{BASE}")
    for k in range(4):
        a(f"v_or_b32 v{vSeg + k}, 0x80000000, v{vSeg + k}")
    a(f"""
    s_mul_i32 s{SRW + 2}, s{sX + 5}, 20
    s_mov_b64 exec, s[{sAct}:{sAct + 1}]
    """)
    for i in range(20):
        a(f"ds_read_b32 v{vJ + i}, v{vJ + i} offset:{BASE}")
    if P["sched"] == "s2b":
        issue_rest("b", False)
    count_clear(len(issued) - nz + 5)
    for q in range(5):
        ld_wait(f"A{q}")
        if q == 0:
            a(f"""
            v_readfirstlane_b32 s{sX + 5}, v{vF}
            v_lshlrev_b32 v{vF}, 16, v{vF}
            """)
        if q in (0, 4):
            st(f"A{q}")
        t = vP

        def unpack():
            for p in range(2):
                d = vA + 2 * q + p
                a(f"v_lshlrev_b32 v{t + 2 * p}, 16, v{d}")
                a(f"v_and_b32 v{t + 2 * p + 1}, 0xffff0000, v{d}")

        unpack()
        a(f"""
        s_cmp_eq_u32 s{sX + 5}, 0x3f80
        s_cbranch_scc1 L_unit{q}
        """)
        for k in range(4):
            a(f"v_mul_f32 v{t + k}, v{vF}, v{t + k}")
        for p in range(2):
            a(f"v_cvt_pk_bf16_f32 v{vA + 2 * q + p}, v{t + 2 * p}, v{t + 2 * p + 1}")
        unpack()
        a(f"L_unit{q}:")
        for k in range(4):
            a(f"v_mul_f32 v{t + k}, 0.15915494, v{t + k}")
        for k in range(4):
            a(f"v_fract_f32 v{t + k}, v{t + k}")
        for k in range(4):
            a(f"v_cos_f32 v{t + k}, v{t + k}")
        a("s_nop 0")
        for p in range(2):
            a(f"v_cvt_pkrtz_f16_f32 v{vA + 2 * q + p}, v{t + 2 * p}, v{t + 2 * p + 1}")
        for p in range(2):
            a(f"v_add_u32 v{vA + 2 * q + p}, 0x40004, v{vA + 2 * q + p}")
        for p in range(2):
            a(f"v_and_b32 v{vA + 2 * q + p}, 0xbff8bff8, v{vA + 2 * q + p}")
    a("s_waitcnt lgkmcnt(0)")
    for i in range(20):
        a(f"v_mad_u32_u24 v{vR + i}, v{vR + i}, 5, v{vJ + i}")
        a(f"v_and_b32 v{vJ + i}, -4, v{vR + i}")
        a(f"v_and_b32 v{vR + i}, 3, v{vR + i}")
        a(f"v_mad_i32_i24 v{vR + i}, v{vR + i}, -3, v{vJ + i}")
    for q in range(5):
        ld_wait(f"I{q}")
        if q in (0, 4):
            st(f"I{q}")
        for r in range(4):
            i = 4 * q + r
            a(f"v_bfe_u32 v{vP + r}, v{vO + i}, 4, 6")
            if PSH == 16:
                a(f"v_mad_u32_u16 v{vP + r}, v{vI + i}, 40, v{vP + r} op_sel:[1,0,0,0]")
            else:
                a(f"v_lshrrev_b32 v{vP + 4}, {PSH}, v{vI + i}")
                a(f"v_mad_u32_u24 v{vP + r}, v{vP + 4}, 40, v{vP + r}")
            a(f"v_lshlrev_b32 v{vI + i}, 16, v{vI + i}")
            a(f"v_and_or_b32 v{vI + i}, v{vO + i}, s{sMask}, v{vI + i}")
            a(f"ds_write_b8 v{vR + i}, v{vP + r} offset:16")
            a(f"v_or_b32_sdwa v{vI + i}, v{vI + i}, v{vA + 2 * q + (r >> 1)} dst_sel:DWORD dst_unused:UNUSED_PAD src0_sel:DWORD src1_sel:WORD_{r & 1}")
            a(f"ds_write_b32 v{vJ + i}, v{vI + i}")
    vS = 64
    a(f"""
    s_mov_b64 exec, -1
    v_add_u32 v5, {STG}, v{vOff16}
    v_mov_b32 v{vP}, v{vOff16}
    s_waitcnt lgkmcnt(0)
    s_barrier
    """)
    st("bar3")
    for i in range(7):
        a(f"ds_read_b128 {vr(vS + 4 * i, 4)}, v5 offset:{i * 8192}")
    a(f"""
    s_mov_b64 exec, s[{sX}:{sX + 1}]
    ds_write_b128 v{vP}, {vr(vPar, 4)} offset:{HIST}
    ds_write_b128 v{vP}, {vr(vPar + 4, 4)} offset:{HIST + 1024}
    s_mov_b64 exec, -1
    """)
    for i in range(7):
        a(f"s_mov_b32 s{sX + 4}, {i * 8192}")
        a(f"s_waitcnt lgkmcnt({8 - i})")
        a(f"buffer_store_dwordx4 {vr(vS + 4 * i, 4)}, v{vP}, s[{SRW}:{SRW + 3}], s{sX + 4} offen {P['rec_st']}")
    st("stissued")

    def poll(mask):
        a(f"""
        s_mov_b32 exec_lo, {mask}
        s_mov_b32 exec_hi, 0
        buffer_load_dword v{vSegW}, v{vSegA}, s[{SSEG}:{SSEG + 3}], s{sJ4} offen sc1
        """)

    if P["rot"]:
        first = [max(range(NP), key=lambda p: min((p + 1) << PSH, 20000 * (x + 1)) - max(p << PSH, 20000 * x)) for x in range(8)]
        phase_of_slot = f"""s_lshr_b32 s{sTk}, s{sJ}, 5
        s_mul_i32 s{sTk}, s{sTk}, 3
        s_lshr_b32 s{sTk}, {sum(((f + P["rot"] - 1) % NP) << (3 * x) for x, f in enumerate(first))}, s{sTk}
        s_and_b32 s{sTk}, s{sTk}, 7
        v_add_u32 v{vT + 6}, s{sTk}, v{vT + 6}
        v_subrev_u32 v{vT + 7}, {NP}, v{vT + 6}
        v_min_u32 v{vT + 6}, v{vT + 6}, v{vT + 7}"""
    else:
        phase_of_slot = f"""v_mul_u32_u24 v{vT + 6}, 3, v{vT + 6}
        v_mov_b32 v{vT + 7}, {sum(o << (3 * i) for i, o in enumerate(ORD))}
        v_bfe_u32 v{vT + 6}, v{vT + 7}, v{vT + 6}, 3"""
    cmap = {
        0: f"v_lshl_add_u32 v{vT + 2}, v{vT + 1}, 3, v{vT}",
        1: f"v_lshl_add_u32 v{vT + 2}, v{vT}, 5, v{vT + 1}",
        2: f"""v_add_u32 v{vT + 2}, v{vT + 1}, v{vT}
        v_and_b32 v{vT + 2}, 7, v{vT + 2}
        v_lshl_add_u32 v{vT + 2}, v{vT + 1}, 3, v{vT + 2}""",
    }[P["cmap"]]
    a(f"""
    s_cmp_lg_u32 s{sW}, 7
    s_cbranch_scc1 L_nox
    s_mov_b64 exec, 15
    buffer_load_dword v{vCtr}, v{vCtr + 1}, s[{SDBG}:{SDBG + 3}], 0 offen sc1
    s_mov_b64 exec, -1
    L_nox:
    v_lshrrev_b32 v{vT}, 6, v0
    v_and_b32 v{vLane}, 63, v0
    v_and_b32 v{vT + 1}, 31, v0
    {cmap}
    v_lshlrev_b32 v{vSegA}, 10, v{vT + 2}
    s_lshl_b32 s{sJ4}, s{sJ}, 2
    v_mul_u32_u24 v{vCb}, {CS}, v{vT + 2}
    v_and_b32 v{vT + 6}, 15, v{vLane}
    v_lshrrev_b32 v{vT + 7}, 4, v{vLane}
    v_mul_u32_u24 v{vLL20}, 20, v{vT + 6}
    v_lshlrev_b32 v{vDw}, 7, v{vT}
    v_add_u32 v{vDw}, {DESC}, v{vDw}
    v_lshl_add_u32 v{vDr}, v{vT + 7}, 4, v{vDw}
    v_mul_u32_u24 v{vT + 8}, 80, v{vT}
    v_add_u32 v{vT + 8}, v{vT + 8}, v{vT + 6}
    v_lshlrev_b32 v{vMoff}, 5, v{vT + 8}
    v_lshl_add_u32 v{vMoff}, v{vT + 7}, 3, v{vMoff}
    v_cmp_gt_u32 vcc, {BK - 64}, v{vT + 8}
    v_mov_b32 v{vT + 9}, 0x7fffff00
    v_lshlrev_b32 v{vDoff}, 1, v{vT + 8}
    v_cndmask_b32 v{vOut4}, v{vT + 9}, v{vMoff}, vcc
    v_mov_b32 v{vZero}, 0
    v_mov_b32 v{vFour}, 4
    v_lshrrev_b32 v{vT + 5}, 1, v{vLane}
    v_lshlrev_b32 v{vLH4}, 2, v{vT + 5}
    v_and_b32 v{vHalf16}, 1, v{vLane}
    v_lshlrev_b32 v{vHalf16}, 4, v{vHalf16}
    v_bfe_u32 v{vT + 6}, v{vT + 5}, 2, 1
    v_bfe_u32 v{vT + 7}, v{vT + 5}, 4, 1
    v_lshl_add_u32 v{vT + 6}, v{vT + 7}, 1, v{vT + 6}
    v_and_b32 v{vT + 7}, 3, v{vT + 5}
    v_bfe_u32 v{vT + 8}, v{vT + 5}, 3, 1
    v_lshl_add_u32 v{vT + 7}, v{vT + 8}, 2, v{vT + 7}
    v_lshlrev_b32 v{vT + 7}, 1, v{vT + 7}
    v_lshl_add_u32 v{vSc}, v{vT + 6}, 8, v{vT + 7}
    v_lshlrev_b32 v{vT + 8}, 10, v{vT}
    v_add_u32 v{vT + 8}, {SB}, v{vT + 8}
    v_add_u32 v{vSc}, v{vSc}, v{vT + 8}
    v_lshl_add_u32 v{vSrd}, v{vLane}, 4, v{vT + 8}
    v_bfe_u32 v{vT + 6}, v{vLane}, 4, 1
    v_bfe_u32 v{vT + 7}, v{vLane}, 5, 1
    v_lshlrev_b32 v{vT + 7}, 4, v{vT + 7}
    v_lshl_add_u32 v{vT + 6}, v{vT + 6}, 2, v{vT + 7}
    v_bfe_u32 v{vT + 7}, v{vLane}, 2, 2
    v_add_u32 v{vT + 6}, v{vT + 6}, v{vT + 7}
    v_and_b32 v{vT + 7}, 3, v{vLane}
    v_lshlrev_b32 v{vT + 7}, 3, v{vT + 7}
    v_lshl_add_u32 v{vTr}, v{vT + 6}, 5, v{vT + 7}
    v_lshlrev_b32 v{vT + 8}, 12, v{vT}
    v_add_u32 v{vT + 8}, {RING}, v{vT + 8}
    v_add_u32 v{vTr}, v{vTr}, v{vT + 8}
    v_mul_u32_u24 v{vT + 6}, 52, v{vLane}
    v_lshrrev_b32 v{vT + 6}, 8, v{vT + 6}
    v_mul_u32_u24 v{vT + 8}, 5, v{vT + 6}
    v_sub_u32 v{vT + 8}, v{vLane}, v{vT + 8}
    {phase_of_slot}
    v_lshrrev_b32 v{vPh}, {16 - PSH}, v{vT + 6}
    v_lshlrev_b32 v{vPh}, 21, v{vPh}
    v_mul_u32_u24 v{vT + 6}, 40, v{vT + 6}
    v_mul_u32_u24 v{vT + 7}, 5, v{vT}
    v_add3_u32 v{vT + 6}, v{vT + 6}, v{vT + 7}, v{vT + 8}
    v_add_u32 v{vT + 6}, 1, v{vT + 6}
    v_lshlrev_b32 v{vCntA}, 2, v{vT + 6}
    """)
    bin_addr(vBase, vT + 6, vT + 7)
    a(f"""
    v_cmp_lt_u32 vcc, {5 * NP - 1}, v{vLane}
    v_mov_b32 v{vT + 8}, {ZB}
    s_nop 0
    v_cndmask_b32 v{vBase}, v{vBase}, v{vT + 8}, vcc
    v_cndmask_b32 v{vPh}, v{vPh}, v{vZero}, vcc
    v_cndmask_b32 v{vCntA}, v{vCntA}, v{vZero}, vcc
    """)
    NCHK = -(-(NB + 1) // 64)
    for k in range(NCHK):
        a(f"v_add_u32 v{vT + 6}, {64 * k + 1}, v{vLane}")
        bin_addr(vLim + k, vT + 6, vT + 7)
    cnt_init(vT, sTk)
    fill(vT + 4, SB, NFILL, RING)
    for k in range(20):
        a(f"v_mov_b32 v{vAcc + k}, 0")
    if P["stamps"]:
        a("s_mov_b32 s97, 0")
        a("s_mov_b64 s[100:101], 0")
    a(f"""
    s_mov_b32 s{sPend}, -1
    s_mov_b32 s{sReady}, 0
    s_mov_b32 s{sPrevN}, 0
    s_mov_b64 s[{sLate}:{sLate + 1}], -1
    s_mul_i32 s{sDo}, s{sJ}, {BK * 2}
    s_mul_i32 s{sMo}, s{sJ}, {BK * 32}
    """)
    if P["dma"]:
        a(f"""
        s_mul_i32 s{sRes}, s{sW}, {RESW}
        s_add_u32 s{sRes}, s{sRes}, {RES}
        s_mul_i32 s{sTk}, s{sW}, 2560
        v_lshlrev_b32 v{vResG}, 4, v{vLane}
        v_add_u32 v{vResG}, s{sTk}, v{vResG}
        v_subrev_u32 v{vResL}, s{sTk}, v{vMoff}
        v_add_u32 v{vResL}, s{sRes}, v{vResL}
        s_mul_i32 s{sTk}, s{sW}, 160
        v_subrev_u32 v{vDstL}, s{sTk}, v{vDoff}
        v_lshlrev_b32 v{vDoff}, 2, v{vLane}
        v_add_u32 v{vDoff}, s{sTk}, v{vDoff}
        s_and_b32 s{sTk}, s{sDo}, 2
        s_and_b32 s{sDo}, s{sDo}, -4
        s_add_u32 s{sTk}, s{sTk}, s{sRes}
        v_add_u32 v{vDstL}, s{sTk}, v{vDstL}
        """)
    a(f"""
    s_waitcnt vmcnt(0) lgkmcnt(0)
    s_cmp_lg_u32 s{sW}, 7
    s_cbranch_scc1 L_ctr_ok
    L_ctr:
    """)
    ctr_sum(None)
    a(f"""
    s_cbranch_scc1 L_ctr_ok
    s_add_u32 s{sSpin}, s{sSpin}, 1
    s_cmp_gt_u32 s{sSpin}, {SPIN_MAX}
    s_cbranch_scc1 L_end
    s_mov_b64 exec, 15
    buffer_load_dword v{vCtr}, v{vCtr + 1}, s[{SDBG}:{SDBG + 3}], 0 offen sc1
    s_mov_b64 exec, -1
    s_waitcnt vmcnt(0)
    s_branch L_ctr
    L_ctr_ok:
    s_mov_b32 s{sSpin}, 0
    """)
    st("drained")

    NLATE = 4 if P["dma"] else 10

    def late_loads():
        a(f"s_mov_b64 exec, s[{sLate}:{sLate + 1}]")
        if P["dma"]:
            for k in range(3):
                a(f"s_add_u32 m0, s{sRes}, 0")
                if k == 2:
                    a("s_mov_b32 exec_hi, 0")
                else:
                    a("s_nop 0")
                a(f"buffer_load_dwordx4 v{vResG}, s[{SM}:{SM + 3}], s{sMo} offen offset:{1024 * k} lds")
            a(f"""
            s_add_u32 m0, s{sRes}, 2560
            s_and_b32 exec_hi, s{sLate + 1}, 0x1ff
            buffer_load_dword v{vDoff}, s[{SDIST}:{SDIST + 3}], s{sDo} offen lds
            """)
        else:
            for g in range(5):
                a(f"buffer_load_ushort v{vDist + g}, v{vDoff}, s[{SDIST}:{SDIST + 3}], s{sDo} offen offset:{32 * g}")
            for g in range(5):
                a(f"buffer_load_dwordx2 {vr(vMr + 2 * g, 2)}, v{vMoff}, s[{SM}:{SM + 3}], s{sMo} offen offset:{512 * g}")
        a(f"s_mov_b64 s[{sLate}:{sLate + 1}], 0")

    a(f"""
    s_barrier
    s_mov_b64 exec, s[{sX}:{sX + 1}]
    buffer_store_dwordx4 {vr(vSeg, 4)}, v{vP}, s[{SSEG}:{SSEG + 3}], s{sX + 2} offen sc1
    """)
    st("pub")
    a("s_branch L_idle3")

    dbg = [0]

    def once(lane):
        if P["stamps"] != 1:
            return
        dbg[0] += 1
        a(f"""
        s_bitcmp1_b64 s[100:101], {lane}
        s_cbranch_scc1 L_once{dbg[0]}
        s_bitset1_b64 s[100:101], {lane}
        s_memrealtime s[98:99]
        s_waitcnt lgkmcnt(0)
        v_writelane_b32 v207, s98, {lane}
        L_once{dbg[0]}:
        """)

    def slot(bank, s):
        return vSlot + 6 * (4 * bank + s), sMk + 2 * (4 * bank + s)

    def rec_issue(bank, s):
        w, m = slot(bank, s)
        a(f"""
        s_mov_b64 exec, -1
        v_add_u32 v{w + 5}, v{vL0 + s}, v{vLL20}
        v_cmp_lt_u32 s[{m}:{m + 1}], v{vLL20}, v{vL1 + s}
        s_mov_b64 exec, s[{m}:{m + 1}]
        buffer_load_dwordx4 {vr(w, 4)}, v{w + 5}, s[{SREC}:{SREC + 3}], 0 offen {P["rec_ld"]}
        buffer_load_dword v{w + 4}, v{w + 5}, s[{SREC}:{SREC + 3}], 0 offen offset:16 {P["rec_ld"]}
        """)

    PP = P["pollpos"]

    def round_ops(upto):
        ops = []
        for s in range(upto + 1):
            if s == PP:
                ops.append("P")
            ops += [s, s]
        if upto == 3 and PP == 4:
            ops.append("P")
        return ops

    def issue_slot(bank, s):
        if s == PP:
            poll(f"s{sPend}")
        rec_issue(bank, s)
        if s == 3 and PP == 4:
            poll(f"s{sPend}")

    def process(bank, issue_bank, extra):
        prev = round_ops(3)
        for s in range(4):
            n = len(prev) - 1 - (len(prev) - 1 - prev[::-1].index(s)) + extra
            if issue_bank is not None:
                issue_slot(issue_bank, s)
                n += len(round_ops(s))
            a(f"s_waitcnt vmcnt({n})")
            if s == 0:
                once(46)
            place_atomics(*slot(bank, s), vRk + 4 * (s & 1))
            if s > 0:
                a(f"s_waitcnt lgkmcnt({4 if s == 1 else 8})")
                place_writes(*slot(bank, s - 1), vRk + 4 * ((s - 1) & 1))
        a("s_waitcnt lgkmcnt(4)")
        place_writes(*slot(bank, 3), vRk + 4)

    for X in range(2):
        Y = 1 - X
        a(f"""
        L_top{X}:
        s_mov_b32 exec_lo, s{sPend}
        s_mov_b32 exec_hi, 0
        s_cbranch_execz L_nowait{X}
        s_waitcnt vmcnt({8 - 2 * PP})
        L_nowait{X}:
        v_cmp_gt_i32 vcc, 0, v{vSegW}
        s_and_b32 s{sTk}, s{sPend}, vcc_lo
        s_andn2_b32 s{sPend}, s{sPend}, s{sTk}
        s_mov_b32 exec_lo, s{sTk}
        v_and_b32 v{vT}, 0xfff, v{vSegW}
        v_bfe_u32 v{vT + 1}, v{vSegW}, 12, 12
        v_mad_u32_u24 v{vD0}, v{vT}, 20, v{vCb}
        v_mul_u32_u24 v{vHi}, 20, v{vT + 1}
        s_or_b32 s{sReady}, s{sReady}, s{sTk}
        s_cbranch_scc1 L_take{X}
        s_cmp_eq_u32 s{sPrevN}, 0
        s_cbranch_scc1 L_idle
        s_cmp_eq_u32 s{sPend}, 0
        s_cbranch_scc1 L_final{X}
        L_take{X}:
        """)
        if P["stamps"] == 1:
            a(f"""
            s_add_u32 s97, s97, 1
            s_memrealtime s[98:99]
            s_waitcnt lgkmcnt(0)
            s_mov_b32 s96, s98
            s_cmp_eq_u32 s97, 1
            s_cbranch_scc0 L_dbg{X}
            v_writelane_b32 v207, s98, 43
            s_bcnt1_i32_b32 s99, s{sReady}
            v_writelane_b32 v207, s99, 44
            L_dbg{X}:
            """)
        a(f"""
        s_mov_b32 exec_lo, 0xffff
        v_lshl_add_u32 v{vT + 3}, v{vLane}, 2, v{vDw}
        ds_write_b32 v{vT + 3}, v{vZero} offset:64
        s_mov_b32 exec_lo, s{sReady}
        v_mbcnt_lo_u32_b32 v{vT}, s{sReady}, 0
        v_cmp_gt_u32 vcc, 16, v{vT}
        s_and_b32 s{sCurN}, s{sReady}, vcc_lo
        s_mov_b32 exec_lo, s{sCurN}
        v_and_b32 v{vT + 2}, 3, v{vT}
        v_lshrrev_b32 v{vT}, 2, v{vT}
        v_min_u32 v{vT + 1}, 320, v{vHi}
        v_lshl_add_u32 v{vT}, v{vT + 2}, 2, v{vT}
        v_sub_u32 v{vHi}, v{vHi}, v{vT + 1}
        v_lshl_add_u32 v{vT}, v{vT}, 2, v{vDw}
        ds_write_b32 v{vT}, v{vD0}
        ds_write_b32 v{vT}, v{vT + 1} offset:64
        v_cmp_lt_u32 vcc, 0, v{vHi}
        v_add_u32 v{vD0}, 320, v{vD0}
        s_andn2_b32 s{sReady}, s{sReady}, s{sCurN}
        s_and_b32 s{sTk}, s{sCurN}, vcc_lo
        s_or_b32 s{sReady}, s{sReady}, s{sTk}
        s_mov_b64 exec, -1
        ds_read_b128 {vr(vL0, 4)}, v{vDr}
        ds_read_b128 {vr(vL1, 4)}, v{vDr} offset:64
        s_cmp_eq_u32 s{sPrevN}, 0
        s_mov_b32 s{sPrevN}, s{sCurN}
        s_waitcnt lgkmcnt(0)
        s_cbranch_scc1 L_only{X}
        """)
        process(Y, X, 0)
        a(f"s_branch L_top{Y}")
    for X in range(2):
        a(f"L_only{X}:")
        for s in range(4):
            issue_slot(X, s)
        a(f"s_branch L_top{1 - X}")
    for X in range(2):
        a(f"L_final{X}:")
        once(45)
        late_loads()
        process(1 - X, None, NLATE)
        a("s_branch L_taken")
    a(f"""
    L_idle:
    s_cmp_eq_u32 s{sPend}, 0
    s_cbranch_scc1 L_idle_late
    s_cmp_lt_u32 s{sSpin}, {P["latespin"]}
    s_cbranch_scc1 L_idle2
    L_idle_late:
    """)
    late_loads()
    a(f"""
    s_cmp_eq_u32 s{sPend}, 0
    s_cbranch_scc1 L_taken
    L_idle2:
    s_add_u32 s{sSpin}, s{sSpin}, 1
    s_cmp_gt_u32 s{sSpin}, {SPIN_MAX}
    s_cbranch_scc1 L_end
    L_idle3:
    """)
    poll(f"s{sPend}")
    a(f"""
    s_waitcnt vmcnt(0)
    s_branch L_top0
    L_taken:
    s_mov_b64 exec, -1
    s_mov_b32 s{sLast}, 1
    s_mov_b32 s{sFirst}, 1
    s_movk_i32 s{sF0}, 0xf0
    s_movk_i32 s{s70}, 0x70
    s_lshl_b32 s{sRingB}, s{sW}, 12
    s_add_u32 s{sRingB}, s{sRingB}, {RING}
    s_mul_i32 s{sRowOff}, s{sJ}, {BK * 32}
    v_lshlrev_b32 v{vT}, 2, v{vLane}
    s_waitcnt lgkmcnt(0)
    """)
    st("intake")
    if P["stamps"] == 1:
        a(f"v_writelane_b32 v207, s{sSpin}, 40")
        a("v_writelane_b32 v207, s97, 41")
        a("v_writelane_b32 v207, s96, 42")
    a("s_barrier")
    st("bar5")
    for k in range(NCHK):
        a(f"ds_read_b32 v{vT + 1 + k}, v{vT} offset:{CNT + 256 * k}")
    a(f"""
    ds_read_b32 v{vEnd}, v{vCntA} offset:{CNT}
    s_waitcnt lgkmcnt(1)
    v_cmp_gt_u32 vcc, v{vT + 1}, v{vLim}
    """)
    for k in range(1, NCHK):
        a(f"v_cmp_gt_u32 s[{sT + 2 * k}:{sT + 2 * k + 1}], v{vT + 1 + k}, v{vLim + k}")
    for k in range(1, NCHK):
        a(f"s_or_b64 vcc, vcc, s[{sT + 2 * k}:{sT + 2 * k + 1}]")
    if P["force_slow"]:
        a("s_cmp_eq_u32 0, 0")
    a(f"""
    s_cbranch_scc0 L_G
    s_mov_b32 s{sSC}, 0
    s_mov_b32 s{sSU}, 0
    s_mov_b32 s{sLast}, 0
    s_mov_b64 s[{sLate}:{sLate + 1}], -1
    L_slow:
    s_waitcnt vmcnt(0) lgkmcnt(0)
    s_barrier
    """)
    if P["dma"]:
        late_loads()
        a("s_mov_b64 exec, -1")
    cnt_init(vT, sT)
    fill(vT + 4, SB, NFILL, RING)
    a(f"""
    s_waitcnt lgkmcnt(0)
    s_barrier
    s_cmp_lt_u32 s{sSC}, {NCH}
    s_cbranch_scc1 L_slow_unit
    s_mov_b32 s{sLast}, 1
    s_branch L_slow_go
    L_slow_unit:
    s_lshl_b32 s{sT}, s{sSC}, 10
    s_lshl_b32 s{sT + 1}, s{sJ}, 2
    s_add_u32 s{sT}, s{sT}, s{sT + 1}
    buffer_load_dword v{vT}, v{vZero}, s[{SSEG}:{SSEG + 3}], s{sT} offen sc1
    s_waitcnt vmcnt(0)
    v_readfirstlane_b32 s{sT + 2}, v{vT}
    s_and_b32 s{sT + 1}, s{sT + 2}, 0xfff
    s_mul_i32 s{sT + 1}, s{sT + 1}, 20
    s_bfe_u32 s{sT + 2}, s{sT + 2}, 0xc000c
    s_mul_i32 s{sT + 2}, s{sT + 2}, 20
    s_mul_i32 s{sT + 3}, s{sSC}, {CS}
    s_add_u32 s{sT + 3}, s{sT + 3}, s{sT + 1}
    s_add_u32 s{sT + 3}, s{sT + 3}, s{sSU}
    s_sub_u32 s{sT + 4}, s{sT + 2}, s{sSU}
    s_min_u32 s{sT + 4}, s{sT + 4}, 480
    s_cmp_lg_u32 s{sW}, 0
    s_cbranch_scc1 L_slow_adv
    v_mul_u32_u24 v{vT}, 20, v{vLane}
    v_cmp_gt_u32 s[{sT + 6}:{sT + 7}], s{sT + 4}, v{vT}
    s_mov_b64 exec, s[{sT + 6}:{sT + 7}]
    buffer_load_dwordx4 {vr(vSlot, 4)}, v{vT}, s[{SREC}:{SREC + 3}], s{sT + 3} offen sc1
    buffer_load_dword v{vSlot + 4}, v{vT}, s[{SREC}:{SREC + 3}], s{sT + 3} offen offset:16 sc1
    s_waitcnt vmcnt(0)
    """)
    place_atomics(vSlot, sT + 6, vRk)
    a("s_waitcnt lgkmcnt(0)")
    place_writes(vSlot, sT + 6, vRk)
    a(f"""
    s_mov_b64 exec, -1
    L_slow_adv:
    s_add_u32 s{sSU}, s{sSU}, 480
    s_cmp_lt_u32 s{sSU}, s{sT + 2}
    s_cbranch_scc1 L_slow_go
    s_add_u32 s{sSC}, s{sSC}, 1
    s_mov_b32 s{sSU}, 0
    L_slow_go:
    s_waitcnt lgkmcnt(0)
    s_barrier
    ds_read_b32 v{vEnd}, v{vCntA} offset:{CNT}
    L_G:
    v_cmp_lt_u32 vcc, {5 * NP - 1}, v{vLane}
    v_add_u32 v{vT + 1}, 128, v{vBase}
    s_mov_b32 s{sCur}, 0
    s_waitcnt lgkmcnt(0)
    v_cndmask_b32 v{vEnd}, v{vEnd}, v{vT + 1}, vcc
    v_cmp_gt_u32 vcc, v{vEnd}, v{vBase}
    v_sub_u32 v{vEnd}, v{vEnd}, v{vBase}
    v_add_u32 v{vEnd}, 127, v{vEnd}
    v_and_b32 v{vEnd}, 0xffffff80, v{vEnd}
    v_add_u32 v{vEnd}, v{vEnd}, v{vBase}
    s_and_b32 s{sNE}, vcc_lo, {(1 << 5 * NP) - 1}
    """)

    def next_bin():
        a(f"""
        s_ff1_i32_b32 s{sL}, s{sNE}
        s_bitset0_b32 s{sNE}, s{sL}
        v_readlane_b32 s{sIA}, v{vBase}, s{sL}
        v_readlane_b32 s{sIE}, v{vEnd}, s{sL}
        v_readlane_b32 s{sIP}, v{vPh}, s{sL}
        """)

    next_bin()
    NRD = D + 1 if P["sp"] else D
    for k in range(NRD):
        a(f"""
        s_mov_b32 s{sT + k}, s{sIP}
        s_nop 0
        v_add_u32 v{vT + k}, s{sIA}, v{vLH4}
        ds_read_b32 v{vWq + k}, v{vT + k}
        s_add_u32 s{sIA}, s{sIA}, 128
        s_cmp_lg_u32 s{sIA}, s{sIE}
        s_cbranch_scc1 L_pro{k}
        """)
        next_bin()
        a(f"L_pro{k}:")
    for k in range(D):
        a(f"""
        s_add_u32 m0, s{sRingB}, {k * 1024}
        s_waitcnt lgkmcnt({NRD - 1 - k})
        v_mad_u32_u16 v{vT + k}, v{vWq + k}, 32, v{vHalf16} op_sel:[1,0,0,0]
        buffer_load_dwordx4 v{vT + k}, s[{SM}:{SM + 3}], s{sT + k} offen {P["gather"]} lds
        """)
    if P["sp"]:
        a(f"""
        s_mov_b32 s{sIPn}, s{sT + D}
        s_waitcnt lgkmcnt(0)
        """)

    def gates(tag):
        a(f"""
        s_cmp_eq_u32 s{sFirst}, 0
        s_cbranch_scc1 L_gates_done
        s_mov_b32 s{sFirst}, 0
        """)
        a(f"""
        v_and_b32 v{vT + 4}, 15, v{vLane}
        v_lshrrev_b32 v{vT + 5}, 4, v{vLane}
        v_lshlrev_b32 v{vT + 4}, 1, v{vT + 4}
        v_lshl_add_u32 v{vT + 6}, v{vT + 5}, 6, v{vT + 4}
        v_lshl_add_u32 v{vT + 4}, v{vT + 5}, 7, v{vT + 4}
        v_lshlrev_b32 v{vT + 5}, 2, v{vT + 5}
        """)
        for k in range(4):
            a(f"ds_read_u16 v{vWraw + k}, v{vT + 4} offset:{HIST + 32 * k}")
            a(f"ds_read_u16 v{vWraw + 4 + k}, v{vT + 4} offset:{HIST + 512 + 32 * k}")
        for k in range(2):
            a(f"ds_read_u16 v{vWraw + 8 + k}, v{vT + 6} offset:{HIST + 1024 + 32 * k}")
            a(f"ds_read_u16 v{vWraw + 10 + k}, v{vT + 6} offset:{HIST + 1280 + 32 * k}")
        a(f"""
        ds_read_b32 v{vCen}, v{vT + 5} offset:{HIST + 1536}
        s_waitcnt vmcnt({D})
        """)
        if P["dma"]:
            for g in range(5):
                a(f"ds_read_u16 v{vDist + g}, v{vDstL} offset:{2560 + 32 * g}")
            for g in range(5):
                a(f"ds_read_b64 {vr(vMr + 2 * g, 2)}, v{vResL} offset:{512 * g}")
        a(f"""
        s_waitcnt lgkmcnt(0)
        v_lshl_or_b32 v{vWd}, v{vWraw + 1}, 16, v{vWraw}
        v_lshl_or_b32 v{vWd + 1}, v{vWraw + 3}, 16, v{vWraw + 2}
        v_lshl_or_b32 v{vWu}, v{vWraw + 5}, 16, v{vWraw + 4}
        v_lshl_or_b32 v{vWu + 1}, v{vWraw + 7}, 16, v{vWraw + 6}
        v_lshl_or_b32 v{vWs}, v{vWraw + 9}, 16, v{vWraw + 8}
        v_lshl_or_b32 v{vWr}, v{vWraw + 11}, 16, v{vWraw + 10}
        v_mov_b32 v{vWd + 2}, v{vWd}
        v_mov_b32 v{vWd + 3}, v{vWd + 1}
        v_mov_b32 v{vWu + 2}, v{vWu}
        v_mov_b32 v{vWu + 3}, v{vWu + 1}
        v_mov_b32 v{vWs + 1}, 0
        v_mov_b32 v{vWr + 1}, 0
        v_mov_b32 v{vRb + 1}, 0
        v_mov_b32 v{vRb + 3}, 0
        v_and_b32 v{vCen + 1}, 0xffff0000, v{vCen}
        v_lshlrev_b32 v{vCen}, 16, v{vCen}
        """)
        for g in range(5):
            t = vT + 4
            rb = vRb + 2 * (g & 1)
            a(f"""
            v_lshlrev_b32 v{t + 2}, 16, v{vDist + g}
            v_sub_f32 v{t}, v{t + 2}, v{vCen}
            v_sub_f32 v{t + 1}, v{t + 2}, v{vCen + 1}
            v_cvt_pk_bf16_f32 v{t + 2}, v{t}, v{t + 1}
            v_lshlrev_b32 v{t}, 16, v{t + 2}
            v_and_b32 v{t + 1}, 0xffff0000, v{t + 2}
            v_mul_f32 v{t}, v{t}, v{t}
            v_mul_f32 v{t + 1}, v{t + 1}, v{t + 1}
            v_cvt_pk_bf16_f32 v{t + 2}, v{t}, v{t + 1}
            v_lshlrev_b32 v{t}, 16, v{t + 2}
            v_and_b32 v{t + 1}, 0xffff0000, v{t + 2}
            v_mul_f32 v{t}, 0xc1200000, v{t}
            v_mul_f32 v{t + 1}, 0xc1200000, v{t + 1}
            v_cvt_pk_bf16_f32 v{t + 2}, v{t}, v{t + 1}
            v_lshlrev_b32 v{t}, 16, v{t + 2}
            v_and_b32 v{t + 1}, 0xffff0000, v{t + 2}
            v_mul_f32 v{t}, 0x3fb8aa3b, v{t}
            v_mul_f32 v{t + 1}, 0x3fb8aa3b, v{t + 1}
            v_exp_f32 v{t}, v{t}
            v_exp_f32 v{t + 1}, v{t + 1}
            s_nop 0
            v_cvt_pk_bf16_f32 v{rb}, v{t}, v{t + 1}
            s_nop 1
            v_mfma_f32_16x16x16_bf16 {vr(vG + 4 * g, 4)}, {vr(vWs, 2)}, {vr(rb, 2)}, 0
            v_mfma_f32_16x16x16_bf16 {vr(vH + 4 * g, 4)}, {vr(vWr, 2)}, {vr(rb, 2)}, 0
            """)
        a("L_gates_done:")
        st("GH")

    a(f"s_movk_i32 s{sPrev}, {D * 1024}")
    st("Gissued")
    gates(0)
    a("L_main:")

    def split(src, dst, t):
        a(f"""
        v_cvt_pk_bf16_f32 v{dst}, v{src}, v{src + 1}
        v_cvt_pk_bf16_f32 v{dst + 1}, v{src + 2}, v{src + 3}
        v_lshlrev_b32 v{t}, 16, v{dst}
        v_and_b32 v{t + 1}, 0xffff0000, v{dst}
        v_lshlrev_b32 v{t + 2}, 16, v{dst + 1}
        v_and_b32 v{t + 3}, 0xffff0000, v{dst + 1}
        v_sub_f32 v{t}, v{src}, v{t}
        v_sub_f32 v{t + 1}, v{src + 1}, v{t + 1}
        v_sub_f32 v{t + 2}, v{src + 2}, v{t + 2}
        v_sub_f32 v{t + 3}, v{src + 3}, v{t + 3}
        v_cvt_pk_bf16_f32 v{dst + 2}, v{t}, v{t + 1}
        v_cvt_pk_bf16_f32 v{dst + 3}, v{t + 2}, v{t + 3}
        s_nop 1
        """)

    def prio(b):
        pat = P["prio"]
        if not pat:
            return ""
        cur = pat[b % len(pat)]
        if b and cur == pat[(b - 1) % len(pat)]:
            return ""
        return f"""s_cmp_lt_u32 s{sW}, 4
        s_cbranch_scc1 L_pr{b}
        s_setprio {1 if cur == "y" else 0}
        L_pr{b}:"""

    ring_adv = f"s_mov_b32 s{sPrev}, s{sCur}" if D == R - 1 else f"s_add_u32 s{sPrev}, s{sPrev}, 1024\ns_and_b32 s{sPrev}, s{sPrev}, {R * 1024 - 1}"
    def step(b, acc):
        if not P["sp"]:
            D = P["D"]
            return f"""
            s_add_u32 m0, s{sRingB}, s{sPrev}
            v_add_u32 v{vT}, s{sIA}, v{vLH4}
            v_add_u32 v{vT + 1}, s{sC}, v{vLH4}
            ds_read_b32 v{vT}, v{vT}
            ds_read_b32 v{vT + 1}, v{vT + 1}
            v_add_u32 v{vT + 3}, s{sCur}, v{vTr}
            {ring_adv}
            s_add_u32 s{sCur}, s{sCur}, 1024
            s_and_b32 s{sCur}, s{sCur}, {R * 1024 - 1}
            s_add_u32 s{sC}, s{sC}, 128
            s_add_u32 s{sIA}, s{sIA}, 128
            s_cmp_eq_u32 s{sIA}, s{sIE}
            s_waitcnt lgkmcnt(1)
            v_mad_u32_u16 v{vT}, v{vT}, 32, v{vHalf16} op_sel:[1,0,0,0]
            buffer_load_dwordx4 v{vT}, s[{SM}:{SM + 3}], s{sIP} offen {P["gather"]} lds
            s_cbranch_scc1 L_nb{b}
            L_nb{b}_back:
            s_waitcnt lgkmcnt(0)
            v_and_b32 v{vT + 2}, 0xbff8, v{vT + 1}
            v_lshlrev_b32 v{vT + 4}, 4, v{vT + 1}
            v_lshrrev_b32 v{vT + 5}, 7, v{vT + 1}
            v_cvt_f32_f16 v{vT + 2}, v{vT + 2}
            v_bfi_b32 v{vT + 4}, s{s70}, v{vT + 4}, v{vT + 5}
            v_and_or_b32 v{vT + 4}, v{vT + 4}, s{sF0}, v{vSc}
            ds_write_b16_d16_hi v{vT + 4}, v{vT + 2}
            ds_read_b128 {vr(vSt, 4)}, v{vSrd}
            ds_write_b16 v{vT + 4}, v{vZero}
            s_waitcnt vmcnt({D})
            ds_read_b64_tr_b16 {vr(vMt, 2)}, v{vT + 3}
            ds_read_b64_tr_b16 {vr(vMt + 2, 2)}, v{vT + 3} offset:256
            s_cmp_lg_u32 s{sC}, s{sCE}
            s_waitcnt lgkmcnt(0)
            v_mfma_f32_16x16x32_bf16 {vr(acc, 4)}, {vr(vMt, 4)}, {vr(vSt, 4)}, {vr(acc, 4)}
            s_cbranch_scc1 L_bin{b}
"""
        D = P["D"]
        late = b >= P["lateiss"]
        issue = f"buffer_load_dwordx4 v{vT}, s[{SM}:{SM + 3}], s{sT} offen {P['gather']} lds"
        shift = "\n".join(f"v_mov_b32 v{vWq + k}, v{vWq + k + 1}" for k in range(D))
        return f"""
            s_add_u32 m0, s{sRingB}, s{sPrev}
            v_mad_u32_u16 v{vT}, v{vWq + D}, 32, v{vHalf16} op_sel:[1,0,0,0]
            v_and_b32 v{vT + 2}, 0xbff8, v{vWq}
            v_lshlrev_b32 v{vT + 4}, 4, v{vWq}
            {f"s_mov_b32 s{sT}, s{sIPn}" if late else issue.replace(f"s{sT} offen", f"s{sIPn} offen")}
            v_lshrrev_b32 v{vT + 5}, 7, v{vWq}
            v_cvt_f32_f16 v{vT + 2}, v{vT + 2}
            v_bfi_b32 v{vT + 4}, s{s70}, v{vT + 4}, v{vT + 5}
            v_add_u32 v{vT + 1}, s{sIA}, v{vLH4}
            v_and_or_b32 v{vT + 4}, v{vT + 4}, s{sF0}, v{vSc}
            {shift}
            ds_write_b16_d16_hi v{vT + 4}, v{vT + 2}
            ds_read_b128 {vr(vSt, 4)}, v{vSrd}
            ds_write_b16 v{vT + 4}, v{vZero}
            ds_read_b32 v{vWq + D}, v{vT + 1}
            v_add_u32 v{vT + 3}, s{sCur}, v{vTr}
            s_mov_b32 s{sIPn}, s{sIP}
            s_add_u32 s{sIA}, s{sIA}, 128
            s_cmp_eq_u32 s{sIA}, s{sIE}
            s_cbranch_scc1 L_nb{b}
            L_nb{b}_back:
            s_waitcnt vmcnt({D - 1 if late else D})
            {issue if late else ""}
            ds_read_b64_tr_b16 {vr(vMt, 2)}, v{vT + 3}
            ds_read_b64_tr_b16 {vr(vMt + 2, 2)}, v{vT + 3} offset:256
            {ring_adv}
            s_add_u32 s{sCur}, s{sCur}, 1024
            s_and_b32 s{sCur}, s{sCur}, {R * 1024 - 1}
            s_add_u32 s{sC}, s{sC}, 128
            s_cmp_lg_u32 s{sC}, s{sCE}
            s_waitcnt lgkmcnt(0)
            v_mfma_f32_16x16x32_bf16 {vr(acc, 4)}, {vr(vMt, 4)}, {vr(vSt, 4)}, {vr(acc, 4)}
            s_cbranch_scc1 L_bin{b}
"""

    for p in range(NP):
        for g in range(5):
            b = p * 5 + g
            acc = vAcc + 4 * g
            a(f"""
            {prio(b)}
            v_readlane_b32 s{sC}, v{vBase}, {b}
            v_readlane_b32 s{sCE}, v{vEnd}, {b}
            s_cmp_eq_u32 s{sC}, s{sCE}
            s_cbranch_scc1 L_bin{b}_done
            L_bin{b}:
            {step(b, acc)}
            L_bin{b}_done:
            """)
            if g == 4 or b == 0:
                st(f"bin{b}")
            if p == NP - 1:
                x, y, t = vT + 4, vT + 8, vT + 12
                a(f"""
                s_cmp_eq_u32 s{sLast}, 0
                s_cbranch_scc1 L_epi{g}_done
                s_nop 5
                """)
                split(acc, x, t)
                a(f"""
                v_mfma_f32_16x16x32_bf16 {vr(y, 4)}, {vr(vWd, 4)}, {vr(x, 4)}, 0
                s_nop 7
                v_mul_f32 v{y}, v{y}, v{vG + 4 * g}
                v_mul_f32 v{y + 1}, v{y + 1}, v{vG + 4 * g + 1}
                v_mul_f32 v{y + 2}, v{y + 2}, v{vG + 4 * g + 2}
                v_mul_f32 v{y + 3}, v{y + 3}, v{vG + 4 * g + 3}
                """)
                split(y, x, t)
                mr = vMr + 2 * g
                a(f"""
                v_mfma_f32_16x16x32_bf16 {vr(y, 4)}, {vr(vWu, 4)}, {vr(x, 4)}, 0
                v_lshlrev_b32 v{t}, 16, v{mr}
                v_and_b32 v{t + 1}, 0xffff0000, v{mr}
                v_lshlrev_b32 v{t + 2}, 16, v{mr + 1}
                v_and_b32 v{t + 3}, 0xffff0000, v{mr + 1}
                s_nop 3
                v_fmac_f32 v{t}, v{y}, v{vH + 4 * g}
                v_fmac_f32 v{t + 1}, v{y + 1}, v{vH + 4 * g + 1}
                v_fmac_f32 v{t + 2}, v{y + 2}, v{vH + 4 * g + 2}
                v_fmac_f32 v{t + 3}, v{y + 3}, v{vH + 4 * g + 3}
                v_cvt_pk_bf16_f32 v{mr}, v{t}, v{t + 1}
                v_cvt_pk_bf16_f32 v{mr + 1}, v{t + 2}, v{t + 3}
                buffer_store_dwordx2 {vr(mr, 2)}, v{vOut4 if g == 4 else vMoff}, s[{SOUT}:{SOUT + 3}], s{sRowOff} offen offset:{512 * g} {P["out_st"]}
                L_epi{g}_done:
                """)
    a(f"""
    s_cmp_eq_u32 s{sLast}, 0
    s_cbranch_scc1 L_slow
    """)
    if P["stamps"]:
        a("s_waitcnt vmcnt(0)")
    st("end")
    if P["stamps"] == 3:
        a(f"""
        s_cmp_lg_u32 s2, {P["dbgwg"]}
        s_cbranch_scc1 L_end
        s_cmp_lg_u32 s{sW}, {P["dbgw"]}
        s_cbranch_scc1 L_end
        v_readlane_b32 s98, v207, 0
        s_mov_b64 exec, 0xfffe
        v_subrev_u32 v207, s98, v207
        v_lshlrev_b32 v{vT}, 2, v{vLane}
        buffer_store_dword v207, v{vT}, s[{SDBG}:{SDBG + 3}], 0 offen
        """)
        print("names:", ",".join(st.names), file=sys.stderr)
    else:
        st.flush(SSEG, "s2", vT)
    a("""
    L_end:
    s_endpgm
    """)
    for b in range(5 * NP):
        a(f"L_nb{b}:")
        next_bin()
        a(f"s_branch L_nb{b}_back")
    a("L_code_end:")
    return a.text(), 256, 102, LDS


def generate(**kw):
    P = dict(DEFAULTS)
    P.update(kw)
    body, nv, ns, lds = gen(P)
    n = NAME + "_kernel"
    out = HEADER
    out += f"; @launch grid=({NCH},1,1) block=(512,1,1) lds={lds}\n"
    out += '.amdgcn_target "amdgcn-amd-amdhsa--gfx950"\n.text\n'
    out += f".globl {n}\n.p2align 8\n.type {n},@function\n{n}:\n{body}"
    out += '.section .rodata,"a"\n.p2align 6\n' + descriptor(n, nv, ns)
    return out


if __name__ == "__main__":
    path = sys.argv[1]
    kw = {}
    for arg in sys.argv[2:]:
        k, v = arg.split("=", 1)
        kw[k] = int(v) if v.lstrip("-").isdigit() else v
    open(path, "w").write(generate(**kw))
```

```python
import sys
from gen import Asm, vr, srd, Stamps, descriptor, NAME, E, T, NCH, CH, BK, WS_SEG

SPIN_MAX = 1 << 20
CS = 53888


DEFAULTS = dict(
    D=2,
    in_ld="nt",
    rec_st="sc1",
    rec_ld="",
    out_st="",
    gather="",
    xl=1,
    latespin=2,
    psh=15,
    order="o40123",
    sched="s2a",
    split=4,
    prio="yo",
    sp=1,
    pollpos=0,
    cmap=0,
    rot=5,
    lateiss=15,
    roll=0,
    dma=1,
    ipf=6,
    stamps=0,
    dbgwg=100,
    dbgw=5,
    force_slow=0,
)

HEADER = """; Kernarg layout for this problem (112 bytes, ptrs only, base s[0:1]):
;
"""


def gen(P):
    a = Asm()
    D = P["D"]
    R = 4
    ORD = [int(ch) for ch in str(P["order"]).lstrip("o")]
    PSH = P["psh"]
    CAPS = {16: (160, 160, 96), 15: (96,) * 5}[PSH]
    NP = len(CAPS)
    NB = 40 * NP
    CNT, HIST, BASE, DESC, SB, TRASH, AB = 0, 1024, 2048, 3072, 4096, 12288, 15360
    ZB = AB + 40 * 4 * sum(CAPS)
    RING = ZB + 128
    STG = RING
    LDS = -(-(STG + 53840) // 1280) * 1280
    RES, RESW = RING + 8 * R * 1024, 2736
    NFILL = -(-(RING - SB) // 8192)
    assert LDS <= 163840 and len(ORD) == NP and RES + 8 * RESW <= LDS
    sJ = 3
    SO, SI, SA, SRW, SSEG, SREC, SM, SOUT, SDIST, SDBG = 4, 8, 12, 16, 20, 24, 28, 32, 36, 40
    pM, pI, pO, pDist, pAng, pCen, pFreq, pWr, pWs, pWd, pWu, pOut, pDbg, pWsp = range(44, 72, 2)
    sOff, sOffA = 72, 77
    sC625, sM625, sPre, sMask, sAct, sW, sSpin, sX = 82, 83, 84, 85, 86, 88, 89, 90
    sMk = 44
    sPend, sReady, sPrevN, sCurN, sJ4, sTk, sEarly = 60, 61, 62, 63, 64, 66, 68
    sLate, sDo, sMo, sRes = 74, 72, 73, 76
    sLast, sFirst, sSC, sSU = 83, 84, 85, 86
    sF0, s70, sRingB, sPrev, sCur, sRowOff = 44, 45, 46, 47, 48, 49
    sNE, sL, sIA, sIE, sIP, sC, sCE, sIPn = 50, 51, 52, 53, 54, 55, 56, 57
    sT = 58
    sB, sEpi = 77, 78
    st = Stamps(a, P, 0, 207, 98)
    vOff16, vOff8, vOne, vF = 1, 2, 3, 4
    vO, vI, vA, vJ, vR = 8, 28, 48, 58, 78
    vP = 98
    vSeg = 112
    vPar = 116
    vCtr = 124
    vLane, vLL20, vFour, vZero = 1, 2, 3, 4
    vLH4, vHalf16, vSc, vSrd, vTr, vBase, vCntA, vEnd, vPh = 5, 6, 7, 8, 9, 10, 11, 12, 13
    vMoff, vOut4 = 14, 15
    vT = 16
    vSlot = 32
    vRk = 80
    vL0, vL1 = 88, 92
    vD0, vHi, vSegA, vCb, vSegW, vDw, vDr, vDoff, vLim = range(100, 109)
    vResG, vResL, vDstL = 126, 127, 128
    vWq = 96
    vAcc = 132
    vG, vH = 152, 172
    vMr = 192
    vDist = 202
    vWraw = 208
    vCen = 220
    vWd, vWu = 224, 228
    vWs, vWr, vRb = 232, 234, 236
    vMt, vSt = 240, 244
    vQ = 248

    def bin_addr(dst, k, tmp):
        a(f"""
        v_mul_u32_u24 v{dst}, {CAPS[0] * 4}, v{k}
        v_add_u32 v{dst}, {AB - CAPS[0] * 4}, v{dst}
        """)
        if CAPS[-1] != CAPS[0]:
            a(f"""
            v_mul_u32_u24 v{tmp}, {CAPS[-1] * 4}, v{k}
            v_add_u32 v{tmp}, {AB + (NB - 40) * CAPS[0] * 4 - (NB - 39) * CAPS[-1] * 4}, v{tmp}
            v_min_u32 v{dst}, v{dst}, v{tmp}
            """)

    def cnt_init(t, stmp):
        bin_addr(t, 0, t + 1)
        a(f"""
        v_mov_b32 v{t + 1}, {TRASH}
        v_cmp_eq_u32 vcc, 0, v0
        v_mov_b32 v{t + 2}, 0
        v_lshlrev_b32 v{t + 3}, 2, v0
        v_cndmask_b32 v{t}, v{t}, v{t + 1}, vcc
        v_cmp_lt_u32 vcc, {NB}, v0
        s_nop 1
        v_cndmask_b32 v{t}, v{t}, v{t + 2}, vcc
        v_cmp_gt_u32 vcc, 256, v0
        s_and_saveexec_b64 s[{stmp}:{stmp + 1}], vcc
        ds_write_b32 v{t + 3}, v{t} offset:{CNT}
        s_mov_b64 exec, s[{stmp}:{stmp + 1}]
        """)

    def fill(t, start, rounds, clip=None):
        a(f"""
        v_lshlrev_b32 v{t}, 4, v0
        v_mov_b32 v{vQ}, 0
        v_mov_b32 v{vQ + 1}, 0
        v_mov_b32 v{vQ + 2}, 0
        v_mov_b32 v{vQ + 3}, 0
        v_add_u32 v{t}, {start}, v{t}
        v_add_u32 v{t + 1}, 65536, v{t}
        """)
        if clip:
            a(f"v_cmp_gt_u32 vcc, {(clip - start - (rounds - 1) * 8192) // 16}, v0")
        for i in range(rounds):
            if clip and i == rounds - 1:
                a("s_mov_b64 exec, vcc")
            a(f"ds_write_b128 v{t + (i >> 3)}, {vr(vQ, 4)} offset:{(i & 7) * 8192}")
        if clip:
            a("s_mov_b64 exec, -1")

    def place_atomics(w, m, t):
        a(f"s_mov_b64 exec, s[{m}:{m + 1}]")
        for r in range(4):
            a(f"v_lshlrev_b32_sdwa v{t + r}, 2, v{w + 4} dst_sel:DWORD dst_unused:UNUSED_PAD src0_sel:DWORD src1_sel:BYTE_{r}")
            a(f"ds_add_rtn_u32 v{t + r}, v{t + r}, v{vFour} offset:{CNT}")

    def place_writes(w, m, t):
        a(f"s_mov_b64 exec, s[{m}:{m + 1}]")
        for r in range(4):
            a(f"ds_write_b32 v{t + r}, v{w + r}")

    def ctr_sum(lab_ok):
        a(f"""
        v_readlane_b32 s{sX + 4}, v{vCtr}, 0
        v_readlane_b32 s{sX + 5}, v{vCtr}, 1
        s_add_u32 s{sX + 4}, s{sX + 4}, s{sX + 5}
        v_readlane_b32 s{sX + 5}, v{vCtr}, 2
        s_add_u32 s{sX + 4}, s{sX + 4}, s{sX + 5}
        v_readlane_b32 s{sX + 5}, v{vCtr}, 3
        s_add_u32 s{sX + 4}, s{sX + 4}, s{sX + 5}
        s_cmp_ge_u32 s{sX + 4}, {NCH}
        """)

    ld = P["in_ld"]
    a(f"""
    s_cmp_ge_u32 s2, {NCH}
    s_cbranch_scc1 L_end
    """)
    st("start")
    a(f"""
    s_load_dwordx16 s[44:59], s[0:1], 0
    s_load_dwordx8 s[60:67], s[0:1], 64
    s_load_dwordx4 s[68:71], s[0:1], 96
    """)
    if P["ipf"]:
        a(f"""
        s_getpc_b64 s[96:97]
        s_lshr_b32 s{sX}, s2, 3
        s_mul_i32 s{sX}, s{sX}, {P["ipf"]}
        v_add_u32 v1, s{sX}, v0
        v_min_u32 v1, (L_code_end - {NAME}_kernel - 256) / 128, v1
        v_lshlrev_b32 v1, 7, v1
        v_cmp_gt_u32 vcc, {P["ipf"]}, v0
        s_and_saveexec_b64 s[{sX}:{sX + 1}], vcc
        s_cbranch_execz L_noipf
        global_load_dword v130, v1, s[96:97]
        L_noipf:
        s_mov_b64 exec, s[{sX}:{sX + 1}]
        """)
    a(f"""
    v_lshlrev_b32 v{vOff16}, 4, v0
    v_lshlrev_b32 v{vOff8}, 3, v0
    v_lshlrev_b32 v5, 2, v0
    v_mov_b32 v6, 0
    v_mov_b32 v{vOne}, 1
    v_lshrrev_b32 v7, 6, v0
    s_mul_i32 s{sOff}, s2, {CH * 4}
    s_mul_i32 s{sOffA}, s2, {CH * 2}
    v_readfirstlane_b32 s{sW}, v7
    ds_write_b32 v5, v6 offset:{HIST}
    """)
    for q in range(1, 5):
        a(f"s_add_u32 s{sOff + q}, s{sOff}, {q * 8000}")
        a(f"s_add_u32 s{sOffA + q}, s{sOffA}, {q * 4000}")
    if P["xl"]:
        a(f"""
        s_and_b32 s{sJ}, s2, 7
        s_lshl_b32 s{sJ}, s{sJ}, 5
        s_lshr_b32 s{sX}, s2, 3
        s_add_u32 s{sJ}, s{sJ}, s{sX}
        """)
    else:
        a(f"s_mov_b32 s{sJ}, s2")
    a(f"""
    s_mov_b32 s{sC625}, 6871948
    s_mov_b32 s{sM625}, -{BK}
    s_mov_b32 s{sMask}, 0x4007
    s_mov_b32 s{sSpin}, 0
    v_cmp_gt_u32 vcc, 500, v0
    s_lshl_b32 s{sX + 2}, s2, 10
    s_cmp_eq_u32 s{sW}, 0
    s_cselect_b64 s[{sX}:{sX + 1}], -1, 0
    s_waitcnt lgkmcnt(0)
    """)
    srd(a, SO, f"s{pO}", f"s{pO + 1}", T * 4)
    a("s_barrier")
    a(f"""
    s_mov_b64 s[{sAct}:{sAct + 1}], vcc
    s_mov_b64 exec, vcc
    """)
    issued = []

    def ld_issue(name):
        k, q = name[0], int(name[1:] or 0)
        act = f"s_mov_b64 exec, s[{sAct}:{sAct + 1}]"
        if k == "F":
            a(f"global_load_ushort v{vF}, v6, s[{pFreq}:{pFreq + 1}]")
        elif k == "O":
            a(f"buffer_load_dwordx4 {vr(vO + 4 * q, 4)}, v{vOff16}, s[{SO}:{SO + 3}], s{sOff + q} offen {ld}")
        elif k == "A":
            a(f"buffer_load_dwordx2 {vr(vA + 2 * q, 2)}, v{vOff8}, s[{SA}:{SA + 3}], s{sOffA + q} offen {ld}")
        else:
            a(f"buffer_load_dwordx4 {vr(vI + 4 * q, 4)}, v{vOff16}, s[{SI}:{SI + 3}], s{sOff + q} offen {ld}")
        issued.append(name)

    def wave0(tag, body):
        a(f"""
        s_cmp_lg_u32 s{sW}, 0
        s_cbranch_scc1 L_w0{tag}
        """)
        body()
        a(f"""
        s_mov_b64 exec, s[{sAct}:{sAct + 1}]
        L_w0{tag}:
        """)

    def row_clear():
        a(f"buffer_store_dwordx4 {vr(vQ, 4)}, v{vOff16}, s[{SSEG}:{SSEG + 3}], s{sX + 2} offen sc1")

    def weights():
        for lo, hi, dst, ptr, off in ((-1, 0, 0, pWd, 0), (0, -1, 0, pWu, -512), (0xffff, 0, 4, pWs, 0),
                                      (0xffff0000, 0, 4, pWr, -256), (0, 1, 4, pCen, -512)):
            a(f"""
            s_mov_b32 exec_lo, {lo}
            s_mov_b32 exec_hi, {hi}
            global_load_dwordx4 {vr(vPar + dst, 4)}, v{vOff16}, s[{ptr}:{ptr + 1}] offset:{off}
            """)

    def count_clear(younger):
        a(f"""
        s_cmp_lg_u32 s{sW}, 0
        s_cbranch_scc1 L_w0c
        s_waitcnt vmcnt({younger})
        L_w0c:
        s_and_b64 exec, s[{sX}:{sX + 1}], 1
        s_and_b32 s{sX + 3}, s2, 3
        s_lshl_b32 s{sX + 3}, s{sX + 3}, 6
        buffer_atomic_add v{vOne}, v6, s[{SDBG}:{SDBG + 3}], s{sX + 3} offen
        s_mov_b64 exec, s[{sAct}:{sAct + 1}]
        """)
        issued.append("C")

    def ld_wait(name):
        a(f"s_waitcnt vmcnt({len(issued) - 1 - issued.index(name)})")

    for n in ("O0", "O1", "O2", "O3", "O4", "F"):
        ld_issue(n)
    srd(a, SI, f"s{pI}", f"s{pI + 1}", T * 4)
    srd(a, SA, f"s{pAng}", f"s{pAng + 1}", T * 2)
    srd(a, SDBG, f"s{pDbg}", f"s{pDbg + 1}", 256)
    srd(a, SREC, f"s{pWsp}", f"s{pWsp + 1}", NCH * CS)
    srd(a, SOUT, f"s{pOut}", f"s{pOut + 1}", E * 32)
    srd(a, SM, f"s{pM}", f"s{pM + 1}", E * 32)
    srd(a, SDIST, f"s{pDist}", f"s{pDist + 1}", E * 2)
    a(f"""
    s_add_u32 s{SSEG}, s{pWsp}, {WS_SEG}
    s_addc_u32 s{SSEG + 1}, s{pWsp + 1}, 0
    s_and_b32 s{SSEG + 1}, s{SSEG + 1}, 0xffff
    s_mov_b32 s{SSEG + 2}, {NCH * 1024}
    s_mov_b32 s{SSEG + 3}, 0x20000
    s_mul_i32 s{sX + 3}, s2, {CS}
    s_add_u32 s{SRW}, s{pWsp}, s{sX + 3}
    s_addc_u32 s{SRW + 1}, s{pWsp + 1}, 0
    s_and_b32 s{SRW + 1}, s{SRW + 1}, 0xffff
    s_mov_b32 s{SRW + 2}, 0
    s_mov_b32 s{SRW + 3}, 0x20000
    s_mov_b64 exec, -1
    v_and_b32 v{vCtr + 1}, 3, v0
    v_lshlrev_b32 v{vCtr + 1}, 6, v{vCtr + 1}
    """)
    fill(vP + 4, STG, 7)
    a(f"s_mov_b64 exec, s[{sAct}:{sAct + 1}]")
    S2 = P["sched"] != "s1"
    rest = [f"A{q}" for q in range(5)] + [f"I{q}" for q in range(5)]
    after_o = [()] * 5 if S2 else [("A0", "A1"), ("A2", "A3"), ("A4", "I0"), ("I1",), ("I2",)]
    for q in range(5):
        ld_wait(f"O{q}")
        if q == 0:
            wave0("z", row_clear)
            nz = len(issued)
        for n in after_o[q]:
            ld_issue(n)
        if q in (0, 4):
            st(f"O{q}")
        for r in range(4):
            i = 4 * q + r
            a(f"v_mul_hi_u32_u24 v{vP + r}, s{sC625}, v{vO + i}")
            a(f"v_add_u32 v{vO + i}, 16, v{vO + i}")
        for r in range(4):
            i = 4 * q + r
            a(f"v_lshlrev_b32 v{vJ + i}, 2, v{vP + r}")
            a(f"v_mad_i32_i24 v{vO + i}, v{vP + r}, s{sM625}, v{vO + i}")
            a(f"ds_add_rtn_u32 v{vR + i}, v{vJ + i}, v{vOne} offset:{HIST}")
        for r in range(4):
            i = 4 * q + r
            a(f"v_lshl_or_b32 v{vO + i}, v{vO + i}, 11, v{vO + i}")


    def issue_rest(tag, older):
        a(f"""
        s_cmp_lt_u32 s{sW}, {P["split"]}
        s_cbranch_scc{0 if older else 1} L_rest{tag}
        """)
        keep = list(issued)
        for n in rest:
            ld_issue(n)
        if older:
            issued[:] = keep
        a(f"L_rest{tag}:")

    if S2:
        issue_rest("a", True)
    wave0("w", weights)
    a(f"""
    s_waitcnt lgkmcnt(0)
    s_barrier
    """)
    st("bar2")
    if P["sched"] == "s2a":
        issue_rest("b", False)
    if not S2:
        ld_issue("I3")
        ld_issue("I4")
    c, b, x, ln = vP, vP + 4, vP + 8, vP + 9
    a(f"""
    s_mov_b64 exec, -1
    v_and_b32 v{ln}, 63, v0
    v_lshlrev_b32 v{ln}, 4, v{ln}
    ds_read_b128 {vr(c, 4)}, v{ln} offset:{HIST}
    s_mov_b32 s{sX + 4}, {STG}
    s_waitcnt lgkmcnt(0)
    """)
    for k in range(4):
        a(f"v_add_u32 v{c + k}, 3, v{c + k}")
        a(f"v_lshrrev_b32 v{c + k}, 2, v{c + k}")
    a(f"""
    v_add_u32 v{b + 2}, v{c}, v{c + 1}
    v_add_u32 v{b + 3}, v{b + 2}, v{c + 2}
    v_add_u32 v{b}, v{b + 3}, v{c + 3}
    v_mov_b32 v{x}, v{b}
    s_nop 1
    v_add_u32_dpp v{x}, v{x}, v{x} row_shr:1 row_mask:0xf bank_mask:0xf
    s_nop 1
    v_add_u32_dpp v{x}, v{x}, v{x} row_shr:2 row_mask:0xf bank_mask:0xf
    s_nop 1
    v_add_u32_dpp v{x}, v{x}, v{x} row_shr:4 row_mask:0xf bank_mask:0xf
    s_nop 1
    v_add_u32_dpp v{x}, v{x}, v{x} row_shr:8 row_mask:0xf bank_mask:0xf
    s_nop 1
    v_add_u32_dpp v{x}, v{x}, v{x} row_bcast:15 row_mask:0xa bank_mask:0xf
    s_nop 1
    v_add_u32_dpp v{x}, v{x}, v{x} row_bcast:31 row_mask:0xc bank_mask:0xf
    v_sub_u32 v{b}, v{x}, v{b}
    v_add_u32 v{b + 1}, v{b}, v{c}
    v_add_u32 v{b + 2}, v{b}, v{b + 2}
    v_add_u32 v{b + 3}, v{b}, v{b + 3}
    v_readlane_b32 s{sX + 5}, v{x}, 63
    """)
    for k in range(4):
        a(f"v_lshl_or_b32 v{vSeg + k}, v{c + k}, 12, v{b + k}")
        a(f"v_mad_u32_u24 v{b + k}, v{b + k}, 20, s{sX + 4}")
    a(f"ds_write_b128 v{ln}, {vr(b, 4)} offset:{BASE}")
    for k in range(4):
        a(f"v_or_b32 v{vSeg + k}, 0x80000000, v{vSeg + k}")
    a(f"""
    s_mul_i32 s{SRW + 2}, s{sX + 5}, 20
    s_mov_b64 exec, s[{sAct}:{sAct + 1}]
    """)
    for i in range(20):
        a(f"ds_read_b32 v{vJ + i}, v{vJ + i} offset:{BASE}")
    if P["sched"] == "s2b":
        issue_rest("b", False)
    count_clear(len(issued) - nz + 5)
    for q in range(5):
        ld_wait(f"A{q}")
        if q == 0:
            a(f"""
            v_readfirstlane_b32 s{sX + 5}, v{vF}
            v_lshlrev_b32 v{vF}, 16, v{vF}
            """)
        if q in (0, 4):
            st(f"A{q}")
        t = vP

        def unpack():
            for p in range(2):
                d = vA + 2 * q + p
                a(f"v_lshlrev_b32 v{t + 2 * p}, 16, v{d}")
                a(f"v_and_b32 v{t + 2 * p + 1}, 0xffff0000, v{d}")

        unpack()
        a(f"""
        s_cmp_eq_u32 s{sX + 5}, 0x3f80
        s_cbranch_scc1 L_unit{q}
        """)
        for k in range(4):
            a(f"v_mul_f32 v{t + k}, v{vF}, v{t + k}")
        for p in range(2):
            a(f"v_cvt_pk_bf16_f32 v{vA + 2 * q + p}, v{t + 2 * p}, v{t + 2 * p + 1}")
        unpack()
        a(f"L_unit{q}:")
        for k in range(4):
            a(f"v_mul_f32 v{t + k}, 0.15915494, v{t + k}")
        for k in range(4):
            a(f"v_fract_f32 v{t + k}, v{t + k}")
        for k in range(4):
            a(f"v_cos_f32 v{t + k}, v{t + k}")
        a("s_nop 0")
        for p in range(2):
            a(f"v_cvt_pkrtz_f16_f32 v{vA + 2 * q + p}, v{t + 2 * p}, v{t + 2 * p + 1}")
        for p in range(2):
            a(f"v_add_u32 v{vA + 2 * q + p}, 0x40004, v{vA + 2 * q + p}")
        for p in range(2):
            a(f"v_and_b32 v{vA + 2 * q + p}, 0xbff8bff8, v{vA + 2 * q + p}")
    a("s_waitcnt lgkmcnt(0)")
    for i in range(20):
        a(f"v_mad_u32_u24 v{vR + i}, v{vR + i}, 5, v{vJ + i}")
        a(f"v_and_b32 v{vJ + i}, -4, v{vR + i}")
        a(f"v_and_b32 v{vR + i}, 3, v{vR + i}")
        a(f"v_mad_i32_i24 v{vR + i}, v{vR + i}, -3, v{vJ + i}")
    for q in range(5):
        ld_wait(f"I{q}")
        if q in (0, 4):
            st(f"I{q}")
        for r in range(4):
            i = 4 * q + r
            a(f"v_bfe_u32 v{vP + r}, v{vO + i}, 4, 6")
            if PSH == 16:
                a(f"v_mad_u32_u16 v{vP + r}, v{vI + i}, 40, v{vP + r} op_sel:[1,0,0,0]")
            else:
                a(f"v_lshrrev_b32 v{vP + 4}, {PSH}, v{vI + i}")
                a(f"v_mad_u32_u24 v{vP + r}, v{vP + 4}, 40, v{vP + r}")
            a(f"v_lshlrev_b32 v{vI + i}, 16, v{vI + i}")
            a(f"v_and_or_b32 v{vI + i}, v{vO + i}, s{sMask}, v{vI + i}")
            a(f"ds_write_b8 v{vR + i}, v{vP + r} offset:16")
            a(f"v_or_b32_sdwa v{vI + i}, v{vI + i}, v{vA + 2 * q + (r >> 1)} dst_sel:DWORD dst_unused:UNUSED_PAD src0_sel:DWORD src1_sel:WORD_{r & 1}")
            a(f"ds_write_b32 v{vJ + i}, v{vI + i}")
    vS = 64
    a(f"""
    s_mov_b64 exec, -1
    v_add_u32 v5, {STG}, v{vOff16}
    v_mov_b32 v{vP}, v{vOff16}
    s_waitcnt lgkmcnt(0)
    s_barrier
    """)
    st("bar3")
    for i in range(7):
        a(f"ds_read_b128 {vr(vS + 4 * i, 4)}, v5 offset:{i * 8192}")
    a(f"""
    s_mov_b64 exec, s[{sX}:{sX + 1}]
    ds_write_b128 v{vP}, {vr(vPar, 4)} offset:{HIST}
    ds_write_b128 v{vP}, {vr(vPar + 4, 4)} offset:{HIST + 1024}
    s_mov_b64 exec, -1
    """)
    for i in range(7):
        a(f"s_mov_b32 s{sX + 4}, {i * 8192}")
        a(f"s_waitcnt lgkmcnt({8 - i})")
        a(f"buffer_store_dwordx4 {vr(vS + 4 * i, 4)}, v{vP}, s[{SRW}:{SRW + 3}], s{sX + 4} offen {P['rec_st']}")
    st("stissued")

    def poll(mask):
        a(f"""
        s_mov_b32 exec_lo, {mask}
        s_mov_b32 exec_hi, 0
        buffer_load_dword v{vSegW}, v{vSegA}, s[{SSEG}:{SSEG + 3}], s{sJ4} offen sc1
        """)

    if P["rot"]:
        first = [max(range(NP), key=lambda p: min((p + 1) << PSH, 20000 * (x + 1)) - max(p << PSH, 20000 * x)) for x in range(8)]
        phase_of_slot = f"""s_lshr_b32 s{sTk}, s{sJ}, 5
        s_mul_i32 s{sTk}, s{sTk}, 3
        s_lshr_b32 s{sTk}, {sum(((f + P["rot"] - 1) % NP) << (3 * x) for x, f in enumerate(first))}, s{sTk}
        s_and_b32 s{sTk}, s{sTk}, 7
        v_add_u32 v{vT + 6}, s{sTk}, v{vT + 6}
        v_subrev_u32 v{vT + 7}, {NP}, v{vT + 6}
        v_min_u32 v{vT + 6}, v{vT + 6}, v{vT + 7}"""
    else:
        phase_of_slot = f"""v_mul_u32_u24 v{vT + 6}, 3, v{vT + 6}
        v_mov_b32 v{vT + 7}, {sum(o << (3 * i) for i, o in enumerate(ORD))}
        v_bfe_u32 v{vT + 6}, v{vT + 7}, v{vT + 6}, 3"""
    cmap = {
        0: f"v_lshl_add_u32 v{vT + 2}, v{vT + 1}, 3, v{vT}",
        1: f"v_lshl_add_u32 v{vT + 2}, v{vT}, 5, v{vT + 1}",
        2: f"""v_add_u32 v{vT + 2}, v{vT + 1}, v{vT}
        v_and_b32 v{vT + 2}, 7, v{vT + 2}
        v_lshl_add_u32 v{vT + 2}, v{vT + 1}, 3, v{vT + 2}""",
    }[P["cmap"]]
    a(f"""
    s_cmp_lg_u32 s{sW}, 7
    s_cbranch_scc1 L_nox
    s_mov_b64 exec, 15
    buffer_load_dword v{vCtr}, v{vCtr + 1}, s[{SDBG}:{SDBG + 3}], 0 offen sc1
    s_mov_b64 exec, -1
    L_nox:
    v_lshrrev_b32 v{vT}, 6, v0
    v_and_b32 v{vLane}, 63, v0
    v_and_b32 v{vT + 1}, 31, v0
    {cmap}
    v_lshlrev_b32 v{vSegA}, 10, v{vT + 2}
    s_lshl_b32 s{sJ4}, s{sJ}, 2
    v_mul_u32_u24 v{vCb}, {CS}, v{vT + 2}
    v_and_b32 v{vT + 6}, 15, v{vLane}
    v_lshrrev_b32 v{vT + 7}, 4, v{vLane}
    v_mul_u32_u24 v{vLL20}, 20, v{vT + 6}
    v_lshlrev_b32 v{vDw}, 7, v{vT}
    v_add_u32 v{vDw}, {DESC}, v{vDw}
    v_lshl_add_u32 v{vDr}, v{vT + 7}, 4, v{vDw}
    v_mul_u32_u24 v{vT + 8}, 80, v{vT}
    v_add_u32 v{vT + 8}, v{vT + 8}, v{vT + 6}
    v_lshlrev_b32 v{vMoff}, 5, v{vT + 8}
    v_lshl_add_u32 v{vMoff}, v{vT + 7}, 3, v{vMoff}
    v_cmp_gt_u32 vcc, {BK - 64}, v{vT + 8}
    v_mov_b32 v{vT + 9}, 0x7fffff00
    v_lshlrev_b32 v{vDoff}, 1, v{vT + 8}
    v_cndmask_b32 v{vOut4}, v{vT + 9}, v{vMoff}, vcc
    v_mov_b32 v{vZero}, 0
    v_mov_b32 v{vFour}, 4
    v_lshrrev_b32 v{vT + 5}, 1, v{vLane}
    v_lshlrev_b32 v{vLH4}, 2, v{vT + 5}
    v_and_b32 v{vHalf16}, 1, v{vLane}
    v_lshlrev_b32 v{vHalf16}, 4, v{vHalf16}
    v_bfe_u32 v{vT + 6}, v{vT + 5}, 2, 1
    v_bfe_u32 v{vT + 7}, v{vT + 5}, 4, 1
    v_lshl_add_u32 v{vT + 6}, v{vT + 7}, 1, v{vT + 6}
    v_and_b32 v{vT + 7}, 3, v{vT + 5}
    v_bfe_u32 v{vT + 8}, v{vT + 5}, 3, 1
    v_lshl_add_u32 v{vT + 7}, v{vT + 8}, 2, v{vT + 7}
    v_lshlrev_b32 v{vT + 7}, 1, v{vT + 7}
    v_lshl_add_u32 v{vSc}, v{vT + 6}, 8, v{vT + 7}
    v_lshlrev_b32 v{vT + 8}, 10, v{vT}
    v_add_u32 v{vT + 8}, {SB}, v{vT + 8}
    v_add_u32 v{vSc}, v{vSc}, v{vT + 8}
    v_lshl_add_u32 v{vSrd}, v{vLane}, 4, v{vT + 8}
    v_bfe_u32 v{vT + 6}, v{vLane}, 4, 1
    v_bfe_u32 v{vT + 7}, v{vLane}, 5, 1
    v_lshlrev_b32 v{vT + 7}, 4, v{vT + 7}
    v_lshl_add_u32 v{vT + 6}, v{vT + 6}, 2, v{vT + 7}
    v_bfe_u32 v{vT + 7}, v{vLane}, 2, 2
    v_add_u32 v{vT + 6}, v{vT + 6}, v{vT + 7}
    v_and_b32 v{vT + 7}, 3, v{vLane}
    v_lshlrev_b32 v{vT + 7}, 3, v{vT + 7}
    v_lshl_add_u32 v{vTr}, v{vT + 6}, 5, v{vT + 7}
    v_lshlrev_b32 v{vT + 8}, 12, v{vT}
    v_add_u32 v{vT + 8}, {RING}, v{vT + 8}
    v_add_u32 v{vTr}, v{vTr}, v{vT + 8}
    v_mul_u32_u24 v{vT + 6}, 52, v{vLane}
    v_lshrrev_b32 v{vT + 6}, 8, v{vT + 6}
    v_mul_u32_u24 v{vT + 8}, 5, v{vT + 6}
    v_sub_u32 v{vT + 8}, v{vLane}, v{vT + 8}
    {phase_of_slot}
    v_lshrrev_b32 v{vPh}, {16 - PSH}, v{vT + 6}
    v_lshlrev_b32 v{vPh}, 21, v{vPh}
    v_mul_u32_u24 v{vT + 6}, 40, v{vT + 6}
    v_mul_u32_u24 v{vT + 7}, 5, v{vT}
    v_add3_u32 v{vT + 6}, v{vT + 6}, v{vT + 7}, v{vT + 8}
    v_add_u32 v{vT + 6}, 1, v{vT + 6}
    v_lshlrev_b32 v{vCntA}, 2, v{vT + 6}
    """)
    bin_addr(vBase, vT + 6, vT + 7)
    a(f"""
    v_cmp_lt_u32 vcc, {5 * NP - 1}, v{vLane}
    v_mov_b32 v{vT + 8}, {ZB}
    s_nop 0
    v_cndmask_b32 v{vBase}, v{vBase}, v{vT + 8}, vcc
    v_cndmask_b32 v{vPh}, v{vPh}, v{vZero}, vcc
    v_cndmask_b32 v{vCntA}, v{vCntA}, v{vZero}, vcc
    """)
    NCHK = -(-(NB + 1) // 64)
    for k in range(NCHK):
        a(f"v_add_u32 v{vT + 6}, {64 * k + 1}, v{vLane}")
        bin_addr(vLim + k, vT + 6, vT + 7)
    cnt_init(vT, sTk)
    fill(vT + 4, SB, NFILL, RING)
    for k in range(20):
        a(f"v_mov_b32 v{vAcc + k}, 0")
    if P["stamps"]:
        a("s_mov_b32 s97, 0")
        a("s_mov_b64 s[100:101], 0")
    a(f"""
    s_mov_b32 s{sPend}, -1
    s_mov_b32 s{sReady}, 0
    s_mov_b32 s{sPrevN}, 0
    s_mov_b64 s[{sLate}:{sLate + 1}], -1
    s_mul_i32 s{sDo}, s{sJ}, {BK * 2}
    s_mul_i32 s{sMo}, s{sJ}, {BK * 32}
    """)
    if P["dma"]:
        a(f"""
        s_mul_i32 s{sRes}, s{sW}, {RESW}
        s_add_u32 s{sRes}, s{sRes}, {RES}
        s_mul_i32 s{sTk}, s{sW}, 2560
        v_lshlrev_b32 v{vResG}, 4, v{vLane}
        v_add_u32 v{vResG}, s{sTk}, v{vResG}
        v_subrev_u32 v{vResL}, s{sTk}, v{vMoff}
        v_add_u32 v{vResL}, s{sRes}, v{vResL}
        s_mul_i32 s{sTk}, s{sW}, 160
        v_subrev_u32 v{vDstL}, s{sTk}, v{vDoff}
        v_lshlrev_b32 v{vDoff}, 2, v{vLane}
        v_add_u32 v{vDoff}, s{sTk}, v{vDoff}
        s_and_b32 s{sTk}, s{sDo}, 2
        s_and_b32 s{sDo}, s{sDo}, -4
        s_add_u32 s{sTk}, s{sTk}, s{sRes}
        v_add_u32 v{vDstL}, s{sTk}, v{vDstL}
        """)
    a(f"""
    s_waitcnt vmcnt(0) lgkmcnt(0)
    s_cmp_lg_u32 s{sW}, 7
    s_cbranch_scc1 L_ctr_ok
    L_ctr:
    """)
    ctr_sum(None)
    a(f"""
    s_cbranch_scc1 L_ctr_ok
    s_add_u32 s{sSpin}, s{sSpin}, 1
    s_cmp_gt_u32 s{sSpin}, {SPIN_MAX}
    s_cbranch_scc1 L_end
    s_mov_b64 exec, 15
    buffer_load_dword v{vCtr}, v{vCtr + 1}, s[{SDBG}:{SDBG + 3}], 0 offen sc1
    s_mov_b64 exec, -1
    s_waitcnt vmcnt(0)
    s_branch L_ctr
    L_ctr_ok:
    s_mov_b32 s{sSpin}, 0
    """)
    st("drained")

    NLATE = 4 if P["dma"] else 10

    def late_loads():
        a(f"s_mov_b64 exec, s[{sLate}:{sLate + 1}]")
        if P["dma"]:
            for k in range(3):
                a(f"s_add_u32 m0, s{sRes}, 0")
                if k == 2:
                    a("s_mov_b32 exec_hi, 0")
                else:
                    a("s_nop 0")
                a(f"buffer_load_dwordx4 v{vResG}, s[{SM}:{SM + 3}], s{sMo} offen offset:{1024 * k} lds")
            a(f"""
            s_add_u32 m0, s{sRes}, 2560
            s_and_b32 exec_hi, s{sLate + 1}, 0x1ff
            buffer_load_dword v{vDoff}, s[{SDIST}:{SDIST + 3}], s{sDo} offen lds
            """)
        else:
            for g in range(5):
                a(f"buffer_load_ushort v{vDist + g}, v{vDoff}, s[{SDIST}:{SDIST + 3}], s{sDo} offen offset:{32 * g}")
            for g in range(5):
                a(f"buffer_load_dwordx2 {vr(vMr + 2 * g, 2)}, v{vMoff}, s[{SM}:{SM + 3}], s{sMo} offen offset:{512 * g}")
        a(f"s_mov_b64 s[{sLate}:{sLate + 1}], 0")

    a(f"""
    s_barrier
    s_mov_b64 exec, s[{sX}:{sX + 1}]
    buffer_store_dwordx4 {vr(vSeg, 4)}, v{vP}, s[{SSEG}:{SSEG + 3}], s{sX + 2} offen sc1
    """)
    st("pub")
    a("s_branch L_idle3")

    dbg = [0]

    def once(lane):
        if P["stamps"] != 1:
            return
        dbg[0] += 1
        a(f"""
        s_bitcmp1_b64 s[100:101], {lane}
        s_cbranch_scc1 L_once{dbg[0]}
        s_bitset1_b64 s[100:101], {lane}
        s_memrealtime s[98:99]
        s_waitcnt lgkmcnt(0)
        v_writelane_b32 v207, s98, {lane}
        L_once{dbg[0]}:
        """)

    def slot(bank, s):
        return vSlot + 6 * (4 * bank + s), sMk + 2 * (4 * bank + s)

    def rec_issue(bank, s):
        w, m = slot(bank, s)
        a(f"""
        s_mov_b64 exec, -1
        v_add_u32 v{w + 5}, v{vL0 + s}, v{vLL20}
        v_cmp_lt_u32 s[{m}:{m + 1}], v{vLL20}, v{vL1 + s}
        s_mov_b64 exec, s[{m}:{m + 1}]
        buffer_load_dwordx4 {vr(w, 4)}, v{w + 5}, s[{SREC}:{SREC + 3}], 0 offen {P["rec_ld"]}
        buffer_load_dword v{w + 4}, v{w + 5}, s[{SREC}:{SREC + 3}], 0 offen offset:16 {P["rec_ld"]}
        """)

    PP = P["pollpos"]

    def round_ops(upto):
        ops = []
        for s in range(upto + 1):
            if s == PP:
                ops.append("P")
            ops += [s, s]
        if upto == 3 and PP == 4:
            ops.append("P")
        return ops

    def issue_slot(bank, s):
        if s == PP:
            poll(f"s{sPend}")
        rec_issue(bank, s)
        if s == 3 and PP == 4:
            poll(f"s{sPend}")

    def process(bank, issue_bank, extra):
        prev = round_ops(3)
        for s in range(4):
            n = len(prev) - 1 - (len(prev) - 1 - prev[::-1].index(s)) + extra
            if issue_bank is not None:
                issue_slot(issue_bank, s)
                n += len(round_ops(s))
            a(f"s_waitcnt vmcnt({n})")
            if s == 0:
                once(46)
            place_atomics(*slot(bank, s), vRk + 4 * (s & 1))
            if s > 0:
                a(f"s_waitcnt lgkmcnt({4 if s == 1 else 8})")
                place_writes(*slot(bank, s - 1), vRk + 4 * ((s - 1) & 1))
        a("s_waitcnt lgkmcnt(4)")
        place_writes(*slot(bank, 3), vRk + 4)

    for X in range(2):
        Y = 1 - X
        a(f"""
        L_top{X}:
        s_mov_b32 exec_lo, s{sPend}
        s_mov_b32 exec_hi, 0
        s_cbranch_execz L_nowait{X}
        s_waitcnt vmcnt({8 - 2 * PP})
        L_nowait{X}:
        v_cmp_gt_i32 vcc, 0, v{vSegW}
        s_and_b32 s{sTk}, s{sPend}, vcc_lo
        s_andn2_b32 s{sPend}, s{sPend}, s{sTk}
        s_mov_b32 exec_lo, s{sTk}
        v_and_b32 v{vT}, 0xfff, v{vSegW}
        v_bfe_u32 v{vT + 1}, v{vSegW}, 12, 12
        v_mad_u32_u24 v{vD0}, v{vT}, 20, v{vCb}
        v_mul_u32_u24 v{vHi}, 20, v{vT + 1}
        s_or_b32 s{sReady}, s{sReady}, s{sTk}
        s_cbranch_scc1 L_take{X}
        s_cmp_eq_u32 s{sPrevN}, 0
        s_cbranch_scc1 L_idle
        s_cmp_eq_u32 s{sPend}, 0
        s_cbranch_scc1 L_final{X}
        L_take{X}:
        """)
        if P["stamps"] == 1:
            a(f"""
            s_add_u32 s97, s97, 1
            s_memrealtime s[98:99]
            s_waitcnt lgkmcnt(0)
            s_mov_b32 s96, s98
            s_cmp_eq_u32 s97, 1
            s_cbranch_scc0 L_dbg{X}
            v_writelane_b32 v207, s98, 43
            s_bcnt1_i32_b32 s99, s{sReady}
            v_writelane_b32 v207, s99, 44
            L_dbg{X}:
            """)
        a(f"""
        s_mov_b32 exec_lo, 0xffff
        v_lshl_add_u32 v{vT + 3}, v{vLane}, 2, v{vDw}
        ds_write_b32 v{vT + 3}, v{vZero} offset:64
        s_mov_b32 exec_lo, s{sReady}
        v_mbcnt_lo_u32_b32 v{vT}, s{sReady}, 0
        v_cmp_gt_u32 vcc, 16, v{vT}
        s_and_b32 s{sCurN}, s{sReady}, vcc_lo
        s_mov_b32 exec_lo, s{sCurN}
        v_and_b32 v{vT + 2}, 3, v{vT}
        v_lshrrev_b32 v{vT}, 2, v{vT}
        v_min_u32 v{vT + 1}, 320, v{vHi}
        v_lshl_add_u32 v{vT}, v{vT + 2}, 2, v{vT}
        v_sub_u32 v{vHi}, v{vHi}, v{vT + 1}
        v_lshl_add_u32 v{vT}, v{vT}, 2, v{vDw}
        ds_write_b32 v{vT}, v{vD0}
        ds_write_b32 v{vT}, v{vT + 1} offset:64
        v_cmp_lt_u32 vcc, 0, v{vHi}
        v_add_u32 v{vD0}, 320, v{vD0}
        s_andn2_b32 s{sReady}, s{sReady}, s{sCurN}
        s_and_b32 s{sTk}, s{sCurN}, vcc_lo
        s_or_b32 s{sReady}, s{sReady}, s{sTk}
        s_mov_b64 exec, -1
        ds_read_b128 {vr(vL0, 4)}, v{vDr}
        ds_read_b128 {vr(vL1, 4)}, v{vDr} offset:64
        s_cmp_eq_u32 s{sPrevN}, 0
        s_mov_b32 s{sPrevN}, s{sCurN}
        s_waitcnt lgkmcnt(0)
        s_cbranch_scc1 L_only{X}
        """)
        process(Y, X, 0)
        a(f"s_branch L_top{Y}")
    for X in range(2):
        a(f"L_only{X}:")
        for s in range(4):
            issue_slot(X, s)
        a(f"s_branch L_top{1 - X}")
    for X in range(2):
        a(f"L_final{X}:")
        once(45)
        late_loads()
        process(1 - X, None, NLATE)
        a("s_branch L_taken")
    a(f"""
    L_idle:
    s_cmp_eq_u32 s{sPend}, 0
    s_cbranch_scc1 L_idle_late
    s_cmp_lt_u32 s{sSpin}, {P["latespin"]}
    s_cbranch_scc1 L_idle2
    L_idle_late:
    """)
    late_loads()
    a(f"""
    s_cmp_eq_u32 s{sPend}, 0
    s_cbranch_scc1 L_taken
    L_idle2:
    s_add_u32 s{sSpin}, s{sSpin}, 1
    s_cmp_gt_u32 s{sSpin}, {SPIN_MAX}
    s_cbranch_scc1 L_end
    L_idle3:
    """)
    poll(f"s{sPend}")
    a(f"""
    s_waitcnt vmcnt(0)
    s_branch L_top0
    L_taken:
    s_mov_b64 exec, -1
    s_mov_b32 s{sLast}, 1
    s_mov_b32 s{sFirst}, 1
    s_movk_i32 s{sF0}, 0xf0
    s_movk_i32 s{s70}, 0x70
    s_lshl_b32 s{sRingB}, s{sW}, 12
    s_add_u32 s{sRingB}, s{sRingB}, {RING}
    s_mul_i32 s{sRowOff}, s{sJ}, {BK * 32}
    v_lshlrev_b32 v{vT}, 2, v{vLane}
    s_waitcnt lgkmcnt(0)
    """)
    st("intake")
    if P["stamps"] == 1:
        a(f"v_writelane_b32 v207, s{sSpin}, 40")
        a("v_writelane_b32 v207, s97, 41")
        a("v_writelane_b32 v207, s96, 42")
    a("s_barrier")
    st("bar5")
    for k in range(NCHK):
        a(f"ds_read_b32 v{vT + 1 + k}, v{vT} offset:{CNT + 256 * k}")
    a(f"""
    ds_read_b32 v{vEnd}, v{vCntA} offset:{CNT}
    s_waitcnt lgkmcnt(1)
    v_cmp_gt_u32 vcc, v{vT + 1}, v{vLim}
    """)
    for k in range(1, NCHK):
        a(f"v_cmp_gt_u32 s[{sT + 2 * k}:{sT + 2 * k + 1}], v{vT + 1 + k}, v{vLim + k}")
    for k in range(1, NCHK):
        a(f"s_or_b64 vcc, vcc, s[{sT + 2 * k}:{sT + 2 * k + 1}]")
    if P["force_slow"]:
        a("s_cmp_eq_u32 0, 0")
    a(f"""
    s_cbranch_scc0 L_G
    s_mov_b32 s{sSC}, 0
    s_mov_b32 s{sSU}, 0
    s_mov_b32 s{sLast}, 0
    s_mov_b64 s[{sLate}:{sLate + 1}], -1
    L_slow:
    s_waitcnt vmcnt(0) lgkmcnt(0)
    s_barrier
    """)
    if P["dma"]:
        late_loads()
        a("s_mov_b64 exec, -1")
    cnt_init(vT, sT)
    fill(vT + 4, SB, NFILL, RING)
    a(f"""
    s_waitcnt lgkmcnt(0)
    s_barrier
    s_cmp_lt_u32 s{sSC}, {NCH}
    s_cbranch_scc1 L_slow_unit
    s_mov_b32 s{sLast}, 1
    s_branch L_slow_go
    L_slow_unit:
    s_lshl_b32 s{sT}, s{sSC}, 10
    s_lshl_b32 s{sT + 1}, s{sJ}, 2
    s_add_u32 s{sT}, s{sT}, s{sT + 1}
    buffer_load_dword v{vT}, v{vZero}, s[{SSEG}:{SSEG + 3}], s{sT} offen sc1
    s_waitcnt vmcnt(0)
    v_readfirstlane_b32 s{sT + 2}, v{vT}
    s_and_b32 s{sT + 1}, s{sT + 2}, 0xfff
    s_mul_i32 s{sT + 1}, s{sT + 1}, 20
    s_bfe_u32 s{sT + 2}, s{sT + 2}, 0xc000c
    s_mul_i32 s{sT + 2}, s{sT + 2}, 20
    s_mul_i32 s{sT + 3}, s{sSC}, {CS}
    s_add_u32 s{sT + 3}, s{sT + 3}, s{sT + 1}
    s_add_u32 s{sT + 3}, s{sT + 3}, s{sSU}
    s_sub_u32 s{sT + 4}, s{sT + 2}, s{sSU}
    s_min_u32 s{sT + 4}, s{sT + 4}, 480
    s_cmp_lg_u32 s{sW}, 0
    s_cbranch_scc1 L_slow_adv
    v_mul_u32_u24 v{vT}, 20, v{vLane}
    v_cmp_gt_u32 s[{sT + 6}:{sT + 7}], s{sT + 4}, v{vT}
    s_mov_b64 exec, s[{sT + 6}:{sT + 7}]
    buffer_load_dwordx4 {vr(vSlot, 4)}, v{vT}, s[{SREC}:{SREC + 3}], s{sT + 3} offen sc1
    buffer_load_dword v{vSlot + 4}, v{vT}, s[{SREC}:{SREC + 3}], s{sT + 3} offen offset:16 sc1
    s_waitcnt vmcnt(0)
    """)
    place_atomics(vSlot, sT + 6, vRk)
    a("s_waitcnt lgkmcnt(0)")
    place_writes(vSlot, sT + 6, vRk)
    a(f"""
    s_mov_b64 exec, -1
    L_slow_adv:
    s_add_u32 s{sSU}, s{sSU}, 480
    s_cmp_lt_u32 s{sSU}, s{sT + 2}
    s_cbranch_scc1 L_slow_go
    s_add_u32 s{sSC}, s{sSC}, 1
    s_mov_b32 s{sSU}, 0
    L_slow_go:
    s_waitcnt lgkmcnt(0)
    s_barrier
    ds_read_b32 v{vEnd}, v{vCntA} offset:{CNT}
    L_G:
    v_cmp_lt_u32 vcc, {5 * NP - 1}, v{vLane}
    v_add_u32 v{vT + 1}, 128, v{vBase}
    s_mov_b32 s{sCur}, 0
    s_waitcnt lgkmcnt(0)
    v_cndmask_b32 v{vEnd}, v{vEnd}, v{vT + 1}, vcc
    v_cmp_gt_u32 vcc, v{vEnd}, v{vBase}
    v_sub_u32 v{vEnd}, v{vEnd}, v{vBase}
    v_add_u32 v{vEnd}, 127, v{vEnd}
    v_and_b32 v{vEnd}, 0xffffff80, v{vEnd}
    v_add_u32 v{vEnd}, v{vEnd}, v{vBase}
    s_and_b32 s{sNE}, vcc_lo, {(1 << 5 * NP) - 1}
    """)

    def next_bin():
        a(f"""
        s_ff1_i32_b32 s{sL}, s{sNE}
        s_bitset0_b32 s{sNE}, s{sL}
        v_readlane_b32 s{sIA}, v{vBase}, s{sL}
        v_readlane_b32 s{sIE}, v{vEnd}, s{sL}
        v_readlane_b32 s{sIP}, v{vPh}, s{sL}
        """)

    next_bin()
    NRD = D + 1 if P["sp"] else D
    for k in range(NRD):
        a(f"""
        s_mov_b32 s{sT + k}, s{sIP}
        s_nop 0
        v_add_u32 v{vT + k}, s{sIA}, v{vLH4}
        ds_read_b32 v{vWq + k}, v{vT + k}
        s_add_u32 s{sIA}, s{sIA}, 128
        s_cmp_lg_u32 s{sIA}, s{sIE}
        s_cbranch_scc1 L_pro{k}
        """)
        next_bin()
        a(f"L_pro{k}:")
    for k in range(D):
        a(f"""
        s_add_u32 m0, s{sRingB}, {k * 1024}
        s_waitcnt lgkmcnt({NRD - 1 - k})
        v_mad_u32_u16 v{vT + k}, v{vWq + k}, 32, v{vHalf16} op_sel:[1,0,0,0]
        buffer_load_dwordx4 v{vT + k}, s[{SM}:{SM + 3}], s{sT + k} offen {P["gather"]} lds
        """)
    if P["sp"]:
        a(f"""
        s_mov_b32 s{sIPn}, s{sT + D}
        s_waitcnt lgkmcnt(0)
        """)

    def gates(tag):
        a(f"""
        s_cmp_eq_u32 s{sFirst}, 0
        s_cbranch_scc1 L_gates_done
        s_mov_b32 s{sFirst}, 0
        """)
        a(f"""
        v_and_b32 v{vT + 4}, 15, v{vLane}
        v_lshrrev_b32 v{vT + 5}, 4, v{vLane}
        v_lshlrev_b32 v{vT + 4}, 1, v{vT + 4}
        v_lshl_add_u32 v{vT + 6}, v{vT + 5}, 6, v{vT + 4}
        v_lshl_add_u32 v{vT + 4}, v{vT + 5}, 7, v{vT + 4}
        v_lshlrev_b32 v{vT + 5}, 2, v{vT + 5}
        """)
        for k in range(4):
            a(f"ds_read_u16 v{vWraw + k}, v{vT + 4} offset:{HIST + 32 * k}")
            a(f"ds_read_u16 v{vWraw + 4 + k}, v{vT + 4} offset:{HIST + 512 + 32 * k}")
        for k in range(2):
            a(f"ds_read_u16 v{vWraw + 8 + k}, v{vT + 6} offset:{HIST + 1024 + 32 * k}")
            a(f"ds_read_u16 v{vWraw + 10 + k}, v{vT + 6} offset:{HIST + 1280 + 32 * k}")
        a(f"""
        ds_read_b32 v{vCen}, v{vT + 5} offset:{HIST + 1536}
        s_waitcnt vmcnt({D})
        """)
        if P["dma"]:
            for g in range(5):
                a(f"ds_read_u16 v{vDist + g}, v{vDstL} offset:{2560 + 32 * g}")
            for g in range(5):
                a(f"ds_read_b64 {vr(vMr + 2 * g, 2)}, v{vResL} offset:{512 * g}")
        a(f"""
        s_waitcnt lgkmcnt(0)
        v_lshl_or_b32 v{vWd}, v{vWraw + 1}, 16, v{vWraw}
        v_lshl_or_b32 v{vWd + 1}, v{vWraw + 3}, 16, v{vWraw + 2}
        v_lshl_or_b32 v{vWu}, v{vWraw + 5}, 16, v{vWraw + 4}
        v_lshl_or_b32 v{vWu + 1}, v{vWraw + 7}, 16, v{vWraw + 6}
        v_lshl_or_b32 v{vWs}, v{vWraw + 9}, 16, v{vWraw + 8}
        v_lshl_or_b32 v{vWr}, v{vWraw + 11}, 16, v{vWraw + 10}
        v_mov_b32 v{vWd + 2}, v{vWd}
        v_mov_b32 v{vWd + 3}, v{vWd + 1}
        v_mov_b32 v{vWu + 2}, v{vWu}
        v_mov_b32 v{vWu + 3}, v{vWu + 1}
        v_mov_b32 v{vWs + 1}, 0
        v_mov_b32 v{vWr + 1}, 0
        v_mov_b32 v{vRb + 1}, 0
        v_mov_b32 v{vRb + 3}, 0
        v_and_b32 v{vCen + 1}, 0xffff0000, v{vCen}
        v_lshlrev_b32 v{vCen}, 16, v{vCen}
        """)
        for g in range(5):
            t = vT + 4
            rb = vRb + 2 * (g & 1)
            a(f"""
            v_lshlrev_b32 v{t + 2}, 16, v{vDist + g}
            v_sub_f32 v{t}, v{t + 2}, v{vCen}
            v_sub_f32 v{t + 1}, v{t + 2}, v{vCen + 1}
            v_cvt_pk_bf16_f32 v{t + 2}, v{t}, v{t + 1}
            v_lshlrev_b32 v{t}, 16, v{t + 2}
            v_and_b32 v{t + 1}, 0xffff0000, v{t + 2}
            v_mul_f32 v{t}, v{t}, v{t}
            v_mul_f32 v{t + 1}, v{t + 1}, v{t + 1}
            v_cvt_pk_bf16_f32 v{t + 2}, v{t}, v{t + 1}
            v_lshlrev_b32 v{t}, 16, v{t + 2}
            v_and_b32 v{t + 1}, 0xffff0000, v{t + 2}
            v_mul_f32 v{t}, 0xc1200000, v{t}
            v_mul_f32 v{t + 1}, 0xc1200000, v{t + 1}
            v_cvt_pk_bf16_f32 v{t + 2}, v{t}, v{t + 1}
            v_lshlrev_b32 v{t}, 16, v{t + 2}
            v_and_b32 v{t + 1}, 0xffff0000, v{t + 2}
            v_mul_f32 v{t}, 0x3fb8aa3b, v{t}
            v_mul_f32 v{t + 1}, 0x3fb8aa3b, v{t + 1}
            v_exp_f32 v{t}, v{t}
            v_exp_f32 v{t + 1}, v{t + 1}
            s_nop 0
            v_cvt_pk_bf16_f32 v{rb}, v{t}, v{t + 1}
            s_nop 1
            v_mfma_f32_16x16x16_bf16 {vr(vG + 4 * g, 4)}, {vr(vWs, 2)}, {vr(rb, 2)}, 0
            v_mfma_f32_16x16x16_bf16 {vr(vH + 4 * g, 4)}, {vr(vWr, 2)}, {vr(rb, 2)}, 0
            """)
        a("L_gates_done:")
        st("GH")

    a(f"s_movk_i32 s{sPrev}, {D * 1024}")
    st("Gissued")
    gates(0)
    a("L_main:")

    def split(src, dst, t):
        a(f"""
        v_cvt_pk_bf16_f32 v{dst}, v{src}, v{src + 1}
        v_cvt_pk_bf16_f32 v{dst + 1}, v{src + 2}, v{src + 3}
        v_lshlrev_b32 v{t}, 16, v{dst}
        v_and_b32 v{t + 1}, 0xffff0000, v{dst}
        v_lshlrev_b32 v{t + 2}, 16, v{dst + 1}
        v_and_b32 v{t + 3}, 0xffff0000, v{dst + 1}
        v_sub_f32 v{t}, v{src}, v{t}
        v_sub_f32 v{t + 1}, v{src + 1}, v{t + 1}
        v_sub_f32 v{t + 2}, v{src + 2}, v{t + 2}
        v_sub_f32 v{t + 3}, v{src + 3}, v{t + 3}
        v_cvt_pk_bf16_f32 v{dst + 2}, v{t}, v{t + 1}
        v_cvt_pk_bf16_f32 v{dst + 3}, v{t + 2}, v{t + 3}
        s_nop 1
        """)

    def prio(b):
        pat = P["prio"]
        if not pat:
            return ""
        cur = pat[b % len(pat)]
        if b % 5 and cur == pat[(b - 1) % len(pat)]:
            return ""
        return f"""s_cmp_lt_u32 s{sW}, 4
        s_cbranch_scc1 L_pr{b}
        s_setprio {1 if cur == "y" else 0}
        L_pr{b}:"""

    ring_adv = f"s_mov_b32 s{sPrev}, s{sCur}" if D == R - 1 else f"s_add_u32 s{sPrev}, s{sPrev}, 1024\ns_and_b32 s{sPrev}, s{sPrev}, {R * 1024 - 1}"
    def step(b, acc):
        if not P["sp"]:
            D = P["D"]
            return f"""
            s_add_u32 m0, s{sRingB}, s{sPrev}
            v_add_u32 v{vT}, s{sIA}, v{vLH4}
            v_add_u32 v{vT + 1}, s{sC}, v{vLH4}
            ds_read_b32 v{vT}, v{vT}
            ds_read_b32 v{vT + 1}, v{vT + 1}
            v_add_u32 v{vT + 3}, s{sCur}, v{vTr}
            {ring_adv}
            s_add_u32 s{sCur}, s{sCur}, 1024
            s_and_b32 s{sCur}, s{sCur}, {R * 1024 - 1}
            s_add_u32 s{sC}, s{sC}, 128
            s_add_u32 s{sIA}, s{sIA}, 128
            s_cmp_eq_u32 s{sIA}, s{sIE}
            s_waitcnt lgkmcnt(1)
            v_mad_u32_u16 v{vT}, v{vT}, 32, v{vHalf16} op_sel:[1,0,0,0]
            buffer_load_dwordx4 v{vT}, s[{SM}:{SM + 3}], s{sIP} offen {P["gather"]} lds
            s_cbranch_scc1 L_nb{b}
            L_nb{b}_back:
            s_waitcnt lgkmcnt(0)
            v_and_b32 v{vT + 2}, 0xbff8, v{vT + 1}
            v_lshlrev_b32 v{vT + 4}, 4, v{vT + 1}
            v_lshrrev_b32 v{vT + 5}, 7, v{vT + 1}
            v_cvt_f32_f16 v{vT + 2}, v{vT + 2}
            v_bfi_b32 v{vT + 4}, s{s70}, v{vT + 4}, v{vT + 5}
            v_and_or_b32 v{vT + 4}, v{vT + 4}, s{sF0}, v{vSc}
            ds_write_b16_d16_hi v{vT + 4}, v{vT + 2}
            ds_read_b128 {vr(vSt, 4)}, v{vSrd}
            ds_write_b16 v{vT + 4}, v{vZero}
            s_waitcnt vmcnt({D})
            ds_read_b64_tr_b16 {vr(vMt, 2)}, v{vT + 3}
            ds_read_b64_tr_b16 {vr(vMt + 2, 2)}, v{vT + 3} offset:256
            s_cmp_lg_u32 s{sC}, s{sCE}
            s_waitcnt lgkmcnt(0)
            v_mfma_f32_16x16x32_bf16 {vr(acc, 4)}, {vr(vMt, 4)}, {vr(vSt, 4)}, {vr(acc, 4)}
            s_cbranch_scc1 L_bin{b}
"""
        D = P["D"]
        late = b >= P["lateiss"]
        issue = f"buffer_load_dwordx4 v{vT}, s[{SM}:{SM + 3}], s{sT} offen {P['gather']} lds"
        shift = "\n".join(f"v_mov_b32 v{vWq + k}, v{vWq + k + 1}" for k in range(D))
        return f"""
            s_add_u32 m0, s{sRingB}, s{sPrev}
            v_mad_u32_u16 v{vT}, v{vWq + D}, 32, v{vHalf16} op_sel:[1,0,0,0]
            v_and_b32 v{vT + 2}, 0xbff8, v{vWq}
            v_lshlrev_b32 v{vT + 4}, 4, v{vWq}
            {f"s_mov_b32 s{sT}, s{sIPn}" if late else issue.replace(f"s{sT} offen", f"s{sIPn} offen")}
            v_lshrrev_b32 v{vT + 5}, 7, v{vWq}
            v_cvt_f32_f16 v{vT + 2}, v{vT + 2}
            v_bfi_b32 v{vT + 4}, s{s70}, v{vT + 4}, v{vT + 5}
            v_add_u32 v{vT + 1}, s{sIA}, v{vLH4}
            v_and_or_b32 v{vT + 4}, v{vT + 4}, s{sF0}, v{vSc}
            {shift}
            ds_write_b16_d16_hi v{vT + 4}, v{vT + 2}
            ds_read_b128 {vr(vSt, 4)}, v{vSrd}
            ds_write_b16 v{vT + 4}, v{vZero}
            ds_read_b32 v{vWq + D}, v{vT + 1}
            v_add_u32 v{vT + 3}, s{sCur}, v{vTr}
            s_mov_b32 s{sIPn}, s{sIP}
            s_add_u32 s{sIA}, s{sIA}, 128
            s_cmp_eq_u32 s{sIA}, s{sIE}
            s_cbranch_scc1 L_nb{b}
            L_nb{b}_back:
            s_waitcnt vmcnt({D - 1 if late else D})
            {issue if late else ""}
            ds_read_b64_tr_b16 {vr(vMt, 2)}, v{vT + 3}
            ds_read_b64_tr_b16 {vr(vMt + 2, 2)}, v{vT + 3} offset:256
            {ring_adv}
            s_add_u32 s{sCur}, s{sCur}, 1024
            s_and_b32 s{sCur}, s{sCur}, {R * 1024 - 1}
            s_add_u32 s{sC}, s{sC}, 128
            s_cmp_lg_u32 s{sC}, s{sCE}
            s_waitcnt lgkmcnt(0)
            v_mfma_f32_16x16x32_bf16 {vr(acc, 4)}, {vr(vMt, 4)}, {vr(vSt, 4)}, {vr(acc, 4)}
            s_cbranch_scc1 L_bin{b}
"""

    ROLL = P["roll"]
    NE = P["lateiss"] // 5
    bodies = [0, NP - 1] if ROLL else range(NP)
    if ROLL:
        assert 0 < NE < NP
        a(f"s_mov_b32 s{sB}, 0")
    for p in bodies:
        if ROLL:
            a(f"L_phase{p}:")
            if p:
                a(f"""
                s_cmp_eq_u32 s{sB}, {5 * (NP - 1)}
                s_cselect_b32 s{sEpi}, s{sLast}, 0
                """)
        for g in range(5):
            b = p * 5 + g
            acc = vAcc + 4 * g
            lane = f"s{sT + 1}" if ROLL else b
            a(f"""
            {prio(b)}
            {f"s_add_u32 s{sT + 1}, s{sB}, {g}" if ROLL else ""}
            v_readlane_b32 s{sC}, v{vBase}, {lane}
            v_readlane_b32 s{sCE}, v{vEnd}, {lane}
            s_cmp_eq_u32 s{sC}, s{sCE}
            s_cbranch_scc1 L_bin{b}_done
            L_bin{b}:
            {step(b, acc)}
            L_bin{b}_done:
            """)
            if g == 4 or b == 0:
                st(f"bin{b}")
            if p == NP - 1:
                x, y, t = vT + 4, vT + 8, vT + 12
                a(f"""
                s_cmp_eq_u32 s{sEpi if ROLL else sLast}, 0
                s_cbranch_scc1 L_epi{g}_done
                s_nop 5
                """)
                split(acc, x, t)
                a(f"""
                v_mfma_f32_16x16x32_bf16 {vr(y, 4)}, {vr(vWd, 4)}, {vr(x, 4)}, 0
                s_nop 7
                v_mul_f32 v{y}, v{y}, v{vG + 4 * g}
                v_mul_f32 v{y + 1}, v{y + 1}, v{vG + 4 * g + 1}
                v_mul_f32 v{y + 2}, v{y + 2}, v{vG + 4 * g + 2}
                v_mul_f32 v{y + 3}, v{y + 3}, v{vG + 4 * g + 3}
                """)
                split(y, x, t)
                mr = vMr + 2 * g
                a(f"""
                v_mfma_f32_16x16x32_bf16 {vr(y, 4)}, {vr(vWu, 4)}, {vr(x, 4)}, 0
                v_lshlrev_b32 v{t}, 16, v{mr}
                v_and_b32 v{t + 1}, 0xffff0000, v{mr}
                v_lshlrev_b32 v{t + 2}, 16, v{mr + 1}
                v_and_b32 v{t + 3}, 0xffff0000, v{mr + 1}
                s_nop 3
                v_fmac_f32 v{t}, v{y}, v{vH + 4 * g}
                v_fmac_f32 v{t + 1}, v{y + 1}, v{vH + 4 * g + 1}
                v_fmac_f32 v{t + 2}, v{y + 2}, v{vH + 4 * g + 2}
                v_fmac_f32 v{t + 3}, v{y + 3}, v{vH + 4 * g + 3}
                v_cvt_pk_bf16_f32 v{mr}, v{t}, v{t + 1}
                v_cvt_pk_bf16_f32 v{mr + 1}, v{t + 2}, v{t + 3}
                buffer_store_dwordx2 {vr(mr, 2)}, v{vOut4 if g == 4 else vMoff}, s[{SOUT}:{SOUT + 3}], s{sRowOff} offen offset:{512 * g} {P["out_st"]}
                L_epi{g}_done:
                """)
        if ROLL:
            a(f"""
            s_add_u32 s{sB}, s{sB}, 5
            s_cmp_lt_u32 s{sB}, {5 * (NP if p else NE)}
            s_cbranch_scc1 L_phase{p}
            """)
    a(f"""
    s_cmp_eq_u32 s{sLast}, 0
    s_cbranch_scc1 L_slow
    """)
    if P["stamps"]:
        a("s_waitcnt vmcnt(0)")
    st("end")
    if P["stamps"] == 3:
        a(f"""
        s_cmp_lg_u32 s2, {P["dbgwg"]}
        s_cbranch_scc1 L_end
        s_cmp_lg_u32 s{sW}, {P["dbgw"]}
        s_cbranch_scc1 L_end
        v_readlane_b32 s98, v207, 0
        s_mov_b64 exec, 0xfffe
        v_subrev_u32 v207, s98, v207
        v_lshlrev_b32 v{vT}, 2, v{vLane}
        buffer_store_dword v207, v{vT}, s[{SDBG}:{SDBG + 3}], 0 offen
        """)
        print("names:", ",".join(st.names), file=sys.stderr)
    else:
        st.flush(SSEG, "s2", vT)
    a("""
    L_end:
    s_endpgm
    """)
    for b in [5 * p + g for p in bodies for g in range(5)]:
        a(f"L_nb{b}:")
        next_bin()
        a(f"s_branch L_nb{b}_back")
    a("L_code_end:")
    return a.text(), 256, 102, LDS


def generate(**kw):
    P = dict(DEFAULTS)
    P.update(kw)
    body, nv, ns, lds = gen(P)
    n = NAME + "_kernel"
    out = HEADER
    out += f"; @launch grid=({NCH},1,1) block=(512,1,1) lds={lds}\n"
    out += '.amdgcn_target "amdgcn-amd-amdhsa--gfx950"\n.text\n'
    out += f".globl {n}\n.p2align 8\n.type {n},@function\n{n}:\n{body}"
    out += '.section .rodata,"a"\n.p2align 6\n' + descriptor(n, nv, ns)
    return out


if __name__ == "__main__":
    path = sys.argv[1]
    kw = {}
    for arg in sys.argv[2:]:
        k, v = arg.split("=", 1)
        kw[k] = int(v) if v.lstrip("-").isdigit() else v
    open(path, "w").write(generate(**kw))
```

```python
import sys
from gen import Asm, vr, srd, Stamps, descriptor, NAME, E, T, NCH, CH, BK, WS_SEG

SPIN_MAX = 1 << 20
CS = 53888


DEFAULTS = dict(
    D=2,
    in_ld="nt",
    rec_st="sc1",
    rec_ld="",
    out_st="",
    gather="",
    xl=1,
    latespin=2,
    psh=15,
    order="o40123",
    sched="s2a",
    split=4,
    prio="yo",
    sp=1,
    pollpos=0,
    cmap=0,
    rot=5,
    lateiss=15,
    roll=0,
    nb=0,
    thr=16,
    lsplit=0,
    tw=0,
    dma=1,
    ipf=6,
    stamps=0,
    dbgwg=100,
    dbgw=5,
    force_slow=0,
)

HEADER = """; Kernarg layout for this problem (112 bytes, ptrs only, base s[0:1]):
;
"""


def gen(P):
    a = Asm()
    D = P["D"]
    R = 4
    ORD = [int(ch) for ch in str(P["order"]).lstrip("o")]
    PSH = P["psh"]
    CAPS = {16: (160, 160, 96), 15: (96,) * 5}[PSH]
    NP = len(CAPS)
    NB = 40 * NP
    CNT, HIST, BASE, DESC, SB, TRASH, AB = 0, 1024, 2048, 3072, 4096, 12288, 15360
    ZB = AB + 40 * 4 * sum(CAPS)
    RING = ZB + 128
    STG = RING
    LDS = -(-(STG + 53840) // 1280) * 1280
    RES, RESW = RING + 8 * R * 1024, 2736
    NFILL = -(-(RING - SB) // 8192)
    assert LDS <= 163840 and len(ORD) == NP and RES + 8 * RESW <= LDS
    sJ = 3
    SO, SI, SA, SRW, SSEG, SREC, SM, SOUT, SDIST, SDBG = 4, 8, 12, 16, 20, 24, 28, 32, 36, 40
    pM, pI, pO, pDist, pAng, pCen, pFreq, pWr, pWs, pWd, pWu, pOut, pDbg, pWsp = range(44, 72, 2)
    sOff, sOffA = 72, 77
    sC625, sM625, sPre, sMask, sAct, sW, sSpin, sX = 82, 83, 84, 85, 86, 88, 89, 90
    sMk = 44
    sPend, sReady, sPrevN, sCurN, sJ4, sTk, sEarly = 60, 61, 62, 63, 64, 66, 68
    sLate, sDo, sMo, sRes = 74, 72, 73, 76
    sLast, sFirst, sSC, sSU = 83, 84, 85, 86
    sF0, s70, sRingB, sPrev, sCur, sRowOff = 44, 45, 46, 47, 48, 49
    sNE, sL, sIA, sIE, sIP, sC, sCE, sIPn = 50, 51, 52, 53, 54, 55, 56, 57
    sT = 58
    sB, sEpi = 77, 78
    st = Stamps(a, P, 0, 207, 98)
    vOff16, vOff8, vOne, vF = 1, 2, 3, 4
    vO, vI, vA, vJ, vR = 8, 28, 48, 58, 78
    vP = 98
    vSeg = 112
    vPar = 116
    vCtr = 124
    vLane, vLL20, vFour, vZero = 1, 2, 3, 4
    vLH4, vHalf16, vSc, vSrd, vTr, vBase, vCntA, vEnd, vPh = 5, 6, 7, 8, 9, 10, 11, 12, 13
    vMoff, vOut4 = 14, 15
    vT = 16
    vSlot = 32
    vRk = 80
    vL0, vL1 = 88, 92
    vD0, vHi, vSegA, vCb, vSegW, vDw, vDr, vDoff, vLim = range(100, 109)
    vResG, vResL, vDstL = 126, 127, 128
    vWq = 96
    vAcc = 132
    vG, vH = 152, 172
    vMr = 192
    vDist = 202
    vWraw = 208
    vCen = 220
    vWd, vWu = 224, 228
    vWs, vWr, vRb = 232, 234, 236
    vMt, vSt = 240, 244
    vQ = 248

    def bin_addr(dst, k, tmp):
        a(f"""
        v_mul_u32_u24 v{dst}, {CAPS[0] * 4}, v{k}
        v_add_u32 v{dst}, {AB - CAPS[0] * 4}, v{dst}
        """)
        if CAPS[-1] != CAPS[0]:
            a(f"""
            v_mul_u32_u24 v{tmp}, {CAPS[-1] * 4}, v{k}
            v_add_u32 v{tmp}, {AB + (NB - 40) * CAPS[0] * 4 - (NB - 39) * CAPS[-1] * 4}, v{tmp}
            v_min_u32 v{dst}, v{dst}, v{tmp}
            """)

    def cnt_init(t, stmp):
        bin_addr(t, 0, t + 1)
        a(f"""
        v_mov_b32 v{t + 1}, {TRASH}
        v_cmp_eq_u32 vcc, 0, v0
        v_mov_b32 v{t + 2}, 0
        v_lshlrev_b32 v{t + 3}, 2, v0
        v_cndmask_b32 v{t}, v{t}, v{t + 1}, vcc
        v_cmp_lt_u32 vcc, {NB}, v0
        s_nop 1
        v_cndmask_b32 v{t}, v{t}, v{t + 2}, vcc
        v_cmp_gt_u32 vcc, 256, v0
        s_and_saveexec_b64 s[{stmp}:{stmp + 1}], vcc
        ds_write_b32 v{t + 3}, v{t} offset:{CNT}
        s_mov_b64 exec, s[{stmp}:{stmp + 1}]
        """)

    def fill(t, start, rounds, clip=None):
        a(f"""
        v_lshlrev_b32 v{t}, 4, v0
        v_mov_b32 v{vQ}, 0
        v_mov_b32 v{vQ + 1}, 0
        v_mov_b32 v{vQ + 2}, 0
        v_mov_b32 v{vQ + 3}, 0
        v_add_u32 v{t}, {start}, v{t}
        v_add_u32 v{t + 1}, 65536, v{t}
        """)
        if clip:
            a(f"v_cmp_gt_u32 vcc, {(clip - start - (rounds - 1) * 8192) // 16}, v0")
        for i in range(rounds):
            if clip and i == rounds - 1:
                a("s_mov_b64 exec, vcc")
            a(f"ds_write_b128 v{t + (i >> 3)}, {vr(vQ, 4)} offset:{(i & 7) * 8192}")
        if clip:
            a("s_mov_b64 exec, -1")

    def place_atomics(w, m, t):
        a(f"s_mov_b64 exec, s[{m}:{m + 1}]")
        for r in range(4):
            a(f"v_lshlrev_b32_sdwa v{t + r}, 2, v{w + 4} dst_sel:DWORD dst_unused:UNUSED_PAD src0_sel:DWORD src1_sel:BYTE_{r}")
            a(f"ds_add_rtn_u32 v{t + r}, v{t + r}, v{vFour} offset:{CNT}")

    def place_writes(w, m, t):
        a(f"s_mov_b64 exec, s[{m}:{m + 1}]")
        for r in range(4):
            a(f"ds_write_b32 v{t + r}, v{w + r}")

    def ctr_sum(lab_ok):
        a(f"""
        v_readlane_b32 s{sX + 4}, v{vCtr}, 0
        v_readlane_b32 s{sX + 5}, v{vCtr}, 1
        s_add_u32 s{sX + 4}, s{sX + 4}, s{sX + 5}
        v_readlane_b32 s{sX + 5}, v{vCtr}, 2
        s_add_u32 s{sX + 4}, s{sX + 4}, s{sX + 5}
        v_readlane_b32 s{sX + 5}, v{vCtr}, 3
        s_add_u32 s{sX + 4}, s{sX + 4}, s{sX + 5}
        s_cmp_ge_u32 s{sX + 4}, {NCH}
        """)

    ld = P["in_ld"]
    a(f"""
    s_cmp_ge_u32 s2, {NCH}
    s_cbranch_scc1 L_end
    """)
    st("start")
    a(f"""
    s_load_dwordx16 s[44:59], s[0:1], 0
    s_load_dwordx8 s[60:67], s[0:1], 64
    s_load_dwordx4 s[68:71], s[0:1], 96
    """)
    if P["ipf"]:
        a(f"""
        s_getpc_b64 s[96:97]
        s_lshr_b32 s{sX}, s2, 3
        s_mul_i32 s{sX}, s{sX}, {P["ipf"]}
        v_add_u32 v1, s{sX}, v0
        v_min_u32 v1, (L_code_end - {NAME}_kernel - 256) / 128, v1
        v_lshlrev_b32 v1, 7, v1
        v_mov_b32 v3, s97
        v_add_co_u32 v2, vcc, s96, v1
        s_nop 1
        v_addc_co_u32 v3, vcc, 0, v3, vcc
        v_cmp_gt_u32 vcc, {P["ipf"]}, v0
        s_and_saveexec_b64 s[{sX}:{sX + 1}], vcc
        s_cbranch_execz L_noipf
        global_load_dword v130, v[2:3], off
        L_noipf:
        s_mov_b64 exec, s[{sX}:{sX + 1}]
        """)
    a(f"""
    v_lshlrev_b32 v{vOff16}, 4, v0
    v_lshlrev_b32 v{vOff8}, 3, v0
    v_lshlrev_b32 v5, 2, v0
    v_mov_b32 v6, 0
    v_mov_b32 v{vOne}, 1
    v_lshrrev_b32 v7, 6, v0
    s_mul_i32 s{sOff}, s2, {CH * 4}
    s_mul_i32 s{sOffA}, s2, {CH * 2}
    v_readfirstlane_b32 s{sW}, v7
    ds_write_b32 v5, v6 offset:{HIST}
    """)
    for q in range(1, 5):
        a(f"s_add_u32 s{sOff + q}, s{sOff}, {q * 8000}")
        a(f"s_add_u32 s{sOffA + q}, s{sOffA}, {q * 4000}")
    if P["xl"]:
        a(f"""
        s_and_b32 s{sJ}, s2, 7
        s_lshl_b32 s{sJ}, s{sJ}, 5
        s_lshr_b32 s{sX}, s2, 3
        s_add_u32 s{sJ}, s{sJ}, s{sX}
        """)
    else:
        a(f"s_mov_b32 s{sJ}, s2")
    a(f"""
    s_mov_b32 s{sC625}, 6871948
    s_mov_b32 s{sM625}, -{BK}
    s_mov_b32 s{sMask}, 0x4007
    s_mov_b32 s{sSpin}, 0
    v_cmp_gt_u32 vcc, 500, v0
    s_lshl_b32 s{sX + 2}, s2, 10
    s_cmp_eq_u32 s{sW}, 0
    s_cselect_b64 s[{sX}:{sX + 1}], -1, 0
    s_waitcnt lgkmcnt(0)
    """)
    srd(a, SO, f"s{pO}", f"s{pO + 1}", T * 4)
    a("s_barrier")
    a(f"""
    s_mov_b64 s[{sAct}:{sAct + 1}], vcc
    s_mov_b64 exec, vcc
    """)
    issued = []

    def ld_issue(name):
        k, q = name[0], int(name[1:] or 0)
        act = f"s_mov_b64 exec, s[{sAct}:{sAct + 1}]"
        if k == "F":
            a(f"global_load_ushort v{vF}, v6, s[{pFreq}:{pFreq + 1}]")
        elif k == "O":
            a(f"buffer_load_dwordx4 {vr(vO + 4 * q, 4)}, v{vOff16}, s[{SO}:{SO + 3}], s{sOff + q} offen {ld}")
        elif k == "A":
            a(f"buffer_load_dwordx2 {vr(vA + 2 * q, 2)}, v{vOff8}, s[{SA}:{SA + 3}], s{sOffA + q} offen {ld}")
        else:
            a(f"buffer_load_dwordx4 {vr(vI + 4 * q, 4)}, v{vOff16}, s[{SI}:{SI + 3}], s{sOff + q} offen {ld}")
        issued.append(name)

    def wave0(tag, body):
        a(f"""
        s_cmp_lg_u32 s{sW}, 0
        s_cbranch_scc1 L_w0{tag}
        """)
        body()
        a(f"""
        s_mov_b64 exec, s[{sAct}:{sAct + 1}]
        L_w0{tag}:
        """)

    def row_clear():
        a(f"buffer_store_dwordx4 {vr(vQ, 4)}, v{vOff16}, s[{SSEG}:{SSEG + 3}], s{sX + 2} offen sc1")

    def weights():
        for lo, hi, dst, ptr, off in ((-1, 0, 0, pWd, 0), (0, -1, 0, pWu, -512), (0xffff, 0, 4, pWs, 0),
                                      (0xffff0000, 0, 4, pWr, -256), (0, 1, 4, pCen, -512)):
            a(f"""
            s_mov_b32 exec_lo, {lo}
            s_mov_b32 exec_hi, {hi}
            global_load_dwordx4 {vr(vPar + dst, 4)}, v{vOff16}, s[{ptr}:{ptr + 1}] offset:{off}
            """)

    def touch():
        a(f"""
        s_mov_b64 exec, -1
        v_lshlrev_b32 v131, {P["tw"]}, v0
        buffer_load_dword v130, v131, s[{SM}:{SM + 3}], 0 offen
        buffer_load_dword v130, v131, s[{SOUT}:{SOUT + 3}], 0 offen
        buffer_load_dword v130, v131, s[{SREC}:{SREC + 3}], 0 offen
        s_mov_b64 exec, 1
        buffer_load_dword v130, v131, s[{SDIST}:{SDIST + 3}], 0 offen
        """)

    def count_clear(younger):
        a(f"""
        s_cmp_lg_u32 s{sW}, 0
        s_cbranch_scc1 L_w0c
        s_waitcnt vmcnt({younger})
        L_w0c:
        s_and_b64 exec, s[{sX}:{sX + 1}], 1
        s_and_b32 s{sX + 3}, s2, 3
        s_lshl_b32 s{sX + 3}, s{sX + 3}, 6
        buffer_atomic_add v{vOne}, v6, s[{SDBG}:{SDBG + 3}], s{sX + 3} offen
        s_mov_b64 exec, s[{sAct}:{sAct + 1}]
        """)
        issued.append("C")

    def ld_wait(name):
        a(f"s_waitcnt vmcnt({len(issued) - 1 - issued.index(name)})")

    for n in ("O0", "O1", "O2", "O3", "O4", "F"):
        ld_issue(n)
    srd(a, SI, f"s{pI}", f"s{pI + 1}", T * 4)
    srd(a, SA, f"s{pAng}", f"s{pAng + 1}", T * 2)
    srd(a, SDBG, f"s{pDbg}", f"s{pDbg + 1}", 256)
    srd(a, SREC, f"s{pWsp}", f"s{pWsp + 1}", NCH * CS)
    srd(a, SOUT, f"s{pOut}", f"s{pOut + 1}", E * 32)
    srd(a, SM, f"s{pM}", f"s{pM + 1}", E * 32)
    srd(a, SDIST, f"s{pDist}", f"s{pDist + 1}", E * 2)
    a(f"""
    s_add_u32 s{SSEG}, s{pWsp}, {WS_SEG}
    s_addc_u32 s{SSEG + 1}, s{pWsp + 1}, 0
    s_and_b32 s{SSEG + 1}, s{SSEG + 1}, 0xffff
    s_mov_b32 s{SSEG + 2}, {NCH * 1024}
    s_mov_b32 s{SSEG + 3}, 0x20000
    s_mul_i32 s{sX + 3}, s2, {CS}
    s_add_u32 s{SRW}, s{pWsp}, s{sX + 3}
    s_addc_u32 s{SRW + 1}, s{pWsp + 1}, 0
    s_and_b32 s{SRW + 1}, s{SRW + 1}, 0xffff
    s_mov_b32 s{SRW + 2}, 0
    s_mov_b32 s{SRW + 3}, 0x20000
    s_mov_b64 exec, -1
    v_and_b32 v{vCtr + 1}, 3, v0
    v_lshlrev_b32 v{vCtr + 1}, 6, v{vCtr + 1}
    """)
    fill(vP + 4, STG, 7)
    a(f"s_mov_b64 exec, s[{sAct}:{sAct + 1}]")
    S2 = P["sched"] != "s1"
    rest = [f"A{q}" for q in range(5)] + [f"I{q}" for q in range(5)]
    after_o = [()] * 5 if S2 else [("A0", "A1"), ("A2", "A3"), ("A4", "I0"), ("I1",), ("I2",)]
    for q in range(5):
        ld_wait(f"O{q}")
        if q == 0:
            wave0("z", row_clear)
            nz = len(issued)
        for n in after_o[q]:
            ld_issue(n)
        if q in (0, 4):
            st(f"O{q}")
        for r in range(4):
            i = 4 * q + r
            a(f"v_mul_hi_u32_u24 v{vP + r}, s{sC625}, v{vO + i}")
            a(f"v_add_u32 v{vO + i}, 16, v{vO + i}")
        for r in range(4):
            i = 4 * q + r
            a(f"v_lshlrev_b32 v{vJ + i}, 2, v{vP + r}")
            a(f"v_mad_i32_i24 v{vO + i}, v{vP + r}, s{sM625}, v{vO + i}")
            a(f"ds_add_rtn_u32 v{vR + i}, v{vJ + i}, v{vOne} offset:{HIST}")
        for r in range(4):
            i = 4 * q + r
            a(f"v_lshl_or_b32 v{vO + i}, v{vO + i}, 11, v{vO + i}")


    def issue_rest(tag, older):
        a(f"""
        s_cmp_lt_u32 s{sW}, {P["split"]}
        s_cbranch_scc{0 if older else 1} L_rest{tag}
        """)
        keep = list(issued)
        for n in rest:
            ld_issue(n)
        if older:
            issued[:] = keep
        a(f"L_rest{tag}:")

    if S2:
        issue_rest("a", True)
    wave0("w", weights)
    if P["tw"]:
        wave0("t", touch)
    a(f"""
    s_waitcnt lgkmcnt(0)
    s_barrier
    """)
    st("bar2")
    if P["sched"] == "s2a":
        issue_rest("b", False)
    if not S2:
        ld_issue("I3")
        ld_issue("I4")
    c, b, x, ln = vP, vP + 4, vP + 8, vP + 9
    a(f"""
    s_mov_b64 exec, -1
    v_and_b32 v{ln}, 63, v0
    v_lshlrev_b32 v{ln}, 4, v{ln}
    ds_read_b128 {vr(c, 4)}, v{ln} offset:{HIST}
    s_mov_b32 s{sX + 4}, {STG}
    s_waitcnt lgkmcnt(0)
    """)
    for k in range(4):
        a(f"v_add_u32 v{c + k}, 3, v{c + k}")
        a(f"v_lshrrev_b32 v{c + k}, 2, v{c + k}")
    a(f"""
    v_add_u32 v{b + 2}, v{c}, v{c + 1}
    v_add_u32 v{b + 3}, v{b + 2}, v{c + 2}
    v_add_u32 v{b}, v{b + 3}, v{c + 3}
    v_mov_b32 v{x}, v{b}
    s_nop 1
    v_add_u32_dpp v{x}, v{x}, v{x} row_shr:1 row_mask:0xf bank_mask:0xf
    s_nop 1
    v_add_u32_dpp v{x}, v{x}, v{x} row_shr:2 row_mask:0xf bank_mask:0xf
    s_nop 1
    v_add_u32_dpp v{x}, v{x}, v{x} row_shr:4 row_mask:0xf bank_mask:0xf
    s_nop 1
    v_add_u32_dpp v{x}, v{x}, v{x} row_shr:8 row_mask:0xf bank_mask:0xf
    s_nop 1
    v_add_u32_dpp v{x}, v{x}, v{x} row_bcast:15 row_mask:0xa bank_mask:0xf
    s_nop 1
    v_add_u32_dpp v{x}, v{x}, v{x} row_bcast:31 row_mask:0xc bank_mask:0xf
    v_sub_u32 v{b}, v{x}, v{b}
    v_add_u32 v{b + 1}, v{b}, v{c}
    v_add_u32 v{b + 2}, v{b}, v{b + 2}
    v_add_u32 v{b + 3}, v{b}, v{b + 3}
    v_readlane_b32 s{sX + 5}, v{x}, 63
    """)
    for k in range(4):
        a(f"v_lshl_or_b32 v{vSeg + k}, v{c + k}, 12, v{b + k}")
        a(f"v_mad_u32_u24 v{b + k}, v{b + k}, 20, s{sX + 4}")
    a(f"ds_write_b128 v{ln}, {vr(b, 4)} offset:{BASE}")
    for k in range(4):
        a(f"v_or_b32 v{vSeg + k}, 0x80000000, v{vSeg + k}")
    a(f"""
    s_mul_i32 s{SRW + 2}, s{sX + 5}, 20
    s_mov_b64 exec, s[{sAct}:{sAct + 1}]
    """)
    for i in range(20):
        a(f"ds_read_b32 v{vJ + i}, v{vJ + i} offset:{BASE}")
    if P["sched"] == "s2b":
        issue_rest("b", False)
    count_clear(len(issued) - nz + 5 + (4 if P["tw"] else 0))
    for q in range(5):
        ld_wait(f"A{q}")
        if q == 0:
            a(f"""
            v_readfirstlane_b32 s{sX + 5}, v{vF}
            v_lshlrev_b32 v{vF}, 16, v{vF}
            """)
        if q in (0, 4):
            st(f"A{q}")
        t = vP

        def unpack():
            for p in range(2):
                d = vA + 2 * q + p
                a(f"v_lshlrev_b32 v{t + 2 * p}, 16, v{d}")
                a(f"v_and_b32 v{t + 2 * p + 1}, 0xffff0000, v{d}")

        unpack()
        a(f"""
        s_cmp_eq_u32 s{sX + 5}, 0x3f80
        s_cbranch_scc1 L_unit{q}
        """)
        for k in range(4):
            a(f"v_mul_f32 v{t + k}, v{vF}, v{t + k}")
        for p in range(2):
            a(f"v_cvt_pk_bf16_f32 v{vA + 2 * q + p}, v{t + 2 * p}, v{t + 2 * p + 1}")
        unpack()
        a(f"L_unit{q}:")
        for k in range(4):
            a(f"v_mul_f32 v{t + k}, 0.15915494, v{t + k}")
        for k in range(4):
            a(f"v_fract_f32 v{t + k}, v{t + k}")
        for k in range(4):
            a(f"v_cos_f32 v{t + k}, v{t + k}")
        a("s_nop 0")
        for p in range(2):
            a(f"v_cvt_pkrtz_f16_f32 v{vA + 2 * q + p}, v{t + 2 * p}, v{t + 2 * p + 1}")
        for p in range(2):
            a(f"v_add_u32 v{vA + 2 * q + p}, 0x40004, v{vA + 2 * q + p}")
        for p in range(2):
            a(f"v_and_b32 v{vA + 2 * q + p}, 0xbff8bff8, v{vA + 2 * q + p}")
    a("s_waitcnt lgkmcnt(0)")
    for i in range(20):
        a(f"v_mad_u32_u24 v{vR + i}, v{vR + i}, 5, v{vJ + i}")
        a(f"v_and_b32 v{vJ + i}, -4, v{vR + i}")
        a(f"v_and_b32 v{vR + i}, 3, v{vR + i}")
        a(f"v_mad_i32_i24 v{vR + i}, v{vR + i}, -3, v{vJ + i}")
    for q in range(5):
        ld_wait(f"I{q}")
        if q in (0, 4):
            st(f"I{q}")
        for r in range(4):
            i = 4 * q + r
            a(f"v_bfe_u32 v{vP + r}, v{vO + i}, 4, 6")
            if PSH == 16:
                a(f"v_mad_u32_u16 v{vP + r}, v{vI + i}, 40, v{vP + r} op_sel:[1,0,0,0]")
            else:
                a(f"v_lshrrev_b32 v{vP + 4}, {PSH}, v{vI + i}")
                a(f"v_mad_u32_u24 v{vP + r}, v{vP + 4}, 40, v{vP + r}")
            a(f"v_lshlrev_b32 v{vI + i}, 16, v{vI + i}")
            a(f"v_and_or_b32 v{vI + i}, v{vO + i}, s{sMask}, v{vI + i}")
            a(f"ds_write_b8 v{vR + i}, v{vP + r} offset:16")
            a(f"v_or_b32_sdwa v{vI + i}, v{vI + i}, v{vA + 2 * q + (r >> 1)} dst_sel:DWORD dst_unused:UNUSED_PAD src0_sel:DWORD src1_sel:WORD_{r & 1}")
            a(f"ds_write_b32 v{vJ + i}, v{vI + i}")
    vS = 64
    a(f"""
    s_mov_b64 exec, -1
    v_add_u32 v5, {STG}, v{vOff16}
    v_mov_b32 v{vP}, v{vOff16}
    s_waitcnt lgkmcnt(0)
    s_barrier
    """)
    st("bar3")
    for i in range(7):
        a(f"ds_read_b128 {vr(vS + 4 * i, 4)}, v5 offset:{i * 8192}")
    a(f"""
    s_mov_b64 exec, s[{sX}:{sX + 1}]
    ds_write_b128 v{vP}, {vr(vPar, 4)} offset:{HIST}
    ds_write_b128 v{vP}, {vr(vPar + 4, 4)} offset:{HIST + 1024}
    s_mov_b64 exec, -1
    """)
    for i in range(7):
        a(f"s_mov_b32 s{sX + 4}, {i * 8192}")
        a(f"s_waitcnt lgkmcnt({8 - i})")
        a(f"buffer_store_dwordx4 {vr(vS + 4 * i, 4)}, v{vP}, s[{SRW}:{SRW + 3}], s{sX + 4} offen {P['rec_st']}")
    st("stissued")

    def poll(mask):
        a(f"""
        s_mov_b32 exec_lo, {mask}
        s_mov_b32 exec_hi, 0
        buffer_load_dword v{vSegW}, v{vSegA}, s[{SSEG}:{SSEG + 3}], s{sJ4} offen sc1
        """)

    if P["rot"]:
        first = [max(range(NP), key=lambda p: min((p + 1) << PSH, 20000 * (x + 1)) - max(p << PSH, 20000 * x)) for x in range(8)]
        phase_of_slot = f"""s_lshr_b32 s{sTk}, s{sJ}, 5
        s_mul_i32 s{sTk}, s{sTk}, 3
        s_lshr_b32 s{sTk}, {sum(((f + P["rot"] - 1) % NP) << (3 * x) for x, f in enumerate(first))}, s{sTk}
        s_and_b32 s{sTk}, s{sTk}, 7
        v_add_u32 v{vT + 6}, s{sTk}, v{vT + 6}
        v_subrev_u32 v{vT + 7}, {NP}, v{vT + 6}
        v_min_u32 v{vT + 6}, v{vT + 6}, v{vT + 7}"""
    else:
        phase_of_slot = f"""v_mul_u32_u24 v{vT + 6}, 3, v{vT + 6}
        v_mov_b32 v{vT + 7}, {sum(o << (3 * i) for i, o in enumerate(ORD))}
        v_bfe_u32 v{vT + 6}, v{vT + 7}, v{vT + 6}, 3"""
    cmap = {
        0: f"v_lshl_add_u32 v{vT + 2}, v{vT + 1}, 3, v{vT}",
        1: f"v_lshl_add_u32 v{vT + 2}, v{vT}, 5, v{vT + 1}",
        2: f"""v_add_u32 v{vT + 2}, v{vT + 1}, v{vT}
        v_and_b32 v{vT + 2}, 7, v{vT + 2}
        v_lshl_add_u32 v{vT + 2}, v{vT + 1}, 3, v{vT + 2}""",
    }[P["cmap"]]
    NB4 = P["nb"]
    if not NB4:
        a(f"""
        s_cmp_lg_u32 s{sW}, 7
        s_cbranch_scc1 L_nox
        """)
    a(f"""
    s_mov_b64 exec, 15
    buffer_load_dword v{vCtr}, v{vCtr + 1}, s[{SDBG}:{SDBG + 3}], 0 offen sc1
    s_mov_b64 exec, -1
    L_nox:
    v_lshrrev_b32 v{vT}, 6, v0
    v_and_b32 v{vLane}, 63, v0
    v_and_b32 v{vT + 1}, 31, v0
    {cmap}
    v_lshlrev_b32 v{vSegA}, 10, v{vT + 2}
    s_lshl_b32 s{sJ4}, s{sJ}, 2
    v_mul_u32_u24 v{vCb}, {CS}, v{vT + 2}
    v_and_b32 v{vT + 6}, 15, v{vLane}
    v_lshrrev_b32 v{vT + 7}, 4, v{vLane}
    v_mul_u32_u24 v{vLL20}, 20, v{vT + 6}
    v_lshlrev_b32 v{vDw}, 7, v{vT}
    v_add_u32 v{vDw}, {DESC}, v{vDw}
    v_lshl_add_u32 v{vDr}, v{vT + 7}, 4, v{vDw}
    v_mul_u32_u24 v{vT + 8}, 80, v{vT}
    v_add_u32 v{vT + 8}, v{vT + 8}, v{vT + 6}
    v_lshlrev_b32 v{vMoff}, 5, v{vT + 8}
    v_lshl_add_u32 v{vMoff}, v{vT + 7}, 3, v{vMoff}
    v_cmp_gt_u32 vcc, {BK - 64}, v{vT + 8}
    v_mov_b32 v{vT + 9}, 0x7fffff00
    v_lshlrev_b32 v{vDoff}, 1, v{vT + 8}
    v_cndmask_b32 v{vOut4}, v{vT + 9}, v{vMoff}, vcc
    v_mov_b32 v{vZero}, 0
    v_mov_b32 v{vFour}, 4
    v_lshrrev_b32 v{vT + 5}, 1, v{vLane}
    v_lshlrev_b32 v{vLH4}, 2, v{vT + 5}
    v_and_b32 v{vHalf16}, 1, v{vLane}
    v_lshlrev_b32 v{vHalf16}, 4, v{vHalf16}
    v_bfe_u32 v{vT + 6}, v{vT + 5}, 2, 1
    v_bfe_u32 v{vT + 7}, v{vT + 5}, 4, 1
    v_lshl_add_u32 v{vT + 6}, v{vT + 7}, 1, v{vT + 6}
    v_and_b32 v{vT + 7}, 3, v{vT + 5}
    v_bfe_u32 v{vT + 8}, v{vT + 5}, 3, 1
    v_lshl_add_u32 v{vT + 7}, v{vT + 8}, 2, v{vT + 7}
    v_lshlrev_b32 v{vT + 7}, 1, v{vT + 7}
    v_lshl_add_u32 v{vSc}, v{vT + 6}, 8, v{vT + 7}
    v_lshlrev_b32 v{vT + 8}, 10, v{vT}
    v_add_u32 v{vT + 8}, {SB}, v{vT + 8}
    v_add_u32 v{vSc}, v{vSc}, v{vT + 8}
    v_lshl_add_u32 v{vSrd}, v{vLane}, 4, v{vT + 8}
    v_bfe_u32 v{vT + 6}, v{vLane}, 4, 1
    v_bfe_u32 v{vT + 7}, v{vLane}, 5, 1
    v_lshlrev_b32 v{vT + 7}, 4, v{vT + 7}
    v_lshl_add_u32 v{vT + 6}, v{vT + 6}, 2, v{vT + 7}
    v_bfe_u32 v{vT + 7}, v{vLane}, 2, 2
    v_add_u32 v{vT + 6}, v{vT + 6}, v{vT + 7}
    v_and_b32 v{vT + 7}, 3, v{vLane}
    v_lshlrev_b32 v{vT + 7}, 3, v{vT + 7}
    v_lshl_add_u32 v{vTr}, v{vT + 6}, 5, v{vT + 7}
    v_lshlrev_b32 v{vT + 8}, 12, v{vT}
    v_add_u32 v{vT + 8}, {RING}, v{vT + 8}
    v_add_u32 v{vTr}, v{vTr}, v{vT + 8}
    v_mul_u32_u24 v{vT + 6}, 52, v{vLane}
    v_lshrrev_b32 v{vT + 6}, 8, v{vT + 6}
    v_mul_u32_u24 v{vT + 8}, 5, v{vT + 6}
    v_sub_u32 v{vT + 8}, v{vLane}, v{vT + 8}
    {phase_of_slot}
    v_lshrrev_b32 v{vPh}, {16 - PSH}, v{vT + 6}
    v_lshlrev_b32 v{vPh}, 21, v{vPh}
    v_mul_u32_u24 v{vT + 6}, 40, v{vT + 6}
    v_mul_u32_u24 v{vT + 7}, 5, v{vT}
    v_add3_u32 v{vT + 6}, v{vT + 6}, v{vT + 7}, v{vT + 8}
    v_add_u32 v{vT + 6}, 1, v{vT + 6}
    v_lshlrev_b32 v{vCntA}, 2, v{vT + 6}
    """)
    bin_addr(vBase, vT + 6, vT + 7)
    a(f"""
    v_cmp_lt_u32 vcc, {5 * NP - 1}, v{vLane}
    v_mov_b32 v{vT + 8}, {ZB}
    s_nop 0
    v_cndmask_b32 v{vBase}, v{vBase}, v{vT + 8}, vcc
    v_cndmask_b32 v{vPh}, v{vPh}, v{vZero}, vcc
    v_cndmask_b32 v{vCntA}, v{vCntA}, v{vZero}, vcc
    """)
    NCHK = -(-(NB + 1) // 64)
    for k in range(NCHK):
        a(f"v_add_u32 v{vT + 6}, {64 * k + 1}, v{vLane}")
        bin_addr(vLim + k, vT + 6, vT + 7)
    cnt_init(vT, sTk)
    fill(vT + 4, SB, NFILL, RING)
    for k in range(20):
        a(f"v_mov_b32 v{vAcc + k}, 0")
    if P["stamps"]:
        a("s_mov_b32 s97, 0")
        a("s_mov_b64 s[100:101], 0")
    a(f"""
    s_mov_b32 s{sPend}, -1
    s_mov_b32 s{sReady}, 0
    s_mov_b32 s{sPrevN}, 0
    s_mov_b64 s[{sLate}:{sLate + 1}], -1
    s_mul_i32 s{sDo}, s{sJ}, {BK * 2}
    s_mul_i32 s{sMo}, s{sJ}, {BK * 32}
    """)
    if P["dma"]:
        a(f"""
        s_mul_i32 s{sRes}, s{sW}, {RESW}
        s_add_u32 s{sRes}, s{sRes}, {RES}
        s_mul_i32 s{sTk}, s{sW}, 2560
        v_lshlrev_b32 v{vResG}, 4, v{vLane}
        v_add_u32 v{vResG}, s{sTk}, v{vResG}
        v_subrev_u32 v{vResL}, s{sTk}, v{vMoff}
        v_add_u32 v{vResL}, s{sRes}, v{vResL}
        s_mul_i32 s{sTk}, s{sW}, 160
        v_subrev_u32 v{vDstL}, s{sTk}, v{vDoff}
        v_lshlrev_b32 v{vDoff}, 2, v{vLane}
        v_add_u32 v{vDoff}, s{sTk}, v{vDoff}
        s_and_b32 s{sTk}, s{sDo}, 2
        s_and_b32 s{sDo}, s{sDo}, -4
        s_add_u32 s{sTk}, s{sTk}, s{sRes}
        v_add_u32 v{vDstL}, s{sTk}, v{vDstL}
        """)
    a(f"""
    """)
    if NB4:
        a(f"""
        v_lshlrev_b32 v{vP}, 4, v{vLane}
        s_waitcnt lgkmcnt(0)
        s_barrier
        s_waitcnt vmcnt(0)
        s_mov_b64 exec, 1
        ds_add_rtn_u32 v{vT}, v{vZero}, v{vFour} offset:{CNT + 255 * 4}
        s_mov_b64 exec, -1
        s_waitcnt lgkmcnt(0)
        v_readfirstlane_b32 s{sTk}, v{vT}
        s_cmp_lg_u32 s{sTk}, 28
        s_cbranch_scc1 L_ctr
        buffer_store_dwordx4 {vr(vSeg, 4)}, v{vP}, s[{SSEG}:{SSEG + 3}], s{sX + 2} offen sc1
        """)
    else:
        a(f"""
        s_waitcnt vmcnt(0) lgkmcnt(0)
        s_cmp_lg_u32 s{sW}, 7
        s_cbranch_scc1 L_ctr_ok
        """)
    a(f"""
    L_ctr:
    """)
    ctr_sum(None)
    a(f"""
    s_cbranch_scc1 L_ctr_ok
    s_add_u32 s{sSpin}, s{sSpin}, 1
    s_cmp_gt_u32 s{sSpin}, {SPIN_MAX}
    s_cbranch_scc1 L_end
    s_mov_b64 exec, 15
    buffer_load_dword v{vCtr}, v{vCtr + 1}, s[{SDBG}:{SDBG + 3}], 0 offen sc1
    s_mov_b64 exec, -1
    s_waitcnt vmcnt(0)
    s_branch L_ctr
    L_ctr_ok:
    s_mov_b32 s{sSpin}, 0
    """)
    st("drained")

    NLATE = 4 if P["dma"] else 10

    def late_loads():
        a(f"s_mov_b64 exec, s[{sLate}:{sLate + 1}]")
        if P["dma"]:
            for k in range(3):
                a(f"s_add_u32 m0, s{sRes}, 0")
                if k == 2:
                    a("s_mov_b32 exec_hi, 0")
                else:
                    a("s_nop 0")
                a(f"buffer_load_dwordx4 v{vResG}, s[{SM}:{SM + 3}], s{sMo} offen offset:{1024 * k} lds")
            a(f"""
            s_add_u32 m0, s{sRes}, 2560
            s_and_b32 exec_hi, s{sLate + 1}, 0x1ff
            buffer_load_dword v{vDoff}, s[{SDIST}:{SDIST + 3}], s{sDo} offen lds
            """)
        else:
            for g in range(5):
                a(f"buffer_load_ushort v{vDist + g}, v{vDoff}, s[{SDIST}:{SDIST + 3}], s{sDo} offen offset:{32 * g}")
            for g in range(5):
                a(f"buffer_load_dwordx2 {vr(vMr + 2 * g, 2)}, v{vMoff}, s[{SM}:{SM + 3}], s{sMo} offen offset:{512 * g}")
        a(f"s_mov_b64 s[{sLate}:{sLate + 1}], 0")

    if not NB4:
        a(f"""
        s_barrier
        s_mov_b64 exec, s[{sX}:{sX + 1}]
        buffer_store_dwordx4 {vr(vSeg, 4)}, v{vP}, s[{SSEG}:{SSEG + 3}], s{sX + 2} offen sc1
        """)
    st("pub")
    a("s_branch L_idle3")

    dbg = [0]

    def once(lane):
        if P["stamps"] != 1:
            return
        dbg[0] += 1
        a(f"""
        s_bitcmp1_b64 s[100:101], {lane}
        s_cbranch_scc1 L_once{dbg[0]}
        s_bitset1_b64 s[100:101], {lane}
        s_memrealtime s[98:99]
        s_waitcnt lgkmcnt(0)
        v_writelane_b32 v207, s98, {lane}
        L_once{dbg[0]}:
        """)

    def slot(bank, s):
        return vSlot + 6 * (4 * bank + s), sMk + 2 * (4 * bank + s)

    def rec_issue(bank, s):
        w, m = slot(bank, s)
        a(f"""
        s_mov_b64 exec, -1
        v_add_u32 v{w + 5}, v{vL0 + s}, v{vLL20}
        v_cmp_lt_u32 s[{m}:{m + 1}], v{vLL20}, v{vL1 + s}
        s_mov_b64 exec, s[{m}:{m + 1}]
        buffer_load_dwordx4 {vr(w, 4)}, v{w + 5}, s[{SREC}:{SREC + 3}], 0 offen {P["rec_ld"]}
        buffer_load_dword v{w + 4}, v{w + 5}, s[{SREC}:{SREC + 3}], 0 offen offset:16 {P["rec_ld"]}
        """)

    PP = P["pollpos"]

    def round_ops(upto):
        ops = []
        for s in range(upto + 1):
            if s == PP:
                ops.append("P")
            ops += [s, s]
        if upto == 3 and PP == 4:
            ops.append("P")
        return ops

    def issue_slot(bank, s):
        if s == PP:
            poll(f"s{sPend}")
        rec_issue(bank, s)
        if s == 3 and PP == 4:
            poll(f"s{sPend}")

    def process(bank, issue_bank, extra):
        prev = round_ops(3)
        for s in range(4):
            n = len(prev) - 1 - (len(prev) - 1 - prev[::-1].index(s)) + extra
            if issue_bank is not None:
                issue_slot(issue_bank, s)
                n += len(round_ops(s))
            a(f"s_waitcnt vmcnt({n})")
            if s == 0:
                once(46)
            place_atomics(*slot(bank, s), vRk + 4 * (s & 1))
            if s > 0:
                a(f"s_waitcnt lgkmcnt({4 if s == 1 else 8})")
                place_writes(*slot(bank, s - 1), vRk + 4 * ((s - 1) & 1))
        a("s_waitcnt lgkmcnt(4)")
        place_writes(*slot(bank, 3), vRk + 4)

    for X in range(2):
        Y = 1 - X
        a(f"""
        L_top{X}:
        s_mov_b32 exec_lo, s{sPend}
        s_mov_b32 exec_hi, 0
        s_cbranch_execz L_nowait{X}
        s_waitcnt vmcnt({8 - 2 * PP})
        L_nowait{X}:
        v_cmp_gt_i32 vcc, 0, v{vSegW}
        s_and_b32 s{sTk}, s{sPend}, vcc_lo
        s_andn2_b32 s{sPend}, s{sPend}, s{sTk}
        s_mov_b32 exec_lo, s{sTk}
        v_and_b32 v{vT}, 0xfff, v{vSegW}
        v_bfe_u32 v{vT + 1}, v{vSegW}, 12, 12
        v_mad_u32_u24 v{vD0}, v{vT}, 20, v{vCb}
        v_mul_u32_u24 v{vHi}, 20, v{vT + 1}
        s_or_b32 s{sReady}, s{sReady}, s{sTk}
        s_cbranch_scc1 L_{"some" if P["thr"] else "take"}{X}
        s_cmp_eq_u32 s{sPrevN}, 0
        s_cbranch_scc1 L_idle
        s_cmp_eq_u32 s{sPend}, 0
        s_cbranch_scc1 L_final{X}
        L_take{X}:
        """)
        if P["stamps"] == 1:
            a(f"""
            s_add_u32 s97, s97, 1
            s_memrealtime s[98:99]
            s_waitcnt lgkmcnt(0)
            s_mov_b32 s96, s98
            s_cmp_eq_u32 s97, 1
            s_cbranch_scc0 L_dbg{X}
            v_writelane_b32 v207, s98, 43
            s_bcnt1_i32_b32 s99, s{sReady}
            v_writelane_b32 v207, s99, 44
            L_dbg{X}:
            """)
        a(f"""
        s_mov_b32 exec_lo, 0xffff
        v_lshl_add_u32 v{vT + 3}, v{vLane}, 2, v{vDw}
        ds_write_b32 v{vT + 3}, v{vZero} offset:64
        s_mov_b32 exec_lo, s{sReady}
        v_mbcnt_lo_u32_b32 v{vT}, s{sReady}, 0
        v_cmp_gt_u32 vcc, 16, v{vT}
        s_and_b32 s{sCurN}, s{sReady}, vcc_lo
        s_mov_b32 exec_lo, s{sCurN}
        v_and_b32 v{vT + 2}, 3, v{vT}
        v_lshrrev_b32 v{vT}, 2, v{vT}
        v_min_u32 v{vT + 1}, 320, v{vHi}
        v_lshl_add_u32 v{vT}, v{vT + 2}, 2, v{vT}
        v_sub_u32 v{vHi}, v{vHi}, v{vT + 1}
        v_lshl_add_u32 v{vT}, v{vT}, 2, v{vDw}
        ds_write_b32 v{vT}, v{vD0}
        ds_write_b32 v{vT}, v{vT + 1} offset:64
        v_cmp_lt_u32 vcc, 0, v{vHi}
        v_add_u32 v{vD0}, 320, v{vD0}
        s_andn2_b32 s{sReady}, s{sReady}, s{sCurN}
        s_and_b32 s{sTk}, s{sCurN}, vcc_lo
        s_or_b32 s{sReady}, s{sReady}, s{sTk}
        s_mov_b64 exec, -1
        ds_read_b128 {vr(vL0, 4)}, v{vDr}
        ds_read_b128 {vr(vL1, 4)}, v{vDr} offset:64
        s_cmp_eq_u32 s{sPrevN}, 0
        s_mov_b32 s{sPrevN}, s{sCurN}
        s_waitcnt lgkmcnt(0)
        s_cbranch_scc1 L_only{X}
        """)
        process(Y, X, 0)
        a(f"s_branch L_top{Y}")
    if P["thr"]:
        for X in range(2):
            a(f"""
            L_some{X}:
            s_cmp_lg_u32 s{sPrevN}, 0
            s_cbranch_scc1 L_take{X}
            s_cmp_eq_u32 s{sPend}, 0
            s_cbranch_scc1 L_take{X}
            s_bcnt1_i32_b32 s{sTk}, s{sReady}
            s_cmp_ge_u32 s{sTk}, {P["thr"]}
            s_cbranch_scc1 L_take{X}
            s_branch L_idle2
            """)
    for X in range(2):
        a(f"L_only{X}:")
        for s in range(4):
            issue_slot(X, s)
        a(f"s_branch L_top{1 - X}")
    for X in range(2):
        a(f"L_final{X}:")
        once(45)
        if P["lsplit"]:
            a(f"""
            s_mov_b64 s[{sTk}:{sTk + 1}], s[{sLate}:{sLate + 1}]
            s_cmp_lt_u32 s{sW}, {P["lsplit"]}
            s_cselect_b64 s[{sLate}:{sLate + 1}], 0, s[{sLate}:{sLate + 1}]
            """)
        late_loads()
        if P["lsplit"]:
            a(f"""
            s_cmp_lt_u32 s{sW}, {P["lsplit"]}
            s_cselect_b64 s[{sLate}:{sLate + 1}], s[{sTk}:{sTk + 1}], 0
            """)
        process(1 - X, None, NLATE)
        a("s_branch L_taken")
    a(f"""
    L_idle:
    s_cmp_eq_u32 s{sPend}, 0
    s_cbranch_scc1 L_idle_late
    s_cmp_lt_u32 s{sSpin}, {P["latespin"]}
    s_cbranch_scc1 L_idle2
    L_idle_late:
    """)
    late_loads()
    a(f"""
    s_cmp_eq_u32 s{sPend}, 0
    s_cbranch_scc1 L_taken
    L_idle2:
    s_add_u32 s{sSpin}, s{sSpin}, 1
    s_cmp_gt_u32 s{sSpin}, {SPIN_MAX}
    s_cbranch_scc1 L_end
    L_idle3:
    """)
    poll(f"s{sPend}")
    a(f"""
    s_waitcnt vmcnt(0)
    s_branch L_top0
    L_taken:
    """)
    if P["lsplit"]:
        late_loads()
    a(f"""
    s_mov_b64 exec, -1
    s_mov_b32 s{sLast}, 1
    s_mov_b32 s{sFirst}, 1
    s_movk_i32 s{sF0}, 0xf0
    s_movk_i32 s{s70}, 0x70
    s_lshl_b32 s{sRingB}, s{sW}, 12
    s_add_u32 s{sRingB}, s{sRingB}, {RING}
    s_mul_i32 s{sRowOff}, s{sJ}, {BK * 32}
    v_lshlrev_b32 v{vT}, 2, v{vLane}
    s_waitcnt lgkmcnt(0)
    """)
    st("intake")
    if P["stamps"] == 1:
        a(f"v_writelane_b32 v207, s{sSpin}, 40")
        a("v_writelane_b32 v207, s97, 41")
        a("v_writelane_b32 v207, s96, 42")
    a("s_barrier")
    st("bar5")
    for k in range(NCHK):
        a(f"ds_read_b32 v{vT + 1 + k}, v{vT} offset:{CNT + 256 * k}")
    a(f"""
    ds_read_b32 v{vEnd}, v{vCntA} offset:{CNT}
    s_waitcnt lgkmcnt(1)
    v_cmp_gt_u32 vcc, v{vT + 1}, v{vLim}
    """)
    for k in range(1, NCHK):
        a(f"v_cmp_gt_u32 s[{sT + 2 * k}:{sT + 2 * k + 1}], v{vT + 1 + k}, v{vLim + k}")
    for k in range(1, NCHK):
        a(f"s_or_b64 vcc, vcc, s[{sT + 2 * k}:{sT + 2 * k + 1}]")
    if P["force_slow"]:
        a("s_cmp_eq_u32 0, 0")
    a(f"""
    s_cbranch_scc0 L_G
    s_mov_b32 s{sSC}, 0
    s_mov_b32 s{sSU}, 0
    s_mov_b32 s{sLast}, 0
    s_mov_b64 s[{sLate}:{sLate + 1}], -1
    L_slow:
    s_waitcnt vmcnt(0) lgkmcnt(0)
    s_barrier
    """)
    if P["dma"]:
        late_loads()
        a("s_mov_b64 exec, -1")
    cnt_init(vT, sT)
    fill(vT + 4, SB, NFILL, RING)
    a(f"""
    s_waitcnt lgkmcnt(0)
    s_barrier
    s_cmp_lt_u32 s{sSC}, {NCH}
    s_cbranch_scc1 L_slow_unit
    s_mov_b32 s{sLast}, 1
    s_branch L_slow_go
    L_slow_unit:
    s_lshl_b32 s{sT}, s{sSC}, 10
    s_lshl_b32 s{sT + 1}, s{sJ}, 2
    s_add_u32 s{sT}, s{sT}, s{sT + 1}
    buffer_load_dword v{vT}, v{vZero}, s[{SSEG}:{SSEG + 3}], s{sT} offen sc1
    s_waitcnt vmcnt(0)
    v_readfirstlane_b32 s{sT + 2}, v{vT}
    s_and_b32 s{sT + 1}, s{sT + 2}, 0xfff
    s_mul_i32 s{sT + 1}, s{sT + 1}, 20
    s_bfe_u32 s{sT + 2}, s{sT + 2}, 0xc000c
    s_mul_i32 s{sT + 2}, s{sT + 2}, 20
    s_mul_i32 s{sT + 3}, s{sSC}, {CS}
    s_add_u32 s{sT + 3}, s{sT + 3}, s{sT + 1}
    s_add_u32 s{sT + 3}, s{sT + 3}, s{sSU}
    s_sub_u32 s{sT + 4}, s{sT + 2}, s{sSU}
    s_min_u32 s{sT + 4}, s{sT + 4}, 480
    s_cmp_lg_u32 s{sW}, 0
    s_cbranch_scc1 L_slow_adv
    v_mul_u32_u24 v{vT}, 20, v{vLane}
    v_cmp_gt_u32 s[{sT + 6}:{sT + 7}], s{sT + 4}, v{vT}
    s_mov_b64 exec, s[{sT + 6}:{sT + 7}]
    buffer_load_dwordx4 {vr(vSlot, 4)}, v{vT}, s[{SREC}:{SREC + 3}], s{sT + 3} offen sc1
    buffer_load_dword v{vSlot + 4}, v{vT}, s[{SREC}:{SREC + 3}], s{sT + 3} offen offset:16 sc1
    s_waitcnt vmcnt(0)
    """)
    place_atomics(vSlot, sT + 6, vRk)
    a("s_waitcnt lgkmcnt(0)")
    place_writes(vSlot, sT + 6, vRk)
    a(f"""
    s_mov_b64 exec, -1
    L_slow_adv:
    s_add_u32 s{sSU}, s{sSU}, 480
    s_cmp_lt_u32 s{sSU}, s{sT + 2}
    s_cbranch_scc1 L_slow_go
    s_add_u32 s{sSC}, s{sSC}, 1
    s_mov_b32 s{sSU}, 0
    L_slow_go:
    s_waitcnt lgkmcnt(0)
    s_barrier
    ds_read_b32 v{vEnd}, v{vCntA} offset:{CNT}
    L_G:
    v_cmp_lt_u32 vcc, {5 * NP - 1}, v{vLane}
    v_add_u32 v{vT + 1}, 128, v{vBase}
    s_mov_b32 s{sCur}, 0
    s_waitcnt lgkmcnt(0)
    v_cndmask_b32 v{vEnd}, v{vEnd}, v{vT + 1}, vcc
    v_cmp_gt_u32 vcc, v{vEnd}, v{vBase}
    v_sub_u32 v{vEnd}, v{vEnd}, v{vBase}
    v_add_u32 v{vEnd}, 127, v{vEnd}
    v_and_b32 v{vEnd}, 0xffffff80, v{vEnd}
    v_add_u32 v{vEnd}, v{vEnd}, v{vBase}
    s_and_b32 s{sNE}, vcc_lo, {(1 << 5 * NP) - 1}
    """)

    def next_bin():
        a(f"""
        s_ff1_i32_b32 s{sL}, s{sNE}
        s_bitset0_b32 s{sNE}, s{sL}
        v_readlane_b32 s{sIA}, v{vBase}, s{sL}
        v_readlane_b32 s{sIE}, v{vEnd}, s{sL}
        v_readlane_b32 s{sIP}, v{vPh}, s{sL}
        """)

    next_bin()
    NRD = D + 1 if P["sp"] else D
    for k in range(NRD):
        a(f"""
        s_mov_b32 s{sT + k}, s{sIP}
        s_nop 0
        v_add_u32 v{vT + k}, s{sIA}, v{vLH4}
        ds_read_b32 v{vWq + k}, v{vT + k}
        s_add_u32 s{sIA}, s{sIA}, 128
        s_cmp_lg_u32 s{sIA}, s{sIE}
        s_cbranch_scc1 L_pro{k}
        """)
        next_bin()
        a(f"L_pro{k}:")
    for k in range(D):
        a(f"""
        s_add_u32 m0, s{sRingB}, {k * 1024}
        s_waitcnt lgkmcnt({NRD - 1 - k})
        v_mad_u32_u16 v{vT + k}, v{vWq + k}, 32, v{vHalf16} op_sel:[1,0,0,0]
        buffer_load_dwordx4 v{vT + k}, s[{SM}:{SM + 3}], s{sT + k} offen {P["gather"]} lds
        """)
    if P["sp"]:
        a(f"""
        s_mov_b32 s{sIPn}, s{sT + D}
        s_waitcnt lgkmcnt(0)
        """)

    def gates(tag):
        a(f"""
        s_cmp_eq_u32 s{sFirst}, 0
        s_cbranch_scc1 L_gates_done
        s_mov_b32 s{sFirst}, 0
        """)
        a(f"""
        v_and_b32 v{vT + 4}, 15, v{vLane}
        v_lshrrev_b32 v{vT + 5}, 4, v{vLane}
        v_lshlrev_b32 v{vT + 4}, 1, v{vT + 4}
        v_lshl_add_u32 v{vT + 6}, v{vT + 5}, 6, v{vT + 4}
        v_lshl_add_u32 v{vT + 4}, v{vT + 5}, 7, v{vT + 4}
        v_lshlrev_b32 v{vT + 5}, 2, v{vT + 5}
        """)
        for k in range(4):
            a(f"ds_read_u16 v{vWraw + k}, v{vT + 4} offset:{HIST + 32 * k}")
            a(f"ds_read_u16 v{vWraw + 4 + k}, v{vT + 4} offset:{HIST + 512 + 32 * k}")
        for k in range(2):
            a(f"ds_read_u16 v{vWraw + 8 + k}, v{vT + 6} offset:{HIST + 1024 + 32 * k}")
            a(f"ds_read_u16 v{vWraw + 10 + k}, v{vT + 6} offset:{HIST + 1280 + 32 * k}")
        a(f"""
        ds_read_b32 v{vCen}, v{vT + 5} offset:{HIST + 1536}
        s_waitcnt vmcnt({D})
        """)
        if P["dma"]:
            for g in range(5):
                a(f"ds_read_u16 v{vDist + g}, v{vDstL} offset:{2560 + 32 * g}")
            for g in range(5):
                a(f"ds_read_b64 {vr(vMr + 2 * g, 2)}, v{vResL} offset:{512 * g}")
        a(f"""
        s_waitcnt lgkmcnt(0)
        v_lshl_or_b32 v{vWd}, v{vWraw + 1}, 16, v{vWraw}
        v_lshl_or_b32 v{vWd + 1}, v{vWraw + 3}, 16, v{vWraw + 2}
        v_lshl_or_b32 v{vWu}, v{vWraw + 5}, 16, v{vWraw + 4}
        v_lshl_or_b32 v{vWu + 1}, v{vWraw + 7}, 16, v{vWraw + 6}
        v_lshl_or_b32 v{vWs}, v{vWraw + 9}, 16, v{vWraw + 8}
        v_lshl_or_b32 v{vWr}, v{vWraw + 11}, 16, v{vWraw + 10}
        v_mov_b32 v{vWd + 2}, v{vWd}
        v_mov_b32 v{vWd + 3}, v{vWd + 1}
        v_mov_b32 v{vWu + 2}, v{vWu}
        v_mov_b32 v{vWu + 3}, v{vWu + 1}
        v_mov_b32 v{vWs + 1}, 0
        v_mov_b32 v{vWr + 1}, 0
        v_mov_b32 v{vRb + 1}, 0
        v_mov_b32 v{vRb + 3}, 0
        v_and_b32 v{vCen + 1}, 0xffff0000, v{vCen}
        v_lshlrev_b32 v{vCen}, 16, v{vCen}
        """)
        for g in range(5):
            t = vT + 4
            rb = vRb + 2 * (g & 1)
            a(f"""
            v_lshlrev_b32 v{t + 2}, 16, v{vDist + g}
            v_sub_f32 v{t}, v{t + 2}, v{vCen}
            v_sub_f32 v{t + 1}, v{t + 2}, v{vCen + 1}
            v_cvt_pk_bf16_f32 v{t + 2}, v{t}, v{t + 1}
            v_lshlrev_b32 v{t}, 16, v{t + 2}
            v_and_b32 v{t + 1}, 0xffff0000, v{t + 2}
            v_mul_f32 v{t}, v{t}, v{t}
            v_mul_f32 v{t + 1}, v{t + 1}, v{t + 1}
            v_cvt_pk_bf16_f32 v{t + 2}, v{t}, v{t + 1}
            v_lshlrev_b32 v{t}, 16, v{t + 2}
            v_and_b32 v{t + 1}, 0xffff0000, v{t + 2}
            v_mul_f32 v{t}, 0xc1200000, v{t}
            v_mul_f32 v{t + 1}, 0xc1200000, v{t + 1}
            v_cvt_pk_bf16_f32 v{t + 2}, v{t}, v{t + 1}
            v_lshlrev_b32 v{t}, 16, v{t + 2}
            v_and_b32 v{t + 1}, 0xffff0000, v{t + 2}
            v_mul_f32 v{t}, 0x3fb8aa3b, v{t}
            v_mul_f32 v{t + 1}, 0x3fb8aa3b, v{t + 1}
            v_exp_f32 v{t}, v{t}
            v_exp_f32 v{t + 1}, v{t + 1}
            s_nop 0
            v_cvt_pk_bf16_f32 v{rb}, v{t}, v{t + 1}
            s_nop 1
            v_mfma_f32_16x16x16_bf16 {vr(vG + 4 * g, 4)}, {vr(vWs, 2)}, {vr(rb, 2)}, 0
            v_mfma_f32_16x16x16_bf16 {vr(vH + 4 * g, 4)}, {vr(vWr, 2)}, {vr(rb, 2)}, 0
            """)
        a("L_gates_done:")
        st("GH")

    a(f"s_movk_i32 s{sPrev}, {D * 1024}")
    st("Gissued")
    gates(0)
    a("L_main:")

    def split(src, dst, t):
        a(f"""
        v_cvt_pk_bf16_f32 v{dst}, v{src}, v{src + 1}
        v_cvt_pk_bf16_f32 v{dst + 1}, v{src + 2}, v{src + 3}
        v_lshlrev_b32 v{t}, 16, v{dst}
        v_and_b32 v{t + 1}, 0xffff0000, v{dst}
        v_lshlrev_b32 v{t + 2}, 16, v{dst + 1}
        v_and_b32 v{t + 3}, 0xffff0000, v{dst + 1}
        v_sub_f32 v{t}, v{src}, v{t}
        v_sub_f32 v{t + 1}, v{src + 1}, v{t + 1}
        v_sub_f32 v{t + 2}, v{src + 2}, v{t + 2}
        v_sub_f32 v{t + 3}, v{src + 3}, v{t + 3}
        v_cvt_pk_bf16_f32 v{dst + 2}, v{t}, v{t + 1}
        v_cvt_pk_bf16_f32 v{dst + 3}, v{t + 2}, v{t + 3}
        s_nop 1
        """)

    def prio(b):
        pat = P["prio"]
        if not pat:
            return ""
        cur = pat[b % len(pat)]
        if b % 5 and cur == pat[(b - 1) % len(pat)]:
            return ""
        return f"""s_cmp_lt_u32 s{sW}, 4
        s_cbranch_scc1 L_pr{b}
        s_setprio {1 if cur == "y" else 0}
        L_pr{b}:"""

    ring_adv = f"s_mov_b32 s{sPrev}, s{sCur}" if D == R - 1 else f"s_add_u32 s{sPrev}, s{sPrev}, 1024\ns_and_b32 s{sPrev}, s{sPrev}, {R * 1024 - 1}"
    def step(b, acc):
        if not P["sp"]:
            D = P["D"]
            return f"""
            s_add_u32 m0, s{sRingB}, s{sPrev}
            v_add_u32 v{vT}, s{sIA}, v{vLH4}
            v_add_u32 v{vT + 1}, s{sC}, v{vLH4}
            ds_read_b32 v{vT}, v{vT}
            ds_read_b32 v{vT + 1}, v{vT + 1}
            v_add_u32 v{vT + 3}, s{sCur}, v{vTr}
            {ring_adv}
            s_add_u32 s{sCur}, s{sCur}, 1024
            s_and_b32 s{sCur}, s{sCur}, {R * 1024 - 1}
            s_add_u32 s{sC}, s{sC}, 128
            s_add_u32 s{sIA}, s{sIA}, 128
            s_cmp_eq_u32 s{sIA}, s{sIE}
            s_waitcnt lgkmcnt(1)
            v_mad_u32_u16 v{vT}, v{vT}, 32, v{vHalf16} op_sel:[1,0,0,0]
            buffer_load_dwordx4 v{vT}, s[{SM}:{SM + 3}], s{sIP} offen {P["gather"]} lds
            s_cbranch_scc1 L_nb{b}
            L_nb{b}_back:
            s_waitcnt lgkmcnt(0)
            v_and_b32 v{vT + 2}, 0xbff8, v{vT + 1}
            v_lshlrev_b32 v{vT + 4}, 4, v{vT + 1}
            v_lshrrev_b32 v{vT + 5}, 7, v{vT + 1}
            v_cvt_f32_f16 v{vT + 2}, v{vT + 2}
            v_bfi_b32 v{vT + 4}, s{s70}, v{vT + 4}, v{vT + 5}
            v_and_or_b32 v{vT + 4}, v{vT + 4}, s{sF0}, v{vSc}
            ds_write_b16_d16_hi v{vT + 4}, v{vT + 2}
            ds_read_b128 {vr(vSt, 4)}, v{vSrd}
            ds_write_b16 v{vT + 4}, v{vZero}
            s_waitcnt vmcnt({D})
            ds_read_b64_tr_b16 {vr(vMt, 2)}, v{vT + 3}
            ds_read_b64_tr_b16 {vr(vMt + 2, 2)}, v{vT + 3} offset:256
            s_cmp_lg_u32 s{sC}, s{sCE}
            s_waitcnt lgkmcnt(0)
            v_mfma_f32_16x16x32_bf16 {vr(acc, 4)}, {vr(vMt, 4)}, {vr(vSt, 4)}, {vr(acc, 4)}
            s_cbranch_scc1 L_bin{b}
"""
        D = P["D"]
        late = b >= P["lateiss"]
        issue = f"buffer_load_dwordx4 v{vT}, s[{SM}:{SM + 3}], s{sT} offen {P['gather']} lds"
        shift = "\n".join(f"v_mov_b32 v{vWq + k}, v{vWq + k + 1}" for k in range(D))
        return f"""
            s_add_u32 m0, s{sRingB}, s{sPrev}
            v_mad_u32_u16 v{vT}, v{vWq + D}, 32, v{vHalf16} op_sel:[1,0,0,0]
            v_and_b32 v{vT + 2}, 0xbff8, v{vWq}
            v_lshlrev_b32 v{vT + 4}, 4, v{vWq}
            {f"s_mov_b32 s{sT}, s{sIPn}" if late else issue.replace(f"s{sT} offen", f"s{sIPn} offen")}
            v_lshrrev_b32 v{vT + 5}, 7, v{vWq}
            v_cvt_f32_f16 v{vT + 2}, v{vT + 2}
            v_bfi_b32 v{vT + 4}, s{s70}, v{vT + 4}, v{vT + 5}
            v_add_u32 v{vT + 1}, s{sIA}, v{vLH4}
            v_and_or_b32 v{vT + 4}, v{vT + 4}, s{sF0}, v{vSc}
            {shift}
            ds_write_b16_d16_hi v{vT + 4}, v{vT + 2}
            ds_read_b128 {vr(vSt, 4)}, v{vSrd}
            ds_write_b16 v{vT + 4}, v{vZero}
            ds_read_b32 v{vWq + D}, v{vT + 1}
            v_add_u32 v{vT + 3}, s{sCur}, v{vTr}
            s_mov_b32 s{sIPn}, s{sIP}
            s_add_u32 s{sIA}, s{sIA}, 128
            s_cmp_eq_u32 s{sIA}, s{sIE}
            s_cbranch_scc1 L_nb{b}
            L_nb{b}_back:
            s_waitcnt vmcnt({D - 1 if late else D})
            {issue if late else ""}
            ds_read_b64_tr_b16 {vr(vMt, 2)}, v{vT + 3}
            ds_read_b64_tr_b16 {vr(vMt + 2, 2)}, v{vT + 3} offset:256
            {ring_adv}
            s_add_u32 s{sCur}, s{sCur}, 1024
            s_and_b32 s{sCur}, s{sCur}, {R * 1024 - 1}
            s_add_u32 s{sC}, s{sC}, 128
            s_cmp_lg_u32 s{sC}, s{sCE}
            s_waitcnt lgkmcnt(0)
            v_mfma_f32_16x16x32_bf16 {vr(acc, 4)}, {vr(vMt, 4)}, {vr(vSt, 4)}, {vr(acc, 4)}
            s_cbranch_scc1 L_bin{b}
"""

    ROLL = P["roll"]
    NE = P["lateiss"] // 5
    bodies = [0, NP - 1] if ROLL else range(NP)
    if ROLL:
        assert 0 < NE < NP
        a(f"s_mov_b32 s{sB}, 0")
    for p in bodies:
        if ROLL:
            a(f"L_phase{p}:")
            if p:
                a(f"""
                s_cmp_eq_u32 s{sB}, {5 * (NP - 1)}
                s_cselect_b32 s{sEpi}, s{sLast}, 0
                """)
        for g in range(5):
            b = p * 5 + g
            acc = vAcc + 4 * g
            lane = f"s{sT + 1}" if ROLL else b
            a(f"""
            {prio(b)}
            {f"s_add_u32 s{sT + 1}, s{sB}, {g}" if ROLL else ""}
            v_readlane_b32 s{sC}, v{vBase}, {lane}
            v_readlane_b32 s{sCE}, v{vEnd}, {lane}
            s_cmp_eq_u32 s{sC}, s{sCE}
            s_cbranch_scc1 L_bin{b}_done
            L_bin{b}:
            {step(b, acc)}
            L_bin{b}_done:
            """)
            if g == 4 or b == 0:
                st(f"bin{b}")
            if p == NP - 1:
                x, y, t = vT + 4, vT + 8, vT + 12
                a(f"""
                s_cmp_eq_u32 s{sEpi if ROLL else sLast}, 0
                s_cbranch_scc1 L_epi{g}_done
                s_nop 5
                """)
                split(acc, x, t)
                a(f"""
                v_mfma_f32_16x16x32_bf16 {vr(y, 4)}, {vr(vWd, 4)}, {vr(x, 4)}, 0
                s_nop 7
                v_mul_f32 v{y}, v{y}, v{vG + 4 * g}
                v_mul_f32 v{y + 1}, v{y + 1}, v{vG + 4 * g + 1}
                v_mul_f32 v{y + 2}, v{y + 2}, v{vG + 4 * g + 2}
                v_mul_f32 v{y + 3}, v{y + 3}, v{vG + 4 * g + 3}
                """)
                split(y, x, t)
                mr = vMr + 2 * g
                a(f"""
                v_mfma_f32_16x16x32_bf16 {vr(y, 4)}, {vr(vWu, 4)}, {vr(x, 4)}, 0
                v_lshlrev_b32 v{t}, 16, v{mr}
                v_and_b32 v{t + 1}, 0xffff0000, v{mr}
                v_lshlrev_b32 v{t + 2}, 16, v{mr + 1}
                v_and_b32 v{t + 3}, 0xffff0000, v{mr + 1}
                s_nop 3
                v_fmac_f32 v{t}, v{y}, v{vH + 4 * g}
                v_fmac_f32 v{t + 1}, v{y + 1}, v{vH + 4 * g + 1}
                v_fmac_f32 v{t + 2}, v{y + 2}, v{vH + 4 * g + 2}
                v_fmac_f32 v{t + 3}, v{y + 3}, v{vH + 4 * g + 3}
                v_cvt_pk_bf16_f32 v{mr}, v{t}, v{t + 1}
                v_cvt_pk_bf16_f32 v{mr + 1}, v{t + 2}, v{t + 3}
                buffer_store_dwordx2 {vr(mr, 2)}, v{vOut4 if g == 4 else vMoff}, s[{SOUT}:{SOUT + 3}], s{sRowOff} offen offset:{512 * g} {P["out_st"]}
                L_epi{g}_done:
                """)
        if ROLL:
            a(f"""
            s_add_u32 s{sB}, s{sB}, 5
            s_cmp_lt_u32 s{sB}, {5 * (NP if p else NE)}
            s_cbranch_scc1 L_phase{p}
            """)
    a(f"""
    s_cmp_eq_u32 s{sLast}, 0
    s_cbranch_scc1 L_slow
    """)
    if P["stamps"]:
        a("s_waitcnt vmcnt(0)")
    st("end")
    if P["stamps"] == 3:
        a(f"""
        s_cmp_lg_u32 s2, {P["dbgwg"]}
        s_cbranch_scc1 L_end
        s_cmp_lg_u32 s{sW}, {P["dbgw"]}
        s_cbranch_scc1 L_end
        v_readlane_b32 s98, v207, 0
        s_mov_b64 exec, 0xfffe
        v_subrev_u32 v207, s98, v207
        v_lshlrev_b32 v{vT}, 2, v{vLane}
        buffer_store_dword v207, v{vT}, s[{SDBG}:{SDBG + 3}], 0 offen
        """)
        print("names:", ",".join(st.names), file=sys.stderr)
    else:
        st.flush(SSEG, "s2", vT)
    a("""
    L_end:
    s_endpgm
    """)
    for b in [5 * p + g for p in bodies for g in range(5)]:
        a(f"L_nb{b}:")
        next_bin()
        a(f"s_branch L_nb{b}_back")
    a("L_code_end:")
    return a.text(), 256, 102, LDS


def generate(**kw):
    P = dict(DEFAULTS)
    P.update(kw)
    body, nv, ns, lds = gen(P)
    n = NAME + "_kernel"
    out = HEADER
    out += f"; @launch grid=({NCH},1,1) block=(512,1,1) lds={lds}\n"
    out += '.amdgcn_target "amdgcn-amd-amdhsa--gfx950"\n.text\n'
    out += f".globl {n}\n.p2align 8\n.type {n},@function\n{n}:\n{body}"
    out += '.section .rodata,"a"\n.p2align 6\n' + descriptor(n, nv, ns)
    return out


if __name__ == "__main__":
    path = sys.argv[1]
    kw = {}
    for arg in sys.argv[2:]:
        k, v = arg.split("=", 1)
        kw[k] = int(v) if v.lstrip("-").isdigit() else v
    open(path, "w").write(generate(**kw))
```

```python
import sys
from gen import Asm, vr, srd, Stamps, descriptor, NAME, E, T, NCH, CH, BK, WS_SEG

SPIN_MAX = 1 << 20
CS = 53888


DEFAULTS = dict(
    D=2,
    in_ld="nt",
    rec_st="sc1",
    rec_ld="",
    out_st="",
    gather="",
    xl=1,
    latespin=2,
    psh=15,
    order="o40123",
    sched="s2a",
    split=4,
    prio="yo",
    sp=1,
    pollpos=0,
    cmap=0,
    rot=5,
    lateiss=15,
    roll=0,
    nb=0,
    thr=16,
    lsplit=0,
    dma=1,
    ipf=6,
    stamps=0,
    dbgwg=100,
    dbgw=5,
    force_slow=0,
)

HEADER = """; Kernarg layout for this problem (112 bytes, ptrs only, base s[0:1]):
;
"""


def gen(P):
    a = Asm()
    D = P["D"]
    R = 4
    ORD = [int(ch) for ch in str(P["order"]).lstrip("o")]
    PSH = P["psh"]
    CAPS = {16: (160, 160, 96), 15: (96,) * 5}[PSH]
    NP = len(CAPS)
    NB = 40 * NP
    CNT, HIST, BASE, DESC, SB, TRASH, AB = 0, 1024, 2048, 3072, 4096, 12288, 15360
    ZB = AB + 40 * 4 * sum(CAPS)
    RING = ZB + 128
    STG = RING
    LDS = -(-(STG + 53840) // 1280) * 1280
    RES, RESW = RING + 8 * R * 1024, 2736
    NFILL = -(-(RING - SB) // 8192)
    assert LDS <= 163840 and len(ORD) == NP and RES + 8 * RESW <= LDS
    sJ = 3
    SO, SI, SA, SRW, SSEG, SREC, SM, SOUT, SDIST, SDBG = 4, 8, 12, 16, 20, 24, 28, 32, 36, 40
    pM, pI, pO, pDist, pAng, pCen, pFreq, pWr, pWs, pWd, pWu, pOut, pDbg, pWsp = range(44, 72, 2)
    sOff, sOffA = 72, 77
    sC625, sM625, sPre, sMask, sAct, sW, sSpin, sX = 82, 83, 84, 85, 86, 88, 89, 90
    sMk = 44
    sPend, sReady, sPrevN, sCurN, sJ4, sTk, sEarly = 60, 61, 62, 63, 64, 66, 68
    sLate, sDo, sMo, sRes = 74, 72, 73, 76
    sLast, sFirst, sSC, sSU = 83, 84, 85, 86
    sF0, s70, sRingB, sPrev, sCur, sRowOff = 44, 45, 46, 47, 48, 49
    sNE, sL, sIA, sIE, sIP, sC, sCE, sIPn = 50, 51, 52, 53, 54, 55, 56, 57
    sT = 58
    sB, sEpi = 77, 78
    st = Stamps(a, P, 0, 207, 98)
    vOff16, vOff8, vOne, vF = 1, 2, 3, 4
    vO, vI, vA, vJ, vR = 8, 28, 48, 58, 78
    vP = 98
    vSeg = 112
    vPar = 116
    vCtr = 124
    vLane, vLL20, vFour, vZero = 1, 2, 3, 4
    vLH4, vHalf16, vSc, vSrd, vTr, vBase, vCntA, vEnd, vPh = 5, 6, 7, 8, 9, 10, 11, 12, 13
    vMoff, vOut4 = 14, 15
    vT = 16
    vSlot = 32
    vRk = 80
    vL0, vL1 = 88, 92
    vD0, vHi, vSegA, vCb, vSegW, vDw, vDr, vDoff, vLim = range(100, 109)
    vResG, vResL, vDstL = 126, 127, 128
    vWq = 96
    vAcc = 132
    vG, vH = 152, 172
    vMr = 192
    vDist = 202
    vWraw = 208
    vCen = 220
    vWd, vWu = 224, 228
    vWs, vWr, vRb = 232, 234, 236
    vMt, vSt = 240, 244
    vQ = 248

    def bin_addr(dst, k, tmp):
        a(f"""
        v_mul_u32_u24 v{dst}, {CAPS[0] * 4}, v{k}
        v_add_u32 v{dst}, {AB - CAPS[0] * 4}, v{dst}
        """)
        if CAPS[-1] != CAPS[0]:
            a(f"""
            v_mul_u32_u24 v{tmp}, {CAPS[-1] * 4}, v{k}
            v_add_u32 v{tmp}, {AB + (NB - 40) * CAPS[0] * 4 - (NB - 39) * CAPS[-1] * 4}, v{tmp}
            v_min_u32 v{dst}, v{dst}, v{tmp}
            """)

    def cnt_init(t, stmp):
        bin_addr(t, 0, t + 1)
        a(f"""
        v_mov_b32 v{t + 1}, {TRASH}
        v_cmp_eq_u32 vcc, 0, v0
        v_mov_b32 v{t + 2}, 0
        v_lshlrev_b32 v{t + 3}, 2, v0
        v_cndmask_b32 v{t}, v{t}, v{t + 1}, vcc
        v_cmp_lt_u32 vcc, {NB}, v0
        s_nop 1
        v_cndmask_b32 v{t}, v{t}, v{t + 2}, vcc
        v_cmp_gt_u32 vcc, 256, v0
        s_and_saveexec_b64 s[{stmp}:{stmp + 1}], vcc
        ds_write_b32 v{t + 3}, v{t} offset:{CNT}
        s_mov_b64 exec, s[{stmp}:{stmp + 1}]
        """)

    def fill(t, start, rounds, clip=None):
        a(f"""
        v_lshlrev_b32 v{t}, 4, v0
        v_mov_b32 v{vQ}, 0
        v_mov_b32 v{vQ + 1}, 0
        v_mov_b32 v{vQ + 2}, 0
        v_mov_b32 v{vQ + 3}, 0
        v_add_u32 v{t}, {start}, v{t}
        v_add_u32 v{t + 1}, 65536, v{t}
        """)
        if clip:
            a(f"v_cmp_gt_u32 vcc, {(clip - start - (rounds - 1) * 8192) // 16}, v0")
        for i in range(rounds):
            if clip and i == rounds - 1:
                a("s_mov_b64 exec, vcc")
            a(f"ds_write_b128 v{t + (i >> 3)}, {vr(vQ, 4)} offset:{(i & 7) * 8192}")
        if clip:
            a("s_mov_b64 exec, -1")

    def place_atomics(w, m, t):
        a(f"s_mov_b64 exec, s[{m}:{m + 1}]")
        for r in range(4):
            a(f"v_lshlrev_b32_sdwa v{t + r}, 2, v{w + 4} dst_sel:DWORD dst_unused:UNUSED_PAD src0_sel:DWORD src1_sel:BYTE_{r}")
            a(f"ds_add_rtn_u32 v{t + r}, v{t + r}, v{vFour} offset:{CNT}")

    def place_writes(w, m, t):
        a(f"s_mov_b64 exec, s[{m}:{m + 1}]")
        for r in range(4):
            a(f"ds_write_b32 v{t + r}, v{w + r}")

    def ctr_sum(lab_ok):
        a(f"""
        v_readlane_b32 s{sX + 4}, v{vCtr}, 0
        v_readlane_b32 s{sX + 5}, v{vCtr}, 1
        s_add_u32 s{sX + 4}, s{sX + 4}, s{sX + 5}
        v_readlane_b32 s{sX + 5}, v{vCtr}, 2
        s_add_u32 s{sX + 4}, s{sX + 4}, s{sX + 5}
        v_readlane_b32 s{sX + 5}, v{vCtr}, 3
        s_add_u32 s{sX + 4}, s{sX + 4}, s{sX + 5}
        s_cmp_ge_u32 s{sX + 4}, {NCH}
        """)

    ld = P["in_ld"]
    a(f"""
    s_cmp_ge_u32 s2, {NCH}
    s_cbranch_scc1 L_end
    """)
    st("start")
    a(f"""
    s_load_dwordx16 s[44:59], s[0:1], 0
    s_load_dwordx8 s[60:67], s[0:1], 64
    s_load_dwordx4 s[68:71], s[0:1], 96
    """)
    if P["ipf"]:
        a(f"""
        s_getpc_b64 s[96:97]
        s_lshr_b32 s{sX}, s2, 3
        s_mul_i32 s{sX}, s{sX}, {P["ipf"]}
        v_add_u32 v1, s{sX}, v0
        v_min_u32 v1, (L_code_end - {NAME}_kernel - 256) / 128, v1
        v_lshlrev_b32 v1, 7, v1
        v_mov_b32 v3, s97
        v_add_co_u32 v2, vcc, s96, v1
        s_nop 1
        v_addc_co_u32 v3, vcc, 0, v3, vcc
        v_cmp_gt_u32 vcc, {P["ipf"]}, v0
        s_and_saveexec_b64 s[{sX}:{sX + 1}], vcc
        s_cbranch_execz L_noipf
        global_load_dword v130, v[2:3], off
        L_noipf:
        s_mov_b64 exec, s[{sX}:{sX + 1}]
        """)
    a(f"""
    v_lshlrev_b32 v{vOff16}, 4, v0
    v_lshlrev_b32 v{vOff8}, 3, v0
    v_lshlrev_b32 v5, 2, v0
    v_mov_b32 v6, 0
    v_mov_b32 v{vOne}, 1
    v_lshrrev_b32 v7, 6, v0
    s_mul_i32 s{sOff}, s2, {CH * 4}
    s_mul_i32 s{sOffA}, s2, {CH * 2}
    v_readfirstlane_b32 s{sW}, v7
    ds_write_b32 v5, v6 offset:{HIST}
    """)
    for q in range(1, 5):
        a(f"s_add_u32 s{sOff + q}, s{sOff}, {q * 8000}")
        a(f"s_add_u32 s{sOffA + q}, s{sOffA}, {q * 4000}")
    if P["xl"]:
        a(f"""
        s_and_b32 s{sJ}, s2, 7
        s_lshl_b32 s{sJ}, s{sJ}, 5
        s_lshr_b32 s{sX}, s2, 3
        s_add_u32 s{sJ}, s{sJ}, s{sX}
        """)
    else:
        a(f"s_mov_b32 s{sJ}, s2")
    a(f"""
    s_mov_b32 s{sC625}, 6871948
    s_mov_b32 s{sM625}, -{BK}
    s_mov_b32 s{sMask}, 0x4007
    s_mov_b32 s{sSpin}, 0
    v_cmp_gt_u32 vcc, 500, v0
    s_lshl_b32 s{sX + 2}, s2, 10
    s_cmp_eq_u32 s{sW}, 0
    s_cselect_b64 s[{sX}:{sX + 1}], -1, 0
    s_waitcnt lgkmcnt(0)
    """)
    srd(a, SO, f"s{pO}", f"s{pO + 1}", T * 4)
    a("s_barrier")
    a(f"""
    s_mov_b64 s[{sAct}:{sAct + 1}], vcc
    s_mov_b64 exec, vcc
    """)
    issued = []

    def ld_issue(name):
        k, q = name[0], int(name[1:] or 0)
        act = f"s_mov_b64 exec, s[{sAct}:{sAct + 1}]"
        if k == "F":
            a(f"global_load_ushort v{vF}, v6, s[{pFreq}:{pFreq + 1}]")
        elif k == "O":
            a(f"buffer_load_dwordx4 {vr(vO + 4 * q, 4)}, v{vOff16}, s[{SO}:{SO + 3}], s{sOff + q} offen {ld}")
        elif k == "A":
            a(f"buffer_load_dwordx2 {vr(vA + 2 * q, 2)}, v{vOff8}, s[{SA}:{SA + 3}], s{sOffA + q} offen {ld}")
        else:
            a(f"buffer_load_dwordx4 {vr(vI + 4 * q, 4)}, v{vOff16}, s[{SI}:{SI + 3}], s{sOff + q} offen {ld}")
        issued.append(name)

    def wave0(tag, body):
        a(f"""
        s_cmp_lg_u32 s{sW}, 0
        s_cbranch_scc1 L_w0{tag}
        """)
        body()
        a(f"""
        s_mov_b64 exec, s[{sAct}:{sAct + 1}]
        L_w0{tag}:
        """)

    def row_clear():
        a(f"buffer_store_dwordx4 {vr(vQ, 4)}, v{vOff16}, s[{SSEG}:{SSEG + 3}], s{sX + 2} offen sc1")

    def weights():
        for lo, hi, dst, ptr, off in ((-1, 0, 0, pWd, 0), (0, -1, 0, pWu, -512), (0xffff, 0, 4, pWs, 0),
                                      (0xffff0000, 0, 4, pWr, -256), (0, 1, 4, pCen, -512)):
            a(f"""
            s_mov_b32 exec_lo, {lo}
            s_mov_b32 exec_hi, {hi}
            global_load_dwordx4 {vr(vPar + dst, 4)}, v{vOff16}, s[{ptr}:{ptr + 1}] offset:{off}
            """)

    def count_clear(younger):
        a(f"""
        s_cmp_lg_u32 s{sW}, 0
        s_cbranch_scc1 L_w0c
        s_waitcnt vmcnt({younger})
        L_w0c:
        s_and_b64 exec, s[{sX}:{sX + 1}], 1
        s_and_b32 s{sX + 3}, s2, 3
        s_lshl_b32 s{sX + 3}, s{sX + 3}, 6
        buffer_atomic_add v{vOne}, v6, s[{SDBG}:{SDBG + 3}], s{sX + 3} offen
        s_mov_b64 exec, s[{sAct}:{sAct + 1}]
        """)
        issued.append("C")

    def ld_wait(name):
        a(f"s_waitcnt vmcnt({len(issued) - 1 - issued.index(name)})")

    for n in ("O0", "O1", "O2", "O3", "O4", "F"):
        ld_issue(n)
    srd(a, SI, f"s{pI}", f"s{pI + 1}", T * 4)
    srd(a, SA, f"s{pAng}", f"s{pAng + 1}", T * 2)
    srd(a, SDBG, f"s{pDbg}", f"s{pDbg + 1}", 256)
    srd(a, SREC, f"s{pWsp}", f"s{pWsp + 1}", NCH * CS)
    srd(a, SOUT, f"s{pOut}", f"s{pOut + 1}", E * 32)
    srd(a, SM, f"s{pM}", f"s{pM + 1}", E * 32)
    srd(a, SDIST, f"s{pDist}", f"s{pDist + 1}", E * 2)
    a(f"""
    s_add_u32 s{SSEG}, s{pWsp}, {WS_SEG}
    s_addc_u32 s{SSEG + 1}, s{pWsp + 1}, 0
    s_and_b32 s{SSEG + 1}, s{SSEG + 1}, 0xffff
    s_mov_b32 s{SSEG + 2}, {NCH * 1024}
    s_mov_b32 s{SSEG + 3}, 0x20000
    s_mul_i32 s{sX + 3}, s2, {CS}
    s_add_u32 s{SRW}, s{pWsp}, s{sX + 3}
    s_addc_u32 s{SRW + 1}, s{pWsp + 1}, 0
    s_and_b32 s{SRW + 1}, s{SRW + 1}, 0xffff
    s_mov_b32 s{SRW + 2}, 0
    s_mov_b32 s{SRW + 3}, 0x20000
    s_mov_b64 exec, -1
    v_and_b32 v{vCtr + 1}, 3, v0
    v_lshlrev_b32 v{vCtr + 1}, 6, v{vCtr + 1}
    """)
    fill(vP + 4, STG, 7)
    a(f"s_mov_b64 exec, s[{sAct}:{sAct + 1}]")
    S2 = P["sched"] != "s1"
    rest = [f"A{q}" for q in range(5)] + [f"I{q}" for q in range(5)]
    after_o = [()] * 5 if S2 else [("A0", "A1"), ("A2", "A3"), ("A4", "I0"), ("I1",), ("I2",)]
    for q in range(5):
        ld_wait(f"O{q}")
        if q == 0:
            wave0("z", row_clear)
            nz = len(issued)
        for n in after_o[q]:
            ld_issue(n)
        if q in (0, 4):
            st(f"O{q}")
        for r in range(4):
            i = 4 * q + r
            a(f"v_mul_hi_u32_u24 v{vP + r}, s{sC625}, v{vO + i}")
            a(f"v_add_u32 v{vO + i}, 16, v{vO + i}")
        for r in range(4):
            i = 4 * q + r
            a(f"v_lshlrev_b32 v{vJ + i}, 2, v{vP + r}")
            a(f"v_mad_i32_i24 v{vO + i}, v{vP + r}, s{sM625}, v{vO + i}")
            a(f"ds_add_rtn_u32 v{vR + i}, v{vJ + i}, v{vOne} offset:{HIST}")
        for r in range(4):
            i = 4 * q + r
            a(f"v_lshl_or_b32 v{vO + i}, v{vO + i}, 11, v{vO + i}")


    def issue_rest(tag, older):
        a(f"""
        s_cmp_lt_u32 s{sW}, {P["split"]}
        s_cbranch_scc{0 if older else 1} L_rest{tag}
        """)
        keep = list(issued)
        for n in rest:
            ld_issue(n)
        if older:
            issued[:] = keep
        a(f"L_rest{tag}:")

    if S2:
        issue_rest("a", True)
    wave0("w", weights)
    a(f"""
    s_waitcnt lgkmcnt(0)
    s_barrier
    """)
    st("bar2")
    if P["sched"] == "s2a":
        issue_rest("b", False)
    if not S2:
        ld_issue("I3")
        ld_issue("I4")
    c, b, x, ln = vP, vP + 4, vP + 8, vP + 9
    a(f"""
    s_mov_b64 exec, -1
    v_and_b32 v{ln}, 63, v0
    v_lshlrev_b32 v{ln}, 4, v{ln}
    ds_read_b128 {vr(c, 4)}, v{ln} offset:{HIST}
    s_mov_b32 s{sX + 4}, {STG}
    s_waitcnt lgkmcnt(0)
    """)
    for k in range(4):
        a(f"v_add_u32 v{c + k}, 3, v{c + k}")
        a(f"v_lshrrev_b32 v{c + k}, 2, v{c + k}")
    a(f"""
    v_add_u32 v{b + 2}, v{c}, v{c + 1}
    v_add_u32 v{b + 3}, v{b + 2}, v{c + 2}
    v_add_u32 v{b}, v{b + 3}, v{c + 3}
    v_mov_b32 v{x}, v{b}
    s_nop 1
    v_add_u32_dpp v{x}, v{x}, v{x} row_shr:1 row_mask:0xf bank_mask:0xf
    s_nop 1
    v_add_u32_dpp v{x}, v{x}, v{x} row_shr:2 row_mask:0xf bank_mask:0xf
    s_nop 1
    v_add_u32_dpp v{x}, v{x}, v{x} row_shr:4 row_mask:0xf bank_mask:0xf
    s_nop 1
    v_add_u32_dpp v{x}, v{x}, v{x} row_shr:8 row_mask:0xf bank_mask:0xf
    s_nop 1
    v_add_u32_dpp v{x}, v{x}, v{x} row_bcast:15 row_mask:0xa bank_mask:0xf
    s_nop 1
    v_add_u32_dpp v{x}, v{x}, v{x} row_bcast:31 row_mask:0xc bank_mask:0xf
    v_sub_u32 v{b}, v{x}, v{b}
    v_add_u32 v{b + 1}, v{b}, v{c}
    v_add_u32 v{b + 2}, v{b}, v{b + 2}
    v_add_u32 v{b + 3}, v{b}, v{b + 3}
    v_readlane_b32 s{sX + 5}, v{x}, 63
    """)
    for k in range(4):
        a(f"v_lshl_or_b32 v{vSeg + k}, v{c + k}, 12, v{b + k}")
        a(f"v_mad_u32_u24 v{b + k}, v{b + k}, 20, s{sX + 4}")
    a(f"ds_write_b128 v{ln}, {vr(b, 4)} offset:{BASE}")
    for k in range(4):
        a(f"v_or_b32 v{vSeg + k}, 0x80000000, v{vSeg + k}")
    a(f"""
    s_mul_i32 s{SRW + 2}, s{sX + 5}, 20
    s_mov_b64 exec, s[{sAct}:{sAct + 1}]
    """)
    for i in range(20):
        a(f"ds_read_b32 v{vJ + i}, v{vJ + i} offset:{BASE}")
    if P["sched"] == "s2b":
        issue_rest("b", False)
    count_clear(len(issued) - nz + 5)
    for q in range(5):
        ld_wait(f"A{q}")
        if q == 0:
            a(f"""
            v_readfirstlane_b32 s{sX + 5}, v{vF}
            v_lshlrev_b32 v{vF}, 16, v{vF}
            """)
        if q in (0, 4):
            st(f"A{q}")
        t = vP

        def unpack():
            for p in range(2):
                d = vA + 2 * q + p
                a(f"v_lshlrev_b32 v{t + 2 * p}, 16, v{d}")
                a(f"v_and_b32 v{t + 2 * p + 1}, 0xffff0000, v{d}")

        unpack()
        a(f"""
        s_cmp_eq_u32 s{sX + 5}, 0x3f80
        s_cbranch_scc1 L_unit{q}
        """)
        for k in range(4):
            a(f"v_mul_f32 v{t + k}, v{vF}, v{t + k}")
        for p in range(2):
            a(f"v_cvt_pk_bf16_f32 v{vA + 2 * q + p}, v{t + 2 * p}, v{t + 2 * p + 1}")
        unpack()
        a(f"L_unit{q}:")
        for k in range(4):
            a(f"v_mul_f32 v{t + k}, 0.15915494, v{t + k}")
        for k in range(4):
            a(f"v_fract_f32 v{t + k}, v{t + k}")
        for k in range(4):
            a(f"v_cos_f32 v{t + k}, v{t + k}")
        a("s_nop 0")
        for p in range(2):
            a(f"v_cvt_pkrtz_f16_f32 v{vA + 2 * q + p}, v{t + 2 * p}, v{t + 2 * p + 1}")
        for p in range(2):
            a(f"v_add_u32 v{vA + 2 * q + p}, 0x40004, v{vA + 2 * q + p}")
        for p in range(2):
            a(f"v_and_b32 v{vA + 2 * q + p}, 0xbff8bff8, v{vA + 2 * q + p}")
    a("s_waitcnt lgkmcnt(0)")
    for i in range(20):
        a(f"v_mad_u32_u24 v{vR + i}, v{vR + i}, 5, v{vJ + i}")
        a(f"v_and_b32 v{vJ + i}, -4, v{vR + i}")
        a(f"v_and_b32 v{vR + i}, 3, v{vR + i}")
        a(f"v_mad_i32_i24 v{vR + i}, v{vR + i}, -3, v{vJ + i}")
    for q in range(5):
        ld_wait(f"I{q}")
        if q in (0, 4):
            st(f"I{q}")
        for r in range(4):
            i = 4 * q + r
            a(f"v_bfe_u32 v{vP + r}, v{vO + i}, 4, 6")
            if PSH == 16:
                a(f"v_mad_u32_u16 v{vP + r}, v{vI + i}, 40, v{vP + r} op_sel:[1,0,0,0]")
            else:
                a(f"v_lshrrev_b32 v{vP + 4}, {PSH}, v{vI + i}")
                a(f"v_mad_u32_u24 v{vP + r}, v{vP + 4}, 40, v{vP + r}")
            a(f"v_lshlrev_b32 v{vI + i}, 16, v{vI + i}")
            a(f"v_and_or_b32 v{vI + i}, v{vO + i}, s{sMask}, v{vI + i}")
            a(f"ds_write_b8 v{vR + i}, v{vP + r} offset:16")
            a(f"v_or_b32_sdwa v{vI + i}, v{vI + i}, v{vA + 2 * q + (r >> 1)} dst_sel:DWORD dst_unused:UNUSED_PAD src0_sel:DWORD src1_sel:WORD_{r & 1}")
            a(f"ds_write_b32 v{vJ + i}, v{vI + i}")
    vS = 64
    a(f"""
    s_mov_b64 exec, -1
    v_add_u32 v5, {STG}, v{vOff16}
    v_mov_b32 v{vP}, v{vOff16}
    s_waitcnt lgkmcnt(0)
    s_barrier
    """)
    st("bar3")
    for i in range(7):
        a(f"ds_read_b128 {vr(vS + 4 * i, 4)}, v5 offset:{i * 8192}")
    a(f"""
    s_mov_b64 exec, s[{sX}:{sX + 1}]
    ds_write_b128 v{vP}, {vr(vPar, 4)} offset:{HIST}
    ds_write_b128 v{vP}, {vr(vPar + 4, 4)} offset:{HIST + 1024}
    s_mov_b64 exec, -1
    """)
    for i in range(7):
        a(f"s_mov_b32 s{sX + 4}, {i * 8192}")
        a(f"s_waitcnt lgkmcnt({8 - i})")
        a(f"buffer_store_dwordx4 {vr(vS + 4 * i, 4)}, v{vP}, s[{SRW}:{SRW + 3}], s{sX + 4} offen {P['rec_st']}")
    st("stissued")

    def poll(mask):
        a(f"""
        s_mov_b32 exec_lo, {mask}
        s_mov_b32 exec_hi, 0
        buffer_load_dword v{vSegW}, v{vSegA}, s[{SSEG}:{SSEG + 3}], s{sJ4} offen sc1
        """)

    if P["rot"]:
        first = [max(range(NP), key=lambda p: min((p + 1) << PSH, 20000 * (x + 1)) - max(p << PSH, 20000 * x)) for x in range(8)]
        phase_of_slot = f"""s_lshr_b32 s{sTk}, s{sJ}, 5
        s_mul_i32 s{sTk}, s{sTk}, 3
        s_lshr_b32 s{sTk}, {sum(((f + P["rot"] - 1) % NP) << (3 * x) for x, f in enumerate(first))}, s{sTk}
        s_and_b32 s{sTk}, s{sTk}, 7
        v_add_u32 v{vT + 6}, s{sTk}, v{vT + 6}
        v_subrev_u32 v{vT + 7}, {NP}, v{vT + 6}
        v_min_u32 v{vT + 6}, v{vT + 6}, v{vT + 7}"""
    else:
        phase_of_slot = f"""v_mul_u32_u24 v{vT + 6}, 3, v{vT + 6}
        v_mov_b32 v{vT + 7}, {sum(o << (3 * i) for i, o in enumerate(ORD))}
        v_bfe_u32 v{vT + 6}, v{vT + 7}, v{vT + 6}, 3"""
    cmap = {
        0: f"v_lshl_add_u32 v{vT + 2}, v{vT + 1}, 3, v{vT}",
        1: f"v_lshl_add_u32 v{vT + 2}, v{vT}, 5, v{vT + 1}",
        2: f"""v_add_u32 v{vT + 2}, v{vT + 1}, v{vT}
        v_and_b32 v{vT + 2}, 7, v{vT + 2}
        v_lshl_add_u32 v{vT + 2}, v{vT + 1}, 3, v{vT + 2}""",
    }[P["cmap"]]
    NB4 = P["nb"]
    if not NB4:
        a(f"""
        s_cmp_lg_u32 s{sW}, 7
        s_cbranch_scc1 L_nox
        """)
    a(f"""
    s_mov_b64 exec, 15
    buffer_load_dword v{vCtr}, v{vCtr + 1}, s[{SDBG}:{SDBG + 3}], 0 offen sc1
    s_mov_b64 exec, -1
    L_nox:
    v_lshrrev_b32 v{vT}, 6, v0
    v_and_b32 v{vLane}, 63, v0
    v_and_b32 v{vT + 1}, 31, v0
    {cmap}
    v_lshlrev_b32 v{vSegA}, 10, v{vT + 2}
    s_lshl_b32 s{sJ4}, s{sJ}, 2
    v_mul_u32_u24 v{vCb}, {CS}, v{vT + 2}
    v_and_b32 v{vT + 6}, 15, v{vLane}
    v_lshrrev_b32 v{vT + 7}, 4, v{vLane}
    v_mul_u32_u24 v{vLL20}, 20, v{vT + 6}
    v_lshlrev_b32 v{vDw}, 7, v{vT}
    v_add_u32 v{vDw}, {DESC}, v{vDw}
    v_lshl_add_u32 v{vDr}, v{vT + 7}, 4, v{vDw}
    v_mul_u32_u24 v{vT + 8}, 80, v{vT}
    v_add_u32 v{vT + 8}, v{vT + 8}, v{vT + 6}
    v_lshlrev_b32 v{vMoff}, 5, v{vT + 8}
    v_lshl_add_u32 v{vMoff}, v{vT + 7}, 3, v{vMoff}
    v_cmp_gt_u32 vcc, {BK - 64}, v{vT + 8}
    v_mov_b32 v{vT + 9}, 0x7fffff00
    v_lshlrev_b32 v{vDoff}, 1, v{vT + 8}
    v_cndmask_b32 v{vOut4}, v{vT + 9}, v{vMoff}, vcc
    v_mov_b32 v{vZero}, 0
    v_mov_b32 v{vFour}, 4
    v_lshrrev_b32 v{vT + 5}, 1, v{vLane}
    v_lshlrev_b32 v{vLH4}, 2, v{vT + 5}
    v_and_b32 v{vHalf16}, 1, v{vLane}
    v_lshlrev_b32 v{vHalf16}, 4, v{vHalf16}
    v_bfe_u32 v{vT + 6}, v{vT + 5}, 2, 1
    v_bfe_u32 v{vT + 7}, v{vT + 5}, 4, 1
    v_lshl_add_u32 v{vT + 6}, v{vT + 7}, 1, v{vT + 6}
    v_and_b32 v{vT + 7}, 3, v{vT + 5}
    v_bfe_u32 v{vT + 8}, v{vT + 5}, 3, 1
    v_lshl_add_u32 v{vT + 7}, v{vT + 8}, 2, v{vT + 7}
    v_lshlrev_b32 v{vT + 7}, 1, v{vT + 7}
    v_lshl_add_u32 v{vSc}, v{vT + 6}, 8, v{vT + 7}
    v_lshlrev_b32 v{vT + 8}, 10, v{vT}
    v_add_u32 v{vT + 8}, {SB}, v{vT + 8}
    v_add_u32 v{vSc}, v{vSc}, v{vT + 8}
    v_lshl_add_u32 v{vSrd}, v{vLane}, 4, v{vT + 8}
    v_bfe_u32 v{vT + 6}, v{vLane}, 4, 1
    v_bfe_u32 v{vT + 7}, v{vLane}, 5, 1
    v_lshlrev_b32 v{vT + 7}, 4, v{vT + 7}
    v_lshl_add_u32 v{vT + 6}, v{vT + 6}, 2, v{vT + 7}
    v_bfe_u32 v{vT + 7}, v{vLane}, 2, 2
    v_add_u32 v{vT + 6}, v{vT + 6}, v{vT + 7}
    v_and_b32 v{vT + 7}, 3, v{vLane}
    v_lshlrev_b32 v{vT + 7}, 3, v{vT + 7}
    v_lshl_add_u32 v{vTr}, v{vT + 6}, 5, v{vT + 7}
    v_lshlrev_b32 v{vT + 8}, 12, v{vT}
    v_add_u32 v{vT + 8}, {RING}, v{vT + 8}
    v_add_u32 v{vTr}, v{vTr}, v{vT + 8}
    v_mul_u32_u24 v{vT + 6}, 52, v{vLane}
    v_lshrrev_b32 v{vT + 6}, 8, v{vT + 6}
    v_mul_u32_u24 v{vT + 8}, 5, v{vT + 6}
    v_sub_u32 v{vT + 8}, v{vLane}, v{vT + 8}
    {phase_of_slot}
    v_lshrrev_b32 v{vPh}, {16 - PSH}, v{vT + 6}
    v_lshlrev_b32 v{vPh}, 21, v{vPh}
    v_mul_u32_u24 v{vT + 6}, 40, v{vT + 6}
    v_mul_u32_u24 v{vT + 7}, 5, v{vT}
    v_add3_u32 v{vT + 6}, v{vT + 6}, v{vT + 7}, v{vT + 8}
    v_add_u32 v{vT + 6}, 1, v{vT + 6}
    v_lshlrev_b32 v{vCntA}, 2, v{vT + 6}
    """)
    bin_addr(vBase, vT + 6, vT + 7)
    a(f"""
    v_cmp_lt_u32 vcc, {5 * NP - 1}, v{vLane}
    v_mov_b32 v{vT + 8}, {ZB}
    s_nop 0
    v_cndmask_b32 v{vBase}, v{vBase}, v{vT + 8}, vcc
    v_cndmask_b32 v{vPh}, v{vPh}, v{vZero}, vcc
    v_cndmask_b32 v{vCntA}, v{vCntA}, v{vZero}, vcc
    """)
    NCHK = -(-(NB + 1) // 64)
    for k in range(NCHK):
        a(f"v_add_u32 v{vT + 6}, {64 * k + 1}, v{vLane}")
        bin_addr(vLim + k, vT + 6, vT + 7)
    cnt_init(vT, sTk)
    fill(vT + 4, SB, NFILL, RING)
    for k in range(20):
        a(f"v_mov_b32 v{vAcc + k}, 0")
    if P["stamps"]:
        a("s_mov_b32 s97, 0")
        a("s_mov_b64 s[100:101], 0")
    a(f"""
    s_mov_b32 s{sPend}, -1
    s_mov_b32 s{sReady}, 0
    s_mov_b32 s{sPrevN}, 0
    s_mov_b64 s[{sLate}:{sLate + 1}], -1
    s_mul_i32 s{sDo}, s{sJ}, {BK * 2}
    s_mul_i32 s{sMo}, s{sJ}, {BK * 32}
    """)
    if P["dma"]:
        a(f"""
        s_mul_i32 s{sRes}, s{sW}, {RESW}
        s_add_u32 s{sRes}, s{sRes}, {RES}
        s_mul_i32 s{sTk}, s{sW}, 2560
        v_lshlrev_b32 v{vResG}, 4, v{vLane}
        v_add_u32 v{vResG}, s{sTk}, v{vResG}
        v_subrev_u32 v{vResL}, s{sTk}, v{vMoff}
        v_add_u32 v{vResL}, s{sRes}, v{vResL}
        s_mul_i32 s{sTk}, s{sW}, 160
        v_subrev_u32 v{vDstL}, s{sTk}, v{vDoff}
        v_lshlrev_b32 v{vDoff}, 2, v{vLane}
        v_add_u32 v{vDoff}, s{sTk}, v{vDoff}
        s_and_b32 s{sTk}, s{sDo}, 2
        s_and_b32 s{sDo}, s{sDo}, -4
        s_add_u32 s{sTk}, s{sTk}, s{sRes}
        v_add_u32 v{vDstL}, s{sTk}, v{vDstL}
        """)
    a(f"""
    """)
    if NB4:
        a(f"""
        v_lshlrev_b32 v{vP}, 4, v{vLane}
        s_waitcnt lgkmcnt(0)
        s_barrier
        s_waitcnt vmcnt(0)
        s_mov_b64 exec, 1
        ds_add_rtn_u32 v{vT}, v{vZero}, v{vFour} offset:{CNT + 255 * 4}
        s_mov_b64 exec, -1
        s_waitcnt lgkmcnt(0)
        v_readfirstlane_b32 s{sTk}, v{vT}
        s_cmp_lg_u32 s{sTk}, 28
        s_cbranch_scc1 L_ctr
        buffer_store_dwordx4 {vr(vSeg, 4)}, v{vP}, s[{SSEG}:{SSEG + 3}], s{sX + 2} offen sc1
        """)
    else:
        a(f"""
        s_waitcnt vmcnt(0) lgkmcnt(0)
        s_cmp_lg_u32 s{sW}, 7
        s_cbranch_scc1 L_ctr_ok
        """)
    a(f"""
    L_ctr:
    """)
    ctr_sum(None)
    a(f"""
    s_cbranch_scc1 L_ctr_ok
    s_add_u32 s{sSpin}, s{sSpin}, 1
    s_cmp_gt_u32 s{sSpin}, {SPIN_MAX}
    s_cbranch_scc1 L_end
    s_mov_b64 exec, 15
    buffer_load_dword v{vCtr}, v{vCtr + 1}, s[{SDBG}:{SDBG + 3}], 0 offen sc1
    s_mov_b64 exec, -1
    s_waitcnt vmcnt(0)
    s_branch L_ctr
    L_ctr_ok:
    s_mov_b32 s{sSpin}, 0
    """)
    st("drained")

    NLATE = 4 if P["dma"] else 10

    def late_loads():
        a(f"s_mov_b64 exec, s[{sLate}:{sLate + 1}]")
        if P["dma"]:
            for k in range(3):
                a(f"s_add_u32 m0, s{sRes}, 0")
                if k == 2:
                    a("s_mov_b32 exec_hi, 0")
                else:
                    a("s_nop 0")
                a(f"buffer_load_dwordx4 v{vResG}, s[{SM}:{SM + 3}], s{sMo} offen offset:{1024 * k} lds")
            a(f"""
            s_add_u32 m0, s{sRes}, 2560
            s_and_b32 exec_hi, s{sLate + 1}, 0x1ff
            buffer_load_dword v{vDoff}, s[{SDIST}:{SDIST + 3}], s{sDo} offen lds
            """)
        else:
            for g in range(5):
                a(f"buffer_load_ushort v{vDist + g}, v{vDoff}, s[{SDIST}:{SDIST + 3}], s{sDo} offen offset:{32 * g}")
            for g in range(5):
                a(f"buffer_load_dwordx2 {vr(vMr + 2 * g, 2)}, v{vMoff}, s[{SM}:{SM + 3}], s{sMo} offen offset:{512 * g}")
        a(f"s_mov_b64 s[{sLate}:{sLate + 1}], 0")

    if not NB4:
        a(f"""
        s_barrier
        s_mov_b64 exec, s[{sX}:{sX + 1}]
        buffer_store_dwordx4 {vr(vSeg, 4)}, v{vP}, s[{SSEG}:{SSEG + 3}], s{sX + 2} offen sc1
        """)
    st("pub")
    a("s_branch L_idle3")

    dbg = [0]

    def once(lane):
        if P["stamps"] != 1:
            return
        dbg[0] += 1
        a(f"""
        s_bitcmp1_b64 s[100:101], {lane}
        s_cbranch_scc1 L_once{dbg[0]}
        s_bitset1_b64 s[100:101], {lane}
        s_memrealtime s[98:99]
        s_waitcnt lgkmcnt(0)
        v_writelane_b32 v207, s98, {lane}
        L_once{dbg[0]}:
        """)

    def slot(bank, s):
        return vSlot + 6 * (4 * bank + s), sMk + 2 * (4 * bank + s)

    def rec_issue(bank, s):
        w, m = slot(bank, s)
        a(f"""
        s_mov_b64 exec, -1
        v_add_u32 v{w + 5}, v{vL0 + s}, v{vLL20}
        v_cmp_lt_u32 s[{m}:{m + 1}], v{vLL20}, v{vL1 + s}
        s_mov_b64 exec, s[{m}:{m + 1}]
        buffer_load_dwordx4 {vr(w, 4)}, v{w + 5}, s[{SREC}:{SREC + 3}], 0 offen {P["rec_ld"]}
        buffer_load_dword v{w + 4}, v{w + 5}, s[{SREC}:{SREC + 3}], 0 offen offset:16 {P["rec_ld"]}
        """)

    PP = P["pollpos"]

    def round_ops(upto):
        ops = []
        for s in range(upto + 1):
            if s == PP:
                ops.append("P")
            ops += [s, s]
        if upto == 3 and PP == 4:
            ops.append("P")
        return ops

    def issue_slot(bank, s):
        if s == PP:
            poll(f"s{sPend}")
        rec_issue(bank, s)
        if s == 3 and PP == 4:
            poll(f"s{sPend}")

    def process(bank, issue_bank, extra):
        prev = round_ops(3)
        for s in range(4):
            n = len(prev) - 1 - (len(prev) - 1 - prev[::-1].index(s)) + extra
            if issue_bank is not None:
                issue_slot(issue_bank, s)
                n += len(round_ops(s))
            a(f"s_waitcnt vmcnt({n})")
            if s == 0:
                once(46)
            place_atomics(*slot(bank, s), vRk + 4 * (s & 1))
            if s > 0:
                a(f"s_waitcnt lgkmcnt({4 if s == 1 else 8})")
                place_writes(*slot(bank, s - 1), vRk + 4 * ((s - 1) & 1))
        a("s_waitcnt lgkmcnt(4)")
        place_writes(*slot(bank, 3), vRk + 4)

    for X in range(2):
        Y = 1 - X
        a(f"""
        L_top{X}:
        s_mov_b32 exec_lo, s{sPend}
        s_mov_b32 exec_hi, 0
        s_cbranch_execz L_nowait{X}
        s_waitcnt vmcnt({8 - 2 * PP})
        L_nowait{X}:
        v_cmp_gt_i32 vcc, 0, v{vSegW}
        s_and_b32 s{sTk}, s{sPend}, vcc_lo
        s_andn2_b32 s{sPend}, s{sPend}, s{sTk}
        s_mov_b32 exec_lo, s{sTk}
        v_and_b32 v{vT}, 0xfff, v{vSegW}
        v_bfe_u32 v{vT + 1}, v{vSegW}, 12, 12
        v_mad_u32_u24 v{vD0}, v{vT}, 20, v{vCb}
        v_mul_u32_u24 v{vHi}, 20, v{vT + 1}
        s_or_b32 s{sReady}, s{sReady}, s{sTk}
        s_cbranch_scc1 L_{"some" if P["thr"] else "take"}{X}
        s_cmp_eq_u32 s{sPrevN}, 0
        s_cbranch_scc1 L_idle
        s_cmp_eq_u32 s{sPend}, 0
        s_cbranch_scc1 L_final{X}
        L_take{X}:
        """)
        if P["stamps"] == 1:
            a(f"""
            s_add_u32 s97, s97, 1
            s_memrealtime s[98:99]
            s_waitcnt lgkmcnt(0)
            s_mov_b32 s96, s98
            s_cmp_eq_u32 s97, 1
            s_cbranch_scc0 L_dbg{X}
            v_writelane_b32 v207, s98, 43
            s_bcnt1_i32_b32 s99, s{sReady}
            v_writelane_b32 v207, s99, 44
            L_dbg{X}:
            """)
        a(f"""
        s_mov_b32 exec_lo, 0xffff
        v_lshl_add_u32 v{vT + 3}, v{vLane}, 2, v{vDw}
        ds_write_b32 v{vT + 3}, v{vZero} offset:64
        s_mov_b32 exec_lo, s{sReady}
        v_mbcnt_lo_u32_b32 v{vT}, s{sReady}, 0
        v_cmp_gt_u32 vcc, 16, v{vT}
        s_and_b32 s{sCurN}, s{sReady}, vcc_lo
        s_mov_b32 exec_lo, s{sCurN}
        v_and_b32 v{vT + 2}, 3, v{vT}
        v_lshrrev_b32 v{vT}, 2, v{vT}
        v_min_u32 v{vT + 1}, 320, v{vHi}
        v_lshl_add_u32 v{vT}, v{vT + 2}, 2, v{vT}
        v_sub_u32 v{vHi}, v{vHi}, v{vT + 1}
        v_lshl_add_u32 v{vT}, v{vT}, 2, v{vDw}
        ds_write_b32 v{vT}, v{vD0}
        ds_write_b32 v{vT}, v{vT + 1} offset:64
        v_cmp_lt_u32 vcc, 0, v{vHi}
        v_add_u32 v{vD0}, 320, v{vD0}
        s_andn2_b32 s{sReady}, s{sReady}, s{sCurN}
        s_and_b32 s{sTk}, s{sCurN}, vcc_lo
        s_or_b32 s{sReady}, s{sReady}, s{sTk}
        s_mov_b64 exec, -1
        ds_read_b128 {vr(vL0, 4)}, v{vDr}
        ds_read_b128 {vr(vL1, 4)}, v{vDr} offset:64
        s_cmp_eq_u32 s{sPrevN}, 0
        s_mov_b32 s{sPrevN}, s{sCurN}
        s_waitcnt lgkmcnt(0)
        s_cbranch_scc1 L_only{X}
        """)
        process(Y, X, 0)
        a(f"s_branch L_top{Y}")
    if P["thr"]:
        for X in range(2):
            a(f"""
            L_some{X}:
            s_cmp_lg_u32 s{sPrevN}, 0
            s_cbranch_scc1 L_take{X}
            s_cmp_eq_u32 s{sPend}, 0
            s_cbranch_scc1 L_take{X}
            s_bcnt1_i32_b32 s{sTk}, s{sReady}
            s_cmp_ge_u32 s{sTk}, {P["thr"]}
            s_cbranch_scc1 L_take{X}
            s_branch L_idle2
            """)
    for X in range(2):
        a(f"L_only{X}:")
        for s in range(4):
            issue_slot(X, s)
        a(f"s_branch L_top{1 - X}")
    for X in range(2):
        a(f"L_final{X}:")
        once(45)
        if P["lsplit"]:
            a(f"""
            s_mov_b64 s[{sTk}:{sTk + 1}], s[{sLate}:{sLate + 1}]
            s_cmp_lt_u32 s{sW}, {P["lsplit"]}
            s_cselect_b64 s[{sLate}:{sLate + 1}], 0, s[{sLate}:{sLate + 1}]
            """)
        late_loads()
        if P["lsplit"]:
            a(f"""
            s_cmp_lt_u32 s{sW}, {P["lsplit"]}
            s_cselect_b64 s[{sLate}:{sLate + 1}], s[{sTk}:{sTk + 1}], 0
            """)
        process(1 - X, None, NLATE)
        a("s_branch L_taken")
    a(f"""
    L_idle:
    s_cmp_eq_u32 s{sPend}, 0
    s_cbranch_scc1 L_idle_late
    s_cmp_lt_u32 s{sSpin}, {P["latespin"]}
    s_cbranch_scc1 L_idle2
    L_idle_late:
    """)
    late_loads()
    a(f"""
    s_cmp_eq_u32 s{sPend}, 0
    s_cbranch_scc1 L_taken
    L_idle2:
    s_add_u32 s{sSpin}, s{sSpin}, 1
    s_cmp_gt_u32 s{sSpin}, {SPIN_MAX}
    s_cbranch_scc1 L_end
    L_idle3:
    """)
    poll(f"s{sPend}")
    a(f"""
    s_waitcnt vmcnt(0)
    s_branch L_top0
    L_taken:
    """)
    if P["lsplit"]:
        late_loads()
    a(f"""
    s_mov_b64 exec, -1
    s_mov_b32 s{sLast}, 1
    s_mov_b32 s{sFirst}, 1
    s_movk_i32 s{sF0}, 0xf0
    s_movk_i32 s{s70}, 0x70
    s_lshl_b32 s{sRingB}, s{sW}, 12
    s_add_u32 s{sRingB}, s{sRingB}, {RING}
    s_mul_i32 s{sRowOff}, s{sJ}, {BK * 32}
    v_lshlrev_b32 v{vT}, 2, v{vLane}
    s_waitcnt lgkmcnt(0)
    """)
    st("intake")
    if P["stamps"] == 1:
        a(f"v_writelane_b32 v207, s{sSpin}, 40")
        a("v_writelane_b32 v207, s97, 41")
        a("v_writelane_b32 v207, s96, 42")
    a("s_barrier")
    st("bar5")
    for k in range(NCHK):
        a(f"ds_read_b32 v{vT + 1 + k}, v{vT} offset:{CNT + 256 * k}")
    a(f"""
    ds_read_b32 v{vEnd}, v{vCntA} offset:{CNT}
    s_waitcnt lgkmcnt(1)
    v_cmp_gt_u32 vcc, v{vT + 1}, v{vLim}
    """)
    for k in range(1, NCHK):
        a(f"v_cmp_gt_u32 s[{sT + 2 * k}:{sT + 2 * k + 1}], v{vT + 1 + k}, v{vLim + k}")
    for k in range(1, NCHK):
        a(f"s_or_b64 vcc, vcc, s[{sT + 2 * k}:{sT + 2 * k + 1}]")
    if P["force_slow"]:
        a("s_cmp_eq_u32 0, 0")
    a(f"""
    s_cbranch_scc0 L_G
    s_mov_b32 s{sSC}, 0
    s_mov_b32 s{sSU}, 0
    s_mov_b32 s{sLast}, 0
    s_mov_b64 s[{sLate}:{sLate + 1}], -1
    L_slow:
    s_waitcnt vmcnt(0) lgkmcnt(0)
    s_barrier
    """)
    if P["dma"]:
        late_loads()
        a("s_mov_b64 exec, -1")
    cnt_init(vT, sT)
    fill(vT + 4, SB, NFILL, RING)
    a(f"""
    s_waitcnt lgkmcnt(0)
    s_barrier
    s_cmp_lt_u32 s{sSC}, {NCH}
    s_cbranch_scc1 L_slow_unit
    s_mov_b32 s{sLast}, 1
    s_branch L_slow_go
    L_slow_unit:
    s_lshl_b32 s{sT}, s{sSC}, 10
    s_lshl_b32 s{sT + 1}, s{sJ}, 2
    s_add_u32 s{sT}, s{sT}, s{sT + 1}
    buffer_load_dword v{vT}, v{vZero}, s[{SSEG}:{SSEG + 3}], s{sT} offen sc1
    s_waitcnt vmcnt(0)
    v_readfirstlane_b32 s{sT + 2}, v{vT}
    s_and_b32 s{sT + 1}, s{sT + 2}, 0xfff
    s_mul_i32 s{sT + 1}, s{sT + 1}, 20
    s_bfe_u32 s{sT + 2}, s{sT + 2}, 0xc000c
    s_mul_i32 s{sT + 2}, s{sT + 2}, 20
    s_mul_i32 s{sT + 3}, s{sSC}, {CS}
    s_add_u32 s{sT + 3}, s{sT + 3}, s{sT + 1}
    s_add_u32 s{sT + 3}, s{sT + 3}, s{sSU}
    s_sub_u32 s{sT + 4}, s{sT + 2}, s{sSU}
    s_min_u32 s{sT + 4}, s{sT + 4}, 480
    s_cmp_lg_u32 s{sW}, 0
    s_cbranch_scc1 L_slow_adv
    v_mul_u32_u24 v{vT}, 20, v{vLane}
    v_cmp_gt_u32 s[{sT + 6}:{sT + 7}], s{sT + 4}, v{vT}
    s_mov_b64 exec, s[{sT + 6}:{sT + 7}]
    buffer_load_dwordx4 {vr(vSlot, 4)}, v{vT}, s[{SREC}:{SREC + 3}], s{sT + 3} offen sc1
    buffer_load_dword v{vSlot + 4}, v{vT}, s[{SREC}:{SREC + 3}], s{sT + 3} offen offset:16 sc1
    s_waitcnt vmcnt(0)
    """)
    place_atomics(vSlot, sT + 6, vRk)
    a("s_waitcnt lgkmcnt(0)")
    place_writes(vSlot, sT + 6, vRk)
    a(f"""
    s_mov_b64 exec, -1
    L_slow_adv:
    s_add_u32 s{sSU}, s{sSU}, 480
    s_cmp_lt_u32 s{sSU}, s{sT + 2}
    s_cbranch_scc1 L_slow_go
    s_add_u32 s{sSC}, s{sSC}, 1
    s_mov_b32 s{sSU}, 0
    L_slow_go:
    s_waitcnt lgkmcnt(0)
    s_barrier
    ds_read_b32 v{vEnd}, v{vCntA} offset:{CNT}
    L_G:
    v_cmp_lt_u32 vcc, {5 * NP - 1}, v{vLane}
    v_add_u32 v{vT + 1}, 128, v{vBase}
    s_mov_b32 s{sCur}, 0
    s_waitcnt lgkmcnt(0)
    v_cndmask_b32 v{vEnd}, v{vEnd}, v{vT + 1}, vcc
    v_cmp_gt_u32 vcc, v{vEnd}, v{vBase}
    v_sub_u32 v{vEnd}, v{vEnd}, v{vBase}
    v_add_u32 v{vEnd}, 127, v{vEnd}
    v_and_b32 v{vEnd}, 0xffffff80, v{vEnd}
    v_add_u32 v{vEnd}, v{vEnd}, v{vBase}
    s_and_b32 s{sNE}, vcc_lo, {(1 << 5 * NP) - 1}
    """)

    def next_bin():
        a(f"""
        s_ff1_i32_b32 s{sL}, s{sNE}
        s_bitset0_b32 s{sNE}, s{sL}
        v_readlane_b32 s{sIA}, v{vBase}, s{sL}
        v_readlane_b32 s{sIE}, v{vEnd}, s{sL}
        v_readlane_b32 s{sIP}, v{vPh}, s{sL}
        """)

    next_bin()
    NRD = D + 1 if P["sp"] else D
    for k in range(NRD):
        a(f"""
        s_mov_b32 s{sT + k}, s{sIP}
        s_nop 0
        v_add_u32 v{vT + k}, s{sIA}, v{vLH4}
        ds_read_b32 v{vWq + k}, v{vT + k}
        s_add_u32 s{sIA}, s{sIA}, 128
        s_cmp_lg_u32 s{sIA}, s{sIE}
        s_cbranch_scc1 L_pro{k}
        """)
        next_bin()
        a(f"L_pro{k}:")
    for k in range(D):
        a(f"""
        s_add_u32 m0, s{sRingB}, {k * 1024}
        s_waitcnt lgkmcnt({NRD - 1 - k})
        v_mad_u32_u16 v{vT + k}, v{vWq + k}, 32, v{vHalf16} op_sel:[1,0,0,0]
        buffer_load_dwordx4 v{vT + k}, s[{SM}:{SM + 3}], s{sT + k} offen {P["gather"]} lds
        """)
    if P["sp"]:
        a(f"""
        s_mov_b32 s{sIPn}, s{sT + D}
        s_waitcnt lgkmcnt(0)
        """)

    def gates(tag):
        a(f"""
        s_cmp_eq_u32 s{sFirst}, 0
        s_cbranch_scc1 L_gates_done
        s_mov_b32 s{sFirst}, 0
        """)
        a(f"""
        v_and_b32 v{vT + 4}, 15, v{vLane}
        v_lshrrev_b32 v{vT + 5}, 4, v{vLane}
        v_lshlrev_b32 v{vT + 4}, 1, v{vT + 4}
        v_lshl_add_u32 v{vT + 6}, v{vT + 5}, 6, v{vT + 4}
        v_lshl_add_u32 v{vT + 4}, v{vT + 5}, 7, v{vT + 4}
        v_lshlrev_b32 v{vT + 5}, 2, v{vT + 5}
        """)
        for k in range(4):
            a(f"ds_read_u16 v{vWraw + k}, v{vT + 4} offset:{HIST + 32 * k}")
            a(f"ds_read_u16 v{vWraw + 4 + k}, v{vT + 4} offset:{HIST + 512 + 32 * k}")
        for k in range(2):
            a(f"ds_read_u16 v{vWraw + 8 + k}, v{vT + 6} offset:{HIST + 1024 + 32 * k}")
            a(f"ds_read_u16 v{vWraw + 10 + k}, v{vT + 6} offset:{HIST + 1280 + 32 * k}")
        a(f"""
        ds_read_b32 v{vCen}, v{vT + 5} offset:{HIST + 1536}
        s_waitcnt vmcnt({D})
        """)
        if P["dma"]:
            for g in range(5):
                a(f"ds_read_u16 v{vDist + g}, v{vDstL} offset:{2560 + 32 * g}")
            for g in range(5):
                a(f"ds_read_b64 {vr(vMr + 2 * g, 2)}, v{vResL} offset:{512 * g}")
        a(f"""
        s_waitcnt lgkmcnt(0)
        v_lshl_or_b32 v{vWd}, v{vWraw + 1}, 16, v{vWraw}
        v_lshl_or_b32 v{vWd + 1}, v{vWraw + 3}, 16, v{vWraw + 2}
        v_lshl_or_b32 v{vWu}, v{vWraw + 5}, 16, v{vWraw + 4}
        v_lshl_or_b32 v{vWu + 1}, v{vWraw + 7}, 16, v{vWraw + 6}
        v_lshl_or_b32 v{vWs}, v{vWraw + 9}, 16, v{vWraw + 8}
        v_lshl_or_b32 v{vWr}, v{vWraw + 11}, 16, v{vWraw + 10}
        v_mov_b32 v{vWd + 2}, v{vWd}
        v_mov_b32 v{vWd + 3}, v{vWd + 1}
        v_mov_b32 v{vWu + 2}, v{vWu}
        v_mov_b32 v{vWu + 3}, v{vWu + 1}
        v_mov_b32 v{vWs + 1}, 0
        v_mov_b32 v{vWr + 1}, 0
        v_mov_b32 v{vRb + 1}, 0
        v_mov_b32 v{vRb + 3}, 0
        v_and_b32 v{vCen + 1}, 0xffff0000, v{vCen}
        v_lshlrev_b32 v{vCen}, 16, v{vCen}
        """)
        for g in range(5):
            t = vT + 4
            rb = vRb + 2 * (g & 1)
            a(f"""
            v_lshlrev_b32 v{t + 2}, 16, v{vDist + g}
            v_sub_f32 v{t}, v{t + 2}, v{vCen}
            v_sub_f32 v{t + 1}, v{t + 2}, v{vCen + 1}
            v_cvt_pk_bf16_f32 v{t + 2}, v{t}, v{t + 1}
            v_lshlrev_b32 v{t}, 16, v{t + 2}
            v_and_b32 v{t + 1}, 0xffff0000, v{t + 2}
            v_mul_f32 v{t}, v{t}, v{t}
            v_mul_f32 v{t + 1}, v{t + 1}, v{t + 1}
            v_cvt_pk_bf16_f32 v{t + 2}, v{t}, v{t + 1}
            v_lshlrev_b32 v{t}, 16, v{t + 2}
            v_and_b32 v{t + 1}, 0xffff0000, v{t + 2}
            v_mul_f32 v{t}, 0xc1200000, v{t}
            v_mul_f32 v{t + 1}, 0xc1200000, v{t + 1}
            v_cvt_pk_bf16_f32 v{t + 2}, v{t}, v{t + 1}
            v_lshlrev_b32 v{t}, 16, v{t + 2}
            v_and_b32 v{t + 1}, 0xffff0000, v{t + 2}
            v_mul_f32 v{t}, 0x3fb8aa3b, v{t}
            v_mul_f32 v{t + 1}, 0x3fb8aa3b, v{t + 1}
            v_exp_f32 v{t}, v{t}
            v_exp_f32 v{t + 1}, v{t + 1}
            s_nop 0
            v_cvt_pk_bf16_f32 v{rb}, v{t}, v{t + 1}
            s_nop 1
            v_mfma_f32_16x16x16_bf16 {vr(vG + 4 * g, 4)}, {vr(vWs, 2)}, {vr(rb, 2)}, 0
            v_mfma_f32_16x16x16_bf16 {vr(vH + 4 * g, 4)}, {vr(vWr, 2)}, {vr(rb, 2)}, 0
            """)
        a("L_gates_done:")
        st("GH")

    a(f"s_movk_i32 s{sPrev}, {D * 1024}")
    st("Gissued")
    gates(0)
    a("L_main:")

    def split(src, dst, t):
        a(f"""
        v_cvt_pk_bf16_f32 v{dst}, v{src}, v{src + 1}
        v_cvt_pk_bf16_f32 v{dst + 1}, v{src + 2}, v{src + 3}
        v_lshlrev_b32 v{t}, 16, v{dst}
        v_and_b32 v{t + 1}, 0xffff0000, v{dst}
        v_lshlrev_b32 v{t + 2}, 16, v{dst + 1}
        v_and_b32 v{t + 3}, 0xffff0000, v{dst + 1}
        v_sub_f32 v{t}, v{src}, v{t}
        v_sub_f32 v{t + 1}, v{src + 1}, v{t + 1}
        v_sub_f32 v{t + 2}, v{src + 2}, v{t + 2}
        v_sub_f32 v{t + 3}, v{src + 3}, v{t + 3}
        v_cvt_pk_bf16_f32 v{dst + 2}, v{t}, v{t + 1}
        v_cvt_pk_bf16_f32 v{dst + 3}, v{t + 2}, v{t + 3}
        s_nop 1
        """)

    def prio(b):
        pat = P["prio"]
        if not pat:
            return ""
        cur = pat[b % len(pat)]
        if b % 5 and cur == pat[(b - 1) % len(pat)]:
            return ""
        return f"""s_cmp_lt_u32 s{sW}, 4
        s_cbranch_scc1 L_pr{b}
        s_setprio {1 if cur == "y" else 0}
        L_pr{b}:"""

    ring_adv = f"s_mov_b32 s{sPrev}, s{sCur}" if D == R - 1 else f"s_add_u32 s{sPrev}, s{sPrev}, 1024\ns_and_b32 s{sPrev}, s{sPrev}, {R * 1024 - 1}"
    def step(b, acc):
        if not P["sp"]:
            D = P["D"]
            return f"""
            s_add_u32 m0, s{sRingB}, s{sPrev}
            v_add_u32 v{vT}, s{sIA}, v{vLH4}
            v_add_u32 v{vT + 1}, s{sC}, v{vLH4}
            ds_read_b32 v{vT}, v{vT}
            ds_read_b32 v{vT + 1}, v{vT + 1}
            v_add_u32 v{vT + 3}, s{sCur}, v{vTr}
            {ring_adv}
            s_add_u32 s{sCur}, s{sCur}, 1024
            s_and_b32 s{sCur}, s{sCur}, {R * 1024 - 1}
            s_add_u32 s{sC}, s{sC}, 128
            s_add_u32 s{sIA}, s{sIA}, 128
            s_cmp_eq_u32 s{sIA}, s{sIE}
            s_waitcnt lgkmcnt(1)
            v_mad_u32_u16 v{vT}, v{vT}, 32, v{vHalf16} op_sel:[1,0,0,0]
            buffer_load_dwordx4 v{vT}, s[{SM}:{SM + 3}], s{sIP} offen {P["gather"]} lds
            s_cbranch_scc1 L_nb{b}
            L_nb{b}_back:
            s_waitcnt lgkmcnt(0)
            v_and_b32 v{vT + 2}, 0xbff8, v{vT + 1}
            v_lshlrev_b32 v{vT + 4}, 4, v{vT + 1}
            v_lshrrev_b32 v{vT + 5}, 7, v{vT + 1}
            v_cvt_f32_f16 v{vT + 2}, v{vT + 2}
            v_bfi_b32 v{vT + 4}, s{s70}, v{vT + 4}, v{vT + 5}
            v_and_or_b32 v{vT + 4}, v{vT + 4}, s{sF0}, v{vSc}
            ds_write_b16_d16_hi v{vT + 4}, v{vT + 2}
            ds_read_b128 {vr(vSt, 4)}, v{vSrd}
            ds_write_b16 v{vT + 4}, v{vZero}
            s_waitcnt vmcnt({D})
            ds_read_b64_tr_b16 {vr(vMt, 2)}, v{vT + 3}
            ds_read_b64_tr_b16 {vr(vMt + 2, 2)}, v{vT + 3} offset:256
            s_cmp_lg_u32 s{sC}, s{sCE}
            s_waitcnt lgkmcnt(0)
            v_mfma_f32_16x16x32_bf16 {vr(acc, 4)}, {vr(vMt, 4)}, {vr(vSt, 4)}, {vr(acc, 4)}
            s_cbranch_scc1 L_bin{b}
"""
        D = P["D"]
        late = b >= P["lateiss"]
        issue = f"buffer_load_dwordx4 v{vT}, s[{SM}:{SM + 3}], s{sT} offen {P['gather']} lds"
        shift = "\n".join(f"v_mov_b32 v{vWq + k}, v{vWq + k + 1}" for k in range(D))
        return f"""
            s_add_u32 m0, s{sRingB}, s{sPrev}
            v_mad_u32_u16 v{vT}, v{vWq + D}, 32, v{vHalf16} op_sel:[1,0,0,0]
            v_and_b32 v{vT + 2}, 0xbff8, v{vWq}
            v_lshlrev_b32 v{vT + 4}, 4, v{vWq}
            {f"s_mov_b32 s{sT}, s{sIPn}" if late else issue.replace(f"s{sT} offen", f"s{sIPn} offen")}
            v_lshrrev_b32 v{vT + 5}, 7, v{vWq}
            v_cvt_f32_f16 v{vT + 2}, v{vT + 2}
            v_bfi_b32 v{vT + 4}, s{s70}, v{vT + 4}, v{vT + 5}
            v_add_u32 v{vT + 1}, s{sIA}, v{vLH4}
            v_and_or_b32 v{vT + 4}, v{vT + 4}, s{sF0}, v{vSc}
            {shift}
            ds_write_b16_d16_hi v{vT + 4}, v{vT + 2}
            ds_read_b128 {vr(vSt, 4)}, v{vSrd}
            ds_write_b16 v{vT + 4}, v{vZero}
            ds_read_b32 v{vWq + D}, v{vT + 1}
            v_add_u32 v{vT + 3}, s{sCur}, v{vTr}
            s_mov_b32 s{sIPn}, s{sIP}
            s_add_u32 s{sIA}, s{sIA}, 128
            s_cmp_eq_u32 s{sIA}, s{sIE}
            s_cbranch_scc1 L_nb{b}
            L_nb{b}_back:
            s_waitcnt vmcnt({D - 1 if late else D})
            {issue if late else ""}
            ds_read_b64_tr_b16 {vr(vMt, 2)}, v{vT + 3}
            ds_read_b64_tr_b16 {vr(vMt + 2, 2)}, v{vT + 3} offset:256
            {ring_adv}
            s_add_u32 s{sCur}, s{sCur}, 1024
            s_and_b32 s{sCur}, s{sCur}, {R * 1024 - 1}
            s_add_u32 s{sC}, s{sC}, 128
            s_cmp_lg_u32 s{sC}, s{sCE}
            s_waitcnt lgkmcnt(0)
            v_mfma_f32_16x16x32_bf16 {vr(acc, 4)}, {vr(vMt, 4)}, {vr(vSt, 4)}, {vr(acc, 4)}
            s_cbranch_scc1 L_bin{b}
"""

    ROLL = P["roll"]
    NE = P["lateiss"] // 5
    bodies = [0, NP - 1] if ROLL else range(NP)
    if ROLL:
        assert 0 < NE < NP
        a(f"s_mov_b32 s{sB}, 0")
    for p in bodies:
        if ROLL:
            a(f"L_phase{p}:")
            if p:
                a(f"""
                s_cmp_eq_u32 s{sB}, {5 * (NP - 1)}
                s_cselect_b32 s{sEpi}, s{sLast}, 0
                """)
        for g in range(5):
            b = p * 5 + g
            acc = vAcc + 4 * g
            lane = f"s{sT + 1}" if ROLL else b
            a(f"""
            {prio(b)}
            {f"s_add_u32 s{sT + 1}, s{sB}, {g}" if ROLL else ""}
            v_readlane_b32 s{sC}, v{vBase}, {lane}
            v_readlane_b32 s{sCE}, v{vEnd}, {lane}
            s_cmp_eq_u32 s{sC}, s{sCE}
            s_cbranch_scc1 L_bin{b}_done
            L_bin{b}:
            {step(b, acc)}
            L_bin{b}_done:
            """)
            if g == 4 or b == 0:
                st(f"bin{b}")
            if p == NP - 1:
                x, y, t = vT + 4, vT + 8, vT + 12
                a(f"""
                s_cmp_eq_u32 s{sEpi if ROLL else sLast}, 0
                s_cbranch_scc1 L_epi{g}_done
                s_nop 5
                """)
                split(acc, x, t)
                a(f"""
                v_mfma_f32_16x16x32_bf16 {vr(y, 4)}, {vr(vWd, 4)}, {vr(x, 4)}, 0
                s_nop 7
                v_mul_f32 v{y}, v{y}, v{vG + 4 * g}
                v_mul_f32 v{y + 1}, v{y + 1}, v{vG + 4 * g + 1}
                v_mul_f32 v{y + 2}, v{y + 2}, v{vG + 4 * g + 2}
                v_mul_f32 v{y + 3}, v{y + 3}, v{vG + 4 * g + 3}
                """)
                split(y, x, t)
                mr = vMr + 2 * g
                a(f"""
                v_mfma_f32_16x16x32_bf16 {vr(y, 4)}, {vr(vWu, 4)}, {vr(x, 4)}, 0
                v_lshlrev_b32 v{t}, 16, v{mr}
                v_and_b32 v{t + 1}, 0xffff0000, v{mr}
                v_lshlrev_b32 v{t + 2}, 16, v{mr + 1}
                v_and_b32 v{t + 3}, 0xffff0000, v{mr + 1}
                s_nop 3
                v_fmac_f32 v{t}, v{y}, v{vH + 4 * g}
                v_fmac_f32 v{t + 1}, v{y + 1}, v{vH + 4 * g + 1}
                v_fmac_f32 v{t + 2}, v{y + 2}, v{vH + 4 * g + 2}
                v_fmac_f32 v{t + 3}, v{y + 3}, v{vH + 4 * g + 3}
                v_cvt_pk_bf16_f32 v{mr}, v{t}, v{t + 1}
                v_cvt_pk_bf16_f32 v{mr + 1}, v{t + 2}, v{t + 3}
                buffer_store_dwordx2 {vr(mr, 2)}, v{vOut4 if g == 4 else vMoff}, s[{SOUT}:{SOUT + 3}], s{sRowOff} offen offset:{512 * g} {P["out_st"]}
                L_epi{g}_done:
                """)
        if ROLL:
            a(f"""
            s_add_u32 s{sB}, s{sB}, 5
            s_cmp_lt_u32 s{sB}, {5 * (NP if p else NE)}
            s_cbranch_scc1 L_phase{p}
            """)
    a(f"""
    s_cmp_eq_u32 s{sLast}, 0
    s_cbranch_scc1 L_slow
    """)
    if P["stamps"]:
        a("s_waitcnt vmcnt(0)")
    st("end")
    if P["stamps"] == 3:
        a(f"""
        s_cmp_lg_u32 s2, {P["dbgwg"]}
        s_cbranch_scc1 L_end
        s_cmp_lg_u32 s{sW}, {P["dbgw"]}
        s_cbranch_scc1 L_end
        v_readlane_b32 s98, v207, 0
        s_mov_b64 exec, 0xfffe
        v_subrev_u32 v207, s98, v207
        v_lshlrev_b32 v{vT}, 2, v{vLane}
        buffer_store_dword v207, v{vT}, s[{SDBG}:{SDBG + 3}], 0 offen
        """)
        print("names:", ",".join(st.names), file=sys.stderr)
    else:
        st.flush(SSEG, "s2", vT)
    a("""
    L_end:
    s_endpgm
    """)
    for b in [5 * p + g for p in bodies for g in range(5)]:
        a(f"L_nb{b}:")
        next_bin()
        a(f"s_branch L_nb{b}_back")
    a("L_code_end:")
    return a.text(), 256, 102, LDS


def generate(**kw):
    P = dict(DEFAULTS)
    P.update(kw)
    body, nv, ns, lds = gen(P)
    n = NAME + "_kernel"
    out = HEADER
    out += f"; @launch grid=({NCH},1,1) block=(512,1,1) lds={lds}\n"
    out += '.amdgcn_target "amdgcn-amd-amdhsa--gfx950"\n.text\n'
    out += f".globl {n}\n.p2align 8\n.type {n},@function\n{n}:\n{body}"
    out += '.section .rodata,"a"\n.p2align 6\n' + descriptor(n, nv, ns)
    return out


if __name__ == "__main__":
    path = sys.argv[1]
    kw = {}
    for arg in sys.argv[2:]:
        k, v = arg.split("=", 1)
        kw[k] = int(v) if v.lstrip("-").isdigit() else v
    open(path, "w").write(generate(**kw))
```

```python
import sys
from gen import Asm, vr, srd, Stamps, descriptor, NAME, E, T, NCH, CH, BK, WS_SEG

SPIN_MAX = 1 << 20
CS = 53888


DEFAULTS = dict(
    D=2,
    in_ld="nt",
    rec_st="sc1",
    rec_ld="",
    out_st="",
    gather="",
    xl=1,
    latespin=2,
    psh=15,
    order="o40123",
    sched="s2a",
    split=4,
    prio="yo",
    sp=1,
    pollpos=0,
    cmap=0,
    rot=5,
    lateiss=15,
    roll=0,
    nb=0,
    thr=16,
    lsplit=0,
    cpos="scan",
    gate=-1,
    dma=1,
    ipf=6,
    stamps=0,
    dbgwg=100,
    dbgw=5,
    force_slow=0,
)

HEADER = """; Kernarg layout for this problem (112 bytes, ptrs only, base s[0:1]):
;
"""


def gen(P):
    a = Asm()
    D = P["D"]
    R = 4
    ORD = [int(ch) for ch in str(P["order"]).lstrip("o")]
    PSH = P["psh"]
    CAPS = {16: (160, 160, 96), 15: (96,) * 5}[PSH]
    NP = len(CAPS)
    NB = 40 * NP
    CNT, HIST, BASE, DESC, SB, TRASH, AB = 0, 1024, 2048, 3072, 4096, 12288, 15360
    ZB = AB + 40 * 4 * sum(CAPS)
    RING = ZB + 128
    STG = RING
    LDS = -(-(STG + 53840) // 1280) * 1280
    RES, RESW = RING + 8 * R * 1024, 2736
    NFILL = -(-(RING - SB) // 8192)
    assert LDS <= 163840 and len(ORD) == NP and RES + 8 * RESW <= LDS
    sJ = 3
    SO, SI, SA, SRW, SSEG, SREC, SM, SOUT, SDIST, SDBG = 4, 8, 12, 16, 20, 24, 28, 32, 36, 40
    pM, pI, pO, pDist, pAng, pCen, pFreq, pWr, pWs, pWd, pWu, pOut, pDbg, pWsp = range(44, 72, 2)
    sOff, sOffA = 72, 77
    sC625, sM625, sPre, sMask, sAct, sW, sSpin, sX = 82, 83, 84, 85, 86, 88, 89, 90
    sMk = 44
    sPend, sReady, sPrevN, sCurN, sJ4, sTk, sEarly = 60, 61, 62, 63, 64, 66, 68
    sLate, sDo, sMo, sRes = 74, 72, 73, 76
    sLast, sFirst, sSC, sSU = 83, 84, 85, 86
    sF0, s70, sRingB, sPrev, sCur, sRowOff = 44, 45, 46, 47, 48, 49
    sNE, sL, sIA, sIE, sIP, sC, sCE, sIPn = 50, 51, 52, 53, 54, 55, 56, 57
    sT = 58
    sB, sEpi, sRetry = 77, 78, 79
    st = Stamps(a, P, 0, 207, 98)
    vOff16, vOff8, vOne, vF = 1, 2, 3, 4
    vO, vI, vA, vJ, vR = 8, 28, 48, 58, 78
    vP = 98
    vSeg = 112
    vPar = 116
    vCtr = 124
    vLane, vLL20, vFour, vZero = 1, 2, 3, 4
    vLH4, vHalf16, vSc, vSrd, vTr, vBase, vCntA, vEnd, vPh = 5, 6, 7, 8, 9, 10, 11, 12, 13
    vMoff, vOut4 = 14, 15
    vT = 16
    vSlot = 32
    vRk = 80
    vL0, vL1 = 88, 92
    vD0, vHi, vSegA, vCb, vSegW, vDw, vDr, vDoff, vLim = range(100, 109)
    vResG, vResL, vDstL = 126, 127, 128
    vWq = 96
    vAcc = 132
    vG, vH = 152, 172
    vMr = 192
    vDist = 202
    vWraw = 208
    vCen = 220
    vWd, vWu = 224, 228
    vWs, vWr, vRb = 232, 234, 236
    vMt, vSt = 240, 244
    vQ = 248

    def bin_addr(dst, k, tmp):
        a(f"""
        v_mul_u32_u24 v{dst}, {CAPS[0] * 4}, v{k}
        v_add_u32 v{dst}, {AB - CAPS[0] * 4}, v{dst}
        """)
        if CAPS[-1] != CAPS[0]:
            a(f"""
            v_mul_u32_u24 v{tmp}, {CAPS[-1] * 4}, v{k}
            v_add_u32 v{tmp}, {AB + (NB - 40) * CAPS[0] * 4 - (NB - 39) * CAPS[-1] * 4}, v{tmp}
            v_min_u32 v{dst}, v{dst}, v{tmp}
            """)

    def cnt_init(t, stmp):
        bin_addr(t, 0, t + 1)
        a(f"""
        v_mov_b32 v{t + 1}, {TRASH}
        v_cmp_eq_u32 vcc, 0, v0
        v_mov_b32 v{t + 2}, 0
        v_lshlrev_b32 v{t + 3}, 2, v0
        v_cndmask_b32 v{t}, v{t}, v{t + 1}, vcc
        v_cmp_lt_u32 vcc, {NB}, v0
        s_nop 1
        v_cndmask_b32 v{t}, v{t}, v{t + 2}, vcc
        v_cmp_gt_u32 vcc, 256, v0
        s_and_saveexec_b64 s[{stmp}:{stmp + 1}], vcc
        ds_write_b32 v{t + 3}, v{t} offset:{CNT}
        s_mov_b64 exec, s[{stmp}:{stmp + 1}]
        """)

    def fill(t, start, rounds, clip=None):
        a(f"""
        v_lshlrev_b32 v{t}, 4, v0
        v_mov_b32 v{vQ}, 0
        v_mov_b32 v{vQ + 1}, 0
        v_mov_b32 v{vQ + 2}, 0
        v_mov_b32 v{vQ + 3}, 0
        v_add_u32 v{t}, {start}, v{t}
        v_add_u32 v{t + 1}, 65536, v{t}
        """)
        if clip:
            a(f"v_cmp_gt_u32 vcc, {(clip - start - (rounds - 1) * 8192) // 16}, v0")
        for i in range(rounds):
            if clip and i == rounds - 1:
                a("s_mov_b64 exec, vcc")
            a(f"ds_write_b128 v{t + (i >> 3)}, {vr(vQ, 4)} offset:{(i & 7) * 8192}")
        if clip:
            a("s_mov_b64 exec, -1")

    def place_atomics(w, m, t):
        a(f"s_mov_b64 exec, s[{m}:{m + 1}]")
        for r in range(4):
            a(f"v_lshlrev_b32_sdwa v{t + r}, 2, v{w + 4} dst_sel:DWORD dst_unused:UNUSED_PAD src0_sel:DWORD src1_sel:BYTE_{r}")
            a(f"ds_add_rtn_u32 v{t + r}, v{t + r}, v{vFour} offset:{CNT}")

    def place_writes(w, m, t):
        a(f"s_mov_b64 exec, s[{m}:{m + 1}]")
        for r in range(4):
            a(f"ds_write_b32 v{t + r}, v{w + r}")

    def ctr_sum(lab_ok):
        a(f"""
        v_readlane_b32 s{sX + 4}, v{vCtr}, 0
        v_readlane_b32 s{sX + 5}, v{vCtr}, 1
        s_add_u32 s{sX + 4}, s{sX + 4}, s{sX + 5}
        v_readlane_b32 s{sX + 5}, v{vCtr}, 2
        s_add_u32 s{sX + 4}, s{sX + 4}, s{sX + 5}
        v_readlane_b32 s{sX + 5}, v{vCtr}, 3
        s_add_u32 s{sX + 4}, s{sX + 4}, s{sX + 5}
        s_cmp_ge_u32 s{sX + 4}, {NCH}
        """)

    ld = P["in_ld"]
    a(f"""
    s_cmp_ge_u32 s2, {NCH}
    s_cbranch_scc1 L_end
    """)
    st("start")
    a(f"""
    s_load_dwordx16 s[44:59], s[0:1], 0
    s_load_dwordx8 s[60:67], s[0:1], 64
    s_load_dwordx4 s[68:71], s[0:1], 96
    """)
    if P["ipf"]:
        a(f"""
        s_getpc_b64 s[96:97]
        s_lshr_b32 s{sX}, s2, 3
        s_mul_i32 s{sX}, s{sX}, {P["ipf"]}
        v_add_u32 v1, s{sX}, v0
        v_min_u32 v1, (L_code_end - {NAME}_kernel - 256) / 128, v1
        v_lshlrev_b32 v1, 7, v1
        v_mov_b32 v3, s97
        v_add_co_u32 v2, vcc, s96, v1
        s_nop 1
        v_addc_co_u32 v3, vcc, 0, v3, vcc
        v_cmp_gt_u32 vcc, {P["ipf"]}, v0
        s_and_saveexec_b64 s[{sX}:{sX + 1}], vcc
        s_cbranch_execz L_noipf
        global_load_dword v130, v[2:3], off
        L_noipf:
        s_mov_b64 exec, s[{sX}:{sX + 1}]
        """)
    a(f"""
    v_lshlrev_b32 v{vOff16}, 4, v0
    v_lshlrev_b32 v{vOff8}, 3, v0
    v_lshlrev_b32 v5, 2, v0
    v_mov_b32 v6, 0
    v_mov_b32 v{vOne}, 1
    v_lshrrev_b32 v7, 6, v0
    s_mul_i32 s{sOff}, s2, {CH * 4}
    s_mul_i32 s{sOffA}, s2, {CH * 2}
    v_readfirstlane_b32 s{sW}, v7
    ds_write_b32 v5, v6 offset:{HIST}
    """)
    for q in range(1, 5):
        a(f"s_add_u32 s{sOff + q}, s{sOff}, {q * 8000}")
        a(f"s_add_u32 s{sOffA + q}, s{sOffA}, {q * 4000}")
    if P["xl"]:
        a(f"""
        s_and_b32 s{sJ}, s2, 7
        s_lshl_b32 s{sJ}, s{sJ}, 5
        s_lshr_b32 s{sX}, s2, 3
        s_add_u32 s{sJ}, s{sJ}, s{sX}
        """)
    else:
        a(f"s_mov_b32 s{sJ}, s2")
    a(f"""
    s_mov_b32 s{sC625}, 6871948
    s_mov_b32 s{sM625}, -{BK}
    s_mov_b32 s{sMask}, 0x4007
    s_mov_b32 s{sSpin}, 0
    v_cmp_gt_u32 vcc, 500, v0
    s_lshl_b32 s{sX + 2}, s2, 10
    s_cmp_eq_u32 s{sW}, 0
    s_cselect_b64 s[{sX}:{sX + 1}], -1, 0
    s_waitcnt lgkmcnt(0)
    """)
    srd(a, SO, f"s{pO}", f"s{pO + 1}", T * 4)
    a("s_barrier")
    a(f"""
    s_mov_b64 s[{sAct}:{sAct + 1}], vcc
    s_mov_b64 exec, vcc
    """)
    issued = []

    def ld_issue(name):
        k, q = name[0], int(name[1:] or 0)
        act = f"s_mov_b64 exec, s[{sAct}:{sAct + 1}]"
        if k == "F":
            a(f"global_load_ushort v{vF}, v6, s[{pFreq}:{pFreq + 1}]")
        elif k == "O":
            a(f"buffer_load_dwordx4 {vr(vO + 4 * q, 4)}, v{vOff16}, s[{SO}:{SO + 3}], s{sOff + q} offen {ld}")
        elif k == "A":
            a(f"buffer_load_dwordx2 {vr(vA + 2 * q, 2)}, v{vOff8}, s[{SA}:{SA + 3}], s{sOffA + q} offen {ld}")
        else:
            a(f"buffer_load_dwordx4 {vr(vI + 4 * q, 4)}, v{vOff16}, s[{SI}:{SI + 3}], s{sOff + q} offen {ld}")
        issued.append(name)

    def wave0(tag, body):
        a(f"""
        s_cmp_lg_u32 s{sW}, 0
        s_cbranch_scc1 L_w0{tag}
        """)
        body()
        a(f"""
        s_mov_b64 exec, s[{sAct}:{sAct + 1}]
        L_w0{tag}:
        """)

    def row_clear():
        a(f"buffer_store_dwordx4 {vr(vQ, 4)}, v{vOff16}, s[{SSEG}:{SSEG + 3}], s{sX + 2} offen sc1")

    def weights():
        for lo, hi, dst, ptr, off in ((-1, 0, 0, pWd, 0), (0, -1, 0, pWu, -512), (0xffff, 0, 4, pWs, 0),
                                      (0xffff0000, 0, 4, pWr, -256), (0, 1, 4, pCen, -512)):
            a(f"""
            s_mov_b32 exec_lo, {lo}
            s_mov_b32 exec_hi, {hi}
            global_load_dwordx4 {vr(vPar + dst, 4)}, v{vOff16}, s[{ptr}:{ptr + 1}] offset:{off}
            """)

    def count_clear(younger):
        a(f"""
        s_cmp_lg_u32 s{sW}, 0
        s_cbranch_scc1 L_w0c
        s_waitcnt vmcnt({younger})
        L_w0c:
        s_and_b64 exec, s[{sX}:{sX + 1}], 1
        s_and_b32 s{sX + 3}, s2, 3
        s_lshl_b32 s{sX + 3}, s{sX + 3}, 6
        buffer_atomic_add v{vOne}, v6, s[{SDBG}:{SDBG + 3}], s{sX + 3} offen
        s_mov_b64 exec, s[{sAct}:{sAct + 1}]
        """)
        issued.append("C")

    def ld_wait(name):
        a(f"s_waitcnt vmcnt({len(issued) - 1 - issued.index(name)})")

    for n in ("O0", "O1", "O2", "O3", "O4", "F"):
        ld_issue(n)
    srd(a, SI, f"s{pI}", f"s{pI + 1}", T * 4)
    srd(a, SA, f"s{pAng}", f"s{pAng + 1}", T * 2)
    srd(a, SDBG, f"s{pDbg}", f"s{pDbg + 1}", 256)
    srd(a, SREC, f"s{pWsp}", f"s{pWsp + 1}", NCH * CS)
    srd(a, SOUT, f"s{pOut}", f"s{pOut + 1}", E * 32)
    srd(a, SM, f"s{pM}", f"s{pM + 1}", E * 32)
    srd(a, SDIST, f"s{pDist}", f"s{pDist + 1}", E * 2)
    a(f"""
    s_add_u32 s{SSEG}, s{pWsp}, {WS_SEG}
    s_addc_u32 s{SSEG + 1}, s{pWsp + 1}, 0
    s_and_b32 s{SSEG + 1}, s{SSEG + 1}, 0xffff
    s_mov_b32 s{SSEG + 2}, {NCH * 1024}
    s_mov_b32 s{SSEG + 3}, 0x20000
    s_mul_i32 s{sX + 3}, s2, {CS}
    s_add_u32 s{SRW}, s{pWsp}, s{sX + 3}
    s_addc_u32 s{SRW + 1}, s{pWsp + 1}, 0
    s_and_b32 s{SRW + 1}, s{SRW + 1}, 0xffff
    s_mov_b32 s{SRW + 2}, 0
    s_mov_b32 s{SRW + 3}, 0x20000
    s_mov_b64 exec, -1
    v_and_b32 v{vCtr + 1}, 3, v0
    v_lshlrev_b32 v{vCtr + 1}, 6, v{vCtr + 1}
    """)
    fill(vP + 4, STG, 7)
    a(f"s_mov_b64 exec, s[{sAct}:{sAct + 1}]")
    S2 = P["sched"] != "s1"
    rest = [f"A{q}" for q in range(5)] + [f"I{q}" for q in range(5)]
    after_o = [()] * 5 if S2 else [("A0", "A1"), ("A2", "A3"), ("A4", "I0"), ("I1",), ("I2",)]
    for q in range(5):
        ld_wait(f"O{q}")
        if q == 0:
            wave0("z", row_clear)
            nz = len(issued)
        for n in after_o[q]:
            ld_issue(n)
        if q in (0, 4):
            st(f"O{q}")
        for r in range(4):
            i = 4 * q + r
            a(f"v_mul_hi_u32_u24 v{vP + r}, s{sC625}, v{vO + i}")
            a(f"v_add_u32 v{vO + i}, 16, v{vO + i}")
        for r in range(4):
            i = 4 * q + r
            a(f"v_lshlrev_b32 v{vJ + i}, 2, v{vP + r}")
            a(f"v_mad_i32_i24 v{vO + i}, v{vP + r}, s{sM625}, v{vO + i}")
            a(f"ds_add_rtn_u32 v{vR + i}, v{vJ + i}, v{vOne} offset:{HIST}")
        for r in range(4):
            i = 4 * q + r
            a(f"v_lshl_or_b32 v{vO + i}, v{vO + i}, 11, v{vO + i}")


    def issue_rest(tag, older):
        a(f"""
        s_cmp_lt_u32 s{sW}, {P["split"]}
        s_cbranch_scc{0 if older else 1} L_rest{tag}
        """)
        keep = list(issued)
        for n in rest:
            ld_issue(n)
        if older:
            issued[:] = keep
        a(f"L_rest{tag}:")

    if S2:
        issue_rest("a", True)
    wave0("w", weights)
    a(f"""
    s_waitcnt lgkmcnt(0)
    s_barrier
    """)
    st("bar2")
    if P["sched"] == "s2a":
        issue_rest("b", False)
    if not S2:
        ld_issue("I3")
        ld_issue("I4")
    c, b, x, ln = vP, vP + 4, vP + 8, vP + 9
    a(f"""
    s_mov_b64 exec, -1
    v_and_b32 v{ln}, 63, v0
    v_lshlrev_b32 v{ln}, 4, v{ln}
    ds_read_b128 {vr(c, 4)}, v{ln} offset:{HIST}
    s_mov_b32 s{sX + 4}, {STG}
    s_waitcnt lgkmcnt(0)
    """)
    for k in range(4):
        a(f"v_add_u32 v{c + k}, 3, v{c + k}")
        a(f"v_lshrrev_b32 v{c + k}, 2, v{c + k}")
    a(f"""
    v_add_u32 v{b + 2}, v{c}, v{c + 1}
    v_add_u32 v{b + 3}, v{b + 2}, v{c + 2}
    v_add_u32 v{b}, v{b + 3}, v{c + 3}
    v_mov_b32 v{x}, v{b}
    s_nop 1
    v_add_u32_dpp v{x}, v{x}, v{x} row_shr:1 row_mask:0xf bank_mask:0xf
    s_nop 1
    v_add_u32_dpp v{x}, v{x}, v{x} row_shr:2 row_mask:0xf bank_mask:0xf
    s_nop 1
    v_add_u32_dpp v{x}, v{x}, v{x} row_shr:4 row_mask:0xf bank_mask:0xf
    s_nop 1
    v_add_u32_dpp v{x}, v{x}, v{x} row_shr:8 row_mask:0xf bank_mask:0xf
    s_nop 1
    v_add_u32_dpp v{x}, v{x}, v{x} row_bcast:15 row_mask:0xa bank_mask:0xf
    s_nop 1
    v_add_u32_dpp v{x}, v{x}, v{x} row_bcast:31 row_mask:0xc bank_mask:0xf
    v_sub_u32 v{b}, v{x}, v{b}
    v_add_u32 v{b + 1}, v{b}, v{c}
    v_add_u32 v{b + 2}, v{b}, v{b + 2}
    v_add_u32 v{b + 3}, v{b}, v{b + 3}
    v_readlane_b32 s{sX + 5}, v{x}, 63
    """)
    for k in range(4):
        a(f"v_lshl_or_b32 v{vSeg + k}, v{c + k}, 12, v{b + k}")
        a(f"v_mad_u32_u24 v{b + k}, v{b + k}, 20, s{sX + 4}")
    a(f"ds_write_b128 v{ln}, {vr(b, 4)} offset:{BASE}")
    for k in range(4):
        a(f"v_or_b32 v{vSeg + k}, 0x80000000, v{vSeg + k}")
    a(f"""
    s_mul_i32 s{SRW + 2}, s{sX + 5}, 20
    s_mov_b64 exec, s[{sAct}:{sAct + 1}]
    """)
    for i in range(20):
        a(f"ds_read_b32 v{vJ + i}, v{vJ + i} offset:{BASE}")
    if P["sched"] == "s2b":
        issue_rest("b", False)
    if P["cpos"] == "scan":
        count_clear(len(issued) - nz + 5)
    for q in range(5):
        ld_wait(f"A{q}")
        if q == 0:
            a(f"""
            v_readfirstlane_b32 s{sX + 5}, v{vF}
            v_lshlrev_b32 v{vF}, 16, v{vF}
            """)
        if q in (0, 4):
            st(f"A{q}")
        t = vP

        def unpack():
            for p in range(2):
                d = vA + 2 * q + p
                a(f"v_lshlrev_b32 v{t + 2 * p}, 16, v{d}")
                a(f"v_and_b32 v{t + 2 * p + 1}, 0xffff0000, v{d}")

        unpack()
        a(f"""
        s_cmp_eq_u32 s{sX + 5}, 0x3f80
        s_cbranch_scc1 L_unit{q}
        """)
        for k in range(4):
            a(f"v_mul_f32 v{t + k}, v{vF}, v{t + k}")
        for p in range(2):
            a(f"v_cvt_pk_bf16_f32 v{vA + 2 * q + p}, v{t + 2 * p}, v{t + 2 * p + 1}")
        unpack()
        a(f"L_unit{q}:")
        for k in range(4):
            a(f"v_mul_f32 v{t + k}, 0.15915494, v{t + k}")
        for k in range(4):
            a(f"v_fract_f32 v{t + k}, v{t + k}")
        for k in range(4):
            a(f"v_cos_f32 v{t + k}, v{t + k}")
        a("s_nop 0")
        for p in range(2):
            a(f"v_cvt_pkrtz_f16_f32 v{vA + 2 * q + p}, v{t + 2 * p}, v{t + 2 * p + 1}")
        for p in range(2):
            a(f"v_add_u32 v{vA + 2 * q + p}, 0x40004, v{vA + 2 * q + p}")
        for p in range(2):
            a(f"v_and_b32 v{vA + 2 * q + p}, 0xbff8bff8, v{vA + 2 * q + p}")
    if P["cpos"] == "A4":
        count_clear(len(issued) - nz + 5)
    a("s_waitcnt lgkmcnt(0)")
    for i in range(20):
        a(f"v_mad_u32_u24 v{vR + i}, v{vR + i}, 5, v{vJ + i}")
        a(f"v_and_b32 v{vJ + i}, -4, v{vR + i}")
        a(f"v_and_b32 v{vR + i}, 3, v{vR + i}")
        a(f"v_mad_i32_i24 v{vR + i}, v{vR + i}, -3, v{vJ + i}")
    for q in range(5):
        ld_wait(f"I{q}")
        if P["cpos"] == f"I{q}":
            count_clear(len(issued) - nz + 5)
        if P["gate"] == q:
            a(f"""
            s_cmp_lg_u32 s{sW}, 7
            s_cbranch_scc1 L_gx
            s_mov_b64 exec, 15
            buffer_load_dword v{vCtr}, v{vCtr + 1}, s[{SDBG}:{SDBG + 3}], 0 offen sc1
            s_mov_b64 exec, s[{sAct}:{sAct + 1}]
            L_gx:
            """)
        if q in (0, 4):
            st(f"I{q}")
        for r in range(4):
            i = 4 * q + r
            a(f"v_bfe_u32 v{vP + r}, v{vO + i}, 4, 6")
            if PSH == 16:
                a(f"v_mad_u32_u16 v{vP + r}, v{vI + i}, 40, v{vP + r} op_sel:[1,0,0,0]")
            else:
                a(f"v_lshrrev_b32 v{vP + 4}, {PSH}, v{vI + i}")
                a(f"v_mad_u32_u24 v{vP + r}, v{vP + 4}, 40, v{vP + r}")
            a(f"v_lshlrev_b32 v{vI + i}, 16, v{vI + i}")
            a(f"v_and_or_b32 v{vI + i}, v{vO + i}, s{sMask}, v{vI + i}")
            a(f"ds_write_b8 v{vR + i}, v{vP + r} offset:16")
            a(f"v_or_b32_sdwa v{vI + i}, v{vI + i}, v{vA + 2 * q + (r >> 1)} dst_sel:DWORD dst_unused:UNUSED_PAD src0_sel:DWORD src1_sel:WORD_{r & 1}")
            a(f"ds_write_b32 v{vJ + i}, v{vI + i}")
    vS = 64
    a(f"""
    s_mov_b64 exec, -1
    v_add_u32 v5, {STG}, v{vOff16}
    v_mov_b32 v{vP}, v{vOff16}
    """)
    if P["gate"] >= 0:
        a(f"""
        s_cmp_lg_u32 s{sW}, 7
        s_cbranch_scc1 L_gate_ok
        L_gate:
        s_waitcnt vmcnt(0)
        """)
        ctr_sum(None)
        a(f"""
        s_cbranch_scc1 L_gate_ok
        s_add_u32 s{sSpin}, s{sSpin}, 1
        s_cmp_gt_u32 s{sSpin}, {SPIN_MAX}
        s_cbranch_scc1 L_end
        s_mov_b64 exec, 15
        buffer_load_dword v{vCtr}, v{vCtr + 1}, s[{SDBG}:{SDBG + 3}], 0 offen sc1
        s_mov_b64 exec, -1
        s_branch L_gate
        L_gate_ok:
        """)
    a("""
    s_waitcnt lgkmcnt(0)
    s_barrier
    """)
    st("bar3")
    for i in range(7):
        a(f"ds_read_b128 {vr(vS + 4 * i, 4)}, v5 offset:{i * 8192}")
    a(f"""
    s_mov_b64 exec, s[{sX}:{sX + 1}]
    ds_write_b128 v{vP}, {vr(vPar, 4)} offset:{HIST}
    ds_write_b128 v{vP}, {vr(vPar + 4, 4)} offset:{HIST + 1024}
    s_mov_b64 exec, -1
    """)
    for i in range(7):
        a(f"s_mov_b32 s{sX + 4}, {i * 8192}")
        a(f"s_waitcnt lgkmcnt({8 - i})")
        a(f"buffer_store_dwordx4 {vr(vS + 4 * i, 4)}, v{vP}, s[{SRW}:{SRW + 3}], s{sX + 4} offen {P['rec_st']}")
    st("stissued")

    def poll(mask):
        a(f"""
        s_mov_b32 exec_lo, {mask}
        s_mov_b32 exec_hi, 0
        buffer_load_dword v{vSegW}, v{vSegA}, s[{SSEG}:{SSEG + 3}], s{sJ4} offen sc1
        """)

    if P["rot"]:
        first = [max(range(NP), key=lambda p: min((p + 1) << PSH, 20000 * (x + 1)) - max(p << PSH, 20000 * x)) for x in range(8)]
        phase_of_slot = f"""s_lshr_b32 s{sTk}, s{sJ}, 5
        s_mul_i32 s{sTk}, s{sTk}, 3
        s_lshr_b32 s{sTk}, {sum(((f + P["rot"] - 1) % NP) << (3 * x) for x, f in enumerate(first))}, s{sTk}
        s_and_b32 s{sTk}, s{sTk}, 7
        v_add_u32 v{vT + 6}, s{sTk}, v{vT + 6}
        v_subrev_u32 v{vT + 7}, {NP}, v{vT + 6}
        v_min_u32 v{vT + 6}, v{vT + 6}, v{vT + 7}"""
    else:
        phase_of_slot = f"""v_mul_u32_u24 v{vT + 6}, 3, v{vT + 6}
        v_mov_b32 v{vT + 7}, {sum(o << (3 * i) for i, o in enumerate(ORD))}
        v_bfe_u32 v{vT + 6}, v{vT + 7}, v{vT + 6}, 3"""
    cmap = {
        0: f"v_lshl_add_u32 v{vT + 2}, v{vT + 1}, 3, v{vT}",
        1: f"v_lshl_add_u32 v{vT + 2}, v{vT}, 5, v{vT + 1}",
        2: f"""v_add_u32 v{vT + 2}, v{vT + 1}, v{vT}
        v_and_b32 v{vT + 2}, 7, v{vT + 2}
        v_lshl_add_u32 v{vT + 2}, v{vT + 1}, 3, v{vT + 2}""",
    }[P["cmap"]]
    NB4 = P["nb"]
    if not NB4:
        a(f"""
        s_cmp_lg_u32 s{sW}, 7
        s_cbranch_scc1 L_nox
        """)
    a(f"""
    s_mov_b64 exec, 15
    buffer_load_dword v{vCtr}, v{vCtr + 1}, s[{SDBG}:{SDBG + 3}], 0 offen sc1
    s_mov_b64 exec, -1
    L_nox:
    v_lshrrev_b32 v{vT}, 6, v0
    v_and_b32 v{vLane}, 63, v0
    v_and_b32 v{vT + 1}, 31, v0
    {cmap}
    v_lshlrev_b32 v{vSegA}, 10, v{vT + 2}
    s_lshl_b32 s{sJ4}, s{sJ}, 2
    v_mul_u32_u24 v{vCb}, {CS}, v{vT + 2}
    v_and_b32 v{vT + 6}, 15, v{vLane}
    v_lshrrev_b32 v{vT + 7}, 4, v{vLane}
    v_mul_u32_u24 v{vLL20}, 20, v{vT + 6}
    v_lshlrev_b32 v{vDw}, 7, v{vT}
    v_add_u32 v{vDw}, {DESC}, v{vDw}
    v_lshl_add_u32 v{vDr}, v{vT + 7}, 4, v{vDw}
    v_mul_u32_u24 v{vT + 8}, 80, v{vT}
    v_add_u32 v{vT + 8}, v{vT + 8}, v{vT + 6}
    v_lshlrev_b32 v{vMoff}, 5, v{vT + 8}
    v_lshl_add_u32 v{vMoff}, v{vT + 7}, 3, v{vMoff}
    v_cmp_gt_u32 vcc, {BK - 64}, v{vT + 8}
    v_mov_b32 v{vT + 9}, 0x7fffff00
    v_lshlrev_b32 v{vDoff}, 1, v{vT + 8}
    v_cndmask_b32 v{vOut4}, v{vT + 9}, v{vMoff}, vcc
    v_mov_b32 v{vZero}, 0
    v_mov_b32 v{vFour}, 4
    v_lshrrev_b32 v{vT + 5}, 1, v{vLane}
    v_lshlrev_b32 v{vLH4}, 2, v{vT + 5}
    v_and_b32 v{vHalf16}, 1, v{vLane}
    v_lshlrev_b32 v{vHalf16}, 4, v{vHalf16}
    v_bfe_u32 v{vT + 6}, v{vT + 5}, 2, 1
    v_bfe_u32 v{vT + 7}, v{vT + 5}, 4, 1
    v_lshl_add_u32 v{vT + 6}, v{vT + 7}, 1, v{vT + 6}
    v_and_b32 v{vT + 7}, 3, v{vT + 5}
    v_bfe_u32 v{vT + 8}, v{vT + 5}, 3, 1
    v_lshl_add_u32 v{vT + 7}, v{vT + 8}, 2, v{vT + 7}
    v_lshlrev_b32 v{vT + 7}, 1, v{vT + 7}
    v_lshl_add_u32 v{vSc}, v{vT + 6}, 8, v{vT + 7}
    v_lshlrev_b32 v{vT + 8}, 10, v{vT}
    v_add_u32 v{vT + 8}, {SB}, v{vT + 8}
    v_add_u32 v{vSc}, v{vSc}, v{vT + 8}
    v_lshl_add_u32 v{vSrd}, v{vLane}, 4, v{vT + 8}
    v_bfe_u32 v{vT + 6}, v{vLane}, 4, 1
    v_bfe_u32 v{vT + 7}, v{vLane}, 5, 1
    v_lshlrev_b32 v{vT + 7}, 4, v{vT + 7}
    v_lshl_add_u32 v{vT + 6}, v{vT + 6}, 2, v{vT + 7}
    v_bfe_u32 v{vT + 7}, v{vLane}, 2, 2
    v_add_u32 v{vT + 6}, v{vT + 6}, v{vT + 7}
    v_and_b32 v{vT + 7}, 3, v{vLane}
    v_lshlrev_b32 v{vT + 7}, 3, v{vT + 7}
    v_lshl_add_u32 v{vTr}, v{vT + 6}, 5, v{vT + 7}
    v_lshlrev_b32 v{vT + 8}, 12, v{vT}
    v_add_u32 v{vT + 8}, {RING}, v{vT + 8}
    v_add_u32 v{vTr}, v{vTr}, v{vT + 8}
    v_mul_u32_u24 v{vT + 6}, 52, v{vLane}
    v_lshrrev_b32 v{vT + 6}, 8, v{vT + 6}
    v_mul_u32_u24 v{vT + 8}, 5, v{vT + 6}
    v_sub_u32 v{vT + 8}, v{vLane}, v{vT + 8}
    {phase_of_slot}
    v_lshrrev_b32 v{vPh}, {16 - PSH}, v{vT + 6}
    v_lshlrev_b32 v{vPh}, 21, v{vPh}
    v_mul_u32_u24 v{vT + 6}, 40, v{vT + 6}
    v_mul_u32_u24 v{vT + 7}, 5, v{vT}
    v_add3_u32 v{vT + 6}, v{vT + 6}, v{vT + 7}, v{vT + 8}
    v_add_u32 v{vT + 6}, 1, v{vT + 6}
    v_lshlrev_b32 v{vCntA}, 2, v{vT + 6}
    """)
    bin_addr(vBase, vT + 6, vT + 7)
    a(f"""
    v_cmp_lt_u32 vcc, {5 * NP - 1}, v{vLane}
    v_mov_b32 v{vT + 8}, {ZB}
    s_nop 0
    v_cndmask_b32 v{vBase}, v{vBase}, v{vT + 8}, vcc
    v_cndmask_b32 v{vPh}, v{vPh}, v{vZero}, vcc
    v_cndmask_b32 v{vCntA}, v{vCntA}, v{vZero}, vcc
    """)
    NCHK = -(-(NB + 1) // 64)
    for k in range(NCHK):
        a(f"v_add_u32 v{vT + 6}, {64 * k + 1}, v{vLane}")
        bin_addr(vLim + k, vT + 6, vT + 7)
    cnt_init(vT, sTk)
    fill(vT + 4, SB, NFILL, RING)
    for k in range(20):
        a(f"v_mov_b32 v{vAcc + k}, 0")
    if P["stamps"]:
        a("s_mov_b32 s97, 0")
        a("s_mov_b64 s[100:101], 0")
    a(f"""
    s_mov_b32 s{sPend}, -1
    s_mov_b32 s{sReady}, 0
    s_mov_b32 s{sPrevN}, 0
    s_mov_b32 s{sRetry}, 0
    s_mov_b64 s[{sLate}:{sLate + 1}], -1
    s_mul_i32 s{sDo}, s{sJ}, {BK * 2}
    s_mul_i32 s{sMo}, s{sJ}, {BK * 32}
    """)
    if P["dma"]:
        a(f"""
        s_mul_i32 s{sRes}, s{sW}, {RESW}
        s_add_u32 s{sRes}, s{sRes}, {RES}
        s_mul_i32 s{sTk}, s{sW}, 2560
        v_lshlrev_b32 v{vResG}, 4, v{vLane}
        v_add_u32 v{vResG}, s{sTk}, v{vResG}
        v_subrev_u32 v{vResL}, s{sTk}, v{vMoff}
        v_add_u32 v{vResL}, s{sRes}, v{vResL}
        s_mul_i32 s{sTk}, s{sW}, 160
        v_subrev_u32 v{vDstL}, s{sTk}, v{vDoff}
        v_lshlrev_b32 v{vDoff}, 2, v{vLane}
        v_add_u32 v{vDoff}, s{sTk}, v{vDoff}
        s_and_b32 s{sTk}, s{sDo}, 2
        s_and_b32 s{sDo}, s{sDo}, -4
        s_add_u32 s{sTk}, s{sTk}, s{sRes}
        v_add_u32 v{vDstL}, s{sTk}, v{vDstL}
        """)
    a(f"""
    """)
    if NB4:
        a(f"""
        v_lshlrev_b32 v{vP}, 4, v{vLane}
        s_waitcnt lgkmcnt(0)
        s_barrier
        s_waitcnt vmcnt(0)
        s_mov_b64 exec, 1
        ds_add_rtn_u32 v{vT}, v{vZero}, v{vFour} offset:{CNT + 255 * 4}
        s_mov_b64 exec, -1
        s_waitcnt lgkmcnt(0)
        v_readfirstlane_b32 s{sTk}, v{vT}
        s_cmp_lg_u32 s{sTk}, 28
        s_cbranch_scc1 L_ctr
        buffer_store_dwordx4 {vr(vSeg, 4)}, v{vP}, s[{SSEG}:{SSEG + 3}], s{sX + 2} offen sc1
        """)
    else:
        a(f"""
        s_waitcnt vmcnt(0) lgkmcnt(0)
        s_cmp_lg_u32 s{sW}, 7
        s_cbranch_scc1 L_ctr_ok
        """)
    a(f"""
    L_ctr:
    """)
    ctr_sum(None)
    a(f"""
    s_cbranch_scc1 L_ctr_ok
    s_add_u32 s{sSpin}, s{sSpin}, 1
    s_cmp_gt_u32 s{sSpin}, {SPIN_MAX}
    s_cbranch_scc1 L_end
    s_mov_b64 exec, 15
    buffer_load_dword v{vCtr}, v{vCtr + 1}, s[{SDBG}:{SDBG + 3}], 0 offen sc1
    s_mov_b64 exec, -1
    s_waitcnt vmcnt(0)
    s_branch L_ctr
    L_ctr_ok:
    s_mov_b32 s{sSpin}, 0
    """)
    st("drained")

    NLATE = 4 if P["dma"] else 10

    def late_loads():
        a(f"s_mov_b64 exec, s[{sLate}:{sLate + 1}]")
        if P["dma"]:
            for k in range(3):
                a(f"s_add_u32 m0, s{sRes}, 0")
                if k == 2:
                    a("s_mov_b32 exec_hi, 0")
                else:
                    a("s_nop 0")
                a(f"buffer_load_dwordx4 v{vResG}, s[{SM}:{SM + 3}], s{sMo} offen offset:{1024 * k} lds")
            a(f"""
            s_add_u32 m0, s{sRes}, 2560
            s_and_b32 exec_hi, s{sLate + 1}, 0x1ff
            buffer_load_dword v{vDoff}, s[{SDIST}:{SDIST + 3}], s{sDo} offen lds
            """)
        else:
            for g in range(5):
                a(f"buffer_load_ushort v{vDist + g}, v{vDoff}, s[{SDIST}:{SDIST + 3}], s{sDo} offen offset:{32 * g}")
            for g in range(5):
                a(f"buffer_load_dwordx2 {vr(vMr + 2 * g, 2)}, v{vMoff}, s[{SM}:{SM + 3}], s{sMo} offen offset:{512 * g}")
        a(f"s_mov_b64 s[{sLate}:{sLate + 1}], 0")

    if not NB4:
        a(f"""
        s_barrier
        s_mov_b64 exec, s[{sX}:{sX + 1}]
        buffer_store_dwordx4 {vr(vSeg, 4)}, v{vP}, s[{SSEG}:{SSEG + 3}], s{sX + 2} offen sc1
        """)
    st("pub")
    a("s_branch L_idle3")

    dbg = [0]

    def once(lane):
        if P["stamps"] != 1:
            return
        dbg[0] += 1
        a(f"""
        s_bitcmp1_b64 s[100:101], {lane}
        s_cbranch_scc1 L_once{dbg[0]}
        s_bitset1_b64 s[100:101], {lane}
        s_memrealtime s[98:99]
        s_waitcnt lgkmcnt(0)
        v_writelane_b32 v207, s98, {lane}
        L_once{dbg[0]}:
        """)

    def slot(bank, s):
        return vSlot + 6 * (4 * bank + s), sMk + 2 * (4 * bank + s)

    def rec_issue(bank, s):
        w, m = slot(bank, s)
        a(f"""
        s_mov_b64 exec, -1
        v_add_u32 v{w + 5}, v{vL0 + s}, v{vLL20}
        v_cmp_lt_u32 s[{m}:{m + 1}], v{vLL20}, v{vL1 + s}
        s_mov_b64 exec, s[{m}:{m + 1}]
        buffer_load_dwordx4 {vr(w, 4)}, v{w + 5}, s[{SREC}:{SREC + 3}], 0 offen {P["rec_ld"]}
        buffer_load_dword v{w + 4}, v{w + 5}, s[{SREC}:{SREC + 3}], 0 offen offset:16 {P["rec_ld"]}
        """)

    PP = P["pollpos"]

    def round_ops(upto):
        ops = []
        for s in range(upto + 1):
            if s == PP:
                ops.append("P")
            ops += [s, s]
        if upto == 3 and PP == 4:
            ops.append("P")
        return ops

    def issue_slot(bank, s):
        if s == PP:
            poll(f"s{sPend}")
        rec_issue(bank, s)
        if s == 3 and PP == 4:
            poll(f"s{sPend}")

    def process(bank, issue_bank, extra):
        prev = round_ops(3)
        for s in range(4):
            n = len(prev) - 1 - (len(prev) - 1 - prev[::-1].index(s)) + extra
            if issue_bank is not None:
                issue_slot(issue_bank, s)
                n += len(round_ops(s))
            a(f"s_waitcnt vmcnt({n})")
            if s == 0:
                once(46)
            place_atomics(*slot(bank, s), vRk + 4 * (s & 1))
            if s > 0:
                a(f"s_waitcnt lgkmcnt({4 if s == 1 else 8})")
                place_writes(*slot(bank, s - 1), vRk + 4 * ((s - 1) & 1))
        a("s_waitcnt lgkmcnt(4)")
        place_writes(*slot(bank, 3), vRk + 4)

    for X in range(2):
        Y = 1 - X
        a(f"""
        L_top{X}:
        s_mov_b32 exec_lo, s{sPend}
        s_mov_b32 exec_hi, 0
        s_cbranch_execz L_nowait{X}
        s_waitcnt vmcnt({8 - 2 * PP})
        L_nowait{X}:
        v_cmp_gt_i32 vcc, 0, v{vSegW}
        s_and_b32 s{sTk}, s{sPend}, vcc_lo
        s_andn2_b32 s{sPend}, s{sPend}, s{sTk}
        s_mov_b32 exec_lo, s{sTk}
        v_and_b32 v{vT}, 0xfff, v{vSegW}
        v_bfe_u32 v{vT + 1}, v{vSegW}, 12, 12
        v_mad_u32_u24 v{vD0}, v{vT}, 20, v{vCb}
        v_mul_u32_u24 v{vHi}, 20, v{vT + 1}
        s_or_b32 s{sReady}, s{sReady}, s{sTk}
        s_cbranch_scc1 L_{"some" if P["thr"] else "take"}{X}
        s_cmp_eq_u32 s{sPrevN}, 0
        s_cbranch_scc1 L_idle
        s_cmp_eq_u32 s{sPend}, 0
        s_cbranch_scc1 L_final{X}
        L_take{X}:
        """)
        if P["stamps"] == 1:
            a(f"""
            s_add_u32 s97, s97, 1
            s_memrealtime s[98:99]
            s_waitcnt lgkmcnt(0)
            s_mov_b32 s96, s98
            s_cmp_eq_u32 s97, 1
            s_cbranch_scc0 L_dbg{X}
            v_writelane_b32 v207, s98, 43
            s_bcnt1_i32_b32 s99, s{sReady}
            v_writelane_b32 v207, s99, 44
            L_dbg{X}:
            """)
        a(f"""
        s_mov_b32 exec_lo, 0xffff
        v_lshl_add_u32 v{vT + 3}, v{vLane}, 2, v{vDw}
        ds_write_b32 v{vT + 3}, v{vZero} offset:64
        s_mov_b32 exec_lo, s{sReady}
        v_mbcnt_lo_u32_b32 v{vT}, s{sReady}, 0
        v_cmp_gt_u32 vcc, 16, v{vT}
        s_and_b32 s{sCurN}, s{sReady}, vcc_lo
        s_mov_b32 exec_lo, s{sCurN}
        v_and_b32 v{vT + 2}, 3, v{vT}
        v_lshrrev_b32 v{vT}, 2, v{vT}
        v_min_u32 v{vT + 1}, 320, v{vHi}
        v_lshl_add_u32 v{vT}, v{vT + 2}, 2, v{vT}
        v_sub_u32 v{vHi}, v{vHi}, v{vT + 1}
        v_lshl_add_u32 v{vT}, v{vT}, 2, v{vDw}
        ds_write_b32 v{vT}, v{vD0}
        ds_write_b32 v{vT}, v{vT + 1} offset:64
        v_cmp_lt_u32 vcc, 0, v{vHi}
        v_add_u32 v{vD0}, 320, v{vD0}
        s_andn2_b32 s{sReady}, s{sReady}, s{sCurN}
        s_and_b32 s{sTk}, s{sCurN}, vcc_lo
        s_or_b32 s{sReady}, s{sReady}, s{sTk}
        s_mov_b64 exec, -1
        ds_read_b128 {vr(vL0, 4)}, v{vDr}
        ds_read_b128 {vr(vL1, 4)}, v{vDr} offset:64
        s_cmp_eq_u32 s{sPrevN}, 0
        s_mov_b32 s{sPrevN}, s{sCurN}
        s_waitcnt lgkmcnt(0)
        s_cbranch_scc1 L_only{X}
        """)
        process(Y, X, 0)
        a(f"s_branch L_top{Y}")
    if P["thr"]:
        for X in range(2):
            a(f"""
            L_some{X}:
            s_cmp_lg_u32 s{sPrevN}, 0
            s_cbranch_scc1 L_take{X}
            s_cmp_eq_u32 s{sPend}, 0
            s_cbranch_scc1 L_take{X}
            s_bcnt1_i32_b32 s{sTk}, s{sReady}
            s_cmp_ge_u32 s{sTk}, {P["thr"]}
            s_cbranch_scc1 L_take{X}
            s_branch L_idle2
            """)
    for X in range(2):
        a(f"L_only{X}:")
        for s in range(4):
            issue_slot(X, s)
        a(f"s_branch L_top{1 - X}")
    for X in range(2):
        a(f"L_final{X}:")
        once(45)
        if P["lsplit"]:
            a(f"""
            s_mov_b64 s[{sTk}:{sTk + 1}], s[{sLate}:{sLate + 1}]
            s_cmp_lt_u32 s{sW}, {P["lsplit"]}
            s_cselect_b64 s[{sLate}:{sLate + 1}], 0, s[{sLate}:{sLate + 1}]
            """)
        late_loads()
        if P["lsplit"]:
            a(f"""
            s_cmp_lt_u32 s{sW}, {P["lsplit"]}
            s_cselect_b64 s[{sLate}:{sLate + 1}], s[{sTk}:{sTk + 1}], 0
            """)
        process(1 - X, None, NLATE)
        a("s_branch L_taken")
    a(f"""
    L_idle:
    s_cmp_eq_u32 s{sPend}, 0
    s_cbranch_scc1 L_idle_late
    s_cmp_lt_u32 s{sSpin}, {P["latespin"]}
    s_cbranch_scc1 L_idle2
    L_idle_late:
    """)
    late_loads()
    a(f"""
    s_cmp_eq_u32 s{sPend}, 0
    s_cbranch_scc1 L_taken
    L_idle2:
    s_add_u32 s{sSpin}, s{sSpin}, 1
    s_cmp_gt_u32 s{sSpin}, {SPIN_MAX}
    s_cbranch_scc1 L_end
    L_idle3:
    """)
    poll(f"s{sPend}")
    a(f"""
    s_waitcnt vmcnt(0)
    s_branch L_top0
    L_taken:
    """)
    if P["lsplit"]:
        late_loads()
    a(f"""
    s_mov_b64 exec, -1
    s_mov_b32 s{sLast}, 1
    s_mov_b32 s{sFirst}, 1
    s_movk_i32 s{sF0}, 0xf0
    s_movk_i32 s{s70}, 0x70
    s_lshl_b32 s{sRingB}, s{sW}, 12
    s_add_u32 s{sRingB}, s{sRingB}, {RING}
    s_mul_i32 s{sRowOff}, s{sJ}, {BK * 32}
    v_lshlrev_b32 v{vT}, 2, v{vLane}
    s_waitcnt lgkmcnt(0)
    """)
    st("intake")
    if P["stamps"] == 1:
        a(f"v_writelane_b32 v207, s{sSpin}, 40")
        a("v_writelane_b32 v207, s97, 41")
        a("v_writelane_b32 v207, s96, 42")
    a("s_barrier")
    st("bar5")
    for k in range(NCHK):
        a(f"ds_read_b32 v{vT + 1 + k}, v{vT} offset:{CNT + 256 * k}")
    a(f"""
    ds_read_b32 v{vEnd}, v{vCntA} offset:{CNT}
    s_waitcnt lgkmcnt(1)
    v_cmp_gt_u32 vcc, v{vT + 1}, v{vLim}
    """)
    for k in range(1, NCHK):
        a(f"v_cmp_gt_u32 s[{sT + 2 * k}:{sT + 2 * k + 1}], v{vT + 1 + k}, v{vLim + k}")
    for k in range(1, NCHK):
        a(f"s_or_b64 vcc, vcc, s[{sT + 2 * k}:{sT + 2 * k + 1}]")
    if P["force_slow"]:
        a("s_cmp_eq_u32 0, 0")
    a(f"""
    s_cbranch_scc0 L_G
    s_cmp_lg_u32 s{sRetry}, 0
    s_cbranch_scc1 L_G
    """)
    c, x, k = vT + 4, vT + 12, vT + 13
    a(f"""
    v_lshlrev_b32 v{vT}, 4, v{vLane}
    ds_read_b128 {vr(c, 4)}, v{vT} offset:{CNT}
    s_waitcnt lgkmcnt(0)
    """)
    for i in range(4):
        a(f"v_lshl_add_u32 v{k}, v{vLane}, 2, {i}")
        bin_addr(vT + 1, k, vT + 2)
        a(f"""
        v_subrev_u32 v{k}, 1, v{k}
        v_sub_u32 v{c + i}, v{c + i}, v{vT + 1}
        v_cmp_gt_u32 vcc, {NB}, v{k}
        v_add_u32 v{c + i}, 127, v{c + i}
        v_and_b32 v{c + i}, 0xffffff80, v{c + i}
        v_cndmask_b32 v{c + i}, v{vZero}, v{c + i}, vcc
        """)
    b = vT + 8
    a(f"""
    v_add_u32 v{b + 2}, v{c}, v{c + 1}
    v_add_u32 v{b + 3}, v{b + 2}, v{c + 2}
    v_add_u32 v{b}, v{b + 3}, v{c + 3}
    v_mov_b32 v{x}, v{b}
    """)
    for ctl in ("row_shr:1 row_mask:0xf", "row_shr:2 row_mask:0xf", "row_shr:4 row_mask:0xf", "row_shr:8 row_mask:0xf",
                "row_bcast:15 row_mask:0xa", "row_bcast:31 row_mask:0xc"):
        a(f"s_nop 1\nv_add_u32_dpp v{x}, v{x}, v{x} {ctl} bank_mask:0xf")
    a(f"""
    v_sub_u32 v{b}, v{x}, v{b}
    v_add_u32 v{b}, {AB}, v{b}
    v_add_u32 v{b + 1}, v{b}, v{c}
    v_add_u32 v{b + 2}, v{b}, v{b + 2}
    v_add_u32 v{b + 3}, v{b}, v{b + 3}
    v_readlane_b32 s{sT}, v{x}, 63
    s_mov_b32 s{sT + 1}, {TRASH}
    v_writelane_b32 v{b}, s{sT + 1}, 0
    s_cmp_gt_u32 s{sT}, {ZB - AB if not (P["force_slow"] & 2) else 0}
    s_cbranch_scc1 L_slow_init
    s_waitcnt vmcnt(0)
    s_barrier
    ds_write_b128 v{vT}, {vr(b, 4)} offset:{CNT}
    """)
    fill(vT + 4, SB, NFILL, RING)
    a(f"""
    s_waitcnt lgkmcnt(0)
    s_barrier
    ds_read_b32 v{vT + 1}, v{vCntA} offset:{CNT}
    v_cmp_lt_u32 vcc, {5 * NP - 1}, v{vLane}
    s_mov_b32 s{sRetry}, 1
    s_mov_b32 s{sPend}, -1
    s_mov_b32 s{sReady}, 0
    s_mov_b32 s{sPrevN}, 0
    s_lshl_b32 s{sJ4}, s{sJ}, 2
    s_mov_b64 s[{sLate}:{sLate + 1}], -1
    s_waitcnt lgkmcnt(0)
    v_cndmask_b32 v{vBase}, v{vT + 1}, v{vBase}, vcc
    s_barrier
    s_branch L_idle3
    L_slow_init:
    s_mov_b32 s{sSC}, 0
    s_mov_b32 s{sSU}, 0
    s_mov_b32 s{sLast}, 0
    s_mov_b64 s[{sLate}:{sLate + 1}], -1
    L_slow:
    s_waitcnt vmcnt(0) lgkmcnt(0)
    s_barrier
    """)
    if P["dma"]:
        late_loads()
        a("s_mov_b64 exec, -1")
    cnt_init(vT, sT)
    fill(vT + 4, SB, NFILL, RING)
    a(f"""
    s_waitcnt lgkmcnt(0)
    s_barrier
    s_cmp_lt_u32 s{sSC}, {NCH}
    s_cbranch_scc1 L_slow_unit
    s_mov_b32 s{sLast}, 1
    s_branch L_slow_go
    L_slow_unit:
    s_lshl_b32 s{sT}, s{sSC}, 10
    s_lshl_b32 s{sT + 1}, s{sJ}, 2
    s_add_u32 s{sT}, s{sT}, s{sT + 1}
    buffer_load_dword v{vT}, v{vZero}, s[{SSEG}:{SSEG + 3}], s{sT} offen sc1
    s_waitcnt vmcnt(0)
    v_readfirstlane_b32 s{sT + 2}, v{vT}
    s_and_b32 s{sT + 1}, s{sT + 2}, 0xfff
    s_mul_i32 s{sT + 1}, s{sT + 1}, 20
    s_bfe_u32 s{sT + 2}, s{sT + 2}, 0xc000c
    s_mul_i32 s{sT + 2}, s{sT + 2}, 20
    s_mul_i32 s{sT + 3}, s{sSC}, {CS}
    s_add_u32 s{sT + 3}, s{sT + 3}, s{sT + 1}
    s_add_u32 s{sT + 3}, s{sT + 3}, s{sSU}
    s_sub_u32 s{sT + 4}, s{sT + 2}, s{sSU}
    s_min_u32 s{sT + 4}, s{sT + 4}, 480
    s_cmp_lg_u32 s{sW}, 0
    s_cbranch_scc1 L_slow_adv
    v_mul_u32_u24 v{vT}, 20, v{vLane}
    v_cmp_gt_u32 s[{sT + 6}:{sT + 7}], s{sT + 4}, v{vT}
    s_mov_b64 exec, s[{sT + 6}:{sT + 7}]
    buffer_load_dwordx4 {vr(vSlot, 4)}, v{vT}, s[{SREC}:{SREC + 3}], s{sT + 3} offen sc1
    buffer_load_dword v{vSlot + 4}, v{vT}, s[{SREC}:{SREC + 3}], s{sT + 3} offen offset:16 sc1
    s_waitcnt vmcnt(0)
    """)
    place_atomics(vSlot, sT + 6, vRk)
    a("s_waitcnt lgkmcnt(0)")
    place_writes(vSlot, sT + 6, vRk)
    a(f"""
    s_mov_b64 exec, -1
    L_slow_adv:
    s_add_u32 s{sSU}, s{sSU}, 480
    s_cmp_lt_u32 s{sSU}, s{sT + 2}
    s_cbranch_scc1 L_slow_go
    s_add_u32 s{sSC}, s{sSC}, 1
    s_mov_b32 s{sSU}, 0
    L_slow_go:
    s_waitcnt lgkmcnt(0)
    s_barrier
    ds_read_b32 v{vEnd}, v{vCntA} offset:{CNT}
    L_G:
    v_cmp_lt_u32 vcc, {5 * NP - 1}, v{vLane}
    v_add_u32 v{vT + 1}, 128, v{vBase}
    s_mov_b32 s{sCur}, 0
    s_waitcnt lgkmcnt(0)
    v_cndmask_b32 v{vEnd}, v{vEnd}, v{vT + 1}, vcc
    v_cmp_gt_u32 vcc, v{vEnd}, v{vBase}
    v_sub_u32 v{vEnd}, v{vEnd}, v{vBase}
    v_add_u32 v{vEnd}, 127, v{vEnd}
    v_and_b32 v{vEnd}, 0xffffff80, v{vEnd}
    v_add_u32 v{vEnd}, v{vEnd}, v{vBase}
    s_and_b32 s{sNE}, vcc_lo, {(1 << 5 * NP) - 1}
    """)

    def next_bin():
        a(f"""
        s_ff1_i32_b32 s{sL}, s{sNE}
        s_bitset0_b32 s{sNE}, s{sL}
        v_readlane_b32 s{sIA}, v{vBase}, s{sL}
        v_readlane_b32 s{sIE}, v{vEnd}, s{sL}
        v_readlane_b32 s{sIP}, v{vPh}, s{sL}
        """)

    next_bin()
    NRD = D + 1 if P["sp"] else D
    for k in range(NRD):
        a(f"""
        s_mov_b32 s{sT + k}, s{sIP}
        s_nop 0
        v_add_u32 v{vT + k}, s{sIA}, v{vLH4}
        ds_read_b32 v{vWq + k}, v{vT + k}
        s_add_u32 s{sIA}, s{sIA}, 128
        s_cmp_lg_u32 s{sIA}, s{sIE}
        s_cbranch_scc1 L_pro{k}
        """)
        next_bin()
        a(f"L_pro{k}:")
    for k in range(D):
        a(f"""
        s_add_u32 m0, s{sRingB}, {k * 1024}
        s_waitcnt lgkmcnt({NRD - 1 - k})
        v_mad_u32_u16 v{vT + k}, v{vWq + k}, 32, v{vHalf16} op_sel:[1,0,0,0]
        buffer_load_dwordx4 v{vT + k}, s[{SM}:{SM + 3}], s{sT + k} offen {P["gather"]} lds
        """)
    if P["sp"]:
        a(f"""
        s_mov_b32 s{sIPn}, s{sT + D}
        s_waitcnt lgkmcnt(0)
        """)

    def gates(tag):
        a(f"""
        s_cmp_eq_u32 s{sFirst}, 0
        s_cbranch_scc1 L_gates_done
        s_mov_b32 s{sFirst}, 0
        """)
        a(f"""
        v_and_b32 v{vT + 4}, 15, v{vLane}
        v_lshrrev_b32 v{vT + 5}, 4, v{vLane}
        v_lshlrev_b32 v{vT + 4}, 1, v{vT + 4}
        v_lshl_add_u32 v{vT + 6}, v{vT + 5}, 6, v{vT + 4}
        v_lshl_add_u32 v{vT + 4}, v{vT + 5}, 7, v{vT + 4}
        v_lshlrev_b32 v{vT + 5}, 2, v{vT + 5}
        """)
        for k in range(4):
            a(f"ds_read_u16 v{vWraw + k}, v{vT + 4} offset:{HIST + 32 * k}")
            a(f"ds_read_u16 v{vWraw + 4 + k}, v{vT + 4} offset:{HIST + 512 + 32 * k}")
        for k in range(2):
            a(f"ds_read_u16 v{vWraw + 8 + k}, v{vT + 6} offset:{HIST + 1024 + 32 * k}")
            a(f"ds_read_u16 v{vWraw + 10 + k}, v{vT + 6} offset:{HIST + 1280 + 32 * k}")
        a(f"""
        ds_read_b32 v{vCen}, v{vT + 5} offset:{HIST + 1536}
        s_waitcnt vmcnt({D})
        """)
        if P["dma"]:
            for g in range(5):
                a(f"ds_read_u16 v{vDist + g}, v{vDstL} offset:{2560 + 32 * g}")
            for g in range(5):
                a(f"ds_read_b64 {vr(vMr + 2 * g, 2)}, v{vResL} offset:{512 * g}")
        a(f"""
        s_waitcnt lgkmcnt(0)
        v_lshl_or_b32 v{vWd}, v{vWraw + 1}, 16, v{vWraw}
        v_lshl_or_b32 v{vWd + 1}, v{vWraw + 3}, 16, v{vWraw + 2}
        v_lshl_or_b32 v{vWu}, v{vWraw + 5}, 16, v{vWraw + 4}
        v_lshl_or_b32 v{vWu + 1}, v{vWraw + 7}, 16, v{vWraw + 6}
        v_lshl_or_b32 v{vWs}, v{vWraw + 9}, 16, v{vWraw + 8}
        v_lshl_or_b32 v{vWr}, v{vWraw + 11}, 16, v{vWraw + 10}
        v_mov_b32 v{vWd + 2}, v{vWd}
        v_mov_b32 v{vWd + 3}, v{vWd + 1}
        v_mov_b32 v{vWu + 2}, v{vWu}
        v_mov_b32 v{vWu + 3}, v{vWu + 1}
        v_mov_b32 v{vWs + 1}, 0
        v_mov_b32 v{vWr + 1}, 0
        v_mov_b32 v{vRb + 1}, 0
        v_mov_b32 v{vRb + 3}, 0
        v_and_b32 v{vCen + 1}, 0xffff0000, v{vCen}
        v_lshlrev_b32 v{vCen}, 16, v{vCen}
        """)
        for g in range(5):
            t = vT + 4
            rb = vRb + 2 * (g & 1)
            a(f"""
            v_lshlrev_b32 v{t + 2}, 16, v{vDist + g}
            v_sub_f32 v{t}, v{t + 2}, v{vCen}
            v_sub_f32 v{t + 1}, v{t + 2}, v{vCen + 1}
            v_cvt_pk_bf16_f32 v{t + 2}, v{t}, v{t + 1}
            v_lshlrev_b32 v{t}, 16, v{t + 2}
            v_and_b32 v{t + 1}, 0xffff0000, v{t + 2}
            v_mul_f32 v{t}, v{t}, v{t}
            v_mul_f32 v{t + 1}, v{t + 1}, v{t + 1}
            v_cvt_pk_bf16_f32 v{t + 2}, v{t}, v{t + 1}
            v_lshlrev_b32 v{t}, 16, v{t + 2}
            v_and_b32 v{t + 1}, 0xffff0000, v{t + 2}
            v_mul_f32 v{t}, 0xc1200000, v{t}
            v_mul_f32 v{t + 1}, 0xc1200000, v{t + 1}
            v_cvt_pk_bf16_f32 v{t + 2}, v{t}, v{t + 1}
            v_lshlrev_b32 v{t}, 16, v{t + 2}
            v_and_b32 v{t + 1}, 0xffff0000, v{t + 2}
            v_mul_f32 v{t}, 0x3fb8aa3b, v{t}
            v_mul_f32 v{t + 1}, 0x3fb8aa3b, v{t + 1}
            v_exp_f32 v{t}, v{t}
            v_exp_f32 v{t + 1}, v{t + 1}
            s_nop 0
            v_cvt_pk_bf16_f32 v{rb}, v{t}, v{t + 1}
            s_nop 1
            v_mfma_f32_16x16x16_bf16 {vr(vG + 4 * g, 4)}, {vr(vWs, 2)}, {vr(rb, 2)}, 0
            v_mfma_f32_16x16x16_bf16 {vr(vH + 4 * g, 4)}, {vr(vWr, 2)}, {vr(rb, 2)}, 0
            """)
        a("L_gates_done:")
        st("GH")

    a(f"s_movk_i32 s{sPrev}, {D * 1024}")
    st("Gissued")
    gates(0)
    a("L_main:")

    def split(src, dst, t):
        a(f"""
        v_cvt_pk_bf16_f32 v{dst}, v{src}, v{src + 1}
        v_cvt_pk_bf16_f32 v{dst + 1}, v{src + 2}, v{src + 3}
        v_lshlrev_b32 v{t}, 16, v{dst}
        v_and_b32 v{t + 1}, 0xffff0000, v{dst}
        v_lshlrev_b32 v{t + 2}, 16, v{dst + 1}
        v_and_b32 v{t + 3}, 0xffff0000, v{dst + 1}
        v_sub_f32 v{t}, v{src}, v{t}
        v_sub_f32 v{t + 1}, v{src + 1}, v{t + 1}
        v_sub_f32 v{t + 2}, v{src + 2}, v{t + 2}
        v_sub_f32 v{t + 3}, v{src + 3}, v{t + 3}
        v_cvt_pk_bf16_f32 v{dst + 2}, v{t}, v{t + 1}
        v_cvt_pk_bf16_f32 v{dst + 3}, v{t + 2}, v{t + 3}
        s_nop 1
        """)

    def prio(b):
        pat = P["prio"]
        if not pat:
            return ""
        cur = pat[b % len(pat)]
        if b % 5 and cur == pat[(b - 1) % len(pat)]:
            return ""
        return f"""s_cmp_lt_u32 s{sW}, 4
        s_cbranch_scc1 L_pr{b}
        s_setprio {1 if cur == "y" else 0}
        L_pr{b}:"""

    ring_adv = f"s_mov_b32 s{sPrev}, s{sCur}" if D == R - 1 else f"s_add_u32 s{sPrev}, s{sPrev}, 1024\ns_and_b32 s{sPrev}, s{sPrev}, {R * 1024 - 1}"
    def step(b, acc):
        if not P["sp"]:
            D = P["D"]
            return f"""
            s_add_u32 m0, s{sRingB}, s{sPrev}
            v_add_u32 v{vT}, s{sIA}, v{vLH4}
            v_add_u32 v{vT + 1}, s{sC}, v{vLH4}
            ds_read_b32 v{vT}, v{vT}
            ds_read_b32 v{vT + 1}, v{vT + 1}
            v_add_u32 v{vT + 3}, s{sCur}, v{vTr}
            {ring_adv}
            s_add_u32 s{sCur}, s{sCur}, 1024
            s_and_b32 s{sCur}, s{sCur}, {R * 1024 - 1}
            s_add_u32 s{sC}, s{sC}, 128
            s_add_u32 s{sIA}, s{sIA}, 128
            s_cmp_eq_u32 s{sIA}, s{sIE}
            s_waitcnt lgkmcnt(1)
            v_mad_u32_u16 v{vT}, v{vT}, 32, v{vHalf16} op_sel:[1,0,0,0]
            buffer_load_dwordx4 v{vT}, s[{SM}:{SM + 3}], s{sIP} offen {P["gather"]} lds
            s_cbranch_scc1 L_nb{b}
            L_nb{b}_back:
            s_waitcnt lgkmcnt(0)
            v_and_b32 v{vT + 2}, 0xbff8, v{vT + 1}
            v_lshlrev_b32 v{vT + 4}, 4, v{vT + 1}
            v_lshrrev_b32 v{vT + 5}, 7, v{vT + 1}
            v_cvt_f32_f16 v{vT + 2}, v{vT + 2}
            v_bfi_b32 v{vT + 4}, s{s70}, v{vT + 4}, v{vT + 5}
            v_and_or_b32 v{vT + 4}, v{vT + 4}, s{sF0}, v{vSc}
            ds_write_b16_d16_hi v{vT + 4}, v{vT + 2}
            ds_read_b128 {vr(vSt, 4)}, v{vSrd}
            ds_write_b16 v{vT + 4}, v{vZero}
            s_waitcnt vmcnt({D})
            ds_read_b64_tr_b16 {vr(vMt, 2)}, v{vT + 3}
            ds_read_b64_tr_b16 {vr(vMt + 2, 2)}, v{vT + 3} offset:256
            s_cmp_lg_u32 s{sC}, s{sCE}
            s_waitcnt lgkmcnt(0)
            v_mfma_f32_16x16x32_bf16 {vr(acc, 4)}, {vr(vMt, 4)}, {vr(vSt, 4)}, {vr(acc, 4)}
            s_cbranch_scc1 L_bin{b}
"""
        D = P["D"]
        late = b >= P["lateiss"]
        issue = f"buffer_load_dwordx4 v{vT}, s[{SM}:{SM + 3}], s{sT} offen {P['gather']} lds"
        shift = "\n".join(f"v_mov_b32 v{vWq + k}, v{vWq + k + 1}" for k in range(D))
        return f"""
            s_add_u32 m0, s{sRingB}, s{sPrev}
            v_mad_u32_u16 v{vT}, v{vWq + D}, 32, v{vHalf16} op_sel:[1,0,0,0]
            v_and_b32 v{vT + 2}, 0xbff8, v{vWq}
            v_lshlrev_b32 v{vT + 4}, 4, v{vWq}
            {f"s_mov_b32 s{sT}, s{sIPn}" if late else issue.replace(f"s{sT} offen", f"s{sIPn} offen")}
            v_lshrrev_b32 v{vT + 5}, 7, v{vWq}
            v_cvt_f32_f16 v{vT + 2}, v{vT + 2}
            v_bfi_b32 v{vT + 4}, s{s70}, v{vT + 4}, v{vT + 5}
            v_add_u32 v{vT + 1}, s{sIA}, v{vLH4}
            v_and_or_b32 v{vT + 4}, v{vT + 4}, s{sF0}, v{vSc}
            {shift}
            ds_write_b16_d16_hi v{vT + 4}, v{vT + 2}
            ds_read_b128 {vr(vSt, 4)}, v{vSrd}
            ds_write_b16 v{vT + 4}, v{vZero}
            ds_read_b32 v{vWq + D}, v{vT + 1}
            v_add_u32 v{vT + 3}, s{sCur}, v{vTr}
            s_mov_b32 s{sIPn}, s{sIP}
            s_add_u32 s{sIA}, s{sIA}, 128
            s_cmp_eq_u32 s{sIA}, s{sIE}
            s_cbranch_scc1 L_nb{b}
            L_nb{b}_back:
            s_waitcnt vmcnt({D - 1 if late else D})
            {issue if late else ""}
            ds_read_b64_tr_b16 {vr(vMt, 2)}, v{vT + 3}
            ds_read_b64_tr_b16 {vr(vMt + 2, 2)}, v{vT + 3} offset:256
            {ring_adv}
            s_add_u32 s{sCur}, s{sCur}, 1024
            s_and_b32 s{sCur}, s{sCur}, {R * 1024 - 1}
            s_add_u32 s{sC}, s{sC}, 128
            s_cmp_lg_u32 s{sC}, s{sCE}
            s_waitcnt lgkmcnt(0)
            v_mfma_f32_16x16x32_bf16 {vr(acc, 4)}, {vr(vMt, 4)}, {vr(vSt, 4)}, {vr(acc, 4)}
            s_cbranch_scc1 L_bin{b}
"""

    ROLL = P["roll"]
    NE = P["lateiss"] // 5
    bodies = [0, NP - 1] if ROLL else range(NP)
    if ROLL:
        assert 0 < NE < NP
        a(f"s_mov_b32 s{sB}, 0")
    for p in bodies:
        if ROLL:
            a(f"L_phase{p}:")
            if p:
                a(f"""
                s_cmp_eq_u32 s{sB}, {5 * (NP - 1)}
                s_cselect_b32 s{sEpi}, s{sLast}, 0
                """)
        for g in range(5):
            b = p * 5 + g
            acc = vAcc + 4 * g
            lane = f"s{sT + 1}" if ROLL else b
            a(f"""
            {prio(b)}
            {f"s_add_u32 s{sT + 1}, s{sB}, {g}" if ROLL else ""}
            v_readlane_b32 s{sC}, v{vBase}, {lane}
            v_readlane_b32 s{sCE}, v{vEnd}, {lane}
            s_cmp_eq_u32 s{sC}, s{sCE}
            s_cbranch_scc1 L_bin{b}_done
            L_bin{b}:
            {step(b, acc)}
            L_bin{b}_done:
            """)
            if g == 4 or b == 0:
                st(f"bin{b}")
            if p == NP - 1:
                x, y, t = vT + 4, vT + 8, vT + 12
                a(f"""
                s_cmp_eq_u32 s{sEpi if ROLL else sLast}, 0
                s_cbranch_scc1 L_epi{g}_done
                s_nop 5
                """)
                split(acc, x, t)
                a(f"""
                v_mfma_f32_16x16x32_bf16 {vr(y, 4)}, {vr(vWd, 4)}, {vr(x, 4)}, 0
                s_nop 7
                v_mul_f32 v{y}, v{y}, v{vG + 4 * g}
                v_mul_f32 v{y + 1}, v{y + 1}, v{vG + 4 * g + 1}
                v_mul_f32 v{y + 2}, v{y + 2}, v{vG + 4 * g + 2}
                v_mul_f32 v{y + 3}, v{y + 3}, v{vG + 4 * g + 3}
                """)
                split(y, x, t)
                mr = vMr + 2 * g
                a(f"""
                v_mfma_f32_16x16x32_bf16 {vr(y, 4)}, {vr(vWu, 4)}, {vr(x, 4)}, 0
                v_lshlrev_b32 v{t}, 16, v{mr}
                v_and_b32 v{t + 1}, 0xffff0000, v{mr}
                v_lshlrev_b32 v{t + 2}, 16, v{mr + 1}
                v_and_b32 v{t + 3}, 0xffff0000, v{mr + 1}
                s_nop 3
                v_fmac_f32 v{t}, v{y}, v{vH + 4 * g}
                v_fmac_f32 v{t + 1}, v{y + 1}, v{vH + 4 * g + 1}
                v_fmac_f32 v{t + 2}, v{y + 2}, v{vH + 4 * g + 2}
                v_fmac_f32 v{t + 3}, v{y + 3}, v{vH + 4 * g + 3}
                v_cvt_pk_bf16_f32 v{mr}, v{t}, v{t + 1}
                v_cvt_pk_bf16_f32 v{mr + 1}, v{t + 2}, v{t + 3}
                buffer_store_dwordx2 {vr(mr, 2)}, v{vOut4 if g == 4 else vMoff}, s[{SOUT}:{SOUT + 3}], s{sRowOff} offen offset:{512 * g} {P["out_st"]}
                L_epi{g}_done:
                """)
        if ROLL:
            a(f"""
            s_add_u32 s{sB}, s{sB}, 5
            s_cmp_lt_u32 s{sB}, {5 * (NP if p else NE)}
            s_cbranch_scc1 L_phase{p}
            """)
    a(f"""
    s_cmp_eq_u32 s{sLast}, 0
    s_cbranch_scc1 L_slow
    """)
    if P["stamps"]:
        a("s_waitcnt vmcnt(0)")
    st("end")
    if P["stamps"] == 3:
        a(f"""
        s_cmp_lg_u32 s2, {P["dbgwg"]}
        s_cbranch_scc1 L_end
        s_cmp_lg_u32 s{sW}, {P["dbgw"]}
        s_cbranch_scc1 L_end
        v_readlane_b32 s98, v207, 0
        s_mov_b64 exec, 0xfffe
        v_subrev_u32 v207, s98, v207
        v_lshlrev_b32 v{vT}, 2, v{vLane}
        buffer_store_dword v207, v{vT}, s[{SDBG}:{SDBG + 3}], 0 offen
        """)
        print("names:", ",".join(st.names), file=sys.stderr)
    else:
        st.flush(SSEG, "s2", vT)
    a("""
    L_end:
    s_endpgm
    """)
    for b in [5 * p + g for p in bodies for g in range(5)]:
        a(f"L_nb{b}:")
        next_bin()
        a(f"s_branch L_nb{b}_back")
    a("L_code_end:")
    return a.text(), 256, 102, LDS


def generate(**kw):
    P = dict(DEFAULTS)
    P.update(kw)
    body, nv, ns, lds = gen(P)
    n = NAME + "_kernel"
    out = HEADER
    out += f"; @launch grid=({NCH},1,1) block=(512,1,1) lds={lds}\n"
    out += '.amdgcn_target "amdgcn-amd-amdhsa--gfx950"\n.text\n'
    out += f".globl {n}\n.p2align 8\n.type {n},@function\n{n}:\n{body}"
    out += '.section .rodata,"a"\n.p2align 6\n' + descriptor(n, nv, ns)
    return out


if __name__ == "__main__":
    path = sys.argv[1]
    kw = {}
    for arg in sys.argv[2:]:
        k, v = arg.split("=", 1)
        kw[k] = int(v) if v.lstrip("-").isdigit() else v
    open(path, "w").write(generate(**kw))
```
